```python
import torch

def _softmax(x, axis=-1):
    return torch.softmax(x, dim=axis)
def _gelu(x):
    return torch.nn.functional.gelu(x, approximate="tanh")
def _silu(x):
    return torch.nn.functional.silu(x)
def _sigmoid(x):
    return torch.sigmoid(x)
def _layernorm(x, axis=-1, eps=1e-5):
    m = x.mean(dim=axis, keepdim=True)
    v = x.var(dim=axis, keepdim=True, unbiased=False)
    return (x - m) / torch.sqrt(v + eps)
def _scatter_add(tgt, idx, src, axis=0):
    return tgt.clone().index_add_(axis, idx, src)
def _segment_sum(src, seg, n):
    out = torch.zeros((n,) + src.shape[1:], dtype=src.dtype)
    return out.index_add_(0, seg, src)
def _pad(x, pw):
    flat = tuple(v for pair in reversed(pw) for v in pair)
    return torch.nn.functional.pad(x, flat)

kernel_name = 'recurrent_scan__mha_block_cached__moe_arch_mod__prompt'

def setup_inputs():

    _w = (lambda a: (lambda t: t.to(torch.bfloat16) if t.is_floating_point() else t)(torch.as_tensor(a)))
    def _A_setup():
        B, Sq, D = 1, 2048, 512
        H, Sk, Dh = 32, 2048, 128
        return {
            "x": _w((lambda *s: torch.randn(*s, dtype=torch.bfloat16) * 0.05)(B, Sq, D)),
            "k_cache": _w((lambda *s: torch.randn(*s, dtype=torch.bfloat16) * 1.6)(B, H, Sk, Dh)),
            "v_cache": _w((lambda *s: torch.randn(*s, dtype=torch.bfloat16) * 0.2)(B, H, Sk, Dh)),
            "wq": _w((lambda *s: torch.randn(*s, dtype=torch.bfloat16) * 1.6)(D, H * Dh) * (D ** -0.5)),
            "wo": _w((lambda *s: torch.randn(*s, dtype=torch.bfloat16) * 0.2)(H * Dh, D) * ((H * Dh) ** -0.5)),
        }
    _A_in = _A_setup()

    def _B_setup():
        B, S, D, F, C = 1, 2048, 512, 1792, 8
        return {
            "x": _w((lambda *s: torch.randn(*s, dtype=torch.bfloat16) * 0.05)(B, S, D)),
            "w_r": _w((lambda *s: torch.randn(*s, dtype=torch.bfloat16) * 0.2)(D)),
            "w_gate": _w((lambda *s: torch.randn(*s, dtype=torch.bfloat16) * 0.1)(D, F)),
            "w_up": _w((lambda *s: torch.randn(*s, dtype=torch.bfloat16) * 0.1)(D, F)),
            "w_down": _w((lambda *s: torch.randn(*s, dtype=torch.bfloat16) * 0.1)(F, D)),
        }
    _B_in = _B_setup()

    return {
        "A_x": _A_in["x"],
        "A_k_cache": _A_in["k_cache"],
        "A_v_cache": _A_in["v_cache"],
        "A_wq": _A_in["wq"],
        "A_wo": _A_in["wo"],
        "B_x": _B_in["x"],
        "B_w_r": _B_in["w_r"],
        "B_w_gate": _B_in["w_gate"],
        "B_w_up": _B_in["w_up"],
        "B_w_down": _B_in["w_down"],
    }

def reference(A_x, A_k_cache, A_v_cache, A_wq, A_wo, B_x, B_w_r, B_w_gate, B_w_up, B_w_down):
    def _A_ref(x, k_cache, v_cache, wq, wo):
        B, Sq, D = x.shape
        H, Dh = 32, 128
        q = (lambda x, *d: x.permute(*d))((x @ wq).reshape(B, Sq, H, Dh), 0, 2, 1, 3)
        scores = torch.einsum("bhqd,bhkd->bhqk", q, k_cache) * (Dh ** -0.5)
        p = _softmax(scores, axis=-1)
        o = torch.einsum("bhqk,bhkd->bhqd", p, v_cache)
        return (lambda x, *d: x.permute(*d))(o, 0, 2, 1, 3).reshape(B, Sq, H * Dh) @ wo

    def _B_ref(x, w_r, w_gate, w_up, w_down):
        B, S, D = x.shape
        C = 8
        r = x @ w_r
        idx = torch.argsort(-r, axis=-1)[:, :C]
        idx_e = (lambda x, n, axis: torch.repeat_interleave(x, n, dim=axis))(idx.reshape(B, C, 1), D, axis=2)
        x_sel = (lambda x, i, axis: torch.take_along_dim(x, i, dim=axis))(x, idx_e, axis=1)
        g = _silu(x_sel @ w_gate)
        u = x_sel @ w_up
        y = (g * u) @ w_down
        r_sel = _sigmoid((lambda x, i, axis: torch.take_along_dim(x, i, dim=axis))(r, idx, axis=1))
        y = y * r_sel.reshape(B, C, 1)
        b_off = (torch.arange(B) * S).reshape(B, 1)
        flat_idx = (idx + b_off).reshape(B * C)
        zero = (x * 0.0).reshape(B * S, D)
        upd = _scatter_add(zero, flat_idx, y.reshape(B * C, D), axis=0)
        return x + upd.reshape(B, S, D)

    x = A_x
    xn = _layernorm(x, axis=-1)
    s = _A_ref(xn, A_k_cache, A_v_cache, A_wq, A_wo)
    g = _silu(_B_ref(xn, B_w_r, B_w_gate, B_w_up, B_w_down))
    return x + s * g
```

```python
import re
class Asm:
    def __init__(self): self.lines = []
    def __call__(self, s):
        for l in s.split("\n"):
            l = l.strip()
            if l: self.lines.append("    " + l)
    def label(self, l): self.lines.append(l + ":")
    def raw(self, l): self.lines.append(l)
    def c(self, l): self.lines.append("    ; " + l)
    def text(self): return "\n".join(self.lines) + "\n"

def v(i, n=1): return f"v{i}" if n == 1 else f"v[{i}:{i+n-1}]"
def a(i, n=1): return f"a{i}" if n == 1 else f"a[{i}:{i+n-1}]"
def s(i, n=1): return f"s{i}" if n == 1 else f"s[{i}:{i+n-1}]"

_reg = re.compile(r"^-?(?:abs\()?\|?([vas])(?:(\d+)|\[(\d+):(\d+)\])\|?\)?$")
def regs(op):
    op = op.strip()
    if op in ("vcc", "exec", "m0", "scc"): return {op}
    if op in ("vcc_lo", "vcc_hi"): return {"vcc"}
    if op in ("exec_lo", "exec_hi"): return {"exec"}
    m = _reg.match(op)
    if not m: return set()
    k = m.group(1)
    if m.group(2) is not None: return {k + m.group(2)}
    return {k + str(i) for i in range(int(m.group(3)), int(m.group(4)) + 1)}

TRANS = ("v_exp_f32", "v_log_f32", "v_rcp_f32", "v_rsq_f32", "v_sqrt_f32", "v_sin_f32", "v_cos_f32", "v_rcp_iflag_f32")
class I:
    def __init__(self, line):
        self.line = line
        t = line.split(";")[0].strip()
        p = t.split(None, 1)
        self.op = p[0]
        rest = p[1] if len(p) > 1 else ""
        ops = [o.strip() for o in rest.split(",")] if rest else []
        if ops:
            last = ops[-1].split()
            self.mods = last[1:]
            ops[-1] = last[0] if last else ""
        else: self.mods = []
        self.ops = ops
        op = self.op
        self.mfma = op.startswith(("v_mfma", "v_smfmac"))
        self.valu = op.startswith("v_") and not self.mfma
        self.trans = any(op.startswith(x) for x in TRANS)
        self.dot = op.startswith("v_dot")
        self.ds = op.startswith("ds_")
        self.vmem = op.startswith(("buffer_", "global_"))
        self.salu = op.startswith("s_")
        self.dpp = "_dpp" in op or any(m.startswith(("row_", "quad_perm", "wave_")) for m in self.mods)
        self.permlane = op.startswith("v_permlane")
        self.w = set(); self.r = set(); self.srcc = set(); self.ab = set()
        R = [regs(o) for o in ops]
        U = lambda L: set().union(*L) if L else set()
        if self.mfma:
            self.w = R[0]; self.ab = R[1] | R[2]; self.srcc = R[3]
            if op.startswith("v_smfmac"): self.ab |= R[3]; self.srcc = R[0]
            self.r = self.ab | self.srcc
            self.passes = 8 if ("32x32" in op or op.startswith("v_smfmac")) else 4
        elif self.valu:
            if self.permlane or op.startswith("v_swap"):
                self.w = R[0] | R[1]; self.r = R[0] | R[1]
            elif op.startswith("v_cmpx"):
                self.w = R[0] | {"exec"}; self.r = U(R[1:])
            elif "_co_" in op or op.startswith("v_div_scale") or op.startswith("v_mad_u64"):
                self.w = R[0] | R[1]; self.r = U(R[2:])
            else:
                self.w = R[0]; self.r = U(R[1:])
                if op.startswith(("v_fmac", "v_dot2c", "v_writelane")) or self.dpp: self.r |= R[0]
                if op.startswith("v_div_fmas"): self.r |= {"vcc"}
        elif self.ds:
            if op.startswith(("ds_read", "ds_bpermute", "ds_swizzle", "ds_permute")) or "_rtn" in op:
                self.w = R[0]; self.r = U(R[1:])
            else: self.r = U(R)
        elif self.vmem:
            if "lds" in self.mods or "load_lds" in op: self.r = U(R) | {"m0"}
            elif "load" in op: self.w = R[0]; self.r = U(R[1:])
            elif "atomic" in op and "sc0" in self.mods:
                self.w = R[0]; self.r = U(R) if op.startswith("buffer") else U(R[1:])
            else: self.r = U(R)
        elif self.salu:
            if op.startswith(("s_cmp", "s_waitcnt", "s_barrier", "s_nop", "s_branch", "s_cbranch", "s_endpgm", "s_sleep", "s_setprio", "s_bitcmp")):
                self.r = U(R)
            else:
                self.w = R[0] if R else set(); self.r = U(R[1:])
                if "saveexec" in op: self.w |= {"exec"}
        self.states = 1
        if op == "s_nop": self.states = int(ops[0], 0) + 1
        self.widestore = self.vmem and ("store" in op) and ("x4" in op or "x3" in op)

def need(p, c):
    n = 0
    isv = lambda S: {x for x in S if x[0] in "va" and x not in ("vcc",)}
    iss = lambda S: {x for x in S if (x[0] == "s" and x != "scc") or x == "vcc"}
    if p.mfma:
        D = p.w; big = 12 if p.passes == 8 else 8
        if c.mfma:
            if D & c.ab: n = max(n, big)
            if D & c.srcc and not (D == c.srcc and p.passes == c.passes): n = max(n, big - 2)
            if D & c.w and not (D & c.srcc): n = max(n, big - 2)
        elif (c.valu or c.ds or c.vmem) and D & (c.r | c.w): n = max(n, big)
        if c.valu and p.srcc & c.w: n = max(n, 7 if p.passes == 8 else 3)
    if p.valu:
        if c.mfma and isv(p.w) & c.r: n = max(n, 3 if p.dot else 2)
        if p.dot and (c.valu or c.vmem or c.ds) and isv(p.w) & (c.r | c.w):
            same_c = c.op == p.op and c.dot and not (isv(p.w) & (regs(c.ops[1]) | regs(c.ops[2])))
            if not same_c: n = max(n, 3)
        if p.trans and (c.valu or c.mfma or c.vmem or c.ds) and not c.trans and isv(p.w) & c.r: n = max(n, 1)
        if p.trans and c.trans and isv(p.w) & c.r: n = max(n, 1)
        if c.dpp and isv(p.w) & c.r: n = max(n, 2)
        if c.permlane and isv(p.w) & c.r: n = max(n, 2)
        if c.op.startswith(("v_readlane", "v_readfirstlane")) and isv(p.w) & c.r: n = max(n, 1)
        if iss(p.w):
            if c.vmem and iss(p.w) & c.r: n = max(n, 5)
            if c.valu and iss(p.w) & c.r:
                n = max(n, 4 if c.op.startswith(("v_readlane", "v_writelane", "v_div_fmas")) else 2)
        if "exec" in p.w:
            if c.mfma or c.permlane or c.op.startswith(("v_readlane", "v_readfirstlane", "v_writelane")): n = max(n, 4)
            if c.dpp: n = max(n, 5)
    if p.salu and "m0" in p.w and "m0" in c.r and c.vmem: n = max(n, 1)
    if p.widestore and regs(p.ops[0] if p.op.startswith("buffer") else p.ops[1]) & c.w: n = max(n, 2)
    return n

def check_hazards(text, verbose=True):
    ins = []; labels = {}
    for l in text.split("\n"):
        t = l.split(";")[0].strip()
        if not t or t.startswith("."): continue
        if t.endswith(":"): labels[t[:-1]] = len(ins); continue
        ins.append(I(t))
    bad = []
    def succ(i):
        x = ins[i]
        if x.op == "s_endpgm": return []
        if x.op == "s_branch": return [labels[x.ops[0]]]
        if x.op.startswith("s_cbranch"): return [labels[x.ops[0]], i + 1]
        return [i + 1] if i + 1 < len(ins) else []
    for i, p in enumerate(ins):
        if not (p.mfma or p.valu or p.widestore or (p.salu and "m0" in p.w)): continue
        maxd = 12 if p.mfma else 5
        stack = [(j, 0) for j in succ(i)]; seen = set()
        while stack:
            j, d = stack.pop()
            if (j, d) in seen or d >= maxd: continue
            seen.add((j, d))
            c = ins[j]
            n = need(p, c)
            if n > d: bad.append((i, j, n, d, p.line, c.line))
            for k in succ(j): stack.append((k, d + c.states))
    if verbose:
        for b in bad[:40]: print("HAZARD need %d have %d:\n   %s\n   %s" % (b[2], b[3], b[4], b[5]))
    return bad

class Stream:
    def __init__(self, A):
        self.A = A; self.q = []; self.hist = []; self.vm = []
    def emit(self, l):
        if callable(l): l = l()
        if l.endswith(":"):
            self.A.label(l[:-1]); return
        self.A(l); c = I(l); self.hist.append(c); self.hist = self.hist[-14:]
        if c.vmem: self.vm.append(l.split(";")[1].strip() if ";" in l else "")
    def many(self, txt):
        for l in txt.split("\n"):
            l = l.strip()
            if l: self.emit(l)
    def vmn(self, *tags):
        idx = [i for i, t in enumerate(self.vm) if t in tags]
        assert idx, tags
        n = len(self.vm) - 1 - max(idx)
        assert n <= 63
        return n
    def ok(self, l):
        c = I(l); d = 0
        for p in reversed(self.hist):
            if need(p, c) > d: return False
            d += p.states
        return True
    def cost(self, l):
        c = I(l)
        if c.trans: return 2
        if c.vmem: return 2
        return 1
    def gap(self, mf, lead=(), budget=2):
        self.emit(mf)
        first = True
        for f in lead:
            if callable(f): f = f()
            c = I(f)
            if not (c.salu and first): budget -= self.cost(f)
            self.emit(f); first = False
        while self.q and budget > 0:
            f = self.q[0]
            if callable(f): f = f()
            if f is None: break
            if isinstance(f, (list, tuple)):
                if not first: break
                if not self.ok(f[0]() if callable(f[0]) else f[0]): break
                for x in f: self.emit(x)
                self.q.pop(0); budget = 0; first = False; break
            if f.endswith(":"):
                self.emit(f); self.q.pop(0); continue
            c = I(f)
            if (c.vmem or c.ds) and not first: break
            if not self.ok(f):
                if first:
                    self.emit("s_nop 0"); first = False
                    if self.ok(f): continue
                break
            k = 0 if (c.salu and first) else self.cost(f)
            if k > budget: break
            self.emit(f); self.q.pop(0); budget -= k; first = False
            while self.q and isinstance(self.q[0], str) and self.q[0].endswith(":"): self.emit(self.q.pop(0))
    def drain(self):
        while self.q:
            f = self.q.pop(0)
            if callable(f): f = f()
            for x in (f if isinstance(f, (list, tuple)) else [f]):
                if callable(x): x = x()
                while not x.endswith(":") and not self.ok(x): self.emit("s_nop 0")
                self.emit(x)
```

```python
from asmlib import *
class R: pass
def default_regs():
    r = R()
    r.vKA, r.vVA, r.vKD, r.vVD, r.vIdx = 4, 8, 16, 20, 22
    r.vOne, r.vL, r.vM = 24, 28, 44
    r.vQ, r.vS, r.vP = 64, 128, 192
    r.aO, r.aK, r.aV = 0, 128, 192
    r.sK, r.sV = 8, 12
    r.sKoff, r.sVoff, r.sM0K, r.sM0V, r.sIt = 23, 24, 25, 26, 27
    r.VBASE = 0x10000
    r.sPerm = 43
    r.vVDl = [20, 21, 20, 21]
    r.sKinc, r.sVinc = 30, 31
    return r
MF = "v_mfma_f32_16x16x32_bf16"
class Attn:
    def __init__(self, A, r, opt):
        self.A, self.r, self.opt = A, r, opt
    def kread(self, T, i):
        r = self.r; kb, st = i >> 2, i & 3
        return f"ds_read_b128 {a(r.aK+4*i,4)}, v{r.vKA+st} offset:{(T&3)*16384 + kb*4096}"
    def vread(self, T, i):
        r = self.r; db, ks, half = i >> 2, (i >> 1) & 1, i & 1
        return f"ds_read_b64_tr_b16 {a(r.aV+4*(ks*8+db)+2*half,2)}, v{r.vVA+db} offset:{((T+1)&3)*16384 + (ks*32+half*16)*256}"
    def qk(self, i):
        r = self.r; qb, kb, st = i >> 4, (i >> 2) & 3, i & 3
        first = st == 0
        if self.opt.get("snake", 1) and kb & 1: st = 3 - st
        D = v(r.vS + qb*16 + kb*4, 4)
        C = v(r.vM + qb*4, 4) if first else D
        return f"{MF} {D}, {a(r.aK+4*(kb*4+st),4)}, {v(r.vQ+qb*16+st*4,4)}, {C}"
    def pv(self, T, i):
        r = self.r; qb, j = divmod(i, 17)
        P = r.vP + (T & 1)*32 + qb*8
        if j == 16:
            if self.opt.get("smf", 1) == 0: return f"{MF} {v(r.vL+qb*4,4)}, {v(r.vOne,4)}, {v(P,4)}, {v(r.vL+qb*4,4)}"
            return f"v_smfmac_f32_16x16x64_bf16 {v(r.vL+qb*4,4)}, {v(r.vOne,4)}, {v(P,8)}, v{r.vIdx}"
        if self.opt.get("pvchain", 1):
            db, ks = j >> 1, j & 1
            if self.opt.get("snake", 1) and db & 1: ks ^= 1
        else:
            db, ks = j & 7, j >> 3
        D = a(r.aO + qb*32 + db*4, 4)
        return f"{MF} {D}, {a(r.aV+4*(ks*8+db),4)}, {v(P+ks*4,4)}, {D}"
    def exp(self, k): return f"v_exp_f32 v{self.r.vS+k}, v{self.r.vS+k}"
    def cvt(self, T, k):
        r = self.r
        if self.opt.get("perm", 0): return f"v_perm_b32 v{r.vP+(T&1)*32+(k>>1)}, v{r.vS+k}, v{r.vS+k-1}, s{r.sPerm}"
        return f"v_cvt_pk_bf16_f32 v{r.vP+(T&1)*32+(k>>1)}, v{r.vS+k-1}, v{r.vS+k}"
    def dma(self, slot):
        r = self.r; nt = ["", " nt", " sc1", " sc0", " sc1 nt", " sc0 sc1", " sc0 sc1 nt", " sc0 nt"][self.opt.get("nt", 0)]
        L = [f"s_add_u32 m0, s{r.sM0K}, {slot*16384}"]
        L += [f"buffer_load_dwordx4 v{r.vKD+p}, s[{r.sK}:{r.sK+3}], s{r.sKoff} offen offset:{p*1024}{nt} lds" for p in range(4)]
        L += [f"s_add_u32 m0, s{r.sM0V}, {slot*16384}"]
        L += [f"buffer_load_dwordx4 v{r.vVDl[p]}, s[{r.sV}:{r.sV+3}], s{r.sVoff} offen offset:{p*1024}{nt} lds" for p in range(4)]
        return L
    def sched(self):
        G0 = self.opt.get("G0", 8)
        eg = []
        g = G0
        for k in range(64):
            eg.append(g)
            g += 2
            if k % 16 == 15: g += 1
        return eg
    def fillers(self, T, NT):
        eg = self.sched()
        F = {g: [] for g in range(132)}
        isexp = set(x % 132 for x in eg)
        if self.opt.get("sm", 1):
            for TT, off in ((T, 0), (T - 1, 132)):
                if not (0 <= TT < NT): continue
                for k in range(64):
                    g = eg[k] - off
                    if 0 <= g < 132: F[g].append(self.exp(k))
                    if k & 1:
                        g = eg[k] + 1 - off
                        if 0 <= g < 132: F[g].append(self.cvt(TT, k))
        self.isexp = isexp
        return F
```

```python
import sys, struct
from attn16 import *
KN = "recurrent_scan__mha_block_cached__moe_arch_mod__prompt"
opt = dict(moe=1, pollat=10, wtouch=1, otouch=0, epace=40, npost=3, rot=0, s1st=5, cyc=0, stamp=0, snake=1, pvchain=1, G0=8, nt=1, ntq=0, sm=1, drate=4, pre=2)
opt_s = dict(wT="(20,22,24,26)")
for x in sys.argv[2:]:
    k, val = x.split("=")
    if k in opt_s: opt_s[k] = val
    else: opt[k] = int(val)
A = Asm(); r = default_regs(); X = Attn(A, r, opt); S = Stream(A); E = S.emit; M = S.many
POL = ["", " nt", " sc1"]
def fbits(x): return hex(struct.unpack("<I", struct.pack("<f", x))[0])
WS_O = 0
WS_STAT = 16 << 20
WS_KEY = WS_STAT + 0x4000
WS_FLAG = WS_STAT + 0x10000
WS_SEL = WS_STAT + 0x8000
WS_FC = WS_STAT + 0x9000
WS_UPD = WS_STAT + 0xC000
WS_XN = 18 << 20
WS_PART = 20 << 20
WS_T = 64 << 20
sX, sK, sV, sW, sWq = 4, 8, 12, 16, 28
sWave, sHead, sQb = 20, 21, 22
sXoff, sWoff, sM0X, sM0W = 34, 35, 62, 63
pX, pK, pV, pWq, pWo, pWr, pWg, pWu, pWd, pOut, pDbg, pWs = 36, 38, 40, 42, 44, 48, 50, 52, 54, 56, 58, 60
sKey0, sRow0, sNonce = 64, 66, 46
sSpin = 33
def spin(label, ok): return [f"s_sub_u32 s{sSpin}, s{sSpin}, 1", f"s_cbranch_scc1 {ok}"]
cold = []
nstamp = [0]
CLK = "s_memtime" if opt["cyc"] else "s_memrealtime"
def stamp(lvl=1):
    if opt["stamp"] & lvl and nstamp[0] < 16:
        i = nstamp[0]; nstamp[0] += 1
        E(f"{CLK} s[{70+2*i}:{71+2*i}]"); E("s_waitcnt lgkmcnt(0)")

A.raw("; @launch grid=(256,1,1) block=(256,1,1) lds=163840")
A.raw('.amdgcn_target "amdgcn-amd-amdhsa--gfx950"')
A.raw(".text"); A.raw(f".globl {KN}_kernel"); A.raw(".p2align 8"); A.raw(f".type {KN}_kernel,@function")
A.label(f"{KN}_kernel")
M(f"""
s_cmp_ge_u32 s2, 256
s_cbranch_scc1 L_end
s_load_dwordx16 s[36:51], s[0:1], 0
s_load_dwordx8 s[52:59], s[0:1], 64
s_load_dwordx2 s[60:61], s[0:1], 96
s_memrealtime s[68:69]
""")
if opt["stamp"]:
    E(f"{CLK} s[70:71]"); nstamp[0] = 1
M(f"""
s_getpc_b64 s[32:33]
v_lshlrev_b32 v4, 7, v0
v_min_u32 v4, L_end-{KN}_kernel-128, v4
v_lshrrev_b32 v1, 6, v0
v_and_b32 v0, 63, v0
global_load_dword v23, v4, s[32:33]
v_readfirstlane_b32 s{sWave}, v1
s_and_b32 s3, s2, 7
s_lshl_b32 s3, s3, 2
s_bfe_u32 s{sHead}, s2, 0x20003
s_or_b32 s{sHead}, s{sHead}, s3
s_lshr_b32 s{sQb}, s2, 5
v_lshrrev_b32 v1, 4, v0
v_and_b32 v2, 15, v0
""")
vXD, vWD, vXA, vWA, vCS, vKM = 76, 84, 88, 92, 100, 108
vSX, vG = r.vL, r.vM
M(f"""
v_lshrrev_b32 v4, 3, v0
s_lshl_b32 s3, s{sWave}, 6
v_add_u32 v4, s3, v4
v_lshlrev_b32 v4, 10, v4
v_and_b32 v5, 7, v0
v_xor_b32 v6, v5, v1
v_xor_b32 v7, 4, v6
v_lshl_add_u32 v6, v6, 4, v4
v_lshl_add_u32 v7, v7, 4, v4
""")
for p in range(8): E(f"v_add_u32 v{vXD+p}, {p*8192 - (p&3)*1024}, v{6+(p&1)}")
M(f"""
s_lshl_b32 s3, s{sWave}, 4
v_add_u32 v4, s3, v1
v_lshlrev_b32 v4, 13, v4
v_lshlrev_b32 v5, 1, v1
v_xor_b32 v6, v5, v2
v_xor_b32 v7, 8, v6
v_lshl_add_u32 v6, v6, 4, v4
v_lshl_add_u32 v7, v7, 4, v4
""")
for p in range(4): E(f"v_add_u32 v{vWD+p}, {p*4*8192 - p*1024}, v{6+(p>>1)}")
M(f"""
s_lshl_b32 s{sM0X}, s{sWave}, 13
s_lshl_b32 s{r.sM0K}, s{sWave}, 12
s_add_u32 s{sM0W}, s{r.sM0K}, 0xC000
s_lshl_b32 s3, s{sHead}, 1
s_mul_i32 s3, s3, {1 if opt['rot'] & 1 else 0}
s_mul_i32 s67, s{sQb}, {1 if opt['rot'] & 2 else 0}
s_add_u32 s3, s3, s67
s_and_b32 s3, s3, 7
s_lshl_b32 s{sXoff}, s3, 7
s_lshl_b32 s{sWoff}, s3, 19
s_mov_b32 s{sX+2}, 0x40000
s_mov_b32 s{sX+3}, 0x20000
s_mov_b32 s{sWq+3}, 0x20000
s_lshl_b32 s3, s{sQb}, 18
s_lshl_b32 s67, s{sHead}, 8
s_sub_u32 s{sWq+2}, 0x400000, s67
s_waitcnt lgkmcnt(0)
s_add_u32 s{sX}, s{pX}, s3
s_addc_u32 s{sX+1}, s{pX+1}, 0
s_add_u32 s{sWq}, s{pWq}, s67
s_addc_u32 s{sWq+1}, s{pWq+1}, 0
s_or_b32 s3, s2, s{sWave}
s_cbranch_scc1 L_nononce
""")
A("s_or_b32 s68, s68, 1"); A("v_mov_b32 v4, 0"); A("v_mov_b32 v5, s68"); A(f"global_store_dword v4, v5, s[{pDbg}:{pDbg+1}] sc1")
E("L_nononce:")
stamp(2)
XSLOT = [0x18000, 0x20000, 0x4000]
def xdma(st):
    L = []
    for p in range(8):
        if p & 3 == 0: L.append(f"s_add_u32 m0, s{sM0X}, {XSLOT[st%3] + (p>>2)*4096}")
        L.append(f"buffer_load_dwordx4 v{vXD+p}, s[{sX}:{sX+3}], s{sXoff} offen offset:{(p&3)*1024}{POL[opt['ntq']]} lds ; x{st}")
    L.append(f"s_add_u32 s{sXoff}, s{sXoff}, 128")
    L.append(f"s_and_b32 s{sXoff}, s{sXoff}, 0x3ff")
    return L
def wdma(st):
    L = [f"s_add_u32 m0, s{sM0W}, {(st%3)*16384}"]
    for p in range(4):
        L.append(f"buffer_load_dwordx4 v{vWD+p}, s[{sWq}:{sWq+3}], s{sWoff} offen offset:{p*1024}{POL[opt['ntq']]} lds ; w{st}")
    L.append(f"s_add_u32 s{sWoff}, s{sWoff}, 0x80000")
    L.append(f"s_and_b32 s{sWoff}, s{sWoff}, 0x3fffff")
    return L
def tagged(L, t): return [l + " ; " + t if l.startswith("buffer") else l for l in L]
def kdma(T): return tagged(X.dma(T & 3)[:5], f"k{T}") + [f"s_add_u32 s{r.sKoff}, s{r.sKoff}, 0x4000"]
def vdma(T): return tagged(X.dma((T + 1) & 3)[5:], f"v{T}") + [f"s_add_u32 s{r.sVoff}, s{r.sVoff}, 0x4000"]
def plain(L):
    for l in L:
        E(l)
        if l.startswith("s_add_u32 m0"): E("s_nop 0")
plain(wdma(0)); plain(xdma(0))
stamp(2)
M(f"""
v_lshrrev_b32 v4, 1, v2
v_xor_b32 v4, v4, v1
v_lshlrev_b32 v5, 7, v2
v_add_u32 v5, s{sM0X}, v5
v_lshl_add_u32 v6, v4, 4, v5
v_xor_b32 v4, 4, v4
v_lshl_add_u32 v7, v4, 4, v5
v_add_u32 v{vXA}, {XSLOT[0]}, v6
v_add_u32 v{vXA+1}, {XSLOT[0]}, v7
v_add_u32 v{vXA+2}, {XSLOT[2]}, v6
v_add_u32 v{vXA+3}, {XSLOT[2]}, v7
v_lshrrev_b32 v4, 2, v2
v_lshl_add_u32 v5, v1, 3, v4
v_lshlrev_b32 v5, 8, v5
v_and_b32 v63, 3, v0
v_lshl_add_u32 v5, v63, 3, v5
v_add_u32 v5, 0xC000, v5
v_and_b32 v6, 1, v1
v_lshl_add_u32 v60, v6, 2, v4
s_lshl_b32 s67, s{sWave}, 1
""")
for j in range(8):
    E(f"s_add_u32 s3, s67, {j}"); E("s_and_b32 s3, s3, 7")
    E("v_xor_b32 v6, s3, v60"); E(f"v_lshl_add_u32 v{vWA+j}, v6, 5, v5")
M(f"""
v_mov_b32 v62, 0x3f803f80
v_cmp_gt_u32 vcc, 2, v63
v_and_b32 v4, 1, v0
v_mov_b32 v5, 0x44444444
v_mov_b32 v6, 0xeeeeeeee
v_cndmask_b32 v{r.vOne}, 0, v62, vcc
v_cndmask_b32 v{r.vOne+1}, 0, v62, vcc
v_cndmask_b32 v{r.vOne+2}, 0, v62, vcc
v_cndmask_b32 v{r.vOne+3}, 0, v62, vcc
v_cmp_eq_u32 vcc, 1, v4
s_lshl_b32 s3, s{sHead}, 2
s_add_u32 s3, s3, s{sWave}
v_cndmask_b32 v{r.vIdx}, v5, v6, vcc
s_lshl_b32 s{sRow0}, s3, 11
v_lshlrev_b32 v3, 4, v0
""")
for i in range(8): E(f"v_mov_b32 v{vCS+i}, 0")
stamp(2)
Q = S.q
Q += f"""v_lshlrev_b32 v61, 8, v1
v_add_u32 v61, s{r.sM0K}, v61
v_xor_b32 v62, v1, v2""".split("\n")
for p in range(4): Q += [f"v_xor_b32 v51, {4*p}, v62", f"v_lshl_add_u32 v{r.vKD+p}, v51, 4, v61"]
Q += ["v_lshlrev_b32 v62, 1, v1", "v_xor_b32 v62, v62, v2"]
for p in range(2): Q += [f"v_xor_b32 v51, {8*p}, v62", f"v_lshl_add_u32 v{r.vVD+p}, v51, 4, v61"]
Q += f"""v_lshrrev_b32 v61, 2, v2
v_lshl_add_u32 v61, v1, 2, v61
v_lshlrev_b32 v61, 8, v61
v_lshl_add_u32 v61, v63, 3, v61
v_add_u32 v61, {r.VBASE}, v61""".split("\n")
for db in range(8): Q += [f"v_xor_b32 v51, {db}, v60", f"v_lshl_add_u32 v{r.vVA+db}, v51, 5, v61"]
Q += ["v_lshrrev_b32 v61, 1, v1", "v_and_b32 v62, 1, v1", "v_lshl_add_u32 v62, v62, 1, v61"]
for s_ in range(4):
    Q += [f"s_add_u32 s68, s{sWave}, {s_}", "s_and_b32 s68, s68, 3", "s_lshl_b32 s68, s68, 2",
          "v_or_b32 v61, s68, v62", "v_xor_b32 v51, v61, v2", "v_lshlrev_b32 v51, 4, v51", f"v_lshl_add_u32 v{r.vKA+s_}, v2, 8, v51",
          "v_xor_b32 v51, v61, v63", "v_lshlrev_b32 v51, 4, v51", f"v_lshl_add_u32 v{vKM+s_}, v63, 8, v51"]
vCA = 124
Q += [f"s_add_u32 s67, s{sM0X}, {XSLOT[1]}", "v_lshl_add_u32 v62, v2, 2, s67", "v_lshlrev_b32 v61, 3, v2",
      f"s_lshl_b32 s47, s{sQb}, 2", f"s_add_u32 s47, s47, s{sWave}", "s_lshl_b32 s47, s47, 9", f"s_add_u32 s47, s47, {WS_STAT}"]
for s_ in range(4):
    Q += [f"s_add_u32 s68, s{sM0X}, {s_*8192}", "s_and_b32 s68, s68, 0x7fff", f"s_add_u32 s68, s68, {XSLOT[1]}", f"v_lshl_add_u32 v{vCA+s_}, v1, 4, s68"]
for i in range(128): Q.append(f"v_accvgpr_write_b32 a{r.aO+i}, 0")
PRE = list(Q); del Q[:]
L1 = []
for st in range(1, opt["pre"]): L1 += wdma(st) + xdma(st)
L1 += f"""buffer_load_dwordx4 v[64:67], v3, s[{sX}:{sX+3}], s{sRow0} offen ; ln
buffer_load_dwordx4 v[68:71], v3, s[{sX}:{sX+3}], s{sRow0} offen offset:1024 ; ln
global_load_dwordx4 v[72:75], v3, s[{pWr}:{pWr+1}] ; ln
global_load_dword v23, v{vCS+2}, s[{pDbg}:{pDbg+1}] sc1 ; ln""".split("\n")
per = -(-len(PRE) // max(1, sum("lds" in l for l in L1)))
for l in L1:
    E(l)
    if l.startswith("s_add_u32 m0"): E("s_nop 0")
    if "lds" in l:
        for f in PRE[:per]: E(f)
        del PRE[:per]
for f in PRE: E(f)
M(f"""
s_lshl_b32 s3, s{sHead}, 19
s_add_u32 s{sK}, s{pK}, s3
s_addc_u32 s{sK+1}, s{pK+1}, 0
s_mov_b32 s{sK+2}, 0x80000
s_mov_b32 s{sK+3}, 0x20000
s_add_u32 s{sV}, s{pV}, s3
s_addc_u32 s{sV+1}, s{pV+1}, 0
s_mov_b32 s{sV+2}, 0x80000
s_mov_b32 s{sV+3}, 0x20000
s_mov_b32 s{sW}, s{pWs}
s_mov_b32 s{sW+1}, s{pWs+1}
s_mov_b32 s{sW+2}, 0x10000000
s_mov_b32 s{sW+3}, 0x20000
s_mov_b32 s{r.sKoff}, 0
s_mov_b32 s{r.sVoff}, 0
s_mov_b32 s{sSpin}, 0x100000
s_add_u32 s{r.sM0V}, s{r.sM0K}, {r.VBASE}
s_lshl_b32 s3, s{sQb}, 8
s_lshr_b32 s{sRow0}, s{sRow0}, 10
s_add_u32 s{sRow0}, s{sRow0}, s3
""")
stamp(2)
aXN = 248
def unpack(dst, src, n=4):
    L = []
    for k in range(n):
        L += [f"v_lshlrev_b32 v{dst+2*k}, 16, v{src+k}", f"v_and_b32 v{dst+2*k+1}, 0xffff0000, v{src+k}"]
    return L
def wave_sum(reg, sdst):
    return [f"v_add_f32_dpp v{reg}, v{reg}, v{reg} {m} bank_mask:0xf" for m in
            ("quad_perm:[1,0,3,2] row_mask:0xf", "quad_perm:[2,3,0,1] row_mask:0xf", "row_half_mirror row_mask:0xf",
             "row_mirror row_mask:0xf", "row_bcast:15 row_mask:0xa", "row_bcast:31 row_mask:0xc")] + [f"v_readlane_b32 s{sdst}, v{reg}, 63"]
def rbf(x): return [f"v_cvt_pk_bf16_f32 v{x}, v{x}, v{x}", f"v_lshlrev_b32 v{x}, 16, v{x}"]
vE, vD, vWr, vO = 32, 40, 112, 120
Q.append([lambda: f"s_waitcnt vmcnt({S.vmn('ln')})", f"v_readfirstlane_b32 s{sNonce}, v23", "s_nop 0", f"s_cmp_eq_u32 s{sNonce}, 0",
          "s_cbranch_scc1 L_nonce_retry", "L_nonce_ok:"])
cold += ["L_nonce_retry:"] + spin("", "L_nonce_ok") + ["v_mov_b32 v48, 0", f"global_load_dword v23, v48, s[{pDbg}:{pDbg+1}] sc1", "s_waitcnt vmcnt(0)",
         f"v_readfirstlane_b32 s{sNonce}, v23", "s_nop 0", f"s_cmp_eq_u32 s{sNonce}, 0", "s_cbranch_scc1 L_nonce_retry", "s_branch L_nonce_ok"]
Q += ["v_mov_b32 v50, 0x3b000000"]
for k in range(2):
    Q += unpack(vE, 64 + 4*k)
    Q += [f"v_add_f32 v{vD+e}, v{vE+2*e}, v{vE+2*e+1}" for e in range(4)]
    Q += [f"v_add_f32 v{vD}, v{vD}, v{vD+1}", f"v_add_f32 v{vD+2}, v{vD+2}, v{vD+3}", f"v_add_f32 v48, v{vD}, v{vD+2}"]
    Q += wave_sum(48, 68) + ["v_mul_f32 v48, s68, v50"]
    Q += [f"v_sub_f32 v{vD+e}, v{vE+e}, v48" for e in range(8)]
    Q += [f"v_mul_f32 v49, v{vD}, v{vD}"] + [f"v_fmac_f32 v49, v{vD+e}, v{vD+e}" for e in range(1, 8)]
    Q += wave_sum(49, 68)
    Q += ["v_mul_f32 v49, s68, v50"] + rbf(49) + ["v_add_f32 v49, 0x3727c5ac, v49"] + rbf(49) + ["v_sqrt_f32 v49, v49"]
    Q += [f"v_mov_b32 v{vO+2*k+1}, s{sNonce}", f"v_cvt_pk_bf16_f32 v{vO+2*k}, v48, v49"]
Q += [f"s_lshl_b32 s68, s{sRow0}, 3", f"s_add_u32 s69, s68, {WS_KEY}", f"s_add_u32 s68, s68, {WS_STAT}"]
Q.append(["s_mov_b64 exec, 1", f"buffer_store_dwordx4 v[{vO}:{vO+3}], off, s[{sW}:{sW+3}], s68 sc1 ; s1", "s_mov_b64 exec, -1"])
Q += unpack(vWr, 72)
for k in range(2):
    Q += unpack(vE, 64 + 4*k) + [f"v_lshlrev_b32 v48, 16, v{vO+2*k}", f"v_and_b32 v49, 0xffff0000, v{vO+2*k}", "v_rcp_f32 v49, v49"]
    Q += [f"v_sub_f32 v{vE+e}, v{vE+e}, v48" for e in range(8)]
    Q += [f"v_cvt_pk_bf16_f32 v{vD+e}, v{vE+2*e}, v{vE+2*e+1}" for e in range(4)]
    Q += unpack(vE, vD)
    Q += [f"v_mul_f32 v{vE+e}, v{vE+e}, v49" for e in range(8)]
    Q += [f"v_cvt_pk_bf16_f32 v{vD+e}, v{vE+2*e}, v{vE+2*e+1}" for e in range(4)]
    Q += unpack(vE, vD)
    Q += [f"v_mul_f32 v49, v{vE}, v{vWr}"] + [f"v_fmac_f32 v49, v{vE+e}, v{vWr+e}" for e in range(1, 8)]
    Q += [f"s_lshl_b32 s67, s{sRow0}, 10", f"s_add_u32 s67, s67, {WS_XN}",
          f"buffer_store_dwordx4 v[{vD}:{vD+3}], v3, s[{sW}:{sW+3}], s67 offen offset:{k*1024} sc1 ; s1"]
    Q += wave_sum(49, 68) + [f"s_sub_u32 s67, {2047-k}, s{sRow0}", "v_mov_b32 v49, s68", "v_cvt_pk_bf16_f32 v49, v49, v49",
          "v_ashrrev_i32 v48, 31, v49", "v_or_b32 v48, 0x80000000, v48", "v_xor_b32 v49, v48, v49", "v_and_b32 v49, 0xffff0000, v49",
          f"v_or_b32 v{28+k}, s67, v49", f"v_mov_b32 v{30+k}, s{sNonce}", f"v_readfirstlane_b32 s{sKey0+k}, v{28+k}"]
Q.append(["s_mov_b64 exec, 1", f"buffer_store_dwordx4 v[28:31], off, s[{sW}:{sW+3}], s69 sc1 ; s1", "s_mov_b64 exec, -1"])
NFILL = len(Q); S1 = list(Q); del Q[:]
aXF, aWF = 128, 192
SMF = "v_smfmac_f32_16x16x64_bf16"
def acc(j, qb): return 128 + (3 - (j >> 1))*32 + qb*8 + (j & 1)*4
def xread(st, n):
    qb, ks = n >> 1, n & 1; slot = st % 3
    base = vXA + (2 if slot == 2 else 0) + ks
    off = (XSLOT[slot] - XSLOT[0] if slot != 2 else 0) + qb*2048
    return f"ds_read_b128 {a(aXF+(st&1)*32+n*4,4)}, v{base} offset:{off}"
def wread(st, j, n):
    ks, half = n >> 1, n & 1
    return f"ds_read_b64_tr_b16 {a(aWF+(j&3)*8+ks*4+half*2,2)}, v{vWA+j} offset:{(st%3)*16384 + ks*8192 + half*1024}"
def qmf(st, j):
    L = []
    if j < 2: L.append(f"{SMF} {v(vCS+4*j,4)}, {v(r.vOne,4)}, {a(aWF+(j&3)*8,8)}, v{r.vIdx}")
    for qb in range(4):
        for t in range(2):
            ks = t ^ (qb & 1)
            D = v(acc(j, qb), 4); C = "0" if (st == 0 and t == 0) else D
            L.append(f"{MF} {D}, {a(aWF+(j&3)*8+ks*4,4)}, {a(aXF+(st&1)*32+(qb*2+ks)*4,4)}, {C}")
    return L
E(f"s_waitcnt vmcnt({S.vmn('x0', 'w0')})")
E("s_barrier")
stamp(3)
for n in range(8): E(xread(0, n))
for j in range(2):
    for n in range(4): E(wread(0, j, n))
pend = []
for st in range(opt["pre"], 3): pend += wdma(st) + xdma(st)
def vmn(*tags):
    assert not any(l.split(";")[-1].strip() in tags for l in pend), (tags, pend)
    return S.vmn(*tags)
def one_dma():
    while pend:
        l = pend.pop(0); E(l)
        if l.startswith("s_add_u32 m0"): E("s_nop 0")
        if l.startswith("buffer"): break
statld = [f"buffer_load_dwordx2 v[{vG+4*qb}:{vG+4*qb+1}], v61, s[{sW}:{sW+3}], s47 offen offset:{qb*128} sc1 ; st" for qb in range(4)]
since = [99]
def dma_slot(j, n, hasds):
    if pend and pend[0].startswith("s_"): return [pend.pop(0)]
    slots = {0: (1, 5, 7), 1: (1, 5, 7), 5: (4, 6), 6: (), 7: ()}.get(j, (1, 5))
    if opt["drate"] == 3: slots = {0: (1, 3, 5, 7), 1: (1, 5, 7), 5: (4, 6), 6: (), 7: ()}.get(j, (1, 3, 5))
    if pend and not hasds and (n in slots or "lds" not in pend[0]): return [pend.pop(0)]
    return []
vC = r.vL
def csread(s_): return [f"ds_read_b128 {v(vC+(s_&1)*8+4*jj,4)}, v{vCA+s_} offset:{jj*64}" for jj in range(2)]
CL2E = 1.4426950408889634 / (128 ** 0.5)
E("s_waitcnt lgkmcnt(4)")
for st in range(8):
    if st + 3 < 8: pend += xdma(st + 3)
    if st == 5:
        pend += kdma(0)

    for j in range(8):
        L = qmf(st, j)
        if st*8 + j == opt["s1st"]: Q += S1
        ds = [None] * len(L); last = []
        if j < 6:
            o = 0
            for n in range(4): ds[o + (n if j == 5 else 2*n)] = wread(st, j + 2, n)
            if j < 5: last = ["s_waitcnt lgkmcnt(4)"]
            elif st < 7:
                tags = [f"x{st+1}", f"w{st+1}"]
                last = [lambda tags=tags: f"s_waitcnt vmcnt({vmn(*tags)}) lgkmcnt(0)", "s_barrier"]
            else: last = [lambda: f"s_waitcnt vmcnt({vmn('k0', 'st')}) lgkmcnt(0)", "s_barrier"]
        elif st < 7:
            seq = [xread(st + 1, n) for n in range(4)] + [wread(st + 1, 0, n) for n in range(4)] if j == 6 else \
                  [xread(st + 1, 4 + n) for n in range(4)] + [wread(st + 1, 1, n) for n in range(4)]
            ds = seq
            if j == 7: last = ["s_waitcnt lgkmcnt(4)"]
        else:
            seq = csread(0) + csread(1) + [f"ds_read_b128 {a(aWF+4*s_,4)}, v{vKM+s_}" for s_ in range(4)] if j == 6 else \
                  [X.kread(0, i) for i in range(8)]
            ds = seq
        if st == 7 and j == 2:
            Q += [f"v_add_f32 v{vCS}, v{vCS}, v{vCS+1}", f"v_add_f32 v{vCS+4}, v{vCS+4}, v{vCS+5}",
                  f"ds_write2_b32 v62, v{vCS}, v{vCS+4} offset0:0 offset1:16"]
        if st == 7 and j == 6:
            assert not Q, len(Q)
            Q.append([f"v_xor_b32 v{vG+2}, s{sNonce}, v{vG+1}", f"v_xor_b32 v{vG+6}, s{sNonce}, v{vG+5}"])
            Q.append([f"v_xor_b32 v{vG+10}, s{sNonce}, v{vG+9}", f"v_xor_b32 v{vG+14}, s{sNonce}, v{vG+13}"])
            del Q[:]
            chk = [f"v_xor_b32 v{vG+4*qb+2}, s{sNonce}, v{vG+4*qb+1}" for qb in range(4)] + \
                  [f"v_or3_b32 v{vG+2}, v{vG+2}, v{vG+6}, v{vG+10}", f"v_or_b32 v{vG+2}, v{vG+2}, v{vG+14}", f"v_cmp_ne_u32 vcc, 0, v{vG+2}"]
            Q += chk + ["s_cbranch_vccnz L_stat_retry", "L_stat_ok:"]
            cold += ["L_stat_retry:"] + spin("", "L_stat_ok") + [l.split(";")[0] for l in statld] + ["s_waitcnt vmcnt(0)"] + chk + ["s_cbranch_vccnz L_stat_retry", "s_branch L_stat_ok"]
            P_ = []
            for qb in range(4):
                g = vG + 4*qb
                P_.append([f"v_and_b32 v{g+1}, 0xffff0000, v{g}", f"v_lshlrev_b32 v{g}, 16, v{g}", f"v_rcp_f32 v{g+1}, v{g+1}",
                           f"v_sub_f32 v{g}, 0, v{g}", f"v_mul_f32 v{g+1}, {fbits(CL2E)}, v{g+1}"])
            for tup in zip(*P_): Q += list(tup)
        for n, m in enumerate(L):
            lead = []
            if n == len(L) - 1 and last:
                lead = ([ds[n]] if ds[n] else []) + last
            else:
                lead = dma_slot(j, n, ds[n] is not None) + ([ds[n]] if ds[n] else [])
            S.gap(m, lead)
        if j == 5:
            stamp(2)
            if st + 3 < 8: pend += wdma(st + 3)
            if st == 6: assert not Q, len(Q)
            if st == 5: pend += kdma(1) + vdma(0) + kdma(2)
            if st == 6: pend[0:0] = statld; pend += vdma(1) + kdma(3) + vdma(2)
print("fillers", NFILL, "left", len(Q), "dma left", len(pend), file=sys.stderr)
for i in range(8, 16): E(X.kread(0, i))
S.drain()
stamp(3)
for s_ in range(4):
    E("s_waitcnt lgkmcnt(0)" if s_ != 1 else "s_nop 0")
    for qb in range(4):
        b = acc(2*s_, qb); st = vG + 4*qb
        for e in range(4):
            E(f"v_pk_fma_f32 v[{b+2*e}:{b+2*e+1}], v[{vC+(s_&1)*8+2*e}:{vC+(s_&1)*8+2*e+1}], v[{st}:{st+1}], v[{b+2*e}:{b+2*e+1}] op_sel:[0,0,0] op_sel_hi:[1,0,1]")
        if qb == 3 and s_ + 2 < 4:
            for l in csread(s_ + 2): E(l)
        for e in range(4):
            E(f"v_pk_mul_f32 v[{b+2*e}:{b+2*e+1}], v[{b+2*e}:{b+2*e+1}], v[{st}:{st+1}] op_sel:[0,1] op_sel_hi:[1,1]")
        q = r.vQ + qb*16 + s_*4
        for e in range(4): E(f"v_cvt_pk_bf16_f32 v{q+e}, v{b+2*e}, v{b+2*e+1}")
        one_dma()
    for qb in range(4):
        q = r.vQ + qb*16 + s_*4
        E(f"v_permlane16_swap_b32 v{q}, v{q+2}"); E(f"v_permlane16_swap_b32 v{q+1}, v{q+3}")
plain(pend); del pend[:]
stamp(2)
Q += [f"v_mov_b32 v{r.vL+i}, 0" for i in range(16)]
for qb in range(4):
    for s_ in range(4):
        D = v(r.vS + 48 + 4*qb, 4)
        S.gap(f"{MF} {D}, {a(aWF+4*s_,4)}, {v(r.vQ+qb*16+s_*4,4)}, {'0' if s_ == 0 else D}")
    if qb == 1:
        for q2 in range(4):
            b = r.vS + 48 + 4*q2
            Q += [f"v_max3_f32 v{b}, v{b}, v{b+1}, v{b+2}", f"v_max_f32 v{b}, v{b}, v{b+3}"] + [f"v_sub_f32 v{r.vM+4*q2+e}, 0, v{b}" for e in range(4)]
            if q2 == 1: hold = len(Q)
        tail = Q[hold:]; del Q[hold:]
Q += tail
S.drain()
E("s_nop 1")
stamp(3)
NT = 32
def emit_gaps(T, lo, hi, lead, mf):
    F = X.fillers(T, NT)
    for g in range(lo, hi):
        m = mf(g)
        if m: E(m)
        for f in lead.get(g, []):
            E(f)
            if not m and f.startswith("s_add_u32 m0"): E("s_nop 0")
        fs = F[g]
        if m and T == 0 and not fs and not lead.get(g): E("s_nop 0")
        if not m and fs and fs[0].startswith("v_cvt"): E("s_nop 0")
        for f in fs: E(f)
def gapsets(lo, hi):
    F = X.fillers(1, NT)
    ex = [g for g in range(lo, hi) if g in X.isexp]
    cv = [g for g in range(lo, hi) if g not in X.isexp and F[g]]
    em = [g for g in range(lo, hi) if g not in X.isexp and not F[g]]
    return ex, cv, em
NVE = 6
def pv_part(T, dmaslot, salu):
    lead = {}
    ex, cv, em = gapsets(64, 132)
    fg = sorted(cv + em)
    late = fg[-NVE:]
    em_e = [g for g in em if g not in late]
    L = X.dma(dmaslot) if dmaslot is not None else []
    dm = [L[i] for i in (1, 2, 3, 4, 6, 7, 8, 9)] if L else []
    step = len(em_e) / 8.0
    dg = [em_e[min(len(em_e) - 1, int(i*step) + 1)] for i in range(8)] if dm else []
    assert len(set(dg)) == len(dg)
    for s_, g in zip(dm, dg): lead.setdefault(g, []).append(s_)
    kg = [g for g in fg if g not in late and g not in dg]
    if T + 1 < NT:
        assert len(kg) >= 16
        for i in range(16): lead.setdefault(kg[i], []).append(X.kread(T + 1, i))
    if L:
        for mi, first in ((0, 0), (5, 4)):
            g = max(x for x in ex if x < dg[first]); lead.setdefault(g, []).append(L[mi])
            if first: assert g > dg[3]
        after = [x for x in ex if x > dg[7]]
        sal = [f"s_add_u32 s{r.sKoff}, s{r.sKoff}, s{r.sKinc}", f"s_add_u32 s{r.sVoff}, s{r.sVoff}, s{r.sVinc}"] + list(salu)
    else:
        after = ex[-8:]; sal = list(salu)
    assert len(after) > len(sal)
    for s_, g in zip(sal, after): lead.setdefault(g, []).append(s_)
    if T < NT:
        for i, g in enumerate(late): lead.setdefault(g, []).append(X.vread(T, i))
    assert 131 not in late
    if T + 1 < NT: lead.setdefault(131, []).insert(0, f"s_waitcnt lgkmcnt({NVE})")
    emit_gaps(T, 64, 132, lead, lambda g: X.pv(T - 1, g - 64) if T >= 1 else None)
def qk_part(T, sync=True):
    lead = {}
    ex, cv, em = gapsets(0, 64)
    fg = sorted(cv + em)
    if T >= 1:
        for i in range(NVE, 32): lead.setdefault(fg[i - NVE], []).append(X.vread(T - 1, i))
    if sync:
        lead.setdefault(63, []).append("s_waitcnt vmcnt(16) lgkmcnt(0)")
        lead[63].append("s_barrier")
    emit_gaps(T, 0, 64, lead, lambda g: X.qk(g) if T < NT else None)
assert S.vmn("k1", "v0") >= 16
r.sKinc, r.sVinc = 34, 35
sMask2, sMask4 = 62, 63
sQt, sNt = 47, 32
HOOK = {}
M(f"""
v_mov_b32 v1, v20
v_mov_b32 v2, v21
s_mov_b32 s{r.sKinc}, 0x4000
s_mov_b32 s{r.sVinc}, 0x4000
s_mov_b32 s{sMask2}, MASK2
s_mov_b32 s{sMask4}, MASK4
s_and_b32 s3, s2, 7
s_lshl_b32 s3, s3, 2
s_lshr_b32 s{sQt}, s2, 6
s_add_u32 s{sQt}, s{sQt}, s3
s_bfe_u32 s{sNt}, s2, 0x30003
s_lshl_b32 s3, s{sNt}, 7
s_lshl_b32 s67, s{sWave}, 20
s_add_u32 s3, s3, s67
s_add_u32 s{sWq}, s{pWo}, s3
s_addc_u32 s{sWq+1}, s{pWo+1}, 0
s_sub_u32 s{sWq+2}, 0x400000, s3
""")
r.vVDl = [20, 21, 1, 2]
qk_part(0)
if opt["moe"]:
    M(f"""
    s_add_u32 m0, s{r.sM0K}, 0x20000
    s_add_u32 s3, s{r.sM0K}, {WS_KEY}
    """)
    for p in range(4): E(f"buffer_load_dwordx4 v3, s[{sW}:{sW+3}], s3 offen offset:{p*1024} sc1 lds")
pv_part(0, 0, [f"s_mov_b32 s{r.sIt}, 0"])
stamp(3)
A.raw(".p2align 6")
A.label("L_loop")
for u in range(1, 5):
    qk_part(u)
    sal = []
    if u == 2: sal = [f"s_bitcmp1_b32 s{sMask2}, s{r.sIt}"]
    if u == 3: sal = [f"s_cmp_ge_u32 s{r.sIt}, 6"]
    if u == 4: sal = [f"s_add_u32 s{r.sIt}, s{r.sIt}, 1", f"s_bitcmp1_b32 s{sMask4}, s{r.sIt}"]
    pv_part(u, u & 3, sal)
    if u == 2: E("s_cbranch_scc1 L_disp2"); E("L_ret2:")
    if u == 3: E("s_cbranch_scc1 L_disp3"); E("L_ret3:")
E("s_cbranch_scc0 L_loop")
E("s_branch L_disp4")
def wo_voff(dst):
    return f"""v_lshrrev_b32 v60, 3, v0
v_and_b32 v61, 7, v0
v_lshrrev_b32 v62, 1, v60
v_lshlrev_b32 v62, 1, v62
v_xor_b32 v62, v62, v61
v_lshlrev_b32 v62, 4, v62
v_lshl_add_u32 v{dst[0]}, v60, 10, v62""".split("\n") + [f"v_add_u32 v{dst[p]}, {7168*p}, v{dst[0]}" for p in range(1, 4)]
if opt["wtouch"]:
    for n, T in enumerate(eval(opt_s["wT"])):
        HOOK.setdefault(T, []).extend(["s_and_b32 s3, s2, 0xf8", f"s_lshl_b32 s67, s{sWave}, 10", "s_add_u32 s3, s3, s67", f"s_add_u32 s3, s3, {256*n}", "s_lshl_b32 s3, s3, 10",
            "v_lshl_add_u32 v60, v0, 7, s3", f"global_load_dword v23, v60, s[{pWo}:{pWo+1}]"])
HOOK[27] = wo_voff([r.vKD + p for p in range(4)]) + [f"s_mov_b32 s{sK}, s{sWq}", f"s_mov_b32 s{sK+1}, s{sWq+1}", f"s_mov_b32 s{sK+2}, s{sWq+2}",
            f"s_mov_b32 s{r.sKoff}, 0", f"s_mov_b32 s{r.sKinc}, 0x8000"]
HOOK[28] = [f"v_mov_b32 v{r.vVDl[p]}, v{r.vKD+p}" for p in range(4)] + [f"s_mov_b32 s{sV}, s{sWq}", f"s_mov_b32 s{sV+1}, s{sWq+1}", f"s_mov_b32 s{sV+2}, s{sWq+2}",
            f"s_mov_b32 s{r.sVoff}, 0x10000", f"s_mov_b32 s{r.sKinc}, 0x10000", f"s_mov_b32 s{r.sVinc}, 0x10000"]
def H(T, txt): HOOK.setdefault(T, []).extend(l.strip() for l in txt.strip().split("\n") if l.strip())
SEL = [4, 5, 6, 7, 42, 43, 48, 49]; sSelMine = 66; sChunk = 64
NLOG2E = fbits(-1.4426950408889634)
if opt["moe"]:
    KQ = [128 + 4*n for n in range(15)] + [224]
    chk = ["v_mov_b32 v228, 0"] + [f"v_bitop3_b32 v228, v228, v{q+2}, s{sNonce} bitop3:0xf6" for q in KQ] + ["v_cmp_ne_u32 vcc, 0, v228"]
    H(2, "v_add_u32 v229, 0x20000, v3")
    HOOK[2] += [f"ds_read_b128 {v(q,4)}, v229 offset:{n*1024}" for n, q in enumerate(KQ)] + ["s_waitcnt lgkmcnt(0)"] + chk
    H(2, f"""s_cbranch_vccnz L_key_retry
    L_key_ok:
    v_max_u32 v228, v{KQ[0]}, v{KQ[0]+1}""")
    HOOK[2] += [f"v_max3_u32 v228, v228, v{q}, v{q+1}" for q in KQ[1:]]
    H(2, f"""v_cmp_lt_u32 vcc, s{sKey0}, v228
    s_bcnt1_i32_b64 s3, vcc
    v_cmp_lt_u32 vcc, s{sKey0+1}, v228
    s_bcnt1_i32_b64 s67, vcc
    s_min_u32 s3, s3, s67
    s_cmp_lt_u32 s3, 8
    s_cbranch_scc1 L_rank
    L_rank_done:""")
    cold += ["L_key_retry:"] + spin("", "L_key_ok")
    for n, q in enumerate(KQ):
        if n % 4 == 0: cold += [f"s_mov_b32 s3, {WS_KEY + n*1024}"]
        cold += [f"buffer_load_dwordx4 {v(q,4)}, v3, s[{sW}:{sW+3}], s3 offen offset:{(n%4)*1024} sc1"]
    cold += ["s_waitcnt vmcnt(0)"] + chk + ["s_cbranch_vccnz L_key_retry", "s_branch L_key_ok"]
    cold += ["L_rank:", "s_mov_b32 s69, 0", "L_rank_row:", "s_mov_b32 s68, 0"]
    for q in KQ:
        for e in range(2): cold += [f"v_cmp_lt_u32 vcc, s{sKey0}, v{q+e}", "s_bcnt1_i32_b64 s3, vcc", "s_add_u32 s68, s68, s3"]
    cold += f"""s_cmp_ge_u32 s68, 8
s_cbranch_scc1 L_rank_next
s_not_b32 s3, s{sKey0}
s_xor_b32 s67, s{sKey0}, 0x80000000
s_bitcmp1_b32 s{sKey0}, 31
s_cselect_b32 s3, s67, s3
s_and_b32 s3, s3, 0xffff0000
v_mov_b32 v230, {NLOG2E}
v_mul_f32 v230, s3, v230
v_exp_f32 v230, v230
s_add_u32 s67, s{sRow0}, s69
v_add_f32 v230, 1.0, v230
v_rcp_f32 v230, v230
s_lshl_b32 s68, s68, 3
v_cvt_pk_bf16_f32 v230, v230, v230
v_and_b32 v230, 0xffff0000, v230
v_or_b32 v230, s67, v230
v_mov_b32 v231, s{sNonce}
s_add_u32 s68, s68, {WS_SEL}
s_mov_b64 exec, 1
buffer_store_dwordx2 v[230:231], off, s[{sW}:{sW+3}], s68 sc1
s_mov_b64 exec, -1
L_rank_next:
s_mov_b32 s{sKey0}, s{sKey0+1}
s_add_u32 s69, s69, 1
s_cmp_lt_u32 s69, 2
s_cbranch_scc1 L_rank_row
s_branch L_rank_done""".split("\n")
    selld = f"buffer_load_dwordx2 v[60:61], v128, s[{sW}:{sW+3}], 0 offen sc1"
    seladdr = ["v_and_b32 v128, 7, v0", "v_lshlrev_b32 v128, 3, v128", f"v_add_u32 v128, {WS_SEL}, v128"]
    HOOK[4] = seladdr + [selld]
    H(4, f"""s_and_b32 s3, s2, 7
    s_mul_i32 s3, s3, 28
    s_lshr_b32 s67, s2, 3
    s_add_u32 s{sChunk}, s3, s67
    s_cmp_ge_u32 s67, 28
    s_cselect_b32 s{sChunk}, -1, s{sChunk}
    s_cbranch_scc1 L_h4_done
    s_mul_i32 s3, s{sWave}, {128*3584}
    s_lshl_b32 s67, s{sChunk}, 4
    s_add_u32 s3, s3, s67
    v_mul_u32_u24 v128, 3584, v0
    v_add_u32 v128, s3, v128
    v_add_u32 v129, {64*3584}, v128
    s_lshr_b32 s68, s{r.sM0K}, 1
    s_add_u32 m0, s68, 0x24000
    v_lshrrev_b32 v130, 4, v0
    global_load_lds_dwordx4 v128, s[{pWg}:{pWg+1}]
    s_add_u32 m0, s68, 0x24400
    v_and_b32 v131, 15, v0
    global_load_lds_dwordx4 v129, s[{pWg}:{pWg+1}]
    s_add_u32 m0, s68, 0x26000
    v_lshlrev_b32 v131, 4, v131
    global_load_lds_dwordx4 v128, s[{pWu}:{pWu+1}]
    s_add_u32 m0, s68, 0x26400
    v_lshl_add_u32 v130, v130, 10, v131
    global_load_lds_dwordx4 v129, s[{pWu}:{pWu+1}]
    s_lshl_b32 s3, s{sChunk}, 13
    s_lshl_b32 s67, s{sWave}, 8
    s_add_u32 s3, s3, s67
    v_add_u32 v130, s3, v130
    s_add_u32 m0, s68, 0x22000
    v_add_u32 v131, 4096, v130
    global_load_lds_dwordx4 v130, s[{pWd}:{pWd+1}]
    s_add_u32 m0, s68, 0x22400
    s_nop 0
    global_load_lds_dwordx4 v131, s[{pWd}:{pWd+1}]
    L_h4_done:""")
    H(6, f"""s_waitcnt vmcnt(16)
    v_cmp_ne_u32 vcc, s{sNonce}, v61
    s_cbranch_vccnz L_sel_retry
    L_sel_ok:
    s_lshr_b32 s3, s2, 5
    v_and_b32 v128, 0xffff, v60
    v_readlane_b32 s{sSelMine}, v60, s3""")
    HOOK[6] += [f"v_readlane_b32 s{SEL[t]}, v128, {t}" for t in range(8)]
    H(6, f"""v_lshrrev_b32 v129, 4, v0
    v_bfe_u32 v130, v0, 3, 1
    v_lshlrev_b32 v129, 4, v129
    v_lshl_add_u32 v129, v130, 6, v129
    v_lshl_add_u32 v128, v128, 10, v129
    s_lshl_b32 s3, s{sWave}, 8
    s_add_u32 s3, s3, {WS_XN}
    s_lshr_b32 s68, s{r.sM0K}, 1
    s_add_u32 m0, s68, 0x20000
    s_add_u32 s67, s3, 128
    buffer_load_dwordx4 v128, s[{sW}:{sW+3}], s3 offen sc1 lds
    s_add_u32 m0, s68, 0x20400
    s_nop 0
    buffer_load_dwordx4 v128, s[{sW}:{sW+3}], s67 offen sc1 lds""")
    cold += ["L_sel_retry:"] + spin("", "L_sel_ok") + seladdr + [selld, "s_waitcnt vmcnt(0)", f"v_cmp_ne_u32 vcc, s{sNonce}, v61",
             "s_cbranch_vccnz L_sel_retry", "s_branch L_sel_ok"]
    H(8, f"""s_cmp_eq_u32 s{sChunk}, -1
    s_cbranch_scc1 L_h8_done
    s_lshr_b32 s68, s{r.sM0K}, 1
    v_lshrrev_b32 v224, 4, v0
    v_and_b32 v225, 15, v0
    v_lshrrev_b32 v226, 2, v225
    v_and_b32 v227, 3, v0
    v_lshl_add_u32 v228, v224, 3, v226
    v_lshlrev_b32 v228, 4, v228
    v_and_b32 v229, 1, v0
    v_lshl_add_u32 v228, v229, 3, v228
    v_bfe_u32 v229, v0, 1, 1
    v_lshl_add_u32 v228, v229, 13, v228
    s_add_u32 s3, s68, 0x24000
    v_add_u32 v228, s3, v228
    v_and_b32 v229, 0x37, v0
    s_add_u32 s3, s68, 0x20000
    v_lshl_add_u32 v229, v229, 4, s3
    v_lshl_add_u32 v230, v224, 1, v226
    v_and_b32 v230, 7, v230
    v_lshlrev_b32 v230, 8, v230
    v_lshl_add_u32 v230, v227, 3, v230
    s_add_u32 s67, s68, 0x22000
    v_add_u32 v230, s67, v230
    s_waitcnt vmcnt(16)""")
    for ks in range(4):
        HOOK[8] += [f"ds_read_b64_tr_b16 v[{128+4*ks}:{129+4*ks}], v228 offset:{ks*512}", f"ds_read_b64_tr_b16 v[{130+4*ks}:{131+4*ks}], v228 offset:{ks*512+64}",
                    f"ds_read_b128 {v(144+4*ks,4)}, v229 offset:{(ks>>1)*1024 + (ks&1)*128}"]
    H(8, f"""v_lshl_add_u32 v231, v0, 4, s3
    v_lshrrev_b32 v232, 1, v224
    v_lshl_add_u32 v232, v232, 4, v225
    v_lshlrev_b32 v232, 4, v232
    v_and_b32 v233, 1, v224
    v_lshl_add_u32 v232, v233, 3, v232
    v_add_u32 v232, 0x20000, v232
    s_waitcnt lgkmcnt(0)""")
    for ks in range(4): HOOK[8] += [f"{MF} v[160:163], {v(128+4*ks,4)}, {v(144+4*ks,4)}, {'0' if ks == 0 else 'v[160:163]'}"]
    HOOK[8] += [f"ds_read_b64_tr_b16 v[{164+2*nb}:{165+2*nb}], v230 offset:{nb*32}" for nb in range(8)]
    H(8, f"""ds_write_b128 v231, v[160:163]
    s_waitcnt lgkmcnt(0)
    s_barrier""")
    for src in range(4):
        HOOK[8] += [f"ds_read_b64 v[{128+4*src}:{129+4*src}], v232 offset:{src*2048}", f"ds_read_b64 v[{130+4*src}:{131+4*src}], v232 offset:{src*2048+512}"]
    H(8, f"""v_mul_u32_u24 v233, {32*224*64//16}, v225
    v_add_u32 v233, v233, v224
    v_lshlrev_b32 v233, 4, v233
    s_mul_i32 s3, s{sWave}, {8*224*64}
    s_lshl_b32 s67, s{sChunk}, 6
    s_add_u32 s3, s3, s67
    s_add_u32 s3, s3, {WS_PART}
    v_mov_b32 v145, 0
    s_waitcnt lgkmcnt(0)""")
    for e in range(4): HOOK[8] += [f"v_add_f32 v{128+e}, v{128+e}, v{132+e}", f"v_add_f32 v{136+e}, v{136+e}, v{140+e}"]
    for e in range(4): HOOK[8] += [f"v_add_f32 v{128+e}, v{128+e}, v{136+e}"]
    H(8, f"""v_cvt_pk_bf16_f32 v132, v128, v129
    v_cvt_pk_bf16_f32 v133, v130, v131""")
    HOOK[8] += unpack(128, 132, 2)
    H(8, f"""v_mul_f32 v132, {NLOG2E}, v128
    v_mul_f32 v133, {NLOG2E}, v129
    v_exp_f32 v132, v132
    v_exp_f32 v133, v133
    v_add_f32 v132, 1.0, v132
    v_add_f32 v133, 1.0, v133
    v_rcp_f32 v132, v132
    v_rcp_f32 v133, v133
    v_mul_f32 v128, v128, v132
    v_mul_f32 v129, v129, v133
    v_cvt_pk_bf16_f32 v132, v128, v129
    v_lshlrev_b32 v128, 16, v132
    v_and_b32 v129, 0xffff0000, v132
    v_mul_f32 v128, v128, v130
    v_mul_f32 v129, v129, v131
    v_cvt_pk_bf16_f32 v144, v128, v129
    s_nop 1""")
    YD = [128, 132, 136, 140, 148, 152, 156, 160]
    HOOK[8] += [f"v_mfma_f32_16x16x16_bf16 {v(YD[nb],4)}, v[{164+2*nb}:{165+2*nb}], v[144:145], 0" for nb in range(8)]
    H(8, "s_mov_b32 exec_lo, 0x00ff00ff\ns_mov_b32 exec_hi, 0x00ff00ff")
    for nb in range(8):
        HOOK[8] += [f"buffer_store_dwordx4 {v(YD[nb],4)}, v233, s[{sW}:{sW+3}], s3 offen sc1", f"s_add_u32 s3, s3, {224*64}"]
    H(8, "s_mov_b64 exec, -1\nL_h8_done:")
    H(10, f"""s_cmp_eq_u32 s{sChunk}, -1
    s_cbranch_scc1 L_h10_done
    s_lshl_b32 s3, s{sWave}, 8
    s_add_u32 s3, s3, s{sChunk}
    s_lshl_b32 s3, s3, 2
    s_add_u32 s3, s3, {WS_FC}
    v_mov_b32 v128, s{sNonce}
    s_waitcnt vmcnt(16)
    s_mov_b64 exec, 1
    buffer_store_dword v128, off, s[{sW}:{sW+3}], s3 sc1
    s_mov_b64 exec, -1
    L_h10_done:""")
    fcaddr = ["v_min_u32 v128, 55, v0", "v_lshlrev_b32 v128, 4, v128", "s_bfe_u32 s3, s2, 0x20003", "s_lshl_b32 s3, s3, 10", f"s_add_u32 s3, s3, {WS_FC}"]
    fcld = f"buffer_load_dwordx4 v[60:63], v128, s[{sW}:{sW+3}], s3 offen sc1"
    fcchk = [f"v_xor_b32 v129, s{sNonce}, v60"] + [f"v_bitop3_b32 v129, v129, v{61+e}, s{sNonce} bitop3:0xf6" for e in range(3)] + ["v_cmp_ne_u32 vcc, 0, v129"]
    HOOK.setdefault(14, []).extend(fcaddr + [fcld])
    HOOK.setdefault(16, []).extend(["s_waitcnt vmcnt(16)"] + fcchk)
    H(16, f"""s_cbranch_vccnz L_fc_retry
    L_fc_ok:
    v_lshlrev_b32 v128, 6, v0
    v_cmp_gt_u32 vcc, 32, v0
    v_mov_b32 v129, 0x40000000
    s_mul_i32 s3, s2, {224*64}
    s_lshl_b32 s67, s{sWave}, 4
    s_add_u32 s3, s3, s67
    s_add_u32 s3, s3, {WS_PART}
    v_cndmask_b32 v129, v129, v128, vcc""")
    for k in range(4):
        HOOK[16] += [f"s_add_u32 m0, s{r.sM0K}, {0x20000 + k*1024}", f"s_add_u32 s67, s3, {k*4096}",
                     f"buffer_load_dwordx4 v{129 if k == 3 else 128}, s[{sW}:{sW+3}], s67 offen sc1 lds"]
    cold += ["L_fc_retry:"] + spin("", "L_fc_ok") + fcaddr + [fcld, "s_waitcnt vmcnt(0)"] + fcchk + ["s_cbranch_vccnz L_fc_retry", "s_branch L_fc_ok"]
    H(18, f"""s_add_u32 s3, s{r.sM0K}, 0x20000
    v_add_u32 v224, s3, v3
    s_waitcnt vmcnt(16)""")
    HOOK[18] += [f"ds_read_b128 {v(128+4*k,4)}, v224 offset:{k*1024}" for k in range(4)]
    H(18, f"""s_lshl_b32 s3, s2, 2
    s_add_u32 s3, s3, s{sWave}
    s_lshl_b32 s3, s3, 4
    s_add_u32 s3, s3, {WS_UPD}
    s_and_b32 s67, s{sSelMine}, 0xffff0000
    s_waitcnt lgkmcnt(0)""")
    for e in range(4): HOOK[18] += [f"v_add_f32 v{128+e}, v{128+e}, v{132+e}", f"v_add_f32 v{136+e}, v{136+e}, v{140+e}"]
    for e in range(4): HOOK[18] += [f"v_add_f32 v{128+e}, v{128+e}, v{136+e}"]
    for tup in zip(*[wave_sum(128 + e, 0)[:-1] for e in range(4)]): HOOK[18] += list(tup)
    H(18, "v_cvt_pk_bf16_f32 v132, v128, v129\nv_cvt_pk_bf16_f32 v133, v130, v131")
    HOOK[18] += unpack(128, 132, 2) + [f"v_mul_f32 v{128+e}, s67, v{128+e}" for e in range(4)]
    H(18, f"""v_cvt_pk_bf16_f32 v132, v128, v129
    v_cvt_pk_bf16_f32 v133, v130, v131
    v_mov_b32 v134, s{sNonce}
    v_mov_b32 v135, s{sNonce}
    s_lshl_b64 exec, 1, 63
    buffer_store_dwordx4 v[132:135], off, s[{sW}:{sW+3}], s3 sc1
    s_mov_b64 exec, -1
    s_nop 0""")
def emit_hooks():
    m2 = m4 = 0
    for site, ret in ((2, "L_ret2"), (4, "L_loop")):
        Ts = sorted(T for T in HOOK if T % 4 == site % 4)
        E(f"L_disp{site}:")
        for T in Ts[:-1]:
            E(f"s_cmp_eq_u32 s{r.sIt}, {T // 4}"); E(f"s_cbranch_scc1 L_hook{T}")
        for T in Ts[-1:] + Ts[:-1]:
            E(f"L_hook{T}:")
            for l in HOOK[T]: E(l)
            E(f"s_branch {ret}")
        if not Ts: E(f"s_branch {ret}")
        if site == 2: m2 = sum(1 << (T // 4) for T in Ts)
        else: m4 = sum(1 << (T // 4) for T in Ts)
    E("L_hook27:")
    for l in HOOK[27]: E(l)
    E("s_branch L_ret3")
    return m2, m4
E("L_disp3:")
E(f"s_cmp_eq_u32 s{r.sIt}, 6")
E("s_cbranch_scc1 L_hook27")
A.label("L_tail")
S.vm[:] = ["wo0"]*4 + ["v31"]*4 + [f"wo{k}" for k in range(1, 7) for _ in range(4)]
sOoff = 63
vWo, vWr, vOq, vFl = r.vKD, 48, 4, 44
VA, VB, VC, AA, AB, AC, AD = ("v", 64), ("v", 128), ("v", 192), ("a", 0), ("a", 64), ("a", 128), ("a", 192)
def blk(B, off, n): return (v if B[0] == "v" else a)(B[1] + off, n)
WBLK = [AC, VA, AD, VC]; OBLK = [AB, VB]; ACC = AA
NU = 10
UNIT = [0, 1, 5, 2, 6, 3, 7, 8, 9, 4]
def wo_dma(kk):
    L = [f"s_add_u32 m0, s{r.sM0K}, {UNIT[kk % NU]*16384}"]
    L += [f"buffer_load_dwordx4 v{vWo+p}, s[{sWq}:{sWq+3}], s{sWoff} offen offset:{p*1024} lds ; wo{kk}" for p in range(4)]
    L += [f"s_add_u32 s{sWoff}, s{sWoff}, 0x8000"]
    return L
def wo_reads(kk):
    u = UNIT[kk % NU]; B = WBLK[(kk >> 2) & 3]
    return [f"ds_read_b64_tr_b16 {blk(B, (nb*4 + (kk & 3))*4 + 2*half, 2)}, v{vWr + 4*(u >> 2) + nb} offset:{(u & 3)*16384 + half*2048}"
            for nb in range(4) for half in range(2)]
def o_loads(h, qb):
    B = OBLK[h & 1]
    return [f"buffer_load_dwordx4 {blk(B, (qb*4 + i)*4, 4)}, v{vOq+qb}, s[{sW}:{sW+3}], s{sOoff} offen offset:{i*1024} sc1 ; o{h}_{qb}" for i in range(4)]
def o_next(): return [f"s_add_u32 s{sOoff}, s{sOoff}, 0x1000"]
setup = f"""
s_mov_b32 s{sWoff}, {7*0x8000}
s_lshl_b32 s{sOoff}, s{sQt}, 19
s_lshl_b32 s3, s{sWave}, 15
s_add_u32 s{sOoff}, s{sOoff}, s3
v_lshrrev_b32 v1, 4, v0
v_and_b32 v2, 15, v0
v_and_b32 v61, 7, v0
v_lshrrev_b32 v60, 2, v2
v_lshl_add_u32 v60, v1, 2, v60
v_bfe_u32 v62, v60, 1, 2
v_lshlrev_b32 v60, 7, v60
v_and_b32 v63, 3, v0
v_lshl_add_u32 v60, v63, 3, v60
v_add_u32 v60, s{r.sM0K}, v60
""".strip().split("\n")
for nb in range(4):
    setup += [f"v_xor_b32 v3, {nb}, v62", f"v_lshl_add_u32 v{vWr+nb}, v3, 5, v60",
              f"v_add_u32 v{vWr+4+nb}, 0x10000, v{vWr+nb}", f"v_add_u32 v{vWr+8+nb}, 0x20000, v{vWr+nb}"]
setup += [f"v_lshlrev_b32 v{vOq}, 4, v0"] + [f"v_add_u32 v{vOq+qb}, {qb*0x20000}, v{vOq}" for qb in range(1, 4)]
setup += [f"s_lshl_b32 s3, s{sQt}, 5", f"s_lshl_b32 s68, s{sWave}, 3", "s_add_u32 s3, s3, s68", "v_add_u32 v61, s3, v61",
          f"v_lshlrev_b32 v{vFl}, 7, v61", f"v_add_u32 v{vFl}, {WS_FLAG}, v{vFl}"]
qk_part(32, sync=False)
for l in setup: E(l)
E(f"s_waitcnt vmcnt({S.vmn('wo3')}) lgkmcnt(0)")
E("s_barrier")
for kk in range(7, NU): pend += wo_dma(kk)
rd0 = [l for kk in range(4) for l in wo_reads(kk)]
order = [16, 33, 50, 67] + [i for i in range(68) if i % 17 != 16]
Q += [None]
for n, i in enumerate(order):
    lead = []
    if pend and pend[0].startswith("s_"): lead = [pend.pop(0)]
    elif pend and n % (5 if n < 22 else 10) == 1: lead = [pend.pop(0)]
    if not (lead and lead[0].startswith("buffer")) and not (12 <= n < 18): lead += rd0[:2]; del rd0[:2]
    if n == 12:
        del Q[:]
        Q += [f"v_add_f32 v{r.vL+4*qb}, v{r.vL+4*qb}, v{r.vL+4*qb+1}" for qb in range(4)] + [f"v_rcp_f32 v{60+qb}, v{r.vL+4*qb}" for qb in range(4)]
        Q += f"""s_lshl_b32 s3, s{sQb}, 2
s_add_u32 s3, s3, s{sWave}
s_lshl_b32 s69, s3, 5
s_add_u32 s69, s69, s{sHead}
s_lshl_b32 s69, s69, 7
s_add_u32 s69, s69, {WS_FLAG}
s_lshl_b32 s3, s3, 7
s_add_u32 s3, s3, s{sHead}
s_lshl_b32 s68, s3, 12""".split("\n")
    def epi(qb):
        t = r.vS; o = r.vS + 32 + (qb & 1)*16
        L = []
        for i4 in range(4):
            L += [f"v_accvgpr_read_b32 v{t+8*i4+e}, a{r.aO+qb*32+8*i4+e}" for e in range(8)]
            L += [f"v_mul_f32 v{t+8*i4+e}, v{60+qb}, v{t+8*i4+e}" for e in range(8)]
            L += [f"v_cvt_pk_bf16_f32 v{o+4*i4+e}, v{t+8*i4+2*e}, v{t+8*i4+2*e+1}" for e in range(4)]
            L += [f"buffer_store_dwordx4 {v(o+4*i4,4)}, v{vOq+qb}, s[{sW}:{sW+3}], s68 offen offset:{i4*1024} sc1 ; ost"]
        return L
    if n == 24: Q += epi(0)
    if n == 38: Q += epi(1)
    S.gap(X.pv(31, i), lead)
stamp(1)
Q += epi(2) + epi(3)
assert not rd0
nextrd = [4]; nextdma = [NU + 3]
def wo_step(maxrd):
    kk = nextrd[0]
    if kk >= maxrd or any(l.endswith(f"; wo{kk}") for l in pend): return False
    E(f"s_waitcnt vmcnt({S.vmn(f'wo{kk}')})")
    for l in wo_reads(kk): E(l)
    nextrd[0] += 1
    if kk >= 1 and nextdma[0] < 32 and nextdma[0] - NU == kk - 1:
        E("s_waitcnt lgkmcnt(8)")
        pend.extend(wo_dma(nextdma[0])); nextdma[0] += 1
    return True
cnt = 0
while Q:
    f = Q.pop(0)
    while not S.ok(f): E("s_nop 0")
    E(f); cnt += 1
    if cnt % opt["epace"] == 0: one_dma()
stamp(1)
E("s_waitcnt lgkmcnt(0)")
for kk in range(NU, NU + 3): pend.extend(wo_dma(kk))
for _ in range(opt["npost"]):
    wo_step(16)
    for _ in range(4): one_dma()
M(f"""
v_mov_b32 v3, s{sNonce}
s_waitcnt vmcnt({S.vmn('ost')})
s_mov_b64 exec, 1
buffer_store_dword v3, off, s[{sW}:{sW+3}], s69 sc1 ; flag
s_mov_b64 exec, -1
""")
stamp(1)
vXo, vXr, vGp, vSt = 45, 20, 28, 46
M(f"""
s_lshl_b32 s3, s{sQt}, 2
s_add_u32 s3, s3, s{sWave}
s_lshl_b32 s3, s3, 4
v_lshrrev_b32 v60, 2, v0
v_add_u32 v60, s3, v60
v_lshlrev_b32 v61, 3, v60
v_add_u32 v61, {WS_STAT}, v61
s_lshl_b32 s3, s{sNt}, 7
v_and_b32 v63, 3, v0
v_lshl_add_u32 v62, v63, 5, s3
v_lshl_add_u32 v{vXo}, v60, 10, v62
global_load_dwordx4 v[{vXr}:{vXr+3}], v{vXo}, s[{pX}:{pX+1}] ; xf
global_load_dwordx4 v[{vXr+4}:{vXr+7}], v{vXo}, s[{pX}:{pX+1}] offset:16 ; xf
buffer_load_dwordx2 v[{vSt}:{vSt+1}], v61, s[{sW}:{sW+3}], 0 offen sc1 ; xf
""")
vU, vUa, vUt = 128, 144, 145
updld = [f"buffer_load_dwordx4 {v(vU+4*k,4)}, v{vUa}, s[{sW}:{sW+3}], s68 offen offset:{16*k} sc1" for k in range(4)]
updchk = [f"v_xor_b32 v146, s{sNonce}, v{vSt+1}"]
if opt["moe"]:
    E(f"v_mov_b32 v{vUa}, 0x200000")
    for t_ in range(8):
        E(f"v_cmp_eq_u32 vcc, s{SEL[t_]}, v60"); E(f"v_mov_b32 v146, {t_*32}"); E("s_nop 0"); E(f"v_cndmask_b32 v{vUa}, v{vUa}, v146, vcc")
    M(f"""
    v_cmp_gt_u32 vcc, 0x1000, v{vUa}
    v_add_u32 v{vUa}, v{vUa}, v63
    v_lshlrev_b32 v{vUa}, 6, v{vUa}
    v_mov_b32 v146, s{sNonce}
    v_cndmask_b32 v{vUt}, 0, v146, vcc
    v_mov_b32 v146, 0x40000000
    v_cndmask_b32 v{vUa}, v146, v{vUa}, vcc
    s_lshl_b32 s68, s{sNt}, 8
    s_add_u32 s68, s68, {WS_UPD}
    """)
    for l in updld: E(l + " ; xf")
    updchk += [f"v_bitop3_b32 v146, v146, v{vU+4*k+2}, v{vUt} bitop3:0xf6" for k in range(4)]
updchk += ["v_cmp_ne_u32 vcc, 0, v146"]
t = 36
cold += ["L_stf_retry:"] + spin("", "L_stf_ok") + [f"buffer_load_dwordx2 v[{vSt}:{vSt+1}], v61, s[{sW}:{sW+3}], 0 offen sc1"] + (updld if opt["moe"] else []) + ["s_waitcnt vmcnt(0)"] + \
        updchk + ["s_cbranch_vccnz L_stf_retry", "s_branch L_stf_ok"]
G = [lambda: f"s_waitcnt vmcnt({S.vmn('xf')})"] + updchk + ["s_cbranch_vccnz L_stf_retry", "L_stf_ok:", f"v_and_b32 v{vSt+1}, 0xffff0000, v{vSt}", f"v_lshlrev_b32 v{vSt}, 16, v{vSt}", f"v_rcp_f32 v{vSt+1}, v{vSt+1}"]
for hf in range(2):
    G += unpack(t, vXr + 4*hf)
    G += [f"v_sub_f32 v{t+e}, v{t+e}, v{vSt}" for e in range(8)]
    G += [f"v_cvt_pk_bf16_f32 v{8+e}, v{t+2*e}, v{t+2*e+1}" for e in range(4)] + unpack(t, 8)
    G += [f"v_mul_f32 v{t+e}, v{t+e}, v{vSt+1}" for e in range(8)]
    G += [f"v_cvt_pk_bf16_f32 v{8+e}, v{t+2*e}, v{t+2*e+1}" for e in range(4)] + unpack(t, 8)
    if opt["moe"]:
        G += unpack(8, vU + 8*hf, 2) + unpack(12, vU + 8*hf + 4, 2) + [f"v_add_f32 v{t+e}, v{t+e}, v{8+e}" for e in range(8)]
        G += [f"v_cvt_pk_bf16_f32 v{8+e}, v{t+2*e}, v{t+2*e+1}" for e in range(4)] + unpack(t, 8)
    G += [f"v_mul_f32 v{8+e}, {fbits(-1.4426950408889634)}, v{t+e}" for e in range(8)]
    G += [f"v_exp_f32 v{8+e}, v{8+e}" for e in range(8)]
    G += [f"v_add_f32 v{8+e}, 1.0, v{8+e}" for e in range(8)]
    G += [f"v_rcp_f32 v{8+e}, v{8+e}" for e in range(8)]
    G += [f"v_mul_f32 v{t+e}, v{t+e}, v{8+e}" for e in range(8)]
    G += [f"v_cvt_pk_bf16_f32 v{vGp+4*hf+e}, v{t+2*e}, v{t+2*e+1}" for e in range(4)]
def some_g(n):
    while G and n > 0:
        f = G.pop(0)
        if callable(f): f = f()
        while not f.endswith(":") and not S.ok(f): E("s_nop 0")
        E(f); n -= 1
        if f.startswith(("v_cmp", "s_cbranch")): n += 1
ndone = 0
while nextrd[0] < 16:
    assert wo_step(16)
    for _ in range(4):
        one_dma(); ndone += 1
        if ndone > 8: some_g(6)
E("s_waitcnt lgkmcnt(0)")
while nextdma[0] < 16 + NU: pend.extend(wo_dma(nextdma[0])); nextdma[0] += 1
nleft = lambda: sum(l.startswith("buffer") for l in pend)
while nleft() > opt["pollat"]: one_dma(); some_g(6)
E(f"buffer_load_dword v2, v{vFl}, s[{sW}:{sW+3}], 0 offen sc1 ; poll")
while pend: one_dma(); some_g(6)
some_g(999)
stamp(1)
M(f"""
s_waitcnt vmcnt({S.vmn('poll')})
v_cmp_ne_u32 vcc, s{sNonce}, v2
s_cbranch_vccnz L_oflag
L_oflag_ok:
""")
cold += ["L_oflag:"] + spin("", "L_oflag_ok") + [f"buffer_load_dword v2, v{vFl}, s[{sW}:{sW+3}], 0 offen sc1", "s_waitcnt vmcnt(0)",
         f"v_cmp_ne_u32 vcc, s{sNonce}, v2", "s_cbranch_vccnz L_oflag", "s_branch L_oflag_ok"]
stamp(5)
if opt["otouch"]:
    M(f"""
    v_bfe_u32 v60, v0, 2, 2
    v_lshlrev_b32 v60, 17, v60
    v_lshl_add_u32 v60, v1, 12, v60
    v_lshl_add_u32 v60, v63, 7, v60
    s_lshl_b32 s3, s{sNt}, 9
    s_add_u32 s3, s3, s{sOoff}
    s_add_u32 s68, s3, 0x4000
    buffer_load_dword v3, v60, s[{sW}:{sW+3}], s3 offen sc1
    """)
for h in range(2):
    for qb in range(4):
        for l in o_loads(h, qb): E(l)
        if opt["otouch"] and h*4 + qb == opt["otouch"]: E(f"buffer_load_dword v3, v60, s[{sW}:{sW+3}], s68 offen sc1")
    for l in o_next(): E(l)
stamp(1)
rdq = []
for h in range(8):
    Wb, Ob = WBLK[h & 3], OBLK[h & 1]
    for qb in range(4):
        ph, pq = (h, qb - 1) if qb else (h - 1, 3)
        if ph >= 0 and ph + 2 < 8:
            pend.extend(o_loads(ph + 2, pq))
            if pq == 3: pend.extend(o_next())
        if 1 <= h <= 4:
            kk = (h + 3)*4 + qb
            rdq = wo_reads(kk)
            w = [f"s_waitcnt vmcnt({vmn(f'wo{kk}', f'o{h}_{qb}')})"]
        else:
            rdq = []; w = [f"s_waitcnt vmcnt({vmn(f'o{h}_{qb}')})"]
        if h >= 4 and qb == 0 or (1 <= h <= 2): w[0] += " lgkmcnt(0)"
        if 1 <= h <= 2:
            kprev = (h + 3)*4 + qb - 1
            if kprev >= 16 and kprev + NU < 32: pend.extend(wo_dma(kprev + NU))
        E(w[0])
        if qb == 0: stamp(4)
        if h == 6 and qb == 0: E("s_barrier")
        for n in range(16):
            nb, i = n >> 2, n & 3
            if nb & 1: i = 3 - i
            D = blk(ACC, (qb*4 + nb)*4, 4)
            m = f"{MF} {D}, {blk(Wb, (nb*4 + i)*4, 4)}, {blk(Ob, (qb*4 + i)*4, 4)}, {'0' if h == 0 and n & 3 == 0 else D}"
            lead = []
            if n & 1 == 0 and n < 15:
                if pend and pend[0].startswith("s_"): lead.append(pend.pop(0))
                if rdq: lead.append(rdq.pop(0))
            elif pend:
                while pend and pend[0].startswith("s_") and not pend[0].startswith("s_add_u32 m0"): lead.append(pend.pop(0))
                if pend and not pend[0].startswith("s_"): lead.append(pend.pop(0))
            S.gap(m, lead)
        assert not rdq
assert not pend
stamp(5)
M(f"""
s_mul_i32 s3, s{sWave}, 4352
v_lshl_add_u32 v60, v0, 4, s3
s_lshl_b32 s3, s3, 2
v_mul_u32_u24 v61, 1088, v63
v_lshrrev_b32 v62, 2, v0
v_lshl_add_u32 v61, v62, 4, v61
v_add_u32 v61, s3, v61
""")
for qb in range(4):
    for nb in range(4): E(f"ds_write_b128 v60, {blk(ACC, (qb*4+nb)*4, 4)} offset:{qb*4*4352 + nb*1088}")
for l in unpack(128, vXr, 8) + unpack(144, vGp, 8): E(l)
E("s_waitcnt lgkmcnt(0)")
E("s_barrier")
for s_ in range(4):
    for g in range(4): E(f"ds_read_b128 {v(64+s_*16+g*4,4)}, v61 offset:{s_*4352 + g*256}")
E("s_waitcnt lgkmcnt(8)")
for e in range(16): E(f"v_add_f32 v{64+e}, v{64+e}, v{80+e}")
E("s_waitcnt lgkmcnt(0)")
for e in range(16): E(f"v_add_f32 v{96+e}, v{96+e}, v{112+e}")
for e in range(16): E(f"v_add_f32 v{64+e}, v{64+e}, v{96+e}")
for e in range(8): E(f"v_cvt_pk_bf16_f32 v{80+e}, v{64+2*e}, v{65+2*e}")
for l in unpack(64, 80, 8): E(l)
for e in range(16): E(f"v_mul_f32 v{64+e}, v{64+e}, v{144+e}")
for e in range(8): E(f"v_cvt_pk_bf16_f32 v{80+e}, v{64+2*e}, v{65+2*e}")
for l in unpack(64, 80, 8): E(l)
for e in range(16): E(f"v_add_f32 v{64+e}, v{64+e}, v{128+e}")
for e in range(8): E(f"v_cvt_pk_bf16_f32 v{80+e}, v{64+2*e}, v{65+2*e}")
E(f"global_store_dwordx4 v{vXo}, v[80:83], s[{pOut}:{pOut+1}]")
E(f"global_store_dwordx4 v{vXo}, v[84:87], s[{pOut}:{pOut+1}] offset:16")
stamp(1)
if opt["stamp"]: E("s_waitcnt vmcnt(0)")
stamp(1)
if opt["stamp"]:
    M(f"""
    s_lshl_b32 s3, s2, 2
    s_add_u32 s3, s3, s{sWave}
    s_lshl_b32 s3, s3, 7
    s_add_u32 s3, s3, {WS_T}
    v_mov_b32 v3, 0
    """)
    for i in range(32): E(f"v_mov_b32 v{4+i}, s{70+i}" if i < 2*nstamp[0] else f"v_mov_b32 v{4+i}, 0")
    for i in range(8): E(f"buffer_store_dwordx4 v[{4+4*i}:{7+4*i}], v3, s[{sW}:{sW+3}], s3 offen offset:{16*i}")
E("s_endpgm")
m2, m4 = emit_hooks()
for l in cold: E(l)
A.label("L_end")
E("s_endpgm")
A.raw(f""".section .rodata,"a"
.p2align 6
.amdhsa_kernel {KN}_kernel
  .amdhsa_next_free_vgpr 512
  .amdhsa_next_free_sgpr 102
  .amdhsa_accum_offset 256
  .amdhsa_group_segment_fixed_size 0
  .amdhsa_kernarg_size 104
  .amdhsa_user_sgpr_count 2
  .amdhsa_user_sgpr_kernarg_segment_ptr 1
  .amdhsa_system_sgpr_workgroup_id_x 1
  .amdhsa_float_denorm_mode_32 3
.end_amdhsa_kernel""")
txt = A.text().replace("MASK2", hex(m2)).replace("MASK4", hex(m4))
bad = check_hazards(txt)
if bad: print("hazards:", len(bad), file=sys.stderr)
open(sys.argv[1], "w").write(txt)
```

```python
import sys, struct
from attn16 import *
KN = "recurrent_scan__mha_block_cached__moe_arch_mod__prompt"
opt = dict(ntw=0, ost=0, tlb=0, varb=1, TF=18, TP=22, moeT=99, moe=1, pollat=10, wtouch=1, otouch=0, epace=40, npost=3, rot=0, s1st=5, cyc=0, stamp=0, snake=1, pvchain=1, G0=8, nt=1, ntq=0, sm=1, drate=4, pre=2)
opt_s = dict(touch="{}", hs="(2,4,6,18,22,24,26)", wT="(24,26)")
for x in sys.argv[2:]:
    k, val = x.split("=")
    if k in opt_s: opt_s[k] = val
    else: opt[k] = int(val)
A = Asm(); r = default_regs(); X = Attn(A, r, opt); S = Stream(A); E = S.emit; M = S.many
POL = ["", " nt", " sc1"]
def fbits(x): return hex(struct.unpack("<I", struct.pack("<f", x))[0])
WS_O = 0
WS_STAT = 16 << 20
WS_KEY = WS_STAT + 0x4000
WS_FLAG = WS_STAT + 0x10000
WS_SEL = WS_STAT + 0x8000
WS_FC = WS_STAT + 0x9000
WS_UPD = WS_STAT + 0xC000
WS_XN = 18 << 20
WS_PART = 20 << 20
WS_T = 64 << 20
sX, sK, sV, sW, sWq = 4, 8, 12, 16, 28
sWave, sHead, sQb = 20, 21, 22
sXoff, sWoff, sM0X, sM0W = 34, 35, 62, 63
pX, pK, pV, pWq, pWo, pWr, pWg, pWu, pWd, pOut, pDbg, pWs = 36, 38, 40, 42, 44, 48, 50, 52, 54, 56, 58, 60
sKey0, sRow0, sNonce = 64, 66, 46
sSpin = 33
def spin(label, ok): return [f"s_sub_u32 s{sSpin}, s{sSpin}, 1", f"s_cbranch_scc1 {ok}"]
cold = []
nstamp = [0]
CLK = "s_memtime" if opt["cyc"] else "s_memrealtime"
def stamp(lvl=1, wait=True):
    if opt["stamp"] & lvl and nstamp[0] < 16:
        i = nstamp[0]; nstamp[0] += 1
        E(f"{CLK} s[{70+2*i}:{71+2*i}]")
        if wait: E("s_waitcnt lgkmcnt(0)")

A.raw("; @launch grid=(256,1,1) block=(256,1,1) lds=163840")
A.raw('.amdgcn_target "amdgcn-amd-amdhsa--gfx950"')
A.raw(".text"); A.raw(f".globl {KN}_kernel"); A.raw(".p2align 8"); A.raw(f".type {KN}_kernel,@function")
A.label(f"{KN}_kernel")
M(f"""
s_cmp_ge_u32 s2, 256
s_cbranch_scc1 L_end
s_load_dwordx16 s[36:51], s[0:1], 0
s_load_dwordx8 s[52:59], s[0:1], 64
s_load_dwordx2 s[60:61], s[0:1], 96
s_memrealtime s[68:69]
""")
if opt["stamp"]:
    E(f"{CLK} s[70:71]"); nstamp[0] = 1
M(f"""
s_getpc_b64 s[32:33]
v_lshlrev_b32 v4, 7, v0
v_add_u32 v5, 0x8000, v4
v_min_u32 v5, L_end-{KN}_kernel-128, v5
v_lshrrev_b32 v1, 6, v0
v_and_b32 v0, 63, v0
global_load_dword v23, v4, s[32:33]
global_load_dword v23, v5, s[32:33]
v_readfirstlane_b32 s{sWave}, v1
s_and_b32 s3, s2, 7
s_lshl_b32 s3, s3, 2
s_bfe_u32 s{sHead}, s2, 0x20003
s_or_b32 s{sHead}, s{sHead}, s3
s_lshr_b32 s{sQb}, s2, 5
v_lshrrev_b32 v1, 4, v0
v_and_b32 v2, 15, v0
""")
vXD, vWD, vXA, vWA, vCS, vKM = 76, 84, 88, 92, 100, 108
vSX, vG = r.vL, r.vM
M(f"""
v_lshrrev_b32 v4, 3, v0
s_lshl_b32 s3, s{sWave}, 6
v_add_u32 v4, s3, v4
v_lshlrev_b32 v4, 10, v4
v_and_b32 v5, 7, v0
v_xor_b32 v6, v5, v1
v_xor_b32 v7, 4, v6
v_lshl_add_u32 v6, v6, 4, v4
v_lshl_add_u32 v7, v7, 4, v4
""")
for p in range(8): E(f"v_add_u32 v{vXD+p}, {p*8192 - (p&3)*1024}, v{6+(p&1)}")
M(f"""
s_lshl_b32 s3, s{sWave}, 4
v_add_u32 v4, s3, v1
v_lshlrev_b32 v4, 13, v4
v_lshlrev_b32 v5, 1, v1
v_xor_b32 v6, v5, v2
v_xor_b32 v7, 8, v6
v_lshl_add_u32 v6, v6, 4, v4
v_lshl_add_u32 v7, v7, 4, v4
""")
for p in range(4): E(f"v_add_u32 v{vWD+p}, {p*4*8192 - p*1024}, v{6+(p>>1)}")
M(f"""
s_lshl_b32 s{sM0X}, s{sWave}, 13
s_lshl_b32 s{r.sM0K}, s{sWave}, 12
s_add_u32 s{sM0W}, s{r.sM0K}, 0xC000
s_lshl_b32 s3, s{sHead}, 1
s_mul_i32 s3, s3, {1 if opt['rot'] & 1 else 0}
s_mul_i32 s67, s{sQb}, {1 if opt['rot'] & 2 else 0}
s_add_u32 s3, s3, s67
s_and_b32 s3, s3, 7
s_lshl_b32 s{sXoff}, s3, 7
s_lshl_b32 s{sWoff}, s3, 19
s_mov_b32 s{sX+2}, 0x40000
s_mov_b32 s{sX+3}, 0x20000
s_mov_b32 s{sWq+3}, 0x20000
s_lshl_b32 s3, s{sQb}, 18
s_lshl_b32 s67, s{sHead}, 8
s_sub_u32 s{sWq+2}, 0x400000, s67
s_waitcnt lgkmcnt(0)
s_add_u32 s{sX}, s{pX}, s3
s_addc_u32 s{sX+1}, s{pX+1}, 0
s_add_u32 s{sWq}, s{pWq}, s67
s_addc_u32 s{sWq+1}, s{pWq+1}, 0
s_or_b32 s3, s2, s{sWave}
s_cbranch_scc1 L_nononce
""")
A("s_or_b32 s68, s68, 1"); A("v_mov_b32 v4, 0"); A("v_mov_b32 v5, s68"); A(f"global_store_dword v4, v5, s[{pDbg}:{pDbg+1}] sc1")
E("L_nononce:")
stamp(2)
XSLOT = [0x18000, 0x20000, 0x4000]
def xdma(st):
    L = []
    for p in range(8):
        if p & 3 == 0: L.append(f"s_add_u32 m0, s{sM0X}, {XSLOT[st%3] + (p>>2)*4096}")
        L.append(f"buffer_load_dwordx4 v{vXD+p}, s[{sX}:{sX+3}], s{sXoff} offen offset:{(p&3)*1024}{POL[opt['ntq']]} lds ; x{st}")
    L.append(f"s_add_u32 s{sXoff}, s{sXoff}, 128")
    L.append(f"s_and_b32 s{sXoff}, s{sXoff}, 0x3ff")
    return L
def wdma(st):
    L = [f"s_add_u32 m0, s{sM0W}, {(st%3)*16384}"]
    for p in range(4):
        L.append(f"buffer_load_dwordx4 v{vWD+p}, s[{sWq}:{sWq+3}], s{sWoff} offen offset:{p*1024}{POL[opt['ntw']]} lds ; w{st}")
    L.append(f"s_add_u32 s{sWoff}, s{sWoff}, 0x80000")
    L.append(f"s_and_b32 s{sWoff}, s{sWoff}, 0x3fffff")
    return L
def tagged(L, t): return [l + " ; " + t if l.startswith("buffer") else l for l in L]
def kdma(T): return tagged(X.dma(T & 3)[:5], f"k{T}") + [f"s_add_u32 s{r.sKoff}, s{r.sKoff}, 0x4000"]
def vdma(T): return tagged(X.dma((T + 1) & 3)[5:], f"v{T}") + [f"s_add_u32 s{r.sVoff}, s{r.sVoff}, 0x4000"]
def plain(L):
    for l in L:
        E(l)
        if l.startswith("s_add_u32 m0"): E("s_nop 0")
TL = []
if opt["tlb"]:
    TL = [[f"s_lshl_b32 s67, s{sHead}, 19", f"s_load_dword s64, s[{pK}:{pK+1}], s67", f"s_load_dword s64, s[{pV}:{pV+1}], s67"],
          [f"s_mov_b32 s67, {WS_STAT}", f"s_load_dword s64, s[{pWs}:{pWs+1}], s67", f"s_mov_b32 s68, {WS_XN}", f"s_load_dword s64, s[{pWs}:{pWs+1}], s68"],
          [f"s_load_dword s64, s[{pWr}:{pWr+1}], 0", f"s_load_dword s64, s[{pDbg}:{pDbg+1}], 128", f"s_mov_b32 s67, 0x200000", f"s_load_dword s64, s[{pWq}:{pWq+1}], s67"]]
    if opt["tlb"] > 1:
        TL += [[f"s_load_dword s64, s[{pWg}:{pWg+1}], 0", f"s_load_dword s64, s[{pWu}:{pWu+1}], 0", f"s_load_dword s64, s[{pWd}:{pWd+1}], 0"],
               [f"s_load_dword s64, s[{pWo}:{pWo+1}], 0", f"s_load_dword s64, s[{pWo}:{pWo+1}], s67", f"s_load_dword s64, s[{pOut}:{pOut+1}], 0"],
               [f"s_lshl_b32 s67, s{sQb}, 21", f"s_load_dword s64, s[{pWs}:{pWs+1}], s67", f"s_mov_b32 s68, {WS_PART}", f"s_load_dword s64, s[{pWs}:{pWs+1}], s68"],
               [f"s_mov_b32 s67, {WS_PART + 0x200000}", f"s_load_dword s64, s[{pWs}:{pWs+1}], s67"]]
for l in wdma(0) + xdma(0):
    E(l)
    if l.startswith("s_add_u32 m0"): E("s_nop 0")
    if "lds" in l and TL:
        for f in TL.pop(0): E(f)
stamp(2, False)
M(f"""
v_lshrrev_b32 v4, 1, v2
v_xor_b32 v4, v4, v1
v_lshlrev_b32 v5, 7, v2
v_add_u32 v5, s{sM0X}, v5
v_lshl_add_u32 v6, v4, 4, v5
v_xor_b32 v4, 4, v4
v_lshl_add_u32 v7, v4, 4, v5
v_add_u32 v{vXA}, {XSLOT[0]}, v6
v_add_u32 v{vXA+1}, {XSLOT[0]}, v7
v_add_u32 v{vXA+2}, {XSLOT[2]}, v6
v_add_u32 v{vXA+3}, {XSLOT[2]}, v7
v_lshrrev_b32 v4, 2, v2
v_lshl_add_u32 v5, v1, 3, v4
v_lshlrev_b32 v5, 8, v5
v_and_b32 v63, 3, v0
v_lshl_add_u32 v5, v63, 3, v5
v_add_u32 v5, 0xC000, v5
v_and_b32 v6, 1, v1
v_lshl_add_u32 v60, v6, 2, v4
s_lshl_b32 s67, s{sWave}, 1
""")
for j in range(8):
    E(f"s_add_u32 s3, s67, {j}"); E("s_and_b32 s3, s3, 7")
    E("v_xor_b32 v6, s3, v60"); E(f"v_lshl_add_u32 v{vWA+j}, v6, 5, v5")
M(f"""
v_mov_b32 v62, 0x3f803f80
v_cmp_gt_u32 vcc, 2, v63
v_and_b32 v4, 1, v0
v_mov_b32 v5, 0x44444444
v_mov_b32 v6, 0xeeeeeeee
v_cndmask_b32 v{r.vOne}, 0, v62, vcc
v_cndmask_b32 v{r.vOne+1}, 0, v62, vcc
v_cndmask_b32 v{r.vOne+2}, 0, v62, vcc
v_cndmask_b32 v{r.vOne+3}, 0, v62, vcc
v_cmp_eq_u32 vcc, 1, v4
s_lshl_b32 s3, s{sHead}, 2
s_add_u32 s3, s3, s{sWave}
v_cndmask_b32 v{r.vIdx}, v5, v6, vcc
s_lshl_b32 s{sRow0}, s3, 11
v_lshlrev_b32 v3, 4, v0
""")
for i in range(8): E(f"v_mov_b32 v{vCS+i}, 0")
vTX, vTW, vTK = 52, 53, 54
M(f"""
s_and_b32 s3, s{sHead}, 3
s_lshl_b32 s3, s3, 2
s_add_u32 s3, s3, s{sWave}
s_lshl_b32 s3, s3, 14
v_lshlrev_b32 v{vTX}, 10, v2
v_lshl_add_u32 v{vTX}, v1, 7, v{vTX}
v_add_u32 v{vTX}, s3, v{vTX}
s_lshl_b32 s3, s{sQb}, 2
s_add_u32 s3, s3, s{sWave}
s_lshl_b32 s67, s3, 14
v_lshrrev_b32 v5, 2, v0
v_lshlrev_b32 v5, 19, v5
v_lshl_add_u32 v5, v4, 13, v5
v_bfe_u32 v6, v0, 1, 1
v_lshl_add_u32 v5, v6, 7, v5
v_add_u32 v{vTW}, s67, v5
s_lshl_b32 s3, s3, 9
v_lshrrev_b32 v5, 2, v0
v_lshlrev_b32 v5, 14, v5
v_lshl_add_u32 v5, v63, 7, v5
v_lshl_add_u32 v5, v1, 28, v5
v_add_u32 v{vTK}, s3, v5
""")
TWX = {}
for kinds in eval(opt_s["touch"]).values():
    for k in kinds:
        if k[0] == "w" and len(k) >= 3:
            TWX[k[1:3]] = 3 + len(TWX)
            lo, hi = int(k[1])*4, int(k[2])*4 + 4
            E(f"v_subrev_u32 v5, {lo}, v0"); E(f"v_cmp_gt_u32 vcc, {hi-lo}, v5"); E("v_mov_b32 v5, 0x40000000"); E("s_nop 0")
            E(f"v_cndmask_b32 v{vTW+TWX[k[1:3]]}, v5, v{vTW}, vcc")
def touch(kind):
    if kind[0] == "x": return f"buffer_load_dword v55, v{vTX}, s[{sX}:{sX+3}], 0 offen offset:{int(kind[1])*128} ; t"
    if kind[0] == "w":
        nt_ = " nt" if kind.endswith("n") else ""
        return f"buffer_load_dword v55, v{vTW + (0 if len(kind) < 3 else TWX[kind[1:3]])}, s[{sWq}:{sWq+3}], 0 offen{nt_} ; t"
    if kind[0] == "k": return f"buffer_load_dword v55, v{vTK}, s[{sK}:{sK+3}], 0 offen ; t"
    if kind[0] == "v": return f"buffer_load_dword v55, v{vTK}, s[{sV}:{sV+3}], 0 offen ; t"
TOUCH = eval(opt_s["touch"])
for k in TOUCH.get(-2, ()): E(touch(k))
stamp(2, False)
Q = S.q
Q += f"""v_lshlrev_b32 v61, 8, v1
v_add_u32 v61, s{r.sM0K}, v61
v_xor_b32 v62, v1, v2""".split("\n")
for p in range(4): Q += [f"v_xor_b32 v51, {4*p}, v62", f"v_lshl_add_u32 v{r.vKD+p}, v51, 4, v61"]
Q += ["v_lshlrev_b32 v62, 1, v1", "v_xor_b32 v62, v62, v2"]
for p in range(2): Q += [f"v_xor_b32 v51, {8*p}, v62", f"v_lshl_add_u32 v{r.vVD+p}, v51, 4, v61"]
Q += f"""v_lshrrev_b32 v61, 2, v2
v_lshl_add_u32 v61, v1, 2, v61
v_lshlrev_b32 v61, 8, v61
v_lshl_add_u32 v61, v63, 3, v61
v_add_u32 v61, {r.VBASE}, v61""".split("\n")
for db in range(8): Q += [f"v_xor_b32 v51, {db}, v60", f"v_lshl_add_u32 v{r.vVA+db}, v51, 5, v61"]
Q += ["v_lshrrev_b32 v61, 1, v1", "v_and_b32 v62, 1, v1", "v_lshl_add_u32 v62, v62, 1, v61"]
for s_ in range(4):
    Q += [f"s_add_u32 s68, s{sWave}, {s_}", "s_and_b32 s68, s68, 3", "s_lshl_b32 s68, s68, 2",
          "v_or_b32 v61, s68, v62", "v_xor_b32 v51, v61, v2", "v_lshlrev_b32 v51, 4, v51", f"v_lshl_add_u32 v{r.vKA+s_}, v2, 8, v51",
          "v_xor_b32 v51, v61, v63", "v_lshlrev_b32 v51, 4, v51", f"v_lshl_add_u32 v{vKM+s_}, v63, 8, v51"]
vCA = 124
Q += [f"s_add_u32 s67, s{sM0X}, {XSLOT[1]}", "v_lshl_add_u32 v62, v2, 2, s67", "v_lshlrev_b32 v61, 3, v2",
      f"s_lshl_b32 s47, s{sQb}, 2", f"s_add_u32 s47, s47, s{sWave}", "s_lshl_b32 s47, s47, 9", f"s_add_u32 s47, s47, {WS_STAT}"]
for s_ in range(4):
    Q += [f"s_add_u32 s68, s{sM0X}, {s_*8192}", "s_and_b32 s68, s68, 0x7fff", f"s_add_u32 s68, s68, {XSLOT[1]}", f"v_lshl_add_u32 v{vCA+s_}, v1, 4, s68"]
for i in range(128): Q.append(f"v_accvgpr_write_b32 a{r.aO+i}, 0")
PRE = list(Q); del Q[:]
L1 = []
for st in range(1, opt["pre"]): L1 += wdma(st) + xdma(st)
L1 += f"""buffer_load_dwordx4 v[64:67], v3, s[{sX}:{sX+3}], s{sRow0} offen ; ln
buffer_load_dwordx4 v[68:71], v3, s[{sX}:{sX+3}], s{sRow0} offen offset:1024 ; ln
global_load_dwordx4 v[72:75], v3, s[{pWr}:{pWr+1}] ; ln
global_load_dword v23, v{vCS+2}, s[{pDbg}:{pDbg+1}] sc1 ; ln""".split("\n")
per = -(-len(PRE) // max(1, sum("lds" in l for l in L1)))
for l in L1:
    E(l)
    if l.startswith("s_add_u32 m0"): E("s_nop 0")
    if "lds" in l:
        for f in PRE[:per]: E(f)
        del PRE[:per]
for f in PRE: E(f)
for k in TOUCH.get(-1, ()): E(touch(k))
M(f"""
s_lshl_b32 s3, s{sHead}, 19
s_add_u32 s{sK}, s{pK}, s3
s_addc_u32 s{sK+1}, s{pK+1}, 0
s_mov_b32 s{sK+2}, 0x80000
s_mov_b32 s{sK+3}, 0x20000
s_add_u32 s{sV}, s{pV}, s3
s_addc_u32 s{sV+1}, s{pV+1}, 0
s_mov_b32 s{sV+2}, 0x80000
s_mov_b32 s{sV+3}, 0x20000
s_mov_b32 s{sW}, s{pWs}
s_mov_b32 s{sW+1}, s{pWs+1}
s_mov_b32 s{sW+2}, 0x10000000
s_mov_b32 s{sW+3}, 0x20000
s_mov_b32 s{r.sKoff}, 0
s_mov_b32 s{r.sVoff}, 0
s_mov_b32 s{sSpin}, 0x100000
s_add_u32 s{r.sM0V}, s{r.sM0K}, {r.VBASE}
s_lshl_b32 s3, s{sQb}, 8
s_lshr_b32 s{sRow0}, s{sRow0}, 10
s_add_u32 s{sRow0}, s{sRow0}, s3
""")
stamp(2, False)
aXN = 248
def unpack(dst, src, n=4):
    L = []
    for k in range(n):
        L += [f"v_lshlrev_b32 v{dst+2*k}, 16, v{src+k}", f"v_and_b32 v{dst+2*k+1}, 0xffff0000, v{src+k}"]
    return L
def wave_sum(reg, sdst):
    return [f"v_add_f32_dpp v{reg}, v{reg}, v{reg} {m} bank_mask:0xf" for m in
            ("quad_perm:[1,0,3,2] row_mask:0xf", "quad_perm:[2,3,0,1] row_mask:0xf", "row_half_mirror row_mask:0xf",
             "row_mirror row_mask:0xf", "row_bcast:15 row_mask:0xa", "row_bcast:31 row_mask:0xc")] + [f"v_readlane_b32 s{sdst}, v{reg}, 63"]
def rbf(x): return [f"v_cvt_pk_bf16_f32 v{x}, v{x}, v{x}", f"v_lshlrev_b32 v{x}, 16, v{x}"]
vE, vD, vWr, vO = 32, 40, 112, 120
Q.append([lambda: f"s_waitcnt vmcnt({S.vmn('ln')})", f"v_readfirstlane_b32 s{sNonce}, v23", "s_nop 0", f"s_cmp_eq_u32 s{sNonce}, 0",
          "s_cbranch_scc1 L_nonce_retry", "L_nonce_ok:"])
cold += ["L_nonce_retry:"] + spin("", "L_nonce_ok") + ["v_mov_b32 v48, 0", f"global_load_dword v23, v48, s[{pDbg}:{pDbg+1}] sc1", "s_waitcnt vmcnt(0)",
         f"v_readfirstlane_b32 s{sNonce}, v23", "s_nop 0", f"s_cmp_eq_u32 s{sNonce}, 0", "s_cbranch_scc1 L_nonce_retry", "s_branch L_nonce_ok"]
Q += ["v_mov_b32 v50, 0x3b000000"]
for k in range(2):
    Q += unpack(vE, 64 + 4*k)
    Q += [f"v_add_f32 v{vD+e}, v{vE+2*e}, v{vE+2*e+1}" for e in range(4)]
    Q += [f"v_add_f32 v{vD}, v{vD}, v{vD+1}", f"v_add_f32 v{vD+2}, v{vD+2}, v{vD+3}", f"v_add_f32 v48, v{vD}, v{vD+2}"]
    Q += wave_sum(48, 68) + ["v_mul_f32 v48, s68, v50"]
    Q += [f"v_sub_f32 v{vD+e}, v{vE+e}, v48" for e in range(8)]
    Q += [f"v_mul_f32 v49, v{vD}, v{vD}"] + [f"v_fmac_f32 v49, v{vD+e}, v{vD+e}" for e in range(1, 8)]
    Q += wave_sum(49, 68)
    Q += ["v_mul_f32 v49, s68, v50"] + rbf(49) + ["v_add_f32 v49, 0x3727c5ac, v49"] + rbf(49) + ["v_sqrt_f32 v49, v49"]
    Q += [f"v_mov_b32 v{vO+2*k+1}, s{sNonce}", f"v_cvt_pk_bf16_f32 v{vO+2*k}, v48, v49"]
Q += [f"s_lshl_b32 s68, s{sRow0}, 3", f"s_add_u32 s69, s68, {WS_KEY}", f"s_add_u32 s68, s68, {WS_STAT}"]
Q.append(["s_mov_b64 exec, 1", f"buffer_store_dwordx4 v[{vO}:{vO+3}], off, s[{sW}:{sW+3}], s68 sc1 ; s1", "s_mov_b64 exec, -1"])
Q += unpack(vWr, 72)
for k in range(2):
    Q += unpack(vE, 64 + 4*k) + [f"v_lshlrev_b32 v48, 16, v{vO+2*k}", f"v_and_b32 v49, 0xffff0000, v{vO+2*k}", "v_rcp_f32 v49, v49"]
    Q += [f"v_sub_f32 v{vE+e}, v{vE+e}, v48" for e in range(8)]
    Q += [f"v_cvt_pk_bf16_f32 v{vD+e}, v{vE+2*e}, v{vE+2*e+1}" for e in range(4)]
    Q += unpack(vE, vD)
    Q += [f"v_mul_f32 v{vE+e}, v{vE+e}, v49" for e in range(8)]
    Q += [f"v_cvt_pk_bf16_f32 v{vD+e}, v{vE+2*e}, v{vE+2*e+1}" for e in range(4)]
    Q += unpack(vE, vD)
    Q += [f"v_mul_f32 v49, v{vE}, v{vWr}"] + [f"v_fmac_f32 v49, v{vE+e}, v{vWr+e}" for e in range(1, 8)]
    Q += [f"s_lshl_b32 s67, s{sRow0}, 10", f"s_add_u32 s67, s67, {WS_XN}",
          f"buffer_store_dwordx4 v[{vD}:{vD+3}], v3, s[{sW}:{sW+3}], s67 offen offset:{k*1024} sc1 ; s1"]
    Q += wave_sum(49, 68) + [f"s_sub_u32 s67, {2047-k}, s{sRow0}", "v_mov_b32 v49, s68", "v_cvt_pk_bf16_f32 v49, v49, v49",
          "v_ashrrev_i32 v48, 31, v49", "v_or_b32 v48, 0x80000000, v48", "v_xor_b32 v49, v48, v49", "v_and_b32 v49, 0xffff0000, v49",
          f"v_or_b32 v{28+k}, s67, v49", f"v_mov_b32 v{30+k}, s{sNonce}", f"v_readfirstlane_b32 s{sKey0+k}, v{28+k}"]
Q.append(["s_mov_b64 exec, 1", f"buffer_store_dwordx4 v[28:31], off, s[{sW}:{sW+3}], s69 sc1 ; s1", "s_mov_b64 exec, -1"])
NFILL = len(Q); S1 = list(Q); del Q[:]
aXF, aWF = 128, 192
SMF = "v_smfmac_f32_16x16x64_bf16"
def acc(j, qb): return 128 + (3 - (j >> 1))*32 + qb*8 + (j & 1)*4
def xread(st, n):
    qb, ks = n >> 1, n & 1; slot = st % 3
    base = vXA + (2 if slot == 2 else 0) + ks
    off = (XSLOT[slot] - XSLOT[0] if slot != 2 else 0) + qb*2048
    return f"ds_read_b128 {a(aXF+(st&1)*32+n*4,4)}, v{base} offset:{off}"
def wread(st, j, n):
    ks, half = n >> 1, n & 1
    return f"ds_read_b64_tr_b16 {a(aWF+(j&3)*8+ks*4+half*2,2)}, v{vWA+j} offset:{(st%3)*16384 + ks*8192 + half*1024}"
def qmf(st, j):
    L = []
    if j < 2: L.append(f"{SMF} {v(vCS+4*j,4)}, {v(r.vOne,4)}, {a(aWF+(j&3)*8,8)}, v{r.vIdx}")
    for qb in range(4):
        for t in range(2):
            ks = t ^ (qb & 1)
            D = v(acc(j, qb), 4); C = "0" if (st == 0 and t == 0) else D
            L.append(f"{MF} {D}, {a(aWF+(j&3)*8+ks*4,4)}, {a(aXF+(st&1)*32+(qb*2+ks)*4,4)}, {C}")
    return L
E(f"s_waitcnt vmcnt({S.vmn('x0', 'w0')}) lgkmcnt(0)")
E("s_barrier")
stamp(3)
for n in range(8): E(xread(0, n))
for j in range(2):
    for n in range(4): E(wread(0, j, n))
pend = []
for st in range(opt["pre"], 3): pend += wdma(st) + xdma(st)
def vmn(*tags):
    assert not any(l.split(";")[-1].strip() in tags for l in pend), (tags, pend)
    return S.vmn(*tags)
def one_dma():
    while pend:
        l = pend.pop(0); E(l)
        if l.startswith("s_add_u32 m0"): E("s_nop 0")
        if l.startswith("buffer"): break
statld = [f"buffer_load_dwordx2 v[{vG+4*qb}:{vG+4*qb+1}], v61, s[{sW}:{sW+3}], s47 offen offset:{qb*128} sc1 ; st" for qb in range(4)]
since = [99]
def dma_slot(j, n, hasds):
    if pend and pend[0].startswith("s_"): return [pend.pop(0)]
    slots = {0: (1, 5, 7), 1: (1, 5, 7), 5: (4, 6), 6: (), 7: ()}.get(j, (1, 5))
    if opt["drate"] == 3: slots = {0: (1, 3, 5, 7), 1: (1, 5, 7), 5: (4, 6), 6: (), 7: ()}.get(j, (1, 3, 5))
    if pend and not hasds and (n in slots or "lds" not in pend[0]): return [pend.pop(0)]
    return []
vC = r.vL
def csread(s_): return [f"ds_read_b128 {v(vC+(s_&1)*8+4*jj,4)}, v{vCA+s_} offset:{jj*64}" for jj in range(2)]
CL2E = 1.4426950408889634 / (128 ** 0.5)
E("s_waitcnt lgkmcnt(4)")
for st in range(8):
    pend[0:0] = [touch(k) for k in TOUCH.get(st, ())]
    if st + 3 < 8: pend += xdma(st + 3)
    if st == 5:
        pend += kdma(0)

    for j in range(8):
        L = qmf(st, j)
        if st*8 + j == opt["s1st"]: Q += S1
        ds = [None] * len(L); last = []
        if j < 6:
            o = 0
            for n in range(4): ds[o + (n if j == 5 else 2*n)] = wread(st, j + 2, n)
            if j < 5: last = ["s_waitcnt lgkmcnt(4)"]
            elif st < 7:
                tags = [f"x{st+1}", f"w{st+1}"]
                last = [lambda tags=tags: f"s_waitcnt vmcnt({vmn(*tags)}) lgkmcnt(0)", "s_barrier"]
            else: last = [lambda: f"s_waitcnt vmcnt({vmn('k0', 'st')}) lgkmcnt(0)", "s_barrier"]
        elif st < 7:
            seq = [xread(st + 1, n) for n in range(4)] + [wread(st + 1, 0, n) for n in range(4)] if j == 6 else \
                  [xread(st + 1, 4 + n) for n in range(4)] + [wread(st + 1, 1, n) for n in range(4)]
            ds = seq
            if j == 7: last = ["s_waitcnt lgkmcnt(4)"]
        else:
            seq = csread(0) + csread(1) + [f"ds_read_b128 {a(aWF+4*s_,4)}, v{vKM+s_}" for s_ in range(4)] if j == 6 else \
                  [X.kread(0, i) for i in range(8)]
            ds = seq
        if st == 7 and j == 2:
            Q += [f"v_add_f32 v{vCS}, v{vCS}, v{vCS+1}", f"v_add_f32 v{vCS+4}, v{vCS+4}, v{vCS+5}",
                  f"ds_write2_b32 v62, v{vCS}, v{vCS+4} offset0:0 offset1:16"]
        if st == 7 and j == 6:
            assert not Q, len(Q)
            Q.append([f"v_xor_b32 v{vG+2}, s{sNonce}, v{vG+1}", f"v_xor_b32 v{vG+6}, s{sNonce}, v{vG+5}"])
            Q.append([f"v_xor_b32 v{vG+10}, s{sNonce}, v{vG+9}", f"v_xor_b32 v{vG+14}, s{sNonce}, v{vG+13}"])
            del Q[:]
            chk = [f"v_xor_b32 v{vG+4*qb+2}, s{sNonce}, v{vG+4*qb+1}" for qb in range(4)] + \
                  [f"v_or3_b32 v{vG+2}, v{vG+2}, v{vG+6}, v{vG+10}", f"v_or_b32 v{vG+2}, v{vG+2}, v{vG+14}", f"v_cmp_ne_u32 vcc, 0, v{vG+2}"]
            Q += chk + ["s_cbranch_vccnz L_stat_retry", "L_stat_ok:"]
            cold += ["L_stat_retry:"] + spin("", "L_stat_ok") + [l.split(";")[0] for l in statld] + ["s_waitcnt vmcnt(0)"] + chk + ["s_cbranch_vccnz L_stat_retry", "s_branch L_stat_ok"]
            P_ = []
            for qb in range(4):
                g = vG + 4*qb
                P_.append([f"v_and_b32 v{g+1}, 0xffff0000, v{g}", f"v_lshlrev_b32 v{g}, 16, v{g}", f"v_rcp_f32 v{g+1}, v{g+1}",
                           f"v_sub_f32 v{g}, 0, v{g}", f"v_mul_f32 v{g+1}, {fbits(CL2E)}, v{g+1}"])
            for tup in zip(*P_): Q += list(tup)
        for n, m in enumerate(L):
            lead = []
            if n == len(L) - 1 and last:
                lead = ([ds[n]] if ds[n] else []) + last
            else:
                lead = dma_slot(j, n, ds[n] is not None) + ([ds[n]] if ds[n] else [])
            S.gap(m, lead)
        if j == 5:
            stamp(2)
            if st + 3 < 8: pend += wdma(st + 3)
            if st == 6: assert not Q, len(Q)
            if st == 5: pend += kdma(1) + vdma(0) + kdma(2)
            if st == 6: pend[0:0] = statld; pend += vdma(1) + kdma(3) + vdma(2)
print("fillers", NFILL, "left", len(Q), "dma left", len(pend), file=sys.stderr)
for i in range(8, 16): E(X.kread(0, i))
S.drain()
stamp(3)
for s_ in range(4):
    E("s_waitcnt lgkmcnt(0)" if s_ != 1 else "s_nop 0")
    for qb in range(4):
        b = acc(2*s_, qb); st = vG + 4*qb
        for e in range(4):
            E(f"v_pk_fma_f32 v[{b+2*e}:{b+2*e+1}], v[{vC+(s_&1)*8+2*e}:{vC+(s_&1)*8+2*e+1}], v[{st}:{st+1}], v[{b+2*e}:{b+2*e+1}] op_sel:[0,0,0] op_sel_hi:[1,0,1]")
        if qb == 3 and s_ + 2 < 4:
            for l in csread(s_ + 2): E(l)
        for e in range(4):
            E(f"v_pk_mul_f32 v[{b+2*e}:{b+2*e+1}], v[{b+2*e}:{b+2*e+1}], v[{st}:{st+1}] op_sel:[0,1] op_sel_hi:[1,1]")
        q = r.vQ + qb*16 + s_*4
        for e in range(4): E(f"v_cvt_pk_bf16_f32 v{q+e}, v{b+2*e}, v{b+2*e+1}")
        one_dma()
    for qb in range(4):
        q = r.vQ + qb*16 + s_*4
        E(f"v_permlane16_swap_b32 v{q}, v{q+2}"); E(f"v_permlane16_swap_b32 v{q+1}, v{q+3}")
plain(pend); del pend[:]
stamp(2)
Q += [f"v_mov_b32 v{r.vL+i}, 0" for i in range(16)]
for qb in range(4):
    for s_ in range(4):
        D = v(r.vS + 48 + 4*qb, 4)
        S.gap(f"{MF} {D}, {a(aWF+4*s_,4)}, {v(r.vQ+qb*16+s_*4,4)}, {'0' if s_ == 0 else D}")
    if qb == 1:
        for q2 in range(4):
            b = r.vS + 48 + 4*q2
            Q += [f"v_max3_f32 v{b}, v{b}, v{b+1}, v{b+2}", f"v_max_f32 v{b}, v{b}, v{b+3}"] + [f"v_sub_f32 v{r.vM+4*q2+e}, 0, v{b}" for e in range(4)]
            if q2 == 1: hold = len(Q)
        tail = Q[hold:]; del Q[hold:]
Q += tail
S.drain()
E("s_nop 1")
stamp(3)
NT = 32
def emit_gaps(T, lo, hi, lead, mf):
    F = X.fillers(T, NT)
    for g in range(lo, hi):
        m = mf(g)
        if m: E(m)
        for f in lead.get(g, []):
            E(f)
            if not m and f.startswith("s_add_u32 m0"): E("s_nop 0")
        fs = F[g]
        if m and T == 0 and not fs and not lead.get(g): E("s_nop 0")
        if not m and fs and fs[0].startswith("v_cvt"): E("s_nop 0")
        for f in fs: E(f)
def gapsets(lo, hi):
    F = X.fillers(1, NT)
    ex = [g for g in range(lo, hi) if g in X.isexp]
    cv = [g for g in range(lo, hi) if g not in X.isexp and F[g]]
    em = [g for g in range(lo, hi) if g not in X.isexp and not F[g]]
    return ex, cv, em
NVE = 6
def pv_part(T, dmaslot, salu):
    lead = {}
    ex, cv, em = gapsets(64, 132)
    fg = sorted(cv + em)
    late = fg[-NVE:]
    em_e = [g for g in em if g not in late]
    L = X.dma(dmaslot) if dmaslot is not None else []
    dm = [L[i] for i in (1, 2, 3, 4, 6, 7, 8, 9)] if L else []
    step = len(em_e) / 8.0
    dg = [em_e[min(len(em_e) - 1, int(i*step) + 1)] for i in range(8)] if dm else []
    assert len(set(dg)) == len(dg)
    for s_, g in zip(dm, dg): lead.setdefault(g, []).append(s_)
    kg = [g for g in fg if g not in late and g not in dg]
    if T + 1 < NT:
        assert len(kg) >= 16
        for i in range(16): lead.setdefault(kg[i], []).append(X.kread(T + 1, i))
    if L:
        for mi, first in ((0, 0), (5, 4)):
            g = max(x for x in ex if x < dg[first]); lead.setdefault(g, []).append(L[mi])
            if first: assert g > dg[3]
        after = [x for x in ex if x > dg[7]]
        sal = [f"s_add_u32 s{r.sKoff}, s{r.sKoff}, s{r.sKinc}", f"s_add_u32 s{r.sVoff}, s{r.sVoff}, s{r.sVinc}"] + list(salu)
    else:
        after = ex[-8:]; sal = list(salu)
    assert len(after) > len(sal)
    for s_, g in zip(sal, after): lead.setdefault(g, []).append(s_)
    if T < NT:
        for i, g in enumerate(late): lead.setdefault(g, []).append(X.vread(T, i))
    assert 131 not in late
    if T + 1 < NT: lead.setdefault(131, []).insert(0, f"s_waitcnt lgkmcnt({NVE})")
    emit_gaps(T, 64, 132, lead, lambda g: X.pv(T - 1, g - 64) if T >= 1 else None)
def qk_part(T, sync=True):
    lead = {}
    ex, cv, em = gapsets(0, 64)
    fg = sorted(cv + em)
    if T >= 1:
        for i in range(NVE, 32): lead.setdefault(fg[i - NVE], []).append(X.vread(T - 1, i))
    if sync:
        lead.setdefault(63, []).append("s_waitcnt vmcnt(16) lgkmcnt(0)")
        lead[63].append("s_barrier")
    emit_gaps(T, 0, 64, lead, lambda g: X.qk(g) if T < NT else None)
assert S.vmn("k1", "v0") >= 16
r.sKinc, r.sVinc = 34, 35
sMask2, sMask4 = 62, 63
sQt, sNt = 47, 32
sChunk = 69
def wpiece(n, a0):
    p = (pWg, pWu)[n >> 1]
    return f"""s_cmp_eq_u32 s{sChunk}, -1
s_cbranch_scc1 L_wp{n}
s_mul_i32 s3, s{sWave}, {128*3584}
s_lshl_b32 s67, s{sChunk}, 4
s_add_u32 s3, s3, s67
s_add_u32 s3, s3, {(n & 1)*64*3584}
s_lshr_b32 s68, s{r.sM0K}, 1
v_mul_u32_u24 v{a0}, 3584, v0
s_add_u32 m0, s68, {0x24000 + (n >> 1)*0x2000 + (n & 1)*0x400}
v_add_u32 v{a0}, s3, v{a0}
global_load_lds_dwordx4 v{a0}, s[{p}:{p+1}]""".split("\n")
HOOK = {}
M(f"""
v_mov_b32 v1, v20
v_mov_b32 v2, v21
s_mov_b32 s{r.sKinc}, 0x4000
s_mov_b32 s{r.sVinc}, 0x4000
s_mov_b32 s{sMask2}, MASK2
s_mov_b32 s{sMask4}, MASK4
""")
if opt["varb"]:
    M(f"""
    s_and_b32 s3, s2, 6
    s_lshl_b32 s3, s3, 2
    s_lshr_b32 s{sQt}, s2, 5
    s_add_u32 s{sQt}, s{sQt}, s3
    s_bfe_u32 s{sNt}, s2, 0x20003
    s_and_b32 s3, s2, 1
    s_lshl_b32 s3, s3, 2
    s_add_u32 s{sNt}, s{sNt}, s3
    """)
else:
    M(f"""
    s_and_b32 s3, s2, 7
    s_lshl_b32 s3, s3, 2
    s_lshr_b32 s{sQt}, s2, 6
    s_add_u32 s{sQt}, s{sQt}, s3
    s_bfe_u32 s{sNt}, s2, 0x30003
    """)
M(f"""
s_lshl_b32 s3, s{sNt}, 7
s_lshl_b32 s67, s{sWave}, 20
s_add_u32 s3, s3, s67
s_add_u32 s{sWq}, s{pWo}, s3
s_addc_u32 s{sWq+1}, s{pWo+1}, 0
s_sub_u32 s{sWq+2}, 0x400000, s3
""")
r.vVDl = [20, 21, 1, 2]
qk_part(0)
if opt["moe"]:
    M(f"""
    s_add_u32 m0, s{r.sM0K}, 0x20000
    s_add_u32 s3, s{r.sM0K}, {WS_KEY}
    """)
    for p in range(4): E(f"buffer_load_dwordx4 v3, s[{sW}:{sW+3}], s3 offen offset:{p*1024} sc1 lds")
    M(f"""
    s_and_b32 s3, s2, 7
    s_mul_i32 s3, s3, 28
    s_lshr_b32 s67, s2, 3
    s_add_u32 s{sChunk}, s3, s67
    s_cmp_ge_u32 s67, 28
    s_cselect_b32 s{sChunk}, -1, s{sChunk}
    """)
    for l in wpiece(0, 60) + ["L_wp0:"]: E(l)
pv_part(0, 0, [f"s_mov_b32 s{r.sIt}, 0"])
stamp(3)
A.raw(".p2align 6")
A.label("L_loop")
for u in range(1, 5):
    qk_part(u)
    sal = []
    if u == 2: sal = [f"s_bitcmp1_b32 s{sMask2}, s{r.sIt}"]
    if u == 3: sal = [f"s_cmp_ge_u32 s{r.sIt}, 6"]
    if u == 4: sal = [f"s_add_u32 s{r.sIt}, s{r.sIt}, 1", f"s_bitcmp1_b32 s{sMask4}, s{r.sIt}"]
    pv_part(u, u & 3, sal)
    if u == 2: E("s_cbranch_scc1 L_disp2"); E("L_ret2:")
    if u == 3: E("s_cbranch_scc1 L_disp3"); E("L_ret3:")
E("s_cbranch_scc0 L_loop")
E("s_branch L_disp4")
def wo_voff(dst):
    return f"""v_lshrrev_b32 v60, 3, v0
v_and_b32 v61, 7, v0
v_lshrrev_b32 v62, 1, v60
v_lshlrev_b32 v62, 1, v62
v_xor_b32 v62, v62, v61
v_lshlrev_b32 v62, 4, v62
v_lshl_add_u32 v{dst[0]}, v60, 10, v62""".split("\n") + [f"v_add_u32 v{dst[p]}, {7168*p}, v{dst[0]}" for p in range(1, 4)]
HOOK[27] = wo_voff([r.vKD + p for p in range(4)]) + [f"s_mov_b32 s{sK}, s{sWq}", f"s_mov_b32 s{sK+1}, s{sWq+1}", f"s_mov_b32 s{sK+2}, s{sWq+2}",
            f"s_mov_b32 s{r.sKoff}, 0", f"s_mov_b32 s{r.sKinc}, 0x8000"]
HOOK[28] = [f"v_mov_b32 v{r.vVDl[p]}, v{r.vKD+p}" for p in range(4)] + [f"s_mov_b32 s{sV}, s{sWq}", f"s_mov_b32 s{sV+1}, s{sWq+1}", f"s_mov_b32 s{sV+2}, s{sWq+2}",
            f"s_mov_b32 s{r.sVoff}, 0x10000", f"s_mov_b32 s{r.sKinc}, 0x10000", f"s_mov_b32 s{r.sVinc}, 0x10000"]
def H(T, txt): HOOK.setdefault(T, []).extend(l.strip() for l in txt.strip().split("\n") if l.strip())
SEL = [4, 5, 6, 7, 42, 43, 48, 49]; sSelMine = 66
TF, TP = opt['TF'], opt['TP']
NLOG2E = fbits(-1.4426950408889634)
if opt["moe"]:
    KQ = [128 + 4*n for n in range(15)] + [224]
    chk = ["v_mov_b32 v228, 0"] + [f"v_bitop3_b32 v228, v228, v{q+2}, s{sNonce} bitop3:0xf6" for q in KQ] + ["v_cmp_ne_u32 vcc, 0, v228"]
    H(2, "v_add_u32 v229, 0x20000, v3")
    HOOK[2] += [f"ds_read_b128 {v(q,4)}, v229 offset:{n*1024}" for n, q in enumerate(KQ)] + wpiece(1, 230) + ["L_wp1:", "s_waitcnt lgkmcnt(0)"] + chk
    H(2, f"""s_cbranch_vccnz L_key_retry
    L_key_ok:
    v_max_u32 v228, v{KQ[0]}, v{KQ[0]+1}""")
    HOOK[2] += [f"v_max3_u32 v228, v228, v{q}, v{q+1}" for q in KQ[1:]]
    H(2, f"""v_cmp_lt_u32 vcc, s{sKey0}, v228
    s_bcnt1_i32_b64 s3, vcc
    v_cmp_lt_u32 vcc, s{sKey0+1}, v228
    s_bcnt1_i32_b64 s67, vcc
    s_min_u32 s3, s3, s67
    s_cmp_lt_u32 s3, 8
    s_cbranch_scc1 L_rank
    L_rank_done:""")
    cold += ["L_key_retry:"] + spin("", "L_key_ok")
    for n, q in enumerate(KQ):
        if n % 4 == 0: cold += [f"s_mov_b32 s3, {WS_KEY + n*1024}"]
        cold += [f"buffer_load_dwordx4 {v(q,4)}, v3, s[{sW}:{sW+3}], s3 offen offset:{(n%4)*1024} sc1"]
    cold += ["s_waitcnt vmcnt(0)"] + chk + ["s_cbranch_vccnz L_key_retry", "s_branch L_key_ok"]
    cold += ["L_rank:", "s_mov_b32 s4, 0", "L_rank_row:", "s_mov_b32 s68, 0"]
    for q in KQ:
        for e in range(2): cold += [f"v_cmp_lt_u32 vcc, s{sKey0}, v{q+e}", "s_bcnt1_i32_b64 s3, vcc", "s_add_u32 s68, s68, s3"]
    cold += f"""s_cmp_ge_u32 s68, 8
s_cbranch_scc1 L_rank_next
s_not_b32 s3, s{sKey0}
s_xor_b32 s67, s{sKey0}, 0x80000000
s_bitcmp1_b32 s{sKey0}, 31
s_cselect_b32 s3, s67, s3
s_and_b32 s3, s3, 0xffff0000
v_mov_b32 v230, {NLOG2E}
v_mul_f32 v230, s3, v230
v_exp_f32 v230, v230
s_add_u32 s67, s{sRow0}, s4
v_add_f32 v230, 1.0, v230
v_rcp_f32 v230, v230
s_lshl_b32 s68, s68, 3
v_cvt_pk_bf16_f32 v230, v230, v230
v_and_b32 v230, 0xffff0000, v230
v_or_b32 v230, s67, v230
v_mov_b32 v231, s{sNonce}
s_add_u32 s68, s68, {WS_SEL}
s_mov_b64 exec, 1
buffer_store_dwordx2 v[230:231], off, s[{sW}:{sW+3}], s68 sc1
s_mov_b64 exec, -1
L_rank_next:
s_mov_b32 s{sKey0}, s{sKey0+1}
s_add_u32 s4, s4, 1
s_cmp_lt_u32 s4, 2
s_cbranch_scc1 L_rank_row
s_branch L_rank_done""".split("\n")
    selld = f"buffer_load_dwordx2 v[60:61], v128, s[{sW}:{sW+3}], 0 offen sc1"
    seladdr = ["v_and_b32 v128, 7, v0", "v_lshlrev_b32 v128, 3, v128", f"v_add_u32 v128, {WS_SEL}, v128"]
    HOOK[4] = seladdr + [selld]
    HOOK[4] += wpiece(2, 128)
    H(4, f"""v_lshrrev_b32 v130, 4, v0
    v_and_b32 v131, 15, v0
    v_lshlrev_b32 v131, 4, v131
    v_lshl_add_u32 v130, v130, 10, v131
    s_lshl_b32 s3, s{sChunk}, 13
    s_lshl_b32 s67, s{sWave}, 8
    s_add_u32 s3, s3, s67
    v_add_u32 v130, s3, v130
    s_add_u32 m0, s68, 0x22000
    v_add_u32 v131, 4096, v130
    global_load_lds_dwordx4 v130, s[{pWd}:{pWd+1}]
    s_add_u32 m0, s68, 0x22400
    s_nop 0
    global_load_lds_dwordx4 v131, s[{pWd}:{pWd+1}]
    L_wp2:""")
    H(6, f"""s_waitcnt vmcnt(16)
    v_cmp_ne_u32 vcc, s{sNonce}, v61
    s_cbranch_vccnz L_sel_retry
    L_sel_ok:
    s_lshr_b32 s3, s2, 5
    v_and_b32 v128, 0xffff, v60
    v_readlane_b32 s{sSelMine}, v60, s3""")
    HOOK[6] += [f"v_readlane_b32 s{SEL[t]}, v128, {t}" for t in range(8)]
    H(6, f"""v_lshrrev_b32 v129, 4, v0
    v_bfe_u32 v130, v0, 3, 1
    v_lshlrev_b32 v129, 4, v129
    v_lshl_add_u32 v129, v130, 6, v129
    v_lshl_add_u32 v128, v128, 10, v129
    s_lshl_b32 s3, s{sWave}, 8
    s_add_u32 s3, s3, {WS_XN}
    s_lshr_b32 s68, s{r.sM0K}, 1
    s_add_u32 m0, s68, 0x20000
    s_add_u32 s67, s3, 128
    buffer_load_dwordx4 v128, s[{sW}:{sW+3}], s3 offen sc1 lds
    s_add_u32 m0, s68, 0x20400
    s_nop 0
    buffer_load_dwordx4 v128, s[{sW}:{sW+3}], s67 offen sc1 lds""")
    HOOK[6] += wpiece(3, 129) + ["L_wp3:"]
    cold += ["L_sel_retry:"] + spin("", "L_sel_ok") + seladdr + [selld, "s_waitcnt vmcnt(0)", f"v_cmp_ne_u32 vcc, s{sNonce}, v61",
             "s_cbranch_vccnz L_sel_retry", "s_branch L_sel_ok"]
    H(8, f"""s_cmp_eq_u32 s{sChunk}, -1
    s_cbranch_scc1 L_h8_done
    s_lshr_b32 s68, s{r.sM0K}, 1
    v_lshrrev_b32 v224, 4, v0
    v_and_b32 v225, 15, v0
    v_lshrrev_b32 v226, 2, v225
    v_and_b32 v227, 3, v0
    v_lshl_add_u32 v228, v224, 3, v226
    v_lshlrev_b32 v228, 4, v228
    v_and_b32 v229, 1, v0
    v_lshl_add_u32 v228, v229, 3, v228
    v_bfe_u32 v229, v0, 1, 1
    v_lshl_add_u32 v228, v229, 13, v228
    s_add_u32 s3, s68, 0x24000
    v_add_u32 v228, s3, v228
    v_and_b32 v229, 0x37, v0
    s_add_u32 s3, s68, 0x20000
    v_lshl_add_u32 v229, v229, 4, s3
    v_lshl_add_u32 v230, v224, 1, v226
    v_and_b32 v230, 7, v230
    v_lshlrev_b32 v230, 8, v230
    v_lshl_add_u32 v230, v227, 3, v230
    s_add_u32 s67, s68, 0x22000
    v_add_u32 v230, s67, v230
    STAMP
    s_waitcnt vmcnt(16)
    STAMP""")
    for ks in range(4):
        HOOK[8] += [f"ds_read_b64_tr_b16 v[{128+4*ks}:{129+4*ks}], v228 offset:{ks*512}", f"ds_read_b64_tr_b16 v[{130+4*ks}:{131+4*ks}], v228 offset:{ks*512+64}",
                    f"ds_read_b128 {v(144+4*ks,4)}, v229 offset:{(ks>>1)*1024 + (ks&1)*128}"]
    H(8, f"""v_lshl_add_u32 v231, v0, 4, s3
    v_lshrrev_b32 v232, 1, v224
    v_lshl_add_u32 v232, v232, 4, v225
    v_lshlrev_b32 v232, 4, v232
    v_and_b32 v233, 1, v224
    v_lshl_add_u32 v232, v233, 3, v232
    v_add_u32 v232, 0x20000, v232
    s_waitcnt lgkmcnt(0)""")
    for ks in range(4): HOOK[8] += [f"{MF} v[160:163], {v(128+4*ks,4)}, {v(144+4*ks,4)}, {'0' if ks == 0 else 'v[160:163]'}"]
    HOOK[8] += [f"ds_read_b64_tr_b16 v[{164+2*nb}:{165+2*nb}], v230 offset:{nb*32}" for nb in range(8)]
    H(8, f"""ds_write_b128 v231, v[160:163]
    s_waitcnt lgkmcnt(0)
    STAMP
    s_barrier
    STAMP""")
    for src in range(4):
        HOOK[8] += [f"ds_read_b64 v[{128+4*src}:{129+4*src}], v232 offset:{src*2048}", f"ds_read_b64 v[{130+4*src}:{131+4*src}], v232 offset:{src*2048+512}"]
    H(8, f"""v_mul_u32_u24 v233, {32*224*64//16}, v225
    v_add_u32 v233, v233, v224
    v_lshlrev_b32 v233, 4, v233
    s_mul_i32 s3, s{sWave}, {8*224*64}
    s_lshl_b32 s67, s{sChunk}, 6
    s_add_u32 s3, s3, s67
    s_add_u32 s3, s3, {WS_PART}
    v_mov_b32 v145, 0
    s_waitcnt lgkmcnt(0)""")
    for e in range(4): HOOK[8] += [f"v_add_f32 v{128+e}, v{128+e}, v{132+e}", f"v_add_f32 v{136+e}, v{136+e}, v{140+e}"]
    for e in range(4): HOOK[8] += [f"v_add_f32 v{128+e}, v{128+e}, v{136+e}"]
    H(8, f"""v_cvt_pk_bf16_f32 v132, v128, v129
    v_cvt_pk_bf16_f32 v133, v130, v131""")
    HOOK[8] += unpack(128, 132, 2)
    H(8, f"""v_mul_f32 v132, {NLOG2E}, v128
    v_mul_f32 v133, {NLOG2E}, v129
    v_exp_f32 v132, v132
    v_exp_f32 v133, v133
    v_add_f32 v132, 1.0, v132
    v_add_f32 v133, 1.0, v133
    v_rcp_f32 v132, v132
    v_rcp_f32 v133, v133
    v_mul_f32 v128, v128, v132
    v_mul_f32 v129, v129, v133
    v_cvt_pk_bf16_f32 v132, v128, v129
    v_lshlrev_b32 v128, 16, v132
    v_and_b32 v129, 0xffff0000, v132
    v_mul_f32 v128, v128, v130
    v_mul_f32 v129, v129, v131
    v_cvt_pk_bf16_f32 v144, v128, v129
    s_nop 1""")
    YD = [128, 132, 136, 140, 148, 152, 156, 160]
    HOOK[8] += [f"v_mfma_f32_16x16x16_bf16 {v(YD[nb],4)}, v[{164+2*nb}:{165+2*nb}], v[144:145], 0" for nb in range(8)]
    H(8, "STAMP\ns_mov_b32 exec_lo, 0x00ff00ff\ns_mov_b32 exec_hi, 0x00ff00ff")
    for nb in range(8):
        HOOK[8] += [f"buffer_store_dwordx4 {v(YD[nb],4)}, v233, s[{sW}:{sW+3}], s3 offen sc1", f"s_add_u32 s3, s3, {224*64}"]
    H(8, "s_mov_b64 exec, -1\nL_h8_done:")
    H(TF, f"""s_cmp_eq_u32 s{sChunk}, -1
    s_cbranch_scc1 L_h10_done
    s_lshl_b32 s3, s{sWave}, 8
    s_add_u32 s3, s3, s{sChunk}
    s_lshl_b32 s3, s3, 2
    s_add_u32 s3, s3, {WS_FC}
    v_mov_b32 v128, s{sNonce}
    s_waitcnt vmcnt(16)
    s_mov_b64 exec, 1
    buffer_store_dword v128, off, s[{sW}:{sW+3}], s3 sc1
    s_mov_b64 exec, -1
    L_h10_done:""")
    fcaddr = ["v_min_u32 v128, 55, v0", "v_lshlrev_b32 v128, 4, v128", "s_bfe_u32 s3, s2, 0x20003", "s_lshl_b32 s3, s3, 10", f"s_add_u32 s3, s3, {WS_FC}"]
    fcld = f"buffer_load_dwordx4 v[60:63], v128, s[{sW}:{sW+3}], s3 offen sc1"
    fcchk = [f"v_xor_b32 v129, s{sNonce}, v60"] + [f"v_bitop3_b32 v129, v129, v{61+e}, s{sNonce} bitop3:0xf6" for e in range(3)] + ["v_cmp_ne_u32 vcc, 0, v129"]
    HOOK.setdefault(TP, []).extend(fcaddr + [fcld])
    HOOK.setdefault(TP + 2, []).extend(["s_waitcnt vmcnt(16)"] + fcchk)
    H(TP + 2, f"""s_cbranch_vccnz L_fc_retry
    L_fc_ok:
    v_lshlrev_b32 v128, 6, v0
    v_cmp_gt_u32 vcc, 32, v0
    v_mov_b32 v129, 0x40000000
    s_mul_i32 s3, s2, {224*64}
    s_lshl_b32 s67, s{sWave}, 4
    s_add_u32 s3, s3, s67
    s_add_u32 s3, s3, {WS_PART}
    v_cndmask_b32 v129, v129, v128, vcc""")
    for k in range(4):
        HOOK[TP + 2] += [f"s_add_u32 m0, s{r.sM0K}, {0x20000 + k*1024}", f"s_add_u32 s67, s3, {k*4096}",
                     f"buffer_load_dwordx4 v{129 if k == 3 else 128}, s[{sW}:{sW+3}], s67 offen sc1 lds"]
    cold += ["L_fc_retry:"] + spin("", "L_fc_ok") + fcaddr + [fcld, "s_waitcnt vmcnt(0)"] + fcchk + ["s_cbranch_vccnz L_fc_retry", "s_branch L_fc_ok"]
    H(TP + 4, f"""s_add_u32 s3, s{r.sM0K}, 0x20000
    v_add_u32 v224, s3, v3
    s_waitcnt vmcnt(16)""")
    HOOK[TP + 4] += [f"ds_read_b128 {v(128+4*k,4)}, v224 offset:{k*1024}" for k in range(4)]
    H(TP + 4, f"""s_lshl_b32 s3, s2, 2
    s_add_u32 s3, s3, s{sWave}
    s_lshl_b32 s3, s3, 4
    s_add_u32 s3, s3, {WS_UPD}
    s_and_b32 s67, s{sSelMine}, 0xffff0000
    s_waitcnt lgkmcnt(0)""")
    for e in range(4): HOOK[TP + 4] += [f"v_add_f32 v{128+e}, v{128+e}, v{132+e}", f"v_add_f32 v{136+e}, v{136+e}, v{140+e}"]
    for e in range(4): HOOK[TP + 4] += [f"v_add_f32 v{128+e}, v{128+e}, v{136+e}"]
    for tup in zip(*[wave_sum(128 + e, 0)[:-1] for e in range(4)]): HOOK[TP + 4] += list(tup)
    H(TP + 4, "v_cvt_pk_bf16_f32 v132, v128, v129\nv_cvt_pk_bf16_f32 v133, v130, v131")
    HOOK[TP + 4] += unpack(128, 132, 2) + [f"v_mul_f32 v{128+e}, s67, v{128+e}" for e in range(4)]
    H(TP + 4, f"""v_cvt_pk_bf16_f32 v132, v128, v129
    v_cvt_pk_bf16_f32 v133, v130, v131
    v_mov_b32 v134, s{sNonce}
    v_mov_b32 v135, s{sNonce}
    s_lshl_b64 exec, 1, 63
    buffer_store_dwordx4 v[132:135], off, s[{sW}:{sW+3}], s3 sc1
    s_mov_b64 exec, -1
    s_nop 0""")
if opt["moeT"] < 18:
    for T in (2, 4, 6, 8, TF, TP, TP + 2, TP + 4):
        if T > opt["moeT"]:
            HOOK[T] = [l for l in HOOK[T] if l.endswith(":")]
    opt["moe"] = 0
if opt["wtouch"]:
    for n, T in enumerate(eval(opt_s["wT"])):
        if opt["varb"]:
            HOOK.setdefault(T, []).extend(["s_and_b32 s3, s2, 0xf8", "s_lshl_b32 s3, s3, 1", f"s_lshl_b32 s67, s{sWave}, 10", "s_add_u32 s3, s3, s67", f"s_add_u32 s3, s3, {512*n}",
                "s_lshl_b32 s3, s3, 1", "s_and_b32 s67, s2, 1", "s_add_u32 s3, s3, s67", "s_lshl_b32 s3, s3, 9",
                "v_lshrrev_b32 v180, 2, v0", "v_and_b32 v181, 3, v0", "v_lshlrev_b32 v181, 7, v181", "v_lshl_add_u32 v180, v180, 10, v181",
                "v_add_u32 v180, s3, v180", f"global_load_dword v23, v180, s[{pWo}:{pWo+1}]"])
        else:
            HOOK.setdefault(T, []).extend(["s_and_b32 s3, s2, 0xf8", f"s_lshl_b32 s67, s{sWave}, 10", "s_add_u32 s3, s3, s67", f"s_add_u32 s3, s3, {256*n}", "s_lshl_b32 s3, s3, 10",
                "v_lshl_add_u32 v180, v0, 7, s3", f"global_load_dword v23, v180, s[{pWo}:{pWo+1}]"])
if opt["stamp"] & 8:
    Ts = eval(opt_s["hs"])
    def st_(i): return [f"{CLK} s[{70+2*i}:{71+2*i}]", "s_waitcnt lgkmcnt(0)"]
    i = 1
    for T in Ts:
        body = []
        for l in HOOK[T]:
            if l.startswith("STAMP"):
                body += st_(i + 1); i += 1
            else: body.append(l)
        k = sum(l.startswith("STAMP") for l in HOOK[T])
        HOOK[T] = st_(i - k) + body + st_(i + 1); i += 2
    nstamp[0] = i
for T in HOOK: HOOK[T] = [l for l in HOOK[T] if not l.startswith("STAMP")]
def emit_hooks():
    m2 = m4 = 0
    for site, ret in ((2, "L_ret2"), (4, "L_loop")):
        Ts = sorted(T for T in HOOK if T % 4 == site % 4)
        E(f"L_disp{site}:")
        for T in Ts[:-1]:
            E(f"s_cmp_eq_u32 s{r.sIt}, {T // 4}"); E(f"s_cbranch_scc1 L_hook{T}")
        for T in Ts[-1:] + Ts[:-1]:
            E(f"L_hook{T}:")
            for l in HOOK[T]: E(l)
            E(f"s_branch {ret}")
        if not Ts: E(f"s_branch {ret}")
        if site == 2: m2 = sum(1 << (T // 4) for T in Ts)
        else: m4 = sum(1 << (T // 4) for T in Ts)
    E("L_hook27:")
    for l in HOOK[27]: E(l)
    E("s_branch L_ret3")
    return m2, m4
E("L_disp3:")
E(f"s_cmp_eq_u32 s{r.sIt}, 6")
E("s_cbranch_scc1 L_hook27")
A.label("L_tail")
S.vm[:] = ["wo0"]*4 + ["v31"]*4 + [f"wo{k}" for k in range(1, 7) for _ in range(4)]
sOoff = 63
vWo, vWr, vOq, vFl = r.vKD, 48, 4, 44
VA, VB, VC, AA, AB, AC, AD = ("v", 64), ("v", 128), ("v", 192), ("a", 0), ("a", 64), ("a", 128), ("a", 192)
def blk(B, off, n): return (v if B[0] == "v" else a)(B[1] + off, n)
WBLK = [AC, VA, AD, VC]; OBLK = [AB, VB]; ACC = AA
NU = 10
UNIT = [0, 1, 5, 2, 6, 3, 7, 8, 9, 4]
def wo_dma(kk):
    L = [f"s_add_u32 m0, s{r.sM0K}, {UNIT[kk % NU]*16384}"]
    L += [f"buffer_load_dwordx4 v{vWo+p}, s[{sWq}:{sWq+3}], s{sWoff} offen offset:{p*1024} lds ; wo{kk}" for p in range(4)]
    L += [f"s_add_u32 s{sWoff}, s{sWoff}, 0x8000"]
    return L
def wo_reads(kk):
    u = UNIT[kk % NU]; B = WBLK[(kk >> 2) & 3]
    return [f"ds_read_b64_tr_b16 {blk(B, (nb*4 + (kk & 3))*4 + 2*half, 2)}, v{vWr + 4*(u >> 2) + nb} offset:{(u & 3)*16384 + half*2048}"
            for nb in range(4) for half in range(2)]
def o_loads(h, qb):
    B = OBLK[h & 1]
    return [f"buffer_load_dwordx4 {blk(B, (qb*4 + i)*4, 4)}, v{vOq+qb}, s[{sW}:{sW+3}], s{sOoff} offen offset:{i*1024} sc1 ; o{h}_{qb}" for i in range(4)]
def o_next(): return [f"s_add_u32 s{sOoff}, s{sOoff}, 0x1000"]
setup = f"""
s_mov_b32 s{sWoff}, {7*0x8000}
s_lshl_b32 s{sOoff}, s{sQt}, 19
s_lshl_b32 s3, s{sWave}, 15
s_add_u32 s{sOoff}, s{sOoff}, s3
v_lshrrev_b32 v1, 4, v0
v_and_b32 v2, 15, v0
v_and_b32 v61, 7, v0
v_lshrrev_b32 v60, 2, v2
v_lshl_add_u32 v60, v1, 2, v60
v_bfe_u32 v62, v60, 1, 2
v_lshlrev_b32 v60, 7, v60
v_and_b32 v63, 3, v0
v_lshl_add_u32 v60, v63, 3, v60
v_add_u32 v60, s{r.sM0K}, v60
""".strip().split("\n")
for nb in range(4):
    setup += [f"v_xor_b32 v3, {nb}, v62", f"v_lshl_add_u32 v{vWr+nb}, v3, 5, v60",
              f"v_add_u32 v{vWr+4+nb}, 0x10000, v{vWr+nb}", f"v_add_u32 v{vWr+8+nb}, 0x20000, v{vWr+nb}"]
setup += [f"v_lshlrev_b32 v{vOq}, 4, v0"] + [f"v_add_u32 v{vOq+qb}, {qb*0x20000}, v{vOq}" for qb in range(1, 4)]
setup += [f"s_lshl_b32 s3, s{sQt}, 5", f"s_lshl_b32 s68, s{sWave}, 3", "s_add_u32 s3, s3, s68", "v_add_u32 v61, s3, v61",
          f"v_lshlrev_b32 v{vFl}, 7, v61", f"v_add_u32 v{vFl}, {WS_FLAG}, v{vFl}"]
qk_part(32, sync=False)
for l in setup: E(l)
E(f"s_waitcnt vmcnt({S.vmn('wo3')}) lgkmcnt(0)")
E("s_barrier")
for kk in range(7, NU): pend += wo_dma(kk)
rd0 = [l for kk in range(4) for l in wo_reads(kk)]
order = [16, 33, 50, 67] + [i for i in range(68) if i % 17 != 16]
Q += [None]
for n, i in enumerate(order):
    lead = []
    if pend and pend[0].startswith("s_"): lead = [pend.pop(0)]
    elif pend and n % (5 if n < 22 else 10) == 1: lead = [pend.pop(0)]
    if not (lead and lead[0].startswith("buffer")) and not (12 <= n < 18): lead += rd0[:2]; del rd0[:2]
    if n == 12:
        del Q[:]
        Q += [f"v_add_f32 v{r.vL+4*qb}, v{r.vL+4*qb}, v{r.vL+4*qb+1}" for qb in range(4)] + [f"v_rcp_f32 v{60+qb}, v{r.vL+4*qb}" for qb in range(4)]
        Q += f"""s_lshl_b32 s3, s{sQb}, 2
s_add_u32 s3, s3, s{sWave}
s_lshl_b32 s69, s3, 5
s_add_u32 s69, s69, s{sHead}
s_lshl_b32 s69, s69, 7
s_add_u32 s69, s69, {WS_FLAG}
s_lshl_b32 s3, s3, 7
s_add_u32 s3, s3, s{sHead}
s_lshl_b32 s68, s3, 12""".split("\n")
    def epi(qb):
        t = r.vS; o = r.vS + 32 + (qb & 1)*16
        L = []
        for i4 in range(4):
            L += [f"v_accvgpr_read_b32 v{t+8*i4+e}, a{r.aO+qb*32+8*i4+e}" for e in range(8)]
            L += [f"v_mul_f32 v{t+8*i4+e}, v{60+qb}, v{t+8*i4+e}" for e in range(8)]
            L += [f"v_cvt_pk_bf16_f32 v{o+4*i4+e}, v{t+8*i4+2*e}, v{t+8*i4+2*e+1}" for e in range(4)]
            L += [f"buffer_store_dwordx4 {v(o+4*i4,4)}, v{vOq+qb}, s[{sW}:{sW+3}], s68 offen offset:{i4*1024} sc1 ; ost"]
        return L
    if n == 24: Q += epi(0)
    if n == 38: Q += epi(1)
    S.gap(X.pv(31, i), lead)
stamp(1)
Q += epi(2) + epi(3)
assert not rd0
nextrd = [4]; nextdma = [NU + 3]
def wo_step(maxrd):
    kk = nextrd[0]
    if kk >= maxrd or any(l.endswith(f"; wo{kk}") for l in pend): return False
    E(f"s_waitcnt vmcnt({S.vmn(f'wo{kk}')})")
    for l in wo_reads(kk): E(l)
    nextrd[0] += 1
    if kk >= 1 and nextdma[0] < 32 and nextdma[0] - NU == kk - 1:
        E("s_waitcnt lgkmcnt(8)")
        pend.extend(wo_dma(nextdma[0])); nextdma[0] += 1
    return True
cnt = 0
while Q:
    f = Q.pop(0)
    while not S.ok(f): E("s_nop 0")
    E(f); cnt += 1
    if cnt % opt["epace"] == 0: one_dma()
stamp(1)
E("s_waitcnt lgkmcnt(0)")
for kk in range(NU, NU + 3): pend.extend(wo_dma(kk))
for _ in range(opt["npost"]):
    wo_step(16)
    for _ in range(4): one_dma()
M(f"""
v_mov_b32 v3, s{sNonce}
s_waitcnt vmcnt({S.vmn('ost')})
s_mov_b64 exec, 1
buffer_store_dword v3, off, s[{sW}:{sW+3}], s69 sc1 ; flag
s_mov_b64 exec, -1
""")
stamp(1)
vXo, vXr, vGp, vSt = 45, 20, 28, 46
M(f"""
s_lshl_b32 s3, s{sQt}, 2
s_add_u32 s3, s3, s{sWave}
s_lshl_b32 s3, s3, 4
v_lshrrev_b32 v60, 2, v0
v_add_u32 v60, s3, v60
v_lshlrev_b32 v61, 3, v60
v_add_u32 v61, {WS_STAT}, v61
s_lshl_b32 s3, s{sNt}, 7
v_and_b32 v63, 3, v0
v_lshl_add_u32 v62, v63, 5, s3
v_lshl_add_u32 v{vXo}, v60, 10, v62
global_load_dwordx4 v[{vXr}:{vXr+3}], v{vXo}, s[{pX}:{pX+1}] ; xf
global_load_dwordx4 v[{vXr+4}:{vXr+7}], v{vXo}, s[{pX}:{pX+1}] offset:16 ; xf
buffer_load_dwordx2 v[{vSt}:{vSt+1}], v61, s[{sW}:{sW+3}], 0 offen sc1 ; xf
""")
vU, vUa, vUt = 128, 144, 145
updld = [f"buffer_load_dwordx4 {v(vU+4*k,4)}, v{vUa}, s[{sW}:{sW+3}], s68 offen offset:{16*k} sc1" for k in range(4)]
updchk = [f"v_xor_b32 v146, s{sNonce}, v{vSt+1}"]
if opt["moe"]:
    E(f"v_mov_b32 v{vUa}, 0x200000")
    for t_ in range(8):
        E(f"v_cmp_eq_u32 vcc, s{SEL[t_]}, v60"); E(f"v_mov_b32 v146, {t_*32}"); E("s_nop 0"); E(f"v_cndmask_b32 v{vUa}, v{vUa}, v146, vcc")
    M(f"""
    v_cmp_gt_u32 vcc, 0x1000, v{vUa}
    v_add_u32 v{vUa}, v{vUa}, v63
    v_lshlrev_b32 v{vUa}, 6, v{vUa}
    v_mov_b32 v146, s{sNonce}
    v_cndmask_b32 v{vUt}, 0, v146, vcc
    v_mov_b32 v146, 0x40000000
    v_cndmask_b32 v{vUa}, v146, v{vUa}, vcc
    s_lshl_b32 s68, s{sNt}, 8
    s_add_u32 s68, s68, {WS_UPD}
    """)
    for l in updld: E(l + " ; xf")
    updchk += [f"v_bitop3_b32 v146, v146, v{vU+4*k+2}, v{vUt} bitop3:0xf6" for k in range(4)]
updchk += ["v_cmp_ne_u32 vcc, 0, v146"]
t = 36
cold += ["L_stf_retry:"] + spin("", "L_stf_ok") + [f"buffer_load_dwordx2 v[{vSt}:{vSt+1}], v61, s[{sW}:{sW+3}], 0 offen sc1"] + (updld if opt["moe"] else []) + ["s_waitcnt vmcnt(0)"] + \
        updchk + ["s_cbranch_vccnz L_stf_retry", "s_branch L_stf_ok"]
G = [lambda: f"s_waitcnt vmcnt({S.vmn('xf')})"] + updchk + ["s_cbranch_vccnz L_stf_retry", "L_stf_ok:", f"v_and_b32 v{vSt+1}, 0xffff0000, v{vSt}", f"v_lshlrev_b32 v{vSt}, 16, v{vSt}", f"v_rcp_f32 v{vSt+1}, v{vSt+1}"]
for hf in range(2):
    G += unpack(t, vXr + 4*hf)
    G += [f"v_sub_f32 v{t+e}, v{t+e}, v{vSt}" for e in range(8)]
    G += [f"v_cvt_pk_bf16_f32 v{8+e}, v{t+2*e}, v{t+2*e+1}" for e in range(4)] + unpack(t, 8)
    G += [f"v_mul_f32 v{t+e}, v{t+e}, v{vSt+1}" for e in range(8)]
    G += [f"v_cvt_pk_bf16_f32 v{8+e}, v{t+2*e}, v{t+2*e+1}" for e in range(4)] + unpack(t, 8)
    if opt["moe"]:
        G += unpack(8, vU + 8*hf, 2) + unpack(12, vU + 8*hf + 4, 2) + [f"v_add_f32 v{t+e}, v{t+e}, v{8+e}" for e in range(8)]
        G += [f"v_cvt_pk_bf16_f32 v{8+e}, v{t+2*e}, v{t+2*e+1}" for e in range(4)] + unpack(t, 8)
    G += [f"v_mul_f32 v{8+e}, {fbits(-1.4426950408889634)}, v{t+e}" for e in range(8)]
    G += [f"v_exp_f32 v{8+e}, v{8+e}" for e in range(8)]
    G += [f"v_add_f32 v{8+e}, 1.0, v{8+e}" for e in range(8)]
    G += [f"v_rcp_f32 v{8+e}, v{8+e}" for e in range(8)]
    G += [f"v_mul_f32 v{t+e}, v{t+e}, v{8+e}" for e in range(8)]
    G += [f"v_cvt_pk_bf16_f32 v{vGp+4*hf+e}, v{t+2*e}, v{t+2*e+1}" for e in range(4)]
def some_g(n):
    while G and n > 0:
        f = G.pop(0)
        if callable(f): f = f()
        while not f.endswith(":") and not S.ok(f): E("s_nop 0")
        E(f); n -= 1
        if f.startswith(("v_cmp", "s_cbranch")): n += 1
ndone = 0
while nextrd[0] < 16:
    assert wo_step(16)
    for _ in range(4):
        one_dma(); ndone += 1
        if ndone > 8: some_g(6)
E("s_waitcnt lgkmcnt(0)")
while nextdma[0] < 16 + NU: pend.extend(wo_dma(nextdma[0])); nextdma[0] += 1
nleft = lambda: sum(l.startswith("buffer") for l in pend)
while nleft() > opt["pollat"]: one_dma(); some_g(6)
E(f"buffer_load_dword v2, v{vFl}, s[{sW}:{sW+3}], 0 offen sc1 ; poll")
while pend: one_dma(); some_g(6)
some_g(999)
stamp(1)
M(f"""
s_waitcnt vmcnt({S.vmn('poll')})
v_cmp_ne_u32 vcc, s{sNonce}, v2
s_cbranch_vccnz L_oflag
L_oflag_ok:
""")
cold += ["L_oflag:"] + spin("", "L_oflag_ok") + [f"buffer_load_dword v2, v{vFl}, s[{sW}:{sW+3}], 0 offen sc1", "s_waitcnt vmcnt(0)",
         f"v_cmp_ne_u32 vcc, s{sNonce}, v2", "s_cbranch_vccnz L_oflag", "s_branch L_oflag_ok"]
stamp(5)
if opt["otouch"]:
    M(f"""
    v_bfe_u32 v60, v0, 2, 2
    v_lshlrev_b32 v60, 17, v60
    v_lshl_add_u32 v60, v1, 12, v60
    v_lshl_add_u32 v60, v63, 7, v60
    s_lshl_b32 s3, s{sNt}, 9
    s_add_u32 s3, s3, s{sOoff}
    s_add_u32 s68, s3, 0x4000
    buffer_load_dword v3, v60, s[{sW}:{sW+3}], s3 offen sc1
    """)
for h in range(2):
    for qb in range(4):
        for l in o_loads(h, qb): E(l)
        if opt["otouch"] and h*4 + qb == opt["otouch"]: E(f"buffer_load_dword v3, v60, s[{sW}:{sW+3}], s68 offen sc1")
    for l in o_next(): E(l)
stamp(1)
rdq = []
for h in range(8):
    Wb, Ob = WBLK[h & 3], OBLK[h & 1]
    for qb in range(4):
        ph, pq = (h, qb - 1) if qb else (h - 1, 3)
        if ph >= 0 and ph + 2 < 8:
            pend.extend(o_loads(ph + 2, pq))
            if pq == 3: pend.extend(o_next())
        if 1 <= h <= 4:
            kk = (h + 3)*4 + qb
            rdq = wo_reads(kk)
            w = [f"s_waitcnt vmcnt({vmn(f'wo{kk}', f'o{h}_{qb}')})"]
        else:
            rdq = []; w = [f"s_waitcnt vmcnt({vmn(f'o{h}_{qb}')})"]
        if h >= 4 and qb == 0 or (1 <= h <= 2): w[0] += " lgkmcnt(0)"
        if 1 <= h <= 2:
            kprev = (h + 3)*4 + qb - 1
            if kprev >= 16 and kprev + NU < 32: pend.extend(wo_dma(kprev + NU))
        E(w[0])
        if qb == 0: stamp(4)
        if h == 6 and qb == 0: E("s_barrier")
        for n in range(16):
            nb, i = n >> 2, n & 3
            if nb & 1: i = 3 - i
            D = blk(ACC, (qb*4 + nb)*4, 4)
            m = f"{MF} {D}, {blk(Wb, (nb*4 + i)*4, 4)}, {blk(Ob, (qb*4 + i)*4, 4)}, {'0' if h == 0 and n & 3 == 0 else D}"
            lead = []
            if n & 1 == 0 and n < 15:
                if pend and pend[0].startswith("s_"): lead.append(pend.pop(0))
                if rdq: lead.append(rdq.pop(0))
            elif pend:
                while pend and pend[0].startswith("s_") and not pend[0].startswith("s_add_u32 m0"): lead.append(pend.pop(0))
                if pend and not pend[0].startswith("s_"): lead.append(pend.pop(0))
            S.gap(m, lead)
        assert not rdq
assert not pend
stamp(5)
M(f"""
s_mul_i32 s3, s{sWave}, 4352
v_lshl_add_u32 v60, v0, 4, s3
s_lshl_b32 s3, s3, 2
v_mul_u32_u24 v61, 1088, v63
v_lshrrev_b32 v62, 2, v0
v_lshl_add_u32 v61, v62, 4, v61
v_add_u32 v61, s3, v61
""")
for qb in range(4):
    for nb in range(4): E(f"ds_write_b128 v60, {blk(ACC, (qb*4+nb)*4, 4)} offset:{qb*4*4352 + nb*1088}")
for l in unpack(128, vXr, 8) + unpack(144, vGp, 8): E(l)
E("s_waitcnt lgkmcnt(0)")
E("s_barrier")
for s_ in range(4):
    for g in range(4): E(f"ds_read_b128 {v(64+s_*16+g*4,4)}, v61 offset:{s_*4352 + g*256}")
E("s_waitcnt lgkmcnt(8)")
for e in range(16): E(f"v_add_f32 v{64+e}, v{64+e}, v{80+e}")
E("s_waitcnt lgkmcnt(0)")
for e in range(16): E(f"v_add_f32 v{96+e}, v{96+e}, v{112+e}")
for e in range(16): E(f"v_add_f32 v{64+e}, v{64+e}, v{96+e}")
for e in range(8): E(f"v_cvt_pk_bf16_f32 v{80+e}, v{64+2*e}, v{65+2*e}")
for l in unpack(64, 80, 8): E(l)
for e in range(16): E(f"v_mul_f32 v{64+e}, v{64+e}, v{144+e}")
for e in range(8): E(f"v_cvt_pk_bf16_f32 v{80+e}, v{64+2*e}, v{65+2*e}")
for l in unpack(64, 80, 8): E(l)
for e in range(16): E(f"v_add_f32 v{64+e}, v{64+e}, v{128+e}")
for e in range(8): E(f"v_cvt_pk_bf16_f32 v{80+e}, v{64+2*e}, v{65+2*e}")
E(f"global_store_dwordx4 v{vXo}, v[80:83], s[{pOut}:{pOut+1}]{POL[opt['ost']]}")
E(f"global_store_dwordx4 v{vXo}, v[84:87], s[{pOut}:{pOut+1}] offset:16{POL[opt['ost']]}")
stamp(1)
if opt["stamp"]: E("s_waitcnt vmcnt(0)")
stamp(1)
if opt["stamp"]:
    M(f"""
    s_lshl_b32 s3, s2, 2
    s_add_u32 s3, s3, s{sWave}
    s_lshl_b32 s3, s3, 7
    s_add_u32 s3, s3, {WS_T}
    v_mov_b32 v3, 0
    """)
    for i in range(32): E(f"v_mov_b32 v{4+i}, s{70+i}" if i < 2*nstamp[0] else f"v_mov_b32 v{4+i}, 0")
    for i in range(8): E(f"buffer_store_dwordx4 v[{4+4*i}:{7+4*i}], v3, s[{sW}:{sW+3}], s3 offen offset:{16*i}")
E("s_endpgm")
m2, m4 = emit_hooks()
for l in cold: E(l)
A.label("L_end")
E("s_endpgm")
A.raw(f""".section .rodata,"a"
.p2align 6
.amdhsa_kernel {KN}_kernel
  .amdhsa_next_free_vgpr 512
  .amdhsa_next_free_sgpr 102
  .amdhsa_accum_offset 256
  .amdhsa_group_segment_fixed_size 0
  .amdhsa_kernarg_size 104
  .amdhsa_user_sgpr_count 2
  .amdhsa_user_sgpr_kernarg_segment_ptr 1
  .amdhsa_system_sgpr_workgroup_id_x 1
  .amdhsa_float_denorm_mode_32 3
.end_amdhsa_kernel""")
txt = A.text().replace("MASK2", hex(m2)).replace("MASK4", hex(m4))
bad = check_hazards(txt)
if bad: print("hazards:", len(bad), file=sys.stderr)
open(sys.argv[1], "w").write(txt)
```

```python
import sys, struct
from attn16 import *
KN = "recurrent_scan__mha_block_cached__moe_arch_mod__prompt"
opt = dict(forcefb=0, ntw=0, ost=0, tlb=0, varb=1, TF=18, TP=22, moeT=99, moe=1, pollat=10, wtouch=1, otouch=0, epace=40, npost=3, rot=0, s1st=5, cyc=0, stamp=0, snake=1, pvchain=1, G0=8, nt=1, ntq=0, sm=1, drate=4, pre=2)
opt_s = dict(touch="{}", hs="(2,4,6,18,22,24,27)", wT="(22,24)")
for x in sys.argv[2:]:
    k, val = x.split("=")
    if k in opt_s: opt_s[k] = val
    else: opt[k] = int(val)
A = Asm(); r = default_regs(); X = Attn(A, r, opt); S = Stream(A); E = S.emit; M = S.many
POL = ["", " nt", " sc1"]
def fbits(x): return hex(struct.unpack("<I", struct.pack("<f", x))[0])
WS_O = 0
WS_STAT = 16 << 20
WS_KEY = WS_STAT + 0x4000
WS_FLAG = WS_STAT + 0x10000
WS_SEL = WS_STAT + 0x8000
WS_FC = WS_STAT + 0x9000
WS_UPD = WS_STAT + 0xC000
WS_XN = 18 << 20
WS_PART = 20 << 20
WS_T = 64 << 20
sX, sK, sV, sW, sWq = 4, 8, 12, 16, 28
sWave, sHead, sQb = 20, 21, 22
sXoff, sWoff, sM0X, sM0W = 34, 35, 62, 63
pX, pK, pV, pWq, pWo, pWr, pWg, pWu, pWd, pOut, pDbg, pWs = 36, 38, 40, 42, 44, 48, 50, 52, 54, 56, 58, 60
sKey0, sRow0, sNonce = 64, 66, 46
sSpin = 33
def spin(label, ok): return [f"s_sub_u32 s{sSpin}, s{sSpin}, 1", f"s_cbranch_scc1 {ok}"]
cold = []
nstamp = [0]
CLK = "s_memtime" if opt["cyc"] else "s_memrealtime"
def stamp(lvl=1, wait=True):
    if opt["stamp"] & lvl and nstamp[0] < 16:
        i = nstamp[0]; nstamp[0] += 1
        E(f"{CLK} s[{70+2*i}:{71+2*i}]")
        if wait: E("s_waitcnt lgkmcnt(0)")

A.raw("; @launch grid=(256,1,1) block=(256,1,1) lds=163840")
A.raw('.amdgcn_target "amdgcn-amd-amdhsa--gfx950"')
A.raw(".text"); A.raw(f".globl {KN}_kernel"); A.raw(".p2align 8"); A.raw(f".type {KN}_kernel,@function")
A.label(f"{KN}_kernel")
M(f"""
s_cmp_ge_u32 s2, 256
s_cbranch_scc1 L_end
s_load_dwordx16 s[36:51], s[0:1], 0
s_load_dwordx8 s[52:59], s[0:1], 64
s_load_dwordx2 s[60:61], s[0:1], 96
s_memrealtime s[68:69]
""")
if opt["stamp"]:
    E(f"{CLK} s[70:71]"); nstamp[0] = 1
M(f"""
s_getpc_b64 s[32:33]
v_lshlrev_b32 v4, 7, v0
v_add_u32 v5, 0x8000, v4
v_min_u32 v5, L_end-{KN}_kernel-128, v5
v_lshrrev_b32 v1, 6, v0
v_and_b32 v0, 63, v0
global_load_dword v23, v4, s[32:33]
global_load_dword v23, v5, s[32:33]
v_readfirstlane_b32 s{sWave}, v1
s_and_b32 s3, s2, 7
s_lshl_b32 s3, s3, 2
s_bfe_u32 s{sHead}, s2, 0x20003
s_or_b32 s{sHead}, s{sHead}, s3
s_lshr_b32 s{sQb}, s2, 5
v_lshrrev_b32 v1, 4, v0
v_and_b32 v2, 15, v0
""")
vXD, vWD, vXA, vWA, vCS, vKM = 76, 84, 88, 92, 100, 108
vSX, vG = r.vL, r.vM
M(f"""
v_lshrrev_b32 v4, 3, v0
s_lshl_b32 s3, s{sWave}, 6
v_add_u32 v4, s3, v4
v_lshlrev_b32 v4, 10, v4
v_and_b32 v5, 7, v0
v_xor_b32 v6, v5, v1
v_xor_b32 v7, 4, v6
v_lshl_add_u32 v6, v6, 4, v4
v_lshl_add_u32 v7, v7, 4, v4
""")
for p in range(8): E(f"v_add_u32 v{vXD+p}, {p*8192 - (p&3)*1024}, v{6+(p&1)}")
M(f"""
s_lshl_b32 s3, s{sWave}, 4
v_add_u32 v4, s3, v1
v_lshlrev_b32 v4, 13, v4
v_lshlrev_b32 v5, 1, v1
v_xor_b32 v6, v5, v2
v_xor_b32 v7, 8, v6
v_lshl_add_u32 v6, v6, 4, v4
v_lshl_add_u32 v7, v7, 4, v4
""")
for p in range(4): E(f"v_add_u32 v{vWD+p}, {p*4*8192 - p*1024}, v{6+(p>>1)}")
M(f"""
s_lshl_b32 s{sM0X}, s{sWave}, 13
s_lshl_b32 s{r.sM0K}, s{sWave}, 12
s_add_u32 s{sM0W}, s{r.sM0K}, 0xC000
s_lshl_b32 s3, s{sHead}, 1
s_mul_i32 s3, s3, {1 if opt['rot'] & 1 else 0}
s_mul_i32 s67, s{sQb}, {1 if opt['rot'] & 2 else 0}
s_add_u32 s3, s3, s67
s_and_b32 s3, s3, 7
s_lshl_b32 s{sXoff}, s3, 7
s_lshl_b32 s{sWoff}, s3, 19
s_mov_b32 s{sX+2}, 0x40000
s_mov_b32 s{sX+3}, 0x20000
s_mov_b32 s{sWq+3}, 0x20000
s_lshl_b32 s3, s{sQb}, 18
s_lshl_b32 s67, s{sHead}, 8
s_sub_u32 s{sWq+2}, 0x400000, s67
s_waitcnt lgkmcnt(0)
s_add_u32 s{sX}, s{pX}, s3
s_addc_u32 s{sX+1}, s{pX+1}, 0
s_add_u32 s{sWq}, s{pWq}, s67
s_addc_u32 s{sWq+1}, s{pWq+1}, 0
s_or_b32 s3, s2, s{sWave}
s_cbranch_scc1 L_nononce
""")
A("s_or_b32 s68, s68, 1"); A("v_mov_b32 v4, 0"); A("v_mov_b32 v5, s68"); A(f"global_store_dword v4, v5, s[{pDbg}:{pDbg+1}] sc1")
E("L_nononce:")
stamp(2)
XSLOT = [0x18000, 0x20000, 0x4000]
def xdma(st):
    L = []
    for p in range(8):
        if p & 3 == 0: L.append(f"s_add_u32 m0, s{sM0X}, {XSLOT[st%3] + (p>>2)*4096}")
        L.append(f"buffer_load_dwordx4 v{vXD+p}, s[{sX}:{sX+3}], s{sXoff} offen offset:{(p&3)*1024}{POL[opt['ntq']]} lds ; x{st}")
    L.append(f"s_add_u32 s{sXoff}, s{sXoff}, 128")
    L.append(f"s_and_b32 s{sXoff}, s{sXoff}, 0x3ff")
    return L
def wdma(st):
    L = [f"s_add_u32 m0, s{sM0W}, {(st%3)*16384}"]
    for p in range(4):
        L.append(f"buffer_load_dwordx4 v{vWD+p}, s[{sWq}:{sWq+3}], s{sWoff} offen offset:{p*1024}{POL[opt['ntw']]} lds ; w{st}")
    L.append(f"s_add_u32 s{sWoff}, s{sWoff}, 0x80000")
    L.append(f"s_and_b32 s{sWoff}, s{sWoff}, 0x3fffff")
    return L
def tagged(L, t): return [l + " ; " + t if l.startswith("buffer") else l for l in L]
def kdma(T): return tagged(X.dma(T & 3)[:5], f"k{T}") + [f"s_add_u32 s{r.sKoff}, s{r.sKoff}, 0x4000"]
def vdma(T): return tagged(X.dma((T + 1) & 3)[5:], f"v{T}") + [f"s_add_u32 s{r.sVoff}, s{r.sVoff}, 0x4000"]
def plain(L):
    for l in L:
        E(l)
        if l.startswith("s_add_u32 m0"): E("s_nop 0")
TL = []
if opt["tlb"]:
    TL = [[f"s_lshl_b32 s67, s{sHead}, 19", f"s_load_dword s64, s[{pK}:{pK+1}], s67", f"s_load_dword s64, s[{pV}:{pV+1}], s67"],
          [f"s_mov_b32 s67, {WS_STAT}", f"s_load_dword s64, s[{pWs}:{pWs+1}], s67", f"s_mov_b32 s68, {WS_XN}", f"s_load_dword s64, s[{pWs}:{pWs+1}], s68"],
          [f"s_load_dword s64, s[{pWr}:{pWr+1}], 0", f"s_load_dword s64, s[{pDbg}:{pDbg+1}], 128", f"s_mov_b32 s67, 0x200000", f"s_load_dword s64, s[{pWq}:{pWq+1}], s67"]]
    if opt["tlb"] > 1:
        TL += [[f"s_load_dword s64, s[{pWg}:{pWg+1}], 0", f"s_load_dword s64, s[{pWu}:{pWu+1}], 0", f"s_load_dword s64, s[{pWd}:{pWd+1}], 0"],
               [f"s_load_dword s64, s[{pWo}:{pWo+1}], 0", f"s_load_dword s64, s[{pWo}:{pWo+1}], s67", f"s_load_dword s64, s[{pOut}:{pOut+1}], 0"],
               [f"s_lshl_b32 s67, s{sQb}, 21", f"s_load_dword s64, s[{pWs}:{pWs+1}], s67", f"s_mov_b32 s68, {WS_PART}", f"s_load_dword s64, s[{pWs}:{pWs+1}], s68"],
               [f"s_mov_b32 s67, {WS_PART + 0x200000}", f"s_load_dword s64, s[{pWs}:{pWs+1}], s67"]]
for l in wdma(0) + xdma(0):
    E(l)
    if l.startswith("s_add_u32 m0"): E("s_nop 0")
    if "lds" in l and TL:
        for f in TL.pop(0): E(f)
stamp(2, False)
M(f"""
v_lshrrev_b32 v4, 1, v2
v_xor_b32 v4, v4, v1
v_lshlrev_b32 v5, 7, v2
v_add_u32 v5, s{sM0X}, v5
v_lshl_add_u32 v6, v4, 4, v5
v_xor_b32 v4, 4, v4
v_lshl_add_u32 v7, v4, 4, v5
v_add_u32 v{vXA}, {XSLOT[0]}, v6
v_add_u32 v{vXA+1}, {XSLOT[0]}, v7
v_add_u32 v{vXA+2}, {XSLOT[2]}, v6
v_add_u32 v{vXA+3}, {XSLOT[2]}, v7
v_lshrrev_b32 v4, 2, v2
v_lshl_add_u32 v5, v1, 3, v4
v_lshlrev_b32 v5, 8, v5
v_and_b32 v63, 3, v0
v_lshl_add_u32 v5, v63, 3, v5
v_add_u32 v5, 0xC000, v5
v_and_b32 v6, 1, v1
v_lshl_add_u32 v60, v6, 2, v4
s_lshl_b32 s67, s{sWave}, 1
""")
for j in range(8):
    E(f"s_add_u32 s3, s67, {j}"); E("s_and_b32 s3, s3, 7")
    E("v_xor_b32 v6, s3, v60"); E(f"v_lshl_add_u32 v{vWA+j}, v6, 5, v5")
M(f"""
v_mov_b32 v62, 0x3f803f80
v_cmp_gt_u32 vcc, 2, v63
v_and_b32 v4, 1, v0
v_mov_b32 v5, 0x44444444
v_mov_b32 v6, 0xeeeeeeee
v_cndmask_b32 v{r.vOne}, 0, v62, vcc
v_cndmask_b32 v{r.vOne+1}, 0, v62, vcc
v_cndmask_b32 v{r.vOne+2}, 0, v62, vcc
v_cndmask_b32 v{r.vOne+3}, 0, v62, vcc
v_cmp_eq_u32 vcc, 1, v4
s_lshl_b32 s3, s{sHead}, 2
s_add_u32 s3, s3, s{sWave}
v_cndmask_b32 v{r.vIdx}, v5, v6, vcc
s_lshl_b32 s{sRow0}, s3, 11
v_lshlrev_b32 v3, 4, v0
""")
for i in range(8): E(f"v_mov_b32 v{vCS+i}, 0")
vTX, vTW, vTK = 52, 53, 54
M(f"""
s_and_b32 s3, s{sHead}, 3
s_lshl_b32 s3, s3, 2
s_add_u32 s3, s3, s{sWave}
s_lshl_b32 s3, s3, 14
v_lshlrev_b32 v{vTX}, 10, v2
v_lshl_add_u32 v{vTX}, v1, 7, v{vTX}
v_add_u32 v{vTX}, s3, v{vTX}
s_lshl_b32 s3, s{sQb}, 2
s_add_u32 s3, s3, s{sWave}
s_lshl_b32 s67, s3, 14
v_lshrrev_b32 v5, 2, v0
v_lshlrev_b32 v5, 19, v5
v_lshl_add_u32 v5, v4, 13, v5
v_bfe_u32 v6, v0, 1, 1
v_lshl_add_u32 v5, v6, 7, v5
v_add_u32 v{vTW}, s67, v5
s_lshl_b32 s3, s3, 9
v_lshrrev_b32 v5, 2, v0
v_lshlrev_b32 v5, 14, v5
v_lshl_add_u32 v5, v63, 7, v5
v_lshl_add_u32 v5, v1, 28, v5
v_add_u32 v{vTK}, s3, v5
""")
TWX = {}
for kinds in eval(opt_s["touch"]).values():
    for k in kinds:
        if k[0] == "w" and len(k) >= 3:
            TWX[k[1:3]] = 3 + len(TWX)
            lo, hi = int(k[1])*4, int(k[2])*4 + 4
            E(f"v_subrev_u32 v5, {lo}, v0"); E(f"v_cmp_gt_u32 vcc, {hi-lo}, v5"); E("v_mov_b32 v5, 0x40000000"); E("s_nop 0")
            E(f"v_cndmask_b32 v{vTW+TWX[k[1:3]]}, v5, v{vTW}, vcc")
def touch(kind):
    if kind[0] == "x": return f"buffer_load_dword v55, v{vTX}, s[{sX}:{sX+3}], 0 offen offset:{int(kind[1])*128} ; t"
    if kind[0] == "w":
        nt_ = " nt" if kind.endswith("n") else ""
        return f"buffer_load_dword v55, v{vTW + (0 if len(kind) < 3 else TWX[kind[1:3]])}, s[{sWq}:{sWq+3}], 0 offen{nt_} ; t"
    if kind[0] == "k": return f"buffer_load_dword v55, v{vTK}, s[{sK}:{sK+3}], 0 offen ; t"
    if kind[0] == "v": return f"buffer_load_dword v55, v{vTK}, s[{sV}:{sV+3}], 0 offen ; t"
TOUCH = eval(opt_s["touch"])
for k in TOUCH.get(-2, ()): E(touch(k))
stamp(2, False)
Q = S.q
Q += f"""v_lshlrev_b32 v61, 8, v1
v_add_u32 v61, s{r.sM0K}, v61
v_xor_b32 v62, v1, v2""".split("\n")
for p in range(4): Q += [f"v_xor_b32 v51, {4*p}, v62", f"v_lshl_add_u32 v{r.vKD+p}, v51, 4, v61"]
Q += ["v_lshlrev_b32 v62, 1, v1", "v_xor_b32 v62, v62, v2"]
for p in range(2): Q += [f"v_xor_b32 v51, {8*p}, v62", f"v_lshl_add_u32 v{r.vVD+p}, v51, 4, v61"]
Q += f"""v_lshrrev_b32 v61, 2, v2
v_lshl_add_u32 v61, v1, 2, v61
v_lshlrev_b32 v61, 8, v61
v_lshl_add_u32 v61, v63, 3, v61
v_add_u32 v61, {r.VBASE}, v61""".split("\n")
for db in range(8): Q += [f"v_xor_b32 v51, {db}, v60", f"v_lshl_add_u32 v{r.vVA+db}, v51, 5, v61"]
Q += ["v_lshrrev_b32 v61, 1, v1", "v_and_b32 v62, 1, v1", "v_lshl_add_u32 v62, v62, 1, v61"]
for s_ in range(4):
    Q += [f"s_add_u32 s68, s{sWave}, {s_}", "s_and_b32 s68, s68, 3", "s_lshl_b32 s68, s68, 2",
          "v_or_b32 v61, s68, v62", "v_xor_b32 v51, v61, v2", "v_lshlrev_b32 v51, 4, v51", f"v_lshl_add_u32 v{r.vKA+s_}, v2, 8, v51",
          "v_xor_b32 v51, v61, v63", "v_lshlrev_b32 v51, 4, v51", f"v_lshl_add_u32 v{vKM+s_}, v63, 8, v51"]
vCA = 124
Q += [f"s_add_u32 s67, s{sM0X}, {XSLOT[1]}", "v_lshl_add_u32 v62, v2, 2, s67", "v_lshlrev_b32 v61, 3, v2",
      f"s_lshl_b32 s1, s{sQb}, 2", f"s_add_u32 s1, s1, s{sWave}", "s_lshl_b32 s1, s1, 9", f"s_add_u32 s1, s1, {WS_STAT}"]
for s_ in range(4):
    Q += [f"s_add_u32 s68, s{sM0X}, {s_*8192}", "s_and_b32 s68, s68, 0x7fff", f"s_add_u32 s68, s68, {XSLOT[1]}", f"v_lshl_add_u32 v{vCA+s_}, v1, 4, s68"]
Q += ["v_mov_b32 v1, v20", "v_mov_b32 v2, v21"]
for i in range(128): Q.append(f"v_accvgpr_write_b32 a{r.aO+i}, 0")
PRE = list(Q); del Q[:]
import re as _re
ADDR = [l for l in PRE if not _re.match(rf"v_\w+ v({vKM}|{vKM+1}|{vKM+2}|{vKM+3}|{vCA}|{vCA+1}|{vCA+2}|{vCA+3}),", l) and "s1" not in l]
L1 = []
for st in range(1, opt["pre"]): L1 += wdma(st) + xdma(st)
L1 += f"""buffer_load_dwordx4 v[64:67], v3, s[{sX}:{sX+3}], s{sRow0} offen ; ln
buffer_load_dwordx4 v[68:71], v3, s[{sX}:{sX+3}], s{sRow0} offen offset:1024 ; ln
global_load_dwordx4 v[72:75], v3, s[{pWr}:{pWr+1}] ; ln
global_load_dword v23, v{vCS+2}, s[{pDbg}:{pDbg+1}] sc1 ; ln""".split("\n")
per = -(-len(PRE) // max(1, sum("lds" in l for l in L1)))
for l in L1:
    E(l)
    if l.startswith("s_add_u32 m0"): E("s_nop 0")
    if "lds" in l:
        for f in PRE[:per]: E(f)
        del PRE[:per]
for f in PRE: E(f)
for k in TOUCH.get(-1, ()): E(touch(k))
M(f"""
s_lshl_b32 s3, s{sHead}, 19
s_add_u32 s{sK}, s{pK}, s3
s_addc_u32 s{sK+1}, s{pK+1}, 0
s_mov_b32 s{sK+2}, 0x80000
s_mov_b32 s{sK+3}, 0x20000
s_add_u32 s{sV}, s{pV}, s3
s_addc_u32 s{sV+1}, s{pV+1}, 0
s_mov_b32 s{sV+2}, 0x80000
s_mov_b32 s{sV+3}, 0x20000
s_mov_b32 s{sW}, s{pWs}
s_mov_b32 s{sW+1}, s{pWs+1}
s_mov_b32 s{sW+2}, 0x10000000
s_mov_b32 s{sW+3}, 0x20000
s_mov_b32 s{r.sKoff}, 0
s_mov_b32 s{r.sVoff}, 0
s_mov_b32 s{sSpin}, 0x100000
s_add_u32 s{r.sM0V}, s{r.sM0K}, {r.VBASE}
s_lshl_b32 s3, s{sQb}, 8
s_lshr_b32 s{sRow0}, s{sRow0}, 10
s_add_u32 s{sRow0}, s{sRow0}, s3
""")
stamp(2, False)
aXN = 248
def unpack(dst, src, n=4):
    L = []
    for k in range(n):
        L += [f"v_lshlrev_b32 v{dst+2*k}, 16, v{src+k}", f"v_and_b32 v{dst+2*k+1}, 0xffff0000, v{src+k}"]
    return L
def wave_sum(reg, sdst):
    return [f"v_add_f32_dpp v{reg}, v{reg}, v{reg} {m} bank_mask:0xf" for m in
            ("quad_perm:[1,0,3,2] row_mask:0xf", "quad_perm:[2,3,0,1] row_mask:0xf", "row_half_mirror row_mask:0xf",
             "row_mirror row_mask:0xf", "row_bcast:15 row_mask:0xa", "row_bcast:31 row_mask:0xc")] + [f"v_readlane_b32 s{sdst}, v{reg}, 63"]
def rbf(x): return [f"v_cvt_pk_bf16_f32 v{x}, v{x}, v{x}", f"v_lshlrev_b32 v{x}, 16, v{x}"]
vE, vD, vWr, vO = 32, 40, 112, 120
Q.append([lambda: f"s_waitcnt vmcnt({S.vmn('ln')})", f"v_readfirstlane_b32 s{sNonce}, v23", "s_nop 0", f"s_cmp_eq_u32 s{sNonce}, 0",
          "s_cbranch_scc1 L_nonce_retry", "L_nonce_ok:"])
cold += ["L_nonce_retry:"] + spin("", "L_nonce_ok") + ["v_mov_b32 v48, 0", f"global_load_dword v23, v48, s[{pDbg}:{pDbg+1}] sc1", "s_waitcnt vmcnt(0)",
         f"v_readfirstlane_b32 s{sNonce}, v23", "s_nop 0", f"s_cmp_eq_u32 s{sNonce}, 0", "s_cbranch_scc1 L_nonce_retry", "s_branch L_nonce_ok"]
Q += ["v_mov_b32 v50, 0x3b000000"]
for k in range(2):
    Q += unpack(vE, 64 + 4*k)
    Q += [f"v_add_f32 v{vD+e}, v{vE+2*e}, v{vE+2*e+1}" for e in range(4)]
    Q += [f"v_add_f32 v{vD}, v{vD}, v{vD+1}", f"v_add_f32 v{vD+2}, v{vD+2}, v{vD+3}", f"v_add_f32 v48, v{vD}, v{vD+2}"]
    Q += wave_sum(48, 68) + ["v_mul_f32 v48, s68, v50"]
    Q += [f"v_sub_f32 v{vD+e}, v{vE+e}, v48" for e in range(8)]
    Q += [f"v_mul_f32 v49, v{vD}, v{vD}"] + [f"v_fmac_f32 v49, v{vD+e}, v{vD+e}" for e in range(1, 8)]
    Q += wave_sum(49, 68)
    Q += ["v_mul_f32 v49, s68, v50"] + rbf(49) + ["v_add_f32 v49, 0x3727c5ac, v49"] + rbf(49) + ["v_sqrt_f32 v49, v49"]
    Q += [f"v_mov_b32 v{vO+2*k+1}, s{sNonce}", f"v_cvt_pk_bf16_f32 v{vO+2*k}, v48, v49"]
Q += [f"s_lshl_b32 s68, s{sRow0}, 3", f"s_add_u32 s69, s68, {WS_KEY}", f"s_add_u32 s68, s68, {WS_STAT}"]
Q.append(["s_mov_b64 exec, 1", f"buffer_store_dwordx4 v[{vO}:{vO+3}], off, s[{sW}:{sW+3}], s68 sc1 ; s1", "s_mov_b64 exec, -1"])
Q += unpack(vWr, 72)
for k in range(2):
    Q += unpack(vE, 64 + 4*k) + [f"v_lshlrev_b32 v48, 16, v{vO+2*k}", f"v_and_b32 v49, 0xffff0000, v{vO+2*k}", "v_rcp_f32 v49, v49"]
    Q += [f"v_sub_f32 v{vE+e}, v{vE+e}, v48" for e in range(8)]
    Q += [f"v_cvt_pk_bf16_f32 v{vD+e}, v{vE+2*e}, v{vE+2*e+1}" for e in range(4)]
    Q += unpack(vE, vD)
    Q += [f"v_mul_f32 v{vE+e}, v{vE+e}, v49" for e in range(8)]
    Q += [f"v_cvt_pk_bf16_f32 v{vD+e}, v{vE+2*e}, v{vE+2*e+1}" for e in range(4)]
    Q += unpack(vE, vD)
    Q += [f"v_mul_f32 v49, v{vE}, v{vWr}"] + [f"v_fmac_f32 v49, v{vE+e}, v{vWr+e}" for e in range(1, 8)]
    Q += [f"s_lshl_b32 s67, s{sRow0}, 10", f"s_add_u32 s67, s67, {WS_XN}",
          f"buffer_store_dwordx4 v[{vD}:{vD+3}], v3, s[{sW}:{sW+3}], s67 offen offset:{k*1024} sc1 ; s1"]
    Q += wave_sum(49, 68) + [f"s_sub_u32 s67, {2047-k}, s{sRow0}", "v_mov_b32 v49, s68", "v_cvt_pk_bf16_f32 v49, v49, v49",
          "v_ashrrev_i32 v48, 31, v49", "v_or_b32 v48, 0x80000000, v48", "v_xor_b32 v49, v48, v49", "v_and_b32 v49, 0xffff0000, v49",
          f"v_or_b32 v{28+k}, s67, v49", f"v_mov_b32 v{30+k}, s{sNonce}", f"v_readfirstlane_b32 s{sKey0+k}, v{28+k}"]
Q.append(["s_mov_b64 exec, 1", f"buffer_store_dwordx4 v[28:31], off, s[{sW}:{sW+3}], s69 sc1 ; s1", "s_mov_b64 exec, -1"])
NFILL = len(Q); S1 = list(Q); del Q[:]
r.sKinc, r.sVinc = 34, 35
sMask2, sMask4 = 62, 63
sQt, sNt = 47, 32
sChunk = 69
sFb = 0
SET = f"""s_mov_b32 s{r.sKinc}, 0x4000
s_mov_b32 s{r.sVinc}, 0x4000
s_mov_b32 s{r.sIt}, 0
s_and_b32 s3, s2, 6
s_lshl_b32 s3, s3, 2
s_lshr_b32 s{sQt}, s2, 5
s_add_u32 s{sQt}, s{sQt}, s3
s_bfe_u32 s{sNt}, s2, 0x20003
s_and_b32 s3, s2, 1
s_lshl_b32 s3, s3, 2
s_add_u32 s{sNt}, s{sNt}, s3
s_lshl_b32 s3, s{sNt}, 7
s_lshl_b32 s67, s{sWave}, 20
s_add_u32 s3, s3, s67
s_sub_u32 s{sWq+2}, 0x400000, s3""".split("\n")
SET.append([f"s_add_u32 s{sWq}, s{pWo}, s3", f"s_addc_u32 s{sWq+1}, s{pWo+1}, 0"])
if opt["moe"]:
    SET += f"""s_and_b32 s3, s2, 7
s_mul_i32 s68, s3, 28
s_lshr_b32 s67, s2, 3
s_add_u32 s{sChunk}, s68, s67""".split("\n")
    SET.append(["s_cmp_ge_u32 s67, 28", f"s_cselect_b32 s{sChunk}, -1, s{sChunk}"])
    SET += f"""s_lshr_b32 s68, s68, 3
s_lshl_b32 s68, s68, 7
s_lshl_b32 s67, s67, 1
s_and_b32 s3, s{sWave}, 1
s_add_u32 s67, s67, s3
s_mul_i32 s67, s67, {8*3584}
s_add_u32 s68, s68, s67
v_bfe_u32 v112, v0, 2, 3
v_mul_u32_u24 v112, 3584, v112
v_and_b32 v113, 3, v0
v_lshl_add_u32 v112, v113, 7, v112
v_add_u32 v112, s68, v112""".split("\n")
    SET.append([f"s_cmp_lt_u32 s{sWave}, 2", f"s_cselect_b64 s[6:7], s[{pWg}:{pWg+1}], s[{pWu}:{pWu+1}]"])
    SET.append("global_load_dword v23, v112, s[6:7] ; t")
SET += [f"s_mov_b32 s{sFb}, 0", f"s_mov_b32 s{sMask2}, MASK2", f"s_mov_b32 s{sMask4}, MASK4"]
aXF, aWF = 128, 192
SMF = "v_smfmac_f32_16x16x64_bf16"
def acc(j, qb): return 128 + (3 - (j >> 1))*32 + qb*8 + (j & 1)*4
def xread(st, n):
    qb, ks = n >> 1, n & 1; slot = st % 3
    base = vXA + (2 if slot == 2 else 0) + ks
    off = (XSLOT[slot] - XSLOT[0] if slot != 2 else 0) + qb*2048
    return f"ds_read_b128 {a(aXF+(st&1)*32+n*4,4)}, v{base} offset:{off}"
def wread(st, j, n):
    ks, half = n >> 1, n & 1
    return f"ds_read_b64_tr_b16 {a(aWF+(j&3)*8+ks*4+half*2,2)}, v{vWA+j} offset:{(st%3)*16384 + ks*8192 + half*1024}"
def qmf(st, j):
    L = []
    if j < 2: L.append(f"{SMF} {v(vCS+4*j,4)}, {v(r.vOne,4)}, {a(aWF+(j&3)*8,8)}, v{r.vIdx}")
    for qb in range(4):
        for t in range(2):
            ks = t ^ (qb & 1)
            D = v(acc(j, qb), 4); C = "0" if (st == 0 and t == 0) else D
            L.append(f"{MF} {D}, {a(aWF+(j&3)*8+ks*4,4)}, {a(aXF+(st&1)*32+(qb*2+ks)*4,4)}, {C}")
    return L
E(f"s_waitcnt vmcnt({S.vmn('x0', 'w0')}) lgkmcnt(0)")
E("s_barrier")
stamp(3)
for n in range(8): E(xread(0, n))
for j in range(2):
    for n in range(4): E(wread(0, j, n))
pend = []
for st in range(opt["pre"], 3): pend += wdma(st) + xdma(st)
def vmn(*tags):
    assert not any(l.split(";")[-1].strip() in tags for l in pend), (tags, pend)
    return S.vmn(*tags)
def one_dma():
    while pend:
        l = pend.pop(0); E(l)
        if l.startswith("s_add_u32 m0"): E("s_nop 0")
        if l.startswith("buffer"): break
statld = [f"buffer_load_dwordx2 v[{vG+4*qb}:{vG+4*qb+1}], v61, s[{sW}:{sW+3}], s1 offen offset:{qb*128} sc1 ; st" for qb in range(4)]
since = [99]
def dma_slot(j, n, hasds):
    if pend and pend[0].startswith("s_"): return [pend.pop(0)]
    slots = {0: (1, 5, 7), 1: (1, 5, 7), 5: (4, 6), 6: (), 7: ()}.get(j, (1, 5))
    if opt["drate"] == 3: slots = {0: (1, 3, 5, 7), 1: (1, 5, 7), 5: (4, 6), 6: (), 7: ()}.get(j, (1, 3, 5))
    if pend and not hasds and (n in slots or "lds" not in pend[0]): return [pend.pop(0)]
    return []
vC = r.vL
def csread(s_): return [f"ds_read_b128 {v(vC+(s_&1)*8+4*jj,4)}, v{vCA+s_} offset:{jj*64}" for jj in range(2)]
CL2E = 1.4426950408889634 / (128 ** 0.5)
E("s_waitcnt lgkmcnt(4)")
for st in range(8):
    if st == 6:
        assert not any(f"s{sXoff}" in l or f"s{sWoff}" in l or f"s{sM0X}" in l or f"s{sM0W}" in l for l in pend)
        Q += SET
    pend[0:0] = [touch(k) for k in TOUCH.get(st, ())]
    if st + 3 < 8: pend += xdma(st + 3)
    if st == 5:
        pend += kdma(0)

    for j in range(8):
        L = qmf(st, j)
        if st*8 + j == opt["s1st"]: Q += S1
        ds = [None] * len(L); last = []
        if j < 6:
            o = 0
            for n in range(4): ds[o + (n if j == 5 else 2*n)] = wread(st, j + 2, n)
            if j < 5: last = ["s_waitcnt lgkmcnt(4)"]
            elif st < 7:
                tags = [f"x{st+1}", f"w{st+1}"]
                last = [lambda tags=tags: f"s_waitcnt vmcnt({vmn(*tags)}) lgkmcnt(0)", "s_barrier"]
            else: last = [lambda: f"s_waitcnt vmcnt({vmn('k0', 'st')}) lgkmcnt(0)", "s_barrier"]
        elif st < 7:
            seq = [xread(st + 1, n) for n in range(4)] + [wread(st + 1, 0, n) for n in range(4)] if j == 6 else \
                  [xread(st + 1, 4 + n) for n in range(4)] + [wread(st + 1, 1, n) for n in range(4)]
            ds = seq
            if j == 7: last = ["s_waitcnt lgkmcnt(4)"]
        else:
            seq = csread(0) + csread(1) + [f"ds_read_b128 {a(aWF+4*s_,4)}, v{vKM+s_}" for s_ in range(4)] if j == 6 else \
                  [X.kread(0, i) for i in range(8)]
            ds = seq
        if st == 7 and j == 2:
            Q += [f"v_add_f32 v{vCS}, v{vCS}, v{vCS+1}", f"v_add_f32 v{vCS+4}, v{vCS+4}, v{vCS+5}",
                  f"ds_write2_b32 v62, v{vCS}, v{vCS+4} offset0:0 offset1:16"]
        if st == 7 and j == 6:
            assert not Q, len(Q)
            Q.append([f"v_xor_b32 v{vG+2}, s{sNonce}, v{vG+1}", f"v_xor_b32 v{vG+6}, s{sNonce}, v{vG+5}"])
            Q.append([f"v_xor_b32 v{vG+10}, s{sNonce}, v{vG+9}", f"v_xor_b32 v{vG+14}, s{sNonce}, v{vG+13}"])
            del Q[:]
            chk = [f"v_xor_b32 v{vG+4*qb+2}, s{sNonce}, v{vG+4*qb+1}" for qb in range(4)] + \
                  [f"v_or3_b32 v{vG+2}, v{vG+2}, v{vG+6}, v{vG+10}", f"v_or_b32 v{vG+2}, v{vG+2}, v{vG+14}", f"v_cmp_ne_u32 vcc, 0, v{vG+2}"]
            Q += chk + ["s_cbranch_vccnz L_stat_retry", "L_stat_ok:"]
            cold += ["L_stat_retry:"] + spin("", "L_stat_ok") + [l.split(";")[0] for l in statld] + ["s_waitcnt vmcnt(0)"] + chk + ["s_cbranch_vccnz L_stat_retry", "s_branch L_stat_ok"]
            P_ = []
            for qb in range(4):
                g = vG + 4*qb
                P_.append([f"v_and_b32 v{g+1}, 0xffff0000, v{g}", f"v_lshlrev_b32 v{g}, 16, v{g}", f"v_rcp_f32 v{g+1}, v{g+1}",
                           f"v_sub_f32 v{g}, 0, v{g}", f"v_mul_f32 v{g+1}, {fbits(CL2E)}, v{g+1}"])
            for tup in zip(*P_): Q += list(tup)
        for n, m in enumerate(L):
            lead = []
            if n == len(L) - 1 and last:
                lead = ([ds[n]] if ds[n] else []) + last
            else:
                lead = dma_slot(j, n, ds[n] is not None) + ([ds[n]] if ds[n] else [])
            S.gap(m, lead)
        if j == 5:
            stamp(2)
            if st + 3 < 8: pend += wdma(st + 3)
            if st == 6: assert len(Q) <= len(SET)
            if st == 5: pend += kdma(1) + vdma(0) + kdma(2)
            if st == 6: pend[0:0] = statld; pend += vdma(1) + kdma(3) + vdma(2)
print("fillers", NFILL, "left", len(Q), "dma left", len(pend), file=sys.stderr)
for i in range(8, 16): E(X.kread(0, i))
S.drain()
stamp(3)
for s_ in range(4):
    E("s_waitcnt lgkmcnt(0)" if s_ != 1 else "s_nop 0")
    for qb in range(4):
        b = acc(2*s_, qb); st = vG + 4*qb
        for e in range(4):
            E(f"v_pk_fma_f32 v[{b+2*e}:{b+2*e+1}], v[{vC+(s_&1)*8+2*e}:{vC+(s_&1)*8+2*e+1}], v[{st}:{st+1}], v[{b+2*e}:{b+2*e+1}] op_sel:[0,0,0] op_sel_hi:[1,0,1]")
        if qb == 3 and s_ + 2 < 4:
            for l in csread(s_ + 2): E(l)
        for e in range(4):
            E(f"v_pk_mul_f32 v[{b+2*e}:{b+2*e+1}], v[{b+2*e}:{b+2*e+1}], v[{st}:{st+1}] op_sel:[0,1] op_sel_hi:[1,1]")
        q = r.vQ + qb*16 + s_*4
        for e in range(4): E(f"v_cvt_pk_bf16_f32 v{q+e}, v{b+2*e}, v{b+2*e+1}")
        one_dma()
    for qb in range(4):
        q = r.vQ + qb*16 + s_*4
        E(f"v_permlane16_swap_b32 v{q}, v{q+2}"); E(f"v_permlane16_swap_b32 v{q+1}, v{q+3}")
plain(pend); del pend[:]
stamp(2)
Q += [f"v_mov_b32 v{r.vL+i}, 0" for i in range(16)]
for qb in range(4):
    for s_ in range(4):
        D = v(r.vS + 48 + 4*qb, 4)
        S.gap(f"{MF} {D}, {a(aWF+4*s_,4)}, {v(r.vQ+qb*16+s_*4,4)}, {'0' if s_ == 0 else D}")
    if qb == 1:
        for q2 in range(4):
            b = r.vS + 48 + 4*q2
            Q += [f"v_max3_f32 v{b}, v{b}, v{b+1}, v{b+2}", f"v_max_f32 v{b}, v{b}, v{b+3}"] + [f"v_sub_f32 v{r.vM+4*q2+e}, 0, v{b}" for e in range(4)]
            if q2 == 1: hold = len(Q)
        tail = Q[hold:]; del Q[hold:]
Q += tail
S.drain()
E("s_nop 1")
stamp(3)
NT = 32
def emit_gaps(T, lo, hi, lead, mf):
    F = X.fillers(T, NT)
    for g in range(lo, hi):
        m = mf(g)
        if m: E(m)
        for f in lead.get(g, []):
            E(f)
            if not m and f.startswith("s_add_u32 m0"): E("s_nop 0")
        fs = F[g]
        if m and T == 0 and not fs and not lead.get(g): E("s_nop 0")
        if not m and fs and fs[0].startswith("v_cvt"): E("s_nop 0")
        for f in fs: E(f)
def gapsets(lo, hi):
    F = X.fillers(1, NT)
    ex = [g for g in range(lo, hi) if g in X.isexp]
    cv = [g for g in range(lo, hi) if g not in X.isexp and F[g]]
    em = [g for g in range(lo, hi) if g not in X.isexp and not F[g]]
    return ex, cv, em
NVE = 6
def pv_part(T, dmaslot, salu):
    lead = {}
    ex, cv, em = gapsets(64, 132)
    fg = sorted(cv + em)
    late = fg[-NVE:]
    em_e = [g for g in em if g not in late]
    L = X.dma(dmaslot) if dmaslot is not None else []
    dm = [L[i] for i in (1, 2, 3, 4, 6, 7, 8, 9)] if L else []
    step = len(em_e) / 8.0
    dg = [em_e[min(len(em_e) - 1, int(i*step) + 1)] for i in range(8)] if dm else []
    assert len(set(dg)) == len(dg)
    for s_, g in zip(dm, dg): lead.setdefault(g, []).append(s_)
    kg = [g for g in fg if g not in late and g not in dg]
    if T + 1 < NT:
        assert len(kg) >= 16
        for i in range(16): lead.setdefault(kg[i], []).append(X.kread(T + 1, i))
    if L:
        for mi, first in ((0, 0), (5, 4)):
            g = max(x for x in ex if x < dg[first]); lead.setdefault(g, []).append(L[mi])
            if first: assert g > dg[3]
        after = [x for x in ex if x > dg[7]]
        sal = [f"s_add_u32 s{r.sKoff}, s{r.sKoff}, s{r.sKinc}", f"s_add_u32 s{r.sVoff}, s{r.sVoff}, s{r.sVinc}"] + list(salu)
    else:
        after = ex[-8:]; sal = list(salu)
    assert len(after) > len(sal)
    for s_, g in zip(sal, after): lead.setdefault(g, []).append(s_)
    if T < NT:
        for i, g in enumerate(late): lead.setdefault(g, []).append(X.vread(T, i))
    assert 131 not in late
    if T + 1 < NT: lead.setdefault(131, []).insert(0, f"s_waitcnt lgkmcnt({NVE})")
    emit_gaps(T, 64, 132, lead, lambda g: X.pv(T - 1, g - 64) if T >= 1 else None)
def qk_part(T, sync=True):
    lead = {}
    ex, cv, em = gapsets(0, 64)
    fg = sorted(cv + em)
    if T >= 1:
        for i in range(NVE, 32): lead.setdefault(fg[i - NVE], []).append(X.vread(T - 1, i))
    if sync:
        lead.setdefault(63, []).append("s_waitcnt vmcnt(16) lgkmcnt(0)")
        lead[63].append("s_barrier")
    emit_gaps(T, 0, 64, lead, lambda g: X.qk(g) if T < NT else None)
def wpiece(n, a0):
    p = (pWg, pWu)[n]
    return f"""s_cmp_eq_u32 s{sChunk}, -1
s_cbranch_scc1 L_wp{n}
s_mul_i32 s3, s{sWave}, {128*3584}
s_lshl_b32 s67, s{sChunk}, 4
s_add_u32 s3, s3, s67
s_lshr_b32 s68, s{r.sM0K}, 1
v_mul_u32_u24 v{a0}, 3584, v0
s_add_u32 m0, s68, {0x24000 + n*0x2000}
v_add_u32 v{a0}, s3, v{a0}
global_load_lds_dwordx4 v{a0}, s[{p}:{p+1}]
s_add_u32 m0, s68, {0x24400 + n*0x2000}
v_add_u32 v{a0}, {64*3584}, v{a0}
global_load_lds_dwordx4 v{a0}, s[{p}:{p+1}]""".split("\n")
HOOK = {}
E("L_restart:")
if opt["moe"]:
    E(f"s_add_u32 s67, s{r.sM0K}, {WS_KEY}")
    pend += [f"s_add_u32 m0, s{r.sM0K}, 0x20000"] + [f"buffer_load_dwordx4 v3, s[{sW}:{sW+3}], s67 offen offset:{p*1024} sc1 lds ; keys" for p in range(4)]
pend += kdma(4) + vdma(3)
krel = sorted((48 + 4*(i >> 2) + ((3 - (i & 3)) if (i >> 2) & 1 else (i & 3)) + 1, i) for i in range(16))
vq = [X.vread(0, i) for i in range(NVE)]
ne, nc = 0, 0
for g in range(64):
    lead = []; budget = 2
    if g == 0: lead = [f"s_waitcnt vmcnt({vmn('k1', 'v0')})", "s_barrier"]
    else:
        if pend and pend[0].startswith("s_"): lead = [pend.pop(0)]
        elif pend and g % 4 == 2: lead = [pend.pop(0)]; budget = 0
        if budget:
            if vq and g < 8: lead += vq[:2]; del vq[:2]; budget = 0
            elif krel and krel[0][0] <= g and (2*nc + 2 < ne or len(krel) > 1 and krel[1][0] <= g):
                lead.append(X.kread(1, krel.pop(0)[1])); budget = 1
                if 2*nc + 2 >= ne: lead.append(X.kread(1, krel.pop(0)[1])); budget = 0
    if budget == 2 and g >= 4*(ne >> 2) + 7 and (ne - 2*nc < 5 or g >= 30):
        lead.append(X.exp(ne)); ne += 1
    else:
        while budget and 2*nc + 2 <= ne - (1 if False else 0) and nc < 30:
            lead.append(X.cvt(0, 2*nc + 1)); nc += 1; budget -= 1
    if not lead: lead = ["s_nop 0"]
    E(X.qk(g))
    for l in lead: E(l)
print("period0: exps", ne, "cvts", nc, "pend", len(pend), "krel", len(krel), "vq", len(vq), file=sys.stderr)
for _, i in krel: E(X.kread(1, i))
assert not vq and not pend
while ne < 61 or nc < 30:
    if 2*nc + 2 < ne or ne == 61: Q.append(X.cvt(0, 2*nc + 1)); nc += 1
    else: Q.append(X.exp(ne)); ne += 1
S.drain()
E("s_waitcnt lgkmcnt(0)")
if opt["moe"]: assert S.vmn("keys") >= 8
assert S.vmn("k2", "v1") >= 16
r.vVDl = [20, 21, 1, 2]
stamp(3)
A.raw(".p2align 6")
A.label("L_loop")
for u in range(1, 5):
    qk_part(u)
    sal = []
    if u == 2: sal = [f"s_bitcmp1_b32 s{sMask2}, s{r.sIt}"]
    if u == 3: sal = [f"s_cmp_ge_u32 s{r.sIt}, 6"]
    if u == 4: sal = [f"s_add_u32 s{r.sIt}, s{r.sIt}, 1", f"s_bitcmp1_b32 s{sMask4}, s{r.sIt}"]
    pv_part(u, u & 3, sal)
    if u == 2: E("s_cbranch_scc1 L_disp2"); E("L_ret2:")
    if u == 3: E("s_cbranch_scc1 L_disp3"); E("L_ret3:")
E("s_cbranch_scc0 L_loop")
E("s_branch L_disp4")
def wo_voff(dst):
    return f"""v_lshrrev_b32 v60, 3, v0
v_and_b32 v61, 7, v0
v_lshrrev_b32 v62, 1, v60
v_lshlrev_b32 v62, 1, v62
v_xor_b32 v62, v62, v61
v_lshlrev_b32 v62, 4, v62
v_lshl_add_u32 v{dst[0]}, v60, 10, v62""".split("\n") + [f"v_add_u32 v{dst[p]}, {7168*p}, v{dst[0]}" for p in range(1, 4)]
HOOK[27] = wo_voff([r.vKD + p for p in range(4)]) + [f"s_mov_b32 s{sK}, s{sWq}", f"s_mov_b32 s{sK+1}, s{sWq+1}", f"s_mov_b32 s{sK+2}, s{sWq+2}",
            f"s_mov_b32 s{r.sKoff}, 0", f"s_mov_b32 s{r.sKinc}, 0x8000"]
HOOK[28] = [f"v_mov_b32 v{r.vVDl[p]}, v{r.vKD+p}" for p in range(4)] + [f"s_mov_b32 s{sV}, s{sWq}", f"s_mov_b32 s{sV+1}, s{sWq+1}", f"s_mov_b32 s{sV+2}, s{sWq+2}",
            f"s_mov_b32 s{r.sVoff}, 0x10000", f"s_mov_b32 s{r.sKinc}, 0x10000", f"s_mov_b32 s{r.sVinc}, 0x10000"]
def H(T, txt): HOOK.setdefault(T, []).extend(l.strip() for l in txt.strip().split("\n") if l.strip())
SEL = [4, 5, 6, 7, 42, 43, 48, 49]; sSelMine = 66
TF, TP = opt['TF'], opt['TP']
NLOG2E = fbits(-1.4426950408889634)
if opt["moe"]:
    KQ = [128 + 4*n for n in range(15)] + [224]
    chk = ["v_mov_b32 v228, 0"] + [f"v_bitop3_b32 v228, v228, v{q+2}, s{sNonce} bitop3:0xf6" for q in KQ] + ["v_cmp_ne_u32 vcc, 0, v228"]
    H(2, "v_add_u32 v229, 0x20000, v3")
    HOOK[2] += [f"ds_read_b128 {v(q,4)}, v229 offset:{n*1024}" for n, q in enumerate(KQ)] + wpiece(0, 230) + ["L_wp0:", "s_waitcnt lgkmcnt(0)"] + chk
    H(2, f"""s_cbranch_vccnz L_key_retry
    L_key_ok:
    v_max_u32 v228, v{KQ[0]}, v{KQ[0]+1}""")
    HOOK[2] += [f"v_max3_u32 v228, v228, v{q}, v{q+1}" for q in KQ[1:]]
    H(2, f"""v_cmp_lt_u32 vcc, s{sKey0}, v228
    s_bcnt1_i32_b64 s3, vcc
    v_cmp_lt_u32 vcc, s{sKey0+1}, v228
    s_bcnt1_i32_b64 s67, vcc
    s_min_u32 s3, s3, s67
    s_cmp_lt_u32 s3, 8
    s_cbranch_scc1 L_rank
    L_rank_done:""")
    cold += ["L_key_retry:"] + spin("", "L_key_ok")
    for n, q in enumerate(KQ):
        if n % 4 == 0: cold += [f"s_mov_b32 s3, {WS_KEY + n*1024}"]
        cold += [f"buffer_load_dwordx4 {v(q,4)}, v3, s[{sW}:{sW+3}], s3 offen offset:{(n%4)*1024} sc1"]
    cold += ["s_waitcnt vmcnt(0)"] + chk + ["s_cbranch_vccnz L_key_retry", "s_branch L_key_ok"]
    cold += ["L_rank:", "s_mov_b32 s4, 0", "L_rank_row:", "s_mov_b32 s68, 0"]
    for q in KQ:
        for e in range(2): cold += [f"v_cmp_lt_u32 vcc, s{sKey0}, v{q+e}", "s_bcnt1_i32_b64 s3, vcc", "s_add_u32 s68, s68, s3"]
    cold += f"""s_cmp_ge_u32 s68, 8
s_cbranch_scc1 L_rank_next
s_not_b32 s3, s{sKey0}
s_xor_b32 s67, s{sKey0}, 0x80000000
s_bitcmp1_b32 s{sKey0}, 31
s_cselect_b32 s3, s67, s3
s_and_b32 s3, s3, 0xffff0000
v_mov_b32 v230, {NLOG2E}
v_mul_f32 v230, s3, v230
v_exp_f32 v230, v230
s_add_u32 s67, s{sRow0}, s4
v_add_f32 v230, 1.0, v230
v_rcp_f32 v230, v230
s_lshl_b32 s68, s68, 3
v_cvt_pk_bf16_f32 v230, v230, v230
v_and_b32 v230, 0xffff0000, v230
v_or_b32 v230, s67, v230
v_mov_b32 v231, s{sNonce}
s_add_u32 s68, s68, {WS_SEL}
s_mov_b64 exec, 1
buffer_store_dwordx2 v[230:231], off, s[{sW}:{sW+3}], s68 sc1
s_mov_b64 exec, -1
L_rank_next:
s_mov_b32 s{sKey0}, s{sKey0+1}
s_add_u32 s4, s4, 1
s_cmp_lt_u32 s4, 2
s_cbranch_scc1 L_rank_row
s_branch L_rank_done""".split("\n")
    selld = f"buffer_load_dwordx2 v[60:61], v128, s[{sW}:{sW+3}], 0 offen sc1"
    seladdr = ["v_and_b32 v128, 7, v0", "v_lshlrev_b32 v128, 3, v128", f"v_add_u32 v128, {WS_SEL}, v128"]
    HOOK[4] = seladdr + [selld]
    HOOK[4] += wpiece(1, 128)
    H(4, f"""v_lshrrev_b32 v130, 4, v0
    v_and_b32 v131, 15, v0
    v_lshlrev_b32 v131, 4, v131
    v_lshl_add_u32 v130, v130, 10, v131
    s_lshl_b32 s3, s{sChunk}, 13
    s_lshl_b32 s67, s{sWave}, 8
    s_add_u32 s3, s3, s67
    v_add_u32 v130, s3, v130
    s_add_u32 m0, s68, 0x22000
    v_add_u32 v131, 4096, v130
    global_load_lds_dwordx4 v130, s[{pWd}:{pWd+1}]
    s_add_u32 m0, s68, 0x22400
    s_nop 0
    global_load_lds_dwordx4 v131, s[{pWd}:{pWd+1}]
    L_wp1:""")
    H(6, f"""s_waitcnt vmcnt(16)
    v_cmp_ne_u32 vcc, s{sNonce}, v61
    s_cbranch_vccnz L_sel_retry
    L_sel_ok:
    s_and_b32 s3, s2, 1
    s_lshl_b32 s3, s3, 2
    s_add_u32 s3, s3, s{sWave}
    v_and_b32 v128, 0xffff, v60
    v_readlane_b32 s{sSelMine}, v60, s3""")
    HOOK[6] += [f"v_readlane_b32 s{SEL[t]}, v128, {t}" for t in range(8)]
    H(6, f"""v_lshrrev_b32 v129, 4, v0
    v_bfe_u32 v130, v0, 3, 1
    v_lshlrev_b32 v129, 4, v129
    v_lshl_add_u32 v129, v130, 6, v129
    v_lshl_add_u32 v128, v128, 10, v129
    s_lshl_b32 s3, s{sWave}, 8
    s_add_u32 s3, s3, {WS_XN}
    s_lshr_b32 s68, s{r.sM0K}, 1
    s_add_u32 m0, s68, 0x20000
    s_add_u32 s67, s3, 128
    buffer_load_dwordx4 v128, s[{sW}:{sW+3}], s3 offen sc1 lds
    s_add_u32 m0, s68, 0x20400
    s_nop 0
    buffer_load_dwordx4 v128, s[{sW}:{sW+3}], s67 offen sc1 lds""")
    cold += ["L_sel_retry:"] + spin("", "L_sel_ok") + seladdr + [selld, "s_waitcnt vmcnt(0)", f"v_cmp_ne_u32 vcc, s{sNonce}, v61",
             "s_cbranch_vccnz L_sel_retry", "s_branch L_sel_ok"]
    H(8, f"""s_cmp_eq_u32 s{sChunk}, -1
    s_cbranch_scc1 L_h8_done
    s_lshr_b32 s68, s{r.sM0K}, 1
    v_lshrrev_b32 v224, 4, v0
    v_and_b32 v225, 15, v0
    v_lshrrev_b32 v226, 2, v225
    v_and_b32 v227, 3, v0
    v_lshl_add_u32 v228, v224, 3, v226
    v_lshlrev_b32 v228, 4, v228
    v_and_b32 v229, 1, v0
    v_lshl_add_u32 v228, v229, 3, v228
    v_bfe_u32 v229, v0, 1, 1
    v_lshl_add_u32 v228, v229, 13, v228
    s_add_u32 s3, s68, 0x24000
    v_add_u32 v228, s3, v228
    v_and_b32 v229, 0x37, v0
    s_add_u32 s3, s68, 0x20000
    v_lshl_add_u32 v229, v229, 4, s3
    v_lshl_add_u32 v230, v224, 1, v226
    v_and_b32 v230, 7, v230
    v_lshlrev_b32 v230, 8, v230
    v_lshl_add_u32 v230, v227, 3, v230
    s_add_u32 s67, s68, 0x22000
    v_add_u32 v230, s67, v230
    STAMP
    s_waitcnt vmcnt(16)
    STAMP""")
    for ks in range(4):
        HOOK[8] += [f"ds_read_b64_tr_b16 v[{128+4*ks}:{129+4*ks}], v228 offset:{ks*512}", f"ds_read_b64_tr_b16 v[{130+4*ks}:{131+4*ks}], v228 offset:{ks*512+64}",
                    f"ds_read_b128 {v(144+4*ks,4)}, v229 offset:{(ks>>1)*1024 + (ks&1)*128}"]
    H(8, f"""v_lshl_add_u32 v231, v0, 4, s3
    v_lshrrev_b32 v232, 1, v224
    v_lshl_add_u32 v232, v232, 4, v225
    v_lshlrev_b32 v232, 4, v232
    v_and_b32 v233, 1, v224
    v_lshl_add_u32 v232, v233, 3, v232
    v_add_u32 v232, 0x20000, v232
    s_waitcnt lgkmcnt(0)""")
    for ks in range(4): HOOK[8] += [f"{MF} v[160:163], {v(128+4*ks,4)}, {v(144+4*ks,4)}, {'0' if ks == 0 else 'v[160:163]'}"]
    HOOK[8] += [f"ds_read_b64_tr_b16 v[{164+2*nb}:{165+2*nb}], v230 offset:{nb*32}" for nb in range(8)]
    H(8, f"""ds_write_b128 v231, v[160:163]
    s_waitcnt lgkmcnt(0)
    STAMP
    s_barrier
    STAMP""")
    for src in range(4):
        HOOK[8] += [f"ds_read_b64 v[{128+4*src}:{129+4*src}], v232 offset:{src*2048}", f"ds_read_b64 v[{130+4*src}:{131+4*src}], v232 offset:{src*2048+512}"]
    H(8, f"""v_and_b32 v233, 7, v0
    v_lshlrev_b32 v233, 4, v233
    v_lshl_add_u32 v233, v224, 7, v233
    v_lshrrev_b32 v234, 3, v225
    v_lshl_add_u32 v233, v234, 9, v233
    v_cmp_eq_u32 vcc, 0, v234
    s_lshl_b32 s3, s{sChunk}, 14
    s_add_u32 s3, s3, s{r.sM0K}
    s_add_u32 s3, s3, {WS_PART}
    v_mov_b32 v145, 0
    v_mov_b32 v147, 0
    s_waitcnt lgkmcnt(0)""")
    for e in range(4): HOOK[8] += [f"v_add_f32 v{128+e}, v{128+e}, v{132+e}", f"v_add_f32 v{136+e}, v{136+e}, v{140+e}"]
    for e in range(4): HOOK[8] += [f"v_add_f32 v{128+e}, v{128+e}, v{136+e}"]
    H(8, f"""v_cvt_pk_bf16_f32 v132, v128, v129
    v_cvt_pk_bf16_f32 v133, v130, v131""")
    HOOK[8] += unpack(128, 132, 2)
    H(8, f"""v_mul_f32 v132, {NLOG2E}, v128
    v_mul_f32 v133, {NLOG2E}, v129
    v_exp_f32 v132, v132
    v_exp_f32 v133, v133
    v_add_f32 v132, 1.0, v132
    v_add_f32 v133, 1.0, v133
    v_rcp_f32 v132, v132
    v_rcp_f32 v133, v133
    v_mul_f32 v128, v128, v132
    v_mul_f32 v129, v129, v133
    v_cvt_pk_bf16_f32 v132, v128, v129
    v_lshlrev_b32 v128, 16, v132
    v_and_b32 v129, 0xffff0000, v132
    v_mul_f32 v128, v128, v130
    v_mul_f32 v129, v129, v131
    v_cvt_pk_bf16_f32 v146, v128, v129
    v_cndmask_b32 v144, 0, v146, vcc
    v_cndmask_b32 v146, v146, 0, vcc
    s_nop 1""")
    for j in range(4):
        HOOK[8] += [f"v_mfma_f32_16x16x16_bf16 {v(128+4*j,4)}, v[{164+4*j}:{165+4*j}], v[144:145], 0",
                    f"v_mfma_f32_16x16x16_bf16 {v(128+4*j,4)}, v[{166+4*j}:{167+4*j}], v[146:147], {v(128+4*j,4)}"]
    H(8, "STAMP\ns_nop 4")
    for j in range(4): HOOK[8] += [f"buffer_store_dwordx4 {v(128+4*j,4)}, v233, s[{sW}:{sW+3}], s3 offen offset:{j*1024} sc1"]
    H(8, "s_nop 0\nL_h8_done:")
    H(TF, f"""s_cmp_eq_u32 s{sChunk}, -1
    s_cbranch_scc1 L_h10_done
    s_lshl_b32 s3, s{sWave}, 8
    s_add_u32 s3, s3, s{sChunk}
    s_lshl_b32 s3, s3, 2
    s_add_u32 s3, s3, {WS_FC}
    v_mov_b32 v128, s{sNonce}
    s_waitcnt vmcnt(16)
    s_mov_b64 exec, 1
    buffer_store_dword v128, off, s[{sW}:{sW+3}], s3 sc1
    s_mov_b64 exec, -1
    L_h10_done:""")
    fcaddr = ["v_min_u32 v128, 55, v0", "v_lshlrev_b32 v128, 4, v128", "s_lshr_b32 s3, s2, 6", "s_lshl_b32 s3, s3, 10", f"s_add_u32 s3, s3, {WS_FC}"]
    fcld = f"buffer_load_dwordx4 v[60:63], v128, s[{sW}:{sW+3}], s3 offen sc1"
    fcchk = [f"v_xor_b32 v129, s{sNonce}, v60"] + [f"v_bitop3_b32 v129, v129, v{61+e}, s{sNonce} bitop3:0xf6" for e in range(3)] + ["v_cmp_ne_u32 vcc, 0, v129"]
    HOOK.setdefault(TP, []).extend(fcaddr + [fcld])
    HOOK.setdefault(TP + 2, []).extend(["s_waitcnt vmcnt(16)"] + fcchk)
    H(TP + 2, f"""s_cbranch_vccnz L_fc_retry
    L_fc_ok:
    v_lshrrev_b32 v128, 2, v0
    v_and_b32 v129, 3, v0
    v_lshlrev_b32 v129, 4, v129
    v_lshl_add_u32 v128, v128, 14, v129
    s_lshl_b32 s3, s2, 6
    s_lshl_b32 s67, s{sWave}, 18
    s_add_u32 s3, s3, s67
    s_add_u32 s3, s3, {WS_PART}
    s_lshr_b32 s68, s{r.sM0K}, 2""")
    for k in range(4):
        HOOK[TP + 2] += [f"s_add_u32 m0, s68, {0x20000 + k*4096}", f"s_add_u32 s67, s3, {k << 20}"]
        if k == 3: HOOK[TP + 2] += [f"s_cmp_lt_u32 s{sWave}, 2", "s_cselect_b32 s67, s67, 0x40000000"]
        HOOK[TP + 2] += [f"buffer_load_dwordx4 v128, s[{sW}:{sW+3}], s67 offen sc1 lds"]
    cold += ["L_fc_retry:"] + spin("", "L_fc_ok") + fcaddr + [fcld, "s_waitcnt vmcnt(0)"] + fcchk + ["s_cbranch_vccnz L_fc_retry", "s_branch L_fc_ok"]
    H(TP + 5, f"""s_cmp_lg_u32 s{sFb}, 0
    s_cbranch_scc1 L_s4_done
    s_lshl_b32 s3, s{sWave}, 4
    s_add_u32 s3, s3, 0x20000
    v_lshl_add_u32 v144, v0, 6, s3""")
    HOOK[TP + 5] += [f"ds_read_b128 {v(128+4*k,4)}, v144 offset:{k*4096}" for k in range(4)]
    H(TP + 5, f"""s_and_b32 s3, s2, 1
    s_lshl_b32 s3, s3, 2
    s_add_u32 s3, s3, s{sWave}
    s_lshl_b32 s3, s3, 7
    s_lshr_b32 s67, s2, 1
    s_add_u32 s3, s3, s67
    s_lshl_b32 s3, s3, 4
    s_add_u32 s3, s3, {WS_UPD}
    s_and_b32 s67, s{sSelMine}, 0xffff0000
    s_waitcnt lgkmcnt(0)""")
    for e in range(4): HOOK[TP + 5] += [f"v_add_f32 v{128+e}, v{128+e}, v{132+e}", f"v_add_f32 v{136+e}, v{136+e}, v{140+e}"]
    for e in range(4): HOOK[TP + 5] += [f"v_add_f32 v{128+e}, v{128+e}, v{136+e}"]
    for tup in zip(*[wave_sum(128 + e, 0)[:-1] for e in range(4)]): HOOK[TP + 5] += list(tup)
    H(TP + 5, "v_cvt_pk_bf16_f32 v132, v128, v129\nv_cvt_pk_bf16_f32 v133, v130, v131")
    HOOK[TP + 5] += unpack(128, 132, 2) + [f"v_mul_f32 v{128+e}, s67, v{128+e}" for e in range(4)]
    H(TP + 5, f"""v_cvt_pk_bf16_f32 v132, v128, v129
    v_cvt_pk_bf16_f32 v133, v130, v131
    v_mov_b32 v134, s{sNonce}
    v_mov_b32 v135, s{sNonce}
    s_lshl_b64 exec, 1, 63
    buffer_store_dwordx4 v[132:135], off, s[{sW}:{sW+3}], s3 sc1
    s_mov_b64 exec, -1
    L_s4_done:""")
if opt["moeT"] < 18:
    for T in (2, 4, 6, 8, TF, TP, TP + 2, TP + 5):
        if T > opt["moeT"]:
            HOOK[T] = [l for l in HOOK[T] if l.endswith(":")]
    opt["moe"] = 0
if opt["wtouch"]:
    for n, T in enumerate(eval(opt_s["wT"])):
        if opt["varb"]:
            HOOK.setdefault(T, []).extend(["s_and_b32 s3, s2, 0xf8", "s_lshl_b32 s3, s3, 1", f"s_lshl_b32 s67, s{sWave}, 10", "s_add_u32 s3, s3, s67", f"s_add_u32 s3, s3, {512*n}",
                "s_lshl_b32 s3, s3, 1", "s_and_b32 s67, s2, 1", "s_add_u32 s3, s3, s67", "s_lshl_b32 s3, s3, 9",
                "v_lshrrev_b32 v180, 2, v0", "v_and_b32 v181, 3, v0", "v_lshlrev_b32 v181, 7, v181", "v_lshl_add_u32 v180, v180, 10, v181",
                "v_add_u32 v180, s3, v180", f"global_load_dword v23, v180, s[{pWo}:{pWo+1}]"])
        else:
            HOOK.setdefault(T, []).extend(["s_and_b32 s3, s2, 0xf8", f"s_lshl_b32 s67, s{sWave}, 10", "s_add_u32 s3, s3, s67", f"s_add_u32 s3, s3, {256*n}", "s_lshl_b32 s3, s3, 10",
                "v_lshl_add_u32 v180, v0, 7, s3", f"global_load_dword v23, v180, s[{pWo}:{pWo+1}]"])
if opt["stamp"] & 8:
    Ts = eval(opt_s["hs"])
    def st_(i): return [f"{CLK} s[{70+2*i}:{71+2*i}]", "s_waitcnt lgkmcnt(0)"]
    i = 1
    for T in Ts:
        body = []
        for l in HOOK[T]:
            if l.startswith("STAMP"):
                body += st_(i + 1); i += 1
            else: body.append(l)
        k = sum(l.startswith("STAMP") for l in HOOK[T])
        HOOK[T] = st_(i - k) + body + st_(i + 1); i += 2
    nstamp[0] = i
for T in HOOK: HOOK[T] = [l for l in HOOK[T] if not l.startswith("STAMP")]
def emit_hooks():
    m2 = m4 = 0
    for site, ret in ((2, "L_ret2"), (4, "L_loop")):
        Ts = sorted(T for T in HOOK if T % 4 == site % 4)
        E(f"L_disp{site}:")
        for T in Ts[:-1]:
            E(f"s_cmp_eq_u32 s{r.sIt}, {T // 4}"); E(f"s_cbranch_scc1 L_hook{T}")
        for T in Ts[-1:] + Ts[:-1]:
            E(f"L_hook{T}:")
            for l in HOOK[T]: E(l)
            E(f"s_branch {ret}")
        if not Ts: E(f"s_branch {ret}")
        if site == 2: m2 = sum(1 << (T // 4) for T in Ts)
        else: m4 = sum(1 << (T // 4) for T in Ts)
    E("L_hook27:")
    for l in HOOK[27]: E(l)
    E("s_branch L_ret3")
    return m2, m4
E("L_disp3:")
E(f"s_cmp_eq_u32 s{r.sIt}, 6")
E("s_cbranch_scc1 L_hook27")
A.label("L_tail")
S.vm[:] = ["wo0"]*4 + ["v31"]*4 + [f"wo{k}" for k in range(1, 7) for _ in range(4)]
sOoff = 63
vWo, vWr, vOq, vFl = r.vKD, 48, 4, 44
VA, VB, VC, AA, AB, AC, AD = ("v", 64), ("v", 128), ("v", 192), ("a", 0), ("a", 64), ("a", 128), ("a", 192)
def blk(B, off, n): return (v if B[0] == "v" else a)(B[1] + off, n)
WBLK = [AC, VA, AD, VC]; OBLK = [AB, VB]; ACC = AA
NU = 10
UNIT = [0, 1, 5, 2, 6, 3, 7, 8, 4, 9]
def wo_dma(kk):
    L = [f"s_add_u32 m0, s{r.sM0K}, {UNIT[kk % NU]*16384}"]
    L += [f"buffer_load_dwordx4 v{vWo+p}, s[{sWq}:{sWq+3}], s{sWoff} offen offset:{p*1024} lds ; wo{kk}" for p in range(4)]
    L += [f"s_add_u32 s{sWoff}, s{sWoff}, 0x8000"]
    return L
def wo_reads(kk):
    u = UNIT[kk % NU]; B = WBLK[(kk >> 2) & 3]
    return [f"ds_read_b64_tr_b16 {blk(B, (nb*4 + (kk & 3))*4 + 2*half, 2)}, v{vWr + 4*(u >> 2) + nb} offset:{(u & 3)*16384 + half*2048}"
            for nb in range(4) for half in range(2)]
def o_loads(h, qb):
    B = OBLK[h & 1]
    return [f"buffer_load_dwordx4 {blk(B, (qb*4 + i)*4, 4)}, v{vOq+qb}, s[{sW}:{sW+3}], s{sOoff} offen offset:{i*1024} sc1 ; o{h}_{qb}" for i in range(4)]
def o_next(): return [f"s_add_u32 s{sOoff}, s{sOoff}, 0x1000"]
setup = f"""
s_mov_b32 s{sWoff}, {7*0x8000}
s_lshl_b32 s{sOoff}, s{sQt}, 19
s_lshl_b32 s3, s{sWave}, 15
s_add_u32 s{sOoff}, s{sOoff}, s3
v_lshrrev_b32 v1, 4, v0
v_and_b32 v2, 15, v0
v_and_b32 v61, 7, v0
v_lshrrev_b32 v60, 2, v2
v_lshl_add_u32 v60, v1, 2, v60
v_bfe_u32 v62, v60, 1, 2
v_lshlrev_b32 v60, 7, v60
v_and_b32 v63, 3, v0
v_lshl_add_u32 v60, v63, 3, v60
v_add_u32 v60, s{r.sM0K}, v60
""".strip().split("\n")
for nb in range(4):
    setup += [f"v_xor_b32 v3, {nb}, v62", f"v_lshl_add_u32 v{vWr+nb}, v3, 5, v60",
              f"v_add_u32 v{vWr+4+nb}, 0x10000, v{vWr+nb}", f"v_add_u32 v{vWr+8+nb}, 0x20000, v{vWr+nb}"]
setup += [f"v_lshlrev_b32 v{vOq}, 4, v0"] + [f"v_add_u32 v{vOq+qb}, {qb*0x20000}, v{vOq}" for qb in range(1, 4)]
setup += [f"s_lshl_b32 s3, s{sQt}, 5", f"s_lshl_b32 s68, s{sWave}, 3", "s_add_u32 s3, s3, s68", "v_add_u32 v61, s3, v61",
          f"v_lshlrev_b32 v{vFl}, 7, v61", f"v_add_u32 v{vFl}, {WS_FLAG}, v{vFl}"]
qk_part(32, sync=False)
for l in setup: E(l)
M(f"""
s_lshl_b32 s3, s{sQb}, 2
s_add_u32 s3, s3, s{sWave}
s_lshl_b32 s69, s3, 5
s_add_u32 s69, s69, s{sHead}
s_lshl_b32 s69, s69, 7
s_add_u32 s69, s69, {WS_FLAG}
s_lshl_b32 s3, s3, 7
s_add_u32 s3, s3, s{sHead}
s_lshl_b32 s68, s3, 12
s_lshl_b32 s3, s{sWave}, 2
s_add_u32 s3, s3, 0x24000
v_lshl_add_u32 v192, v63, 12, s3
s_add_u32 s3, s{r.sM0K}, 0x24000
v_mov_b32 v193, s3
s_waitcnt vmcnt({S.vmn('wo3')}) lgkmcnt(0)
""")
pend += wo_dma(7)
rd0 = [l for kk in range(4) for l in wo_reads(kk)]
order = [16, 33, 50, 67] + [i for i in range(68) if i % 17 != 16]
L_ = r.vL
for n, i in enumerate(order):
    lead = []
    if n == 18:
        assert not Q
        lead = ["s_waitcnt lgkmcnt(0)", "s_barrier", "ds_read_b128 v[196:199], v193"]; nrd = len(rd0)
        pend += wo_dma(8)
    elif n == 24:
        lead = [f"s_waitcnt lgkmcnt({nrd - len(rd0)})"]
        Q += ["v_or3_b32 v196, v196, v197, v198", "v_or_b32 v196, v196, v199", "v_cmp_ne_u32 vcc, 0, v196", "s_cbranch_vccnz L_fallback", "L_safe:"]
        pend += wo_dma(9)
    else:
        if pend and pend[0].startswith("s_"): lead = [pend.pop(0)]
        elif pend and n % (5 if n < 22 else 10) == 1: lead = [pend.pop(0)]
        if not (lead and lead[0].startswith("buffer")) and not (9 <= n < 18) and not (24 <= n < 27): lead += rd0[:2]; del rd0[:2]
    if n == 9:
        Q += [f"v_add_f32 v{L_+4*qb}, v{L_+4*qb}, v{L_+4*qb+1}" for qb in range(4)]
        Q += [f"v_add_f32 v194, v{L_}, v{L_+4}", f"v_add_f32 v195, v{L_+8}, v{L_+12}", "v_add_f32 v194, v194, v195",
              f"v_cmp_ngt_f32 vcc, {'0' if opt['forcefb'] else '0x5f800000'}, v194", "s_or_b32 s3, vcc_lo, vcc_hi", "v_mov_b32 v194, s3", "ds_write_b32 v192, v194"]
    if n == 19: Q += [f"v_rcp_f32 v{60+qb}, v{L_+4*qb}" for qb in range(1)]
    if n == 26: Q += [f"v_rcp_f32 v{60+qb}, v{L_+4*qb}" for qb in range(1, 4)]
    def epi(qb):
        t = r.vS; o = r.vS + 32 + (qb & 1)*16
        L = []
        for i4 in range(4):
            L += [f"v_accvgpr_read_b32 v{t+8*i4+e}, a{r.aO+qb*32+8*i4+e}" for e in range(8)]
            L += [f"v_mul_f32 v{t+8*i4+e}, v{60+qb}, v{t+8*i4+e}" for e in range(8)]
            L += [f"v_cvt_pk_bf16_f32 v{o+4*i4+e}, v{t+8*i4+2*e}, v{t+8*i4+2*e+1}" for e in range(4)]
            L += [f"buffer_store_dwordx4 {v(o+4*i4,4)}, v{vOq+qb}, s[{sW}:{sW+3}], s68 offen offset:{i4*1024} sc1 ; ost"]
        return L
    if n == 26: Q += epi(0)
    if n == 38: Q += epi(1)
    S.gap(X.pv(31, i), lead)
stamp(1)
Q += epi(2) + epi(3)
assert not rd0
nextrd = [4]; nextdma = [NU + 3]
def wo_step(maxrd):
    kk = nextrd[0]
    if kk >= maxrd or any(l.endswith(f"; wo{kk}") for l in pend): return False
    E(f"s_waitcnt vmcnt({S.vmn(f'wo{kk}')})")
    for l in wo_reads(kk): E(l)
    nextrd[0] += 1
    if kk >= 1 and nextdma[0] < 32 and nextdma[0] - NU == kk - 1:
        E("s_waitcnt lgkmcnt(8)")
        pend.extend(wo_dma(nextdma[0])); nextdma[0] += 1
    return True
cnt = 0
while Q:
    f = Q.pop(0)
    while not S.ok(f): E("s_nop 0")
    E(f); cnt += 1
    if cnt % opt["epace"] == 0: one_dma()
stamp(1)
E("s_waitcnt lgkmcnt(0)")
for kk in range(NU, NU + 3): pend.extend(wo_dma(kk))
for _ in range(opt["npost"]):
    wo_step(16)
    for _ in range(4): one_dma()
M(f"""
v_mov_b32 v3, s{sNonce}
s_waitcnt vmcnt({S.vmn('ost')})
s_mov_b64 exec, 1
buffer_store_dword v3, off, s[{sW}:{sW+3}], s69 sc1 ; flag
s_mov_b64 exec, -1
""")
stamp(1)
vXo, vXr, vGp, vSt = 45, 20, 28, 46
M(f"""
s_lshl_b32 s3, s{sQt}, 2
s_add_u32 s3, s3, s{sWave}
s_lshl_b32 s3, s3, 4
v_lshrrev_b32 v60, 2, v0
v_add_u32 v60, s3, v60
v_lshlrev_b32 v61, 3, v60
v_add_u32 v61, {WS_STAT}, v61
s_lshl_b32 s3, s{sNt}, 7
v_and_b32 v63, 3, v0
v_lshl_add_u32 v62, v63, 5, s3
v_lshl_add_u32 v{vXo}, v60, 10, v62
global_load_dwordx4 v[{vXr}:{vXr+3}], v{vXo}, s[{pX}:{pX+1}] ; xf
global_load_dwordx4 v[{vXr+4}:{vXr+7}], v{vXo}, s[{pX}:{pX+1}] offset:16 ; xf
buffer_load_dwordx2 v[{vSt}:{vSt+1}], v61, s[{sW}:{sW+3}], 0 offen sc1 ; xf
""")
vU, vUa, vUt = 128, 144, 145
updld = [f"buffer_load_dwordx4 {v(vU+4*k,4)}, v{vUa}, s[{sW}:{sW+3}], s68 offen offset:{16*k} sc1" for k in range(4)]
updchk = [f"v_xor_b32 v146, s{sNonce}, v{vSt+1}"]
if opt["moe"]:
    E(f"v_mov_b32 v{vUa}, 0x200000")
    for t_ in range(8):
        E(f"v_cmp_eq_u32 vcc, s{SEL[t_]}, v60"); E(f"v_mov_b32 v146, {t_*32}"); E("s_nop 0"); E(f"v_cndmask_b32 v{vUa}, v{vUa}, v146, vcc")
    M(f"""
    v_cmp_gt_u32 vcc, 0x1000, v{vUa}
    v_add_u32 v{vUa}, v{vUa}, v63
    v_lshlrev_b32 v{vUa}, 6, v{vUa}
    v_mov_b32 v146, s{sNonce}
    v_cndmask_b32 v{vUt}, 0, v146, vcc
    v_mov_b32 v146, 0x40000000
    v_cndmask_b32 v{vUa}, v146, v{vUa}, vcc
    s_lshl_b32 s68, s{sNt}, 8
    s_add_u32 s68, s68, {WS_UPD}
    """)
    for l in updld: E(l + " ; xf")
    updchk += [f"v_bitop3_b32 v146, v146, v{vU+4*k+2}, v{vUt} bitop3:0xf6" for k in range(4)]
updchk += ["v_cmp_ne_u32 vcc, 0, v146"]
t = 36
cold += ["L_stf_retry:"] + spin("", "L_stf_ok") + [f"buffer_load_dwordx2 v[{vSt}:{vSt+1}], v61, s[{sW}:{sW+3}], 0 offen sc1"] + (updld if opt["moe"] else []) + ["s_waitcnt vmcnt(0)"] + \
        updchk + ["s_cbranch_vccnz L_stf_retry", "s_branch L_stf_ok"]
G = [lambda: f"s_waitcnt vmcnt({S.vmn('xf')})"] + updchk + ["s_cbranch_vccnz L_stf_retry", "L_stf_ok:", f"v_and_b32 v{vSt+1}, 0xffff0000, v{vSt}", f"v_lshlrev_b32 v{vSt}, 16, v{vSt}", f"v_rcp_f32 v{vSt+1}, v{vSt+1}"]
for hf in range(2):
    G += unpack(t, vXr + 4*hf)
    G += [f"v_sub_f32 v{t+e}, v{t+e}, v{vSt}" for e in range(8)]
    G += [f"v_cvt_pk_bf16_f32 v{8+e}, v{t+2*e}, v{t+2*e+1}" for e in range(4)] + unpack(t, 8)
    G += [f"v_mul_f32 v{t+e}, v{t+e}, v{vSt+1}" for e in range(8)]
    G += [f"v_cvt_pk_bf16_f32 v{8+e}, v{t+2*e}, v{t+2*e+1}" for e in range(4)] + unpack(t, 8)
    if opt["moe"]:
        G += unpack(8, vU + 8*hf, 2) + unpack(12, vU + 8*hf + 4, 2) + [f"v_add_f32 v{t+e}, v{t+e}, v{8+e}" for e in range(8)]
        G += [f"v_cvt_pk_bf16_f32 v{8+e}, v{t+2*e}, v{t+2*e+1}" for e in range(4)] + unpack(t, 8)
    G += [f"v_mul_f32 v{8+e}, {fbits(-1.4426950408889634)}, v{t+e}" for e in range(8)]
    G += [f"v_exp_f32 v{8+e}, v{8+e}" for e in range(8)]
    G += [f"v_add_f32 v{8+e}, 1.0, v{8+e}" for e in range(8)]
    G += [f"v_rcp_f32 v{8+e}, v{8+e}" for e in range(8)]
    G += [f"v_mul_f32 v{t+e}, v{t+e}, v{8+e}" for e in range(8)]
    G += [f"v_cvt_pk_bf16_f32 v{vGp+4*hf+e}, v{t+2*e}, v{t+2*e+1}" for e in range(4)]
def some_g(n):
    while G and n > 0:
        f = G.pop(0)
        if callable(f): f = f()
        while not f.endswith(":") and not S.ok(f): E("s_nop 0")
        E(f); n -= 1
        if f.startswith(("v_cmp", "s_cbranch")): n += 1
ndone = 0
while nextrd[0] < 16:
    assert wo_step(16)
    for _ in range(4):
        one_dma(); ndone += 1
        if ndone > 8: some_g(6)
E("s_waitcnt lgkmcnt(0)")
while nextdma[0] < 16 + NU: pend.extend(wo_dma(nextdma[0])); nextdma[0] += 1
nleft = lambda: sum(l.startswith("buffer") for l in pend)
while nleft() > opt["pollat"]: one_dma(); some_g(6)
E(f"buffer_load_dword v2, v{vFl}, s[{sW}:{sW+3}], 0 offen sc1 ; poll")
while pend: one_dma(); some_g(6)
some_g(999)
stamp(1)
M(f"""
s_waitcnt vmcnt({S.vmn('poll')})
v_cmp_ne_u32 vcc, s{sNonce}, v2
s_cbranch_vccnz L_oflag
L_oflag_ok:
""")
cold += ["L_oflag:"] + spin("", "L_oflag_ok") + [f"buffer_load_dword v2, v{vFl}, s[{sW}:{sW+3}], 0 offen sc1", "s_waitcnt vmcnt(0)",
         f"v_cmp_ne_u32 vcc, s{sNonce}, v2", "s_cbranch_vccnz L_oflag", "s_branch L_oflag_ok"]
stamp(5)
if opt["otouch"]:
    M(f"""
    v_bfe_u32 v60, v0, 2, 2
    v_lshlrev_b32 v60, 17, v60
    v_lshl_add_u32 v60, v1, 12, v60
    v_lshl_add_u32 v60, v63, 7, v60
    s_lshl_b32 s3, s{sNt}, 9
    s_add_u32 s3, s3, s{sOoff}
    s_add_u32 s68, s3, 0x4000
    buffer_load_dword v3, v60, s[{sW}:{sW+3}], s3 offen sc1
    """)
for h in range(2):
    for qb in range(4):
        for l in o_loads(h, qb): E(l)
        if opt["otouch"] and h*4 + qb == opt["otouch"]: E(f"buffer_load_dword v3, v60, s[{sW}:{sW+3}], s68 offen sc1")
    for l in o_next(): E(l)
stamp(1)
rdq = []
for h in range(8):
    Wb, Ob = WBLK[h & 3], OBLK[h & 1]
    for qb in range(4):
        ph, pq = (h, qb - 1) if qb else (h - 1, 3)
        if ph >= 0 and ph + 2 < 8:
            pend.extend(o_loads(ph + 2, pq))
            if pq == 3: pend.extend(o_next())
        if 1 <= h <= 4:
            kk = (h + 3)*4 + qb
            rdq = wo_reads(kk)
            w = [f"s_waitcnt vmcnt({vmn(f'wo{kk}', f'o{h}_{qb}')})"]
        else:
            rdq = []; w = [f"s_waitcnt vmcnt({vmn(f'o{h}_{qb}')})"]
        if h >= 4 and qb == 0 or (1 <= h <= 2): w[0] += " lgkmcnt(0)"
        if 1 <= h <= 2:
            kprev = (h + 3)*4 + qb - 1
            if kprev >= 16 and kprev + NU < 32: pend.extend(wo_dma(kprev + NU))
        E(w[0])
        if qb == 0: stamp(4)
        if h == 6 and qb == 0: E("s_barrier")
        for n in range(16):
            nb, i = n >> 2, n & 3
            if nb & 1: i = 3 - i
            D = blk(ACC, (qb*4 + nb)*4, 4)
            m = f"{MF} {D}, {blk(Wb, (nb*4 + i)*4, 4)}, {blk(Ob, (qb*4 + i)*4, 4)}, {'0' if h == 0 and n & 3 == 0 else D}"
            lead = []
            if n & 1 == 0 and n < 15:
                if pend and pend[0].startswith("s_"): lead.append(pend.pop(0))
                if rdq: lead.append(rdq.pop(0))
            elif pend:
                while pend and pend[0].startswith("s_") and not pend[0].startswith("s_add_u32 m0"): lead.append(pend.pop(0))
                if pend and not pend[0].startswith("s_"): lead.append(pend.pop(0))
            S.gap(m, lead)
        assert not rdq
assert not pend
stamp(5)
M(f"""
s_mul_i32 s3, s{sWave}, 4352
v_lshl_add_u32 v60, v0, 4, s3
s_lshl_b32 s3, s3, 2
v_mul_u32_u24 v61, 1088, v63
v_lshrrev_b32 v62, 2, v0
v_lshl_add_u32 v61, v62, 4, v61
v_add_u32 v61, s3, v61
""")
for qb in range(4):
    for nb in range(4): E(f"ds_write_b128 v60, {blk(ACC, (qb*4+nb)*4, 4)} offset:{qb*4*4352 + nb*1088}")
for l in unpack(128, vXr, 8) + unpack(144, vGp, 8): E(l)
E("s_waitcnt lgkmcnt(0)")
E("s_barrier")
for s_ in range(4):
    for g in range(4): E(f"ds_read_b128 {v(64+s_*16+g*4,4)}, v61 offset:{s_*4352 + g*256}")
E("s_waitcnt lgkmcnt(8)")
for e in range(16): E(f"v_add_f32 v{64+e}, v{64+e}, v{80+e}")
E("s_waitcnt lgkmcnt(0)")
for e in range(16): E(f"v_add_f32 v{96+e}, v{96+e}, v{112+e}")
for e in range(16): E(f"v_add_f32 v{64+e}, v{64+e}, v{96+e}")
for e in range(8): E(f"v_cvt_pk_bf16_f32 v{80+e}, v{64+2*e}, v{65+2*e}")
for l in unpack(64, 80, 8): E(l)
for e in range(16): E(f"v_mul_f32 v{64+e}, v{64+e}, v{144+e}")
for e in range(8): E(f"v_cvt_pk_bf16_f32 v{80+e}, v{64+2*e}, v{65+2*e}")
for l in unpack(64, 80, 8): E(l)
for e in range(16): E(f"v_add_f32 v{64+e}, v{64+e}, v{128+e}")
for e in range(8): E(f"v_cvt_pk_bf16_f32 v{80+e}, v{64+2*e}, v{65+2*e}")
E(f"global_store_dwordx4 v{vXo}, v[80:83], s[{pOut}:{pOut+1}]{POL[opt['ost']]}")
E(f"global_store_dwordx4 v{vXo}, v[84:87], s[{pOut}:{pOut+1}] offset:16{POL[opt['ost']]}")
stamp(1)
if opt["stamp"]: E("s_waitcnt vmcnt(0)")
stamp(1)
if opt["stamp"]:
    M(f"""
    s_lshl_b32 s3, s2, 2
    s_add_u32 s3, s3, s{sWave}
    s_lshl_b32 s3, s3, 7
    s_add_u32 s3, s3, {WS_T}
    v_mov_b32 v3, 0
    """)
    for i in range(32): E(f"v_mov_b32 v{4+i}, s{70+i}" if i < 2*nstamp[0] else f"v_mov_b32 v{4+i}, 0")
    for i in range(8): E(f"buffer_store_dwordx4 v[{4+4*i}:{7+4*i}], v3, s[{sW}:{sW+3}], s3 offen offset:{16*i}")
E("s_endpgm")
m2, m4 = emit_hooks()
r.vVDl = [20, 21, 20, 21]
M(f"""
L_fallback:
s_cmp_lg_u32 s{sFb}, 0
s_cbranch_scc1 L_safe
s_mov_b32 s{sFb}, 1
s_mov_b32 s{sMask2}, 0
s_mov_b32 s{sMask4}, 0x80
s_lshl_b32 s3, s{sHead}, 19
s_add_u32 s{sK}, s{pK}, s3
s_addc_u32 s{sK+1}, s{pK+1}, 0
s_mov_b32 s{sK+2}, 0x80000
s_add_u32 s{sV}, s{pV}, s3
s_addc_u32 s{sV+1}, s{pV+1}, 0
s_mov_b32 s{sV+2}, 0x80000
s_mov_b32 s{r.sKoff}, 0
s_mov_b32 s{r.sVoff}, 0
s_mov_b32 s{r.sKinc}, 0x4000
s_mov_b32 s{r.sVinc}, 0x4000
s_mov_b32 s{r.sIt}, 0
v_lshlrev_b32 v3, 4, v0
v_lshrrev_b32 v60, 2, v2
v_and_b32 v61, 1, v1
v_lshl_add_u32 v60, v61, 2, v60
v_and_b32 v63, 3, v0
s_waitcnt vmcnt(0) lgkmcnt(0)
s_barrier
""")
for l in ADDR: E(l)
for i in range(16): E(f"v_mov_b32 v{r.vM+i}, 0")
for i in range(16): E(f"v_mov_b32 v{r.vL+i}, 0")
for qb in range(4): E(f"v_mov_b32 v{60+qb}, 0xff800000")
E("L_fb_loop:")
plain(kdma(0))
M("s_waitcnt vmcnt(0)\ns_barrier")
for i in range(16): E(X.kread(0, i))
M("s_waitcnt lgkmcnt(0)\ns_barrier")
for g in range(64): E(X.qk(g))
E("s_nop 7")
for qb in range(4):
    for e in range(8): E(f"v_max3_f32 v{60+qb}, v{60+qb}, v{r.vS+16*qb+2*e}, v{r.vS+16*qb+2*e+1}")
M(f"""
s_cmp_lt_u32 s{r.sKoff}, 0x80000
s_cbranch_scc1 L_fb_loop
s_mov_b32 s{r.sKoff}, 0
""")
plain(kdma(0) + kdma(1) + vdma(0) + kdma(2) + vdma(1) + kdma(3) + vdma(2))
for sw in ("v_permlane32_swap_b32", "v_permlane16_swap_b32"):
    for qb in range(4): E(f"v_mov_b32 v{128+qb}, v{60+qb}")
    E("s_nop 1")
    for qb in range(4): E(f"{sw} v{128+qb}, v{60+qb}")
    E("s_nop 1")
    for qb in range(4): E(f"v_max_f32 v{60+qb}, v{60+qb}, v{128+qb}")
for qb in range(4):
    for e in range(4): E(f"v_sub_f32 v{r.vM+4*qb+e}, 0, v{60+qb}")
M("s_waitcnt vmcnt(0)\ns_barrier")
for i in range(16): E(X.kread(0, i))
M("s_waitcnt lgkmcnt(0)\ns_branch L_restart")
for l in cold: E(l)
A.label("L_end")
E("s_endpgm")
A.raw(f""".section .rodata,"a"
.p2align 6
.amdhsa_kernel {KN}_kernel
  .amdhsa_next_free_vgpr 512
  .amdhsa_next_free_sgpr 102
  .amdhsa_accum_offset 256
  .amdhsa_group_segment_fixed_size 0
  .amdhsa_kernarg_size 104
  .amdhsa_user_sgpr_count 2
  .amdhsa_user_sgpr_kernarg_segment_ptr 1
  .amdhsa_system_sgpr_workgroup_id_x 1
  .amdhsa_float_denorm_mode_32 3
.end_amdhsa_kernel""")
txt = A.text().replace("MASK2", hex(m2)).replace("MASK4", hex(m4))
bad = check_hazards(txt)
if bad: print("hazards:", len(bad), file=sys.stderr)
open(sys.argv[1], "w").write(txt)
```

```python
import sys, struct
from attn16 import *
KN = "recurrent_scan__mha_block_cached__moe_arch_mod__prompt"
opt = dict(holdp=0, holdt=0, forcefb=0, ntw=0, ost=0, tlb=0, varb=1, TF=18, TP=22, moeT=99, moe=1, pollat=10, wtouch=1, otouch=0, epace=40, npost=3, rot=0, s1st=5, cyc=0, stamp=0, snake=1, pvchain=1, G0=8, nt=1, ntq=0, sm=1, drate=4, pre=2)
opt_s = dict(touch="{}", hs="(2,4,6,18,22,24,27)", wT="(22,24)")
for x in sys.argv[2:]:
    k, val = x.split("=")
    if k in opt_s: opt_s[k] = val
    else: opt[k] = int(val)
A = Asm(); r = default_regs(); X = Attn(A, r, opt); S = Stream(A); E = S.emit; M = S.many
POL = ["", " nt", " sc1"]
def fbits(x): return hex(struct.unpack("<I", struct.pack("<f", x))[0])
WS_O = 0
WS_STAT = 16 << 20
WS_KEY = WS_STAT + 0x4000
WS_FLAG = WS_STAT + 0x10000
WS_SEL = WS_STAT + 0x8000
WS_FC = WS_STAT + 0x9000
WS_UPD = WS_STAT + 0xC000
WS_XN = 18 << 20
WS_PART = 20 << 20
WS_T = 64 << 20
sX, sK, sV, sW, sWq = 4, 8, 12, 16, 28
sWave, sHead, sQb = 20, 21, 22
sXoff, sWoff, sM0X, sM0W = 34, 35, 62, 63
pX, pK, pV, pWq, pWo, pWr, pWg, pWu, pWd, pOut, pDbg, pWs = 36, 38, 40, 42, 44, 48, 50, 52, 54, 56, 58, 60
sKey0, sRow0, sNonce = 64, 66, 46
sSpin = 33
def spin(label, ok): return [f"s_sub_u32 s{sSpin}, s{sSpin}, 1", f"s_cbranch_scc1 {ok}"]
cold = []
nstamp = [0]
CLK = "s_memtime" if opt["cyc"] else "s_memrealtime"
npoint = [0]
def hold_at():
    npoint[0] += 1
    if opt["holdp"] == npoint[0]:
        M(f"""
        L_hold:
        s_memrealtime s[98:99]
        s_waitcnt lgkmcnt(0)
        s_sub_u32 s98, s98, s100
        s_cmp_lt_u32 s98, {opt['holdt']*100}
        s_cbranch_scc1 L_hold
        """)
def stamp(lvl=1, wait=True):
    if lvl & 1: hold_at()
    if opt["stamp"] & lvl and nstamp[0] < 16:
        i = nstamp[0]; nstamp[0] += 1
        E(f"{CLK} s[{70+2*i}:{71+2*i}]")
        if wait: E("s_waitcnt lgkmcnt(0)")

A.raw("; @launch grid=(256,1,1) block=(256,1,1) lds=163840")
A.raw('.amdgcn_target "amdgcn-amd-amdhsa--gfx950"')
A.raw(".text"); A.raw(f".globl {KN}_kernel"); A.raw(".p2align 8"); A.raw(f".type {KN}_kernel,@function")
A.label(f"{KN}_kernel")
M(f"""
s_cmp_ge_u32 s2, 256
s_cbranch_scc1 L_end
s_load_dwordx16 s[36:51], s[0:1], 0
s_load_dwordx8 s[52:59], s[0:1], 64
s_load_dwordx2 s[60:61], s[0:1], 96
s_memrealtime s[68:69]
""")
if opt["stamp"]:
    E(f"{CLK} s[70:71]"); nstamp[0] = 1
if opt["holdp"]: E("s_memrealtime s[100:101]")
M(f"""
s_getpc_b64 s[32:33]
v_lshlrev_b32 v4, 7, v0
v_add_u32 v5, 0x8000, v4
v_min_u32 v5, L_end-{KN}_kernel-128, v5
v_lshrrev_b32 v1, 6, v0
v_and_b32 v0, 63, v0
global_load_dword v23, v4, s[32:33]
global_load_dword v23, v5, s[32:33]
v_readfirstlane_b32 s{sWave}, v1
s_and_b32 s3, s2, 7
s_lshl_b32 s3, s3, 2
s_bfe_u32 s{sHead}, s2, 0x20003
s_or_b32 s{sHead}, s{sHead}, s3
s_lshr_b32 s{sQb}, s2, 5
v_lshrrev_b32 v1, 4, v0
v_and_b32 v2, 15, v0
""")
vXD, vWD, vXA, vWA, vCS, vKM = 76, 84, 88, 92, 100, 108
vSX, vG = r.vL, r.vM
M(f"""
v_lshrrev_b32 v4, 3, v0
s_lshl_b32 s3, s{sWave}, 6
v_add_u32 v4, s3, v4
v_lshlrev_b32 v4, 10, v4
v_and_b32 v5, 7, v0
v_xor_b32 v6, v5, v1
v_xor_b32 v7, 4, v6
v_lshl_add_u32 v6, v6, 4, v4
v_lshl_add_u32 v7, v7, 4, v4
""")
for p in range(8): E(f"v_add_u32 v{vXD+p}, {p*8192 - (p&3)*1024}, v{6+(p&1)}")
M(f"""
s_lshl_b32 s3, s{sWave}, 4
v_add_u32 v4, s3, v1
v_lshlrev_b32 v4, 13, v4
v_lshlrev_b32 v5, 1, v1
v_xor_b32 v6, v5, v2
v_xor_b32 v7, 8, v6
v_lshl_add_u32 v6, v6, 4, v4
v_lshl_add_u32 v7, v7, 4, v4
""")
for p in range(4): E(f"v_add_u32 v{vWD+p}, {p*4*8192 - p*1024}, v{6+(p>>1)}")
M(f"""
s_lshl_b32 s{sM0X}, s{sWave}, 13
s_lshl_b32 s{r.sM0K}, s{sWave}, 12
s_add_u32 s{sM0W}, s{r.sM0K}, 0xC000
s_lshl_b32 s3, s{sHead}, 1
s_mul_i32 s3, s3, {1 if opt['rot'] & 1 else 0}
s_mul_i32 s67, s{sQb}, {1 if opt['rot'] & 2 else 0}
s_add_u32 s3, s3, s67
s_and_b32 s3, s3, 7
s_lshl_b32 s{sXoff}, s3, 7
s_lshl_b32 s{sWoff}, s3, 19
s_mov_b32 s{sX+2}, 0x40000
s_mov_b32 s{sX+3}, 0x20000
s_mov_b32 s{sWq+3}, 0x20000
s_lshl_b32 s3, s{sQb}, 18
s_lshl_b32 s67, s{sHead}, 8
s_sub_u32 s{sWq+2}, 0x400000, s67
s_waitcnt lgkmcnt(0)
s_add_u32 s{sX}, s{pX}, s3
s_addc_u32 s{sX+1}, s{pX+1}, 0
s_add_u32 s{sWq}, s{pWq}, s67
s_addc_u32 s{sWq+1}, s{pWq+1}, 0
s_or_b32 s3, s2, s{sWave}
s_cbranch_scc1 L_nononce
""")
A("s_or_b32 s68, s68, 1"); A("v_mov_b32 v4, 0"); A("v_mov_b32 v5, s68"); A(f"global_store_dword v4, v5, s[{pDbg}:{pDbg+1}] sc1")
E("L_nononce:")
stamp(2)
XSLOT = [0x18000, 0x20000, 0x4000]
def xdma(st):
    L = []
    for p in range(8):
        if p & 3 == 0: L.append(f"s_add_u32 m0, s{sM0X}, {XSLOT[st%3] + (p>>2)*4096}")
        L.append(f"buffer_load_dwordx4 v{vXD+p}, s[{sX}:{sX+3}], s{sXoff} offen offset:{(p&3)*1024}{POL[opt['ntq']]} lds ; x{st}")
    L.append(f"s_add_u32 s{sXoff}, s{sXoff}, 128")
    L.append(f"s_and_b32 s{sXoff}, s{sXoff}, 0x3ff")
    return L
def wdma(st):
    L = [f"s_add_u32 m0, s{sM0W}, {(st%3)*16384}"]
    for p in range(4):
        L.append(f"buffer_load_dwordx4 v{vWD+p}, s[{sWq}:{sWq+3}], s{sWoff} offen offset:{p*1024}{POL[opt['ntw']]} lds ; w{st}")
    L.append(f"s_add_u32 s{sWoff}, s{sWoff}, 0x80000")
    L.append(f"s_and_b32 s{sWoff}, s{sWoff}, 0x3fffff")
    return L
def tagged(L, t): return [l + " ; " + t if l.startswith("buffer") else l for l in L]
def kdma(T): return tagged(X.dma(T & 3)[:5], f"k{T}") + [f"s_add_u32 s{r.sKoff}, s{r.sKoff}, 0x4000"]
def vdma(T): return tagged(X.dma((T + 1) & 3)[5:], f"v{T}") + [f"s_add_u32 s{r.sVoff}, s{r.sVoff}, 0x4000"]
def plain(L):
    for l in L:
        E(l)
        if l.startswith("s_add_u32 m0"): E("s_nop 0")
TL = []
if opt["tlb"]:
    TL = [[f"s_lshl_b32 s67, s{sHead}, 19", f"s_load_dword s64, s[{pK}:{pK+1}], s67", f"s_load_dword s64, s[{pV}:{pV+1}], s67"],
          [f"s_mov_b32 s67, {WS_STAT}", f"s_load_dword s64, s[{pWs}:{pWs+1}], s67", f"s_mov_b32 s68, {WS_XN}", f"s_load_dword s64, s[{pWs}:{pWs+1}], s68"],
          [f"s_load_dword s64, s[{pWr}:{pWr+1}], 0", f"s_load_dword s64, s[{pDbg}:{pDbg+1}], 128", f"s_mov_b32 s67, 0x200000", f"s_load_dword s64, s[{pWq}:{pWq+1}], s67"]]
    if opt["tlb"] > 1:
        TL += [[f"s_load_dword s64, s[{pWg}:{pWg+1}], 0", f"s_load_dword s64, s[{pWu}:{pWu+1}], 0", f"s_load_dword s64, s[{pWd}:{pWd+1}], 0"],
               [f"s_load_dword s64, s[{pWo}:{pWo+1}], 0", f"s_load_dword s64, s[{pWo}:{pWo+1}], s67", f"s_load_dword s64, s[{pOut}:{pOut+1}], 0"],
               [f"s_lshl_b32 s67, s{sQb}, 21", f"s_load_dword s64, s[{pWs}:{pWs+1}], s67", f"s_mov_b32 s68, {WS_PART}", f"s_load_dword s64, s[{pWs}:{pWs+1}], s68"],
               [f"s_mov_b32 s67, {WS_PART + 0x200000}", f"s_load_dword s64, s[{pWs}:{pWs+1}], s67"]]
for l in wdma(0) + xdma(0):
    E(l)
    if l.startswith("s_add_u32 m0"): E("s_nop 0")
    if "lds" in l and TL:
        for f in TL.pop(0): E(f)
stamp(2, False)
M(f"""
v_lshrrev_b32 v4, 1, v2
v_xor_b32 v4, v4, v1
v_lshlrev_b32 v5, 7, v2
v_add_u32 v5, s{sM0X}, v5
v_lshl_add_u32 v6, v4, 4, v5
v_xor_b32 v4, 4, v4
v_lshl_add_u32 v7, v4, 4, v5
v_add_u32 v{vXA}, {XSLOT[0]}, v6
v_add_u32 v{vXA+1}, {XSLOT[0]}, v7
v_add_u32 v{vXA+2}, {XSLOT[2]}, v6
v_add_u32 v{vXA+3}, {XSLOT[2]}, v7
v_lshrrev_b32 v4, 2, v2
v_lshl_add_u32 v5, v1, 3, v4
v_lshlrev_b32 v5, 8, v5
v_and_b32 v63, 3, v0
v_lshl_add_u32 v5, v63, 3, v5
v_add_u32 v5, 0xC000, v5
v_and_b32 v6, 1, v1
v_lshl_add_u32 v60, v6, 2, v4
s_lshl_b32 s67, s{sWave}, 1
""")
for j in range(8):
    E(f"s_add_u32 s3, s67, {j}"); E("s_and_b32 s3, s3, 7")
    E("v_xor_b32 v6, s3, v60"); E(f"v_lshl_add_u32 v{vWA+j}, v6, 5, v5")
M(f"""
v_mov_b32 v62, 0x3f803f80
v_cmp_gt_u32 vcc, 2, v63
v_and_b32 v4, 1, v0
v_mov_b32 v5, 0x44444444
v_mov_b32 v6, 0xeeeeeeee
v_cndmask_b32 v{r.vOne}, 0, v62, vcc
v_cndmask_b32 v{r.vOne+1}, 0, v62, vcc
v_cndmask_b32 v{r.vOne+2}, 0, v62, vcc
v_cndmask_b32 v{r.vOne+3}, 0, v62, vcc
v_cmp_eq_u32 vcc, 1, v4
s_lshl_b32 s3, s{sHead}, 2
s_add_u32 s3, s3, s{sWave}
v_cndmask_b32 v{r.vIdx}, v5, v6, vcc
s_lshl_b32 s{sRow0}, s3, 11
v_lshlrev_b32 v3, 4, v0
""")
for i in range(8): E(f"v_mov_b32 v{vCS+i}, 0")
vTX, vTW, vTK = 52, 53, 54
M(f"""
s_and_b32 s3, s{sHead}, 3
s_lshl_b32 s3, s3, 2
s_add_u32 s3, s3, s{sWave}
s_lshl_b32 s3, s3, 14
v_lshlrev_b32 v{vTX}, 10, v2
v_lshl_add_u32 v{vTX}, v1, 7, v{vTX}
v_add_u32 v{vTX}, s3, v{vTX}
s_lshl_b32 s3, s{sQb}, 2
s_add_u32 s3, s3, s{sWave}
s_lshl_b32 s67, s3, 14
v_lshrrev_b32 v5, 2, v0
v_lshlrev_b32 v5, 19, v5
v_lshl_add_u32 v5, v4, 13, v5
v_bfe_u32 v6, v0, 1, 1
v_lshl_add_u32 v5, v6, 7, v5
v_add_u32 v{vTW}, s67, v5
s_lshl_b32 s3, s3, 9
v_lshrrev_b32 v5, 2, v0
v_lshlrev_b32 v5, 14, v5
v_lshl_add_u32 v5, v63, 7, v5
v_lshl_add_u32 v5, v1, 28, v5
v_add_u32 v{vTK}, s3, v5
""")
TWX = {}
for kinds in eval(opt_s["touch"]).values():
    for k in kinds:
        if k[0] == "w" and len(k) >= 3:
            TWX[k[1:3]] = 3 + len(TWX)
            lo, hi = int(k[1])*4, int(k[2])*4 + 4
            E(f"v_subrev_u32 v5, {lo}, v0"); E(f"v_cmp_gt_u32 vcc, {hi-lo}, v5"); E("v_mov_b32 v5, 0x40000000"); E("s_nop 0")
            E(f"v_cndmask_b32 v{vTW+TWX[k[1:3]]}, v5, v{vTW}, vcc")
def touch(kind):
    if kind[0] == "x": return f"buffer_load_dword v55, v{vTX}, s[{sX}:{sX+3}], 0 offen offset:{int(kind[1])*128} ; t"
    if kind[0] == "w":
        nt_ = " nt" if kind.endswith("n") else ""
        return f"buffer_load_dword v55, v{vTW + (0 if len(kind) < 3 else TWX[kind[1:3]])}, s[{sWq}:{sWq+3}], 0 offen{nt_} ; t"
    if kind[0] == "k": return f"buffer_load_dword v55, v{vTK}, s[{sK}:{sK+3}], 0 offen ; t"
    if kind[0] == "v": return f"buffer_load_dword v55, v{vTK}, s[{sV}:{sV+3}], 0 offen ; t"
TOUCH = eval(opt_s["touch"])
for k in TOUCH.get(-2, ()): E(touch(k))
stamp(2, False)
Q = S.q
Q += f"""v_lshlrev_b32 v61, 8, v1
v_add_u32 v61, s{r.sM0K}, v61
v_xor_b32 v62, v1, v2""".split("\n")
for p in range(4): Q += [f"v_xor_b32 v51, {4*p}, v62", f"v_lshl_add_u32 v{r.vKD+p}, v51, 4, v61"]
Q += ["v_lshlrev_b32 v62, 1, v1", "v_xor_b32 v62, v62, v2"]
for p in range(2): Q += [f"v_xor_b32 v51, {8*p}, v62", f"v_lshl_add_u32 v{r.vVD+p}, v51, 4, v61"]
Q += f"""v_lshrrev_b32 v61, 2, v2
v_lshl_add_u32 v61, v1, 2, v61
v_lshlrev_b32 v61, 8, v61
v_lshl_add_u32 v61, v63, 3, v61
v_add_u32 v61, {r.VBASE}, v61""".split("\n")
for db in range(8): Q += [f"v_xor_b32 v51, {db}, v60", f"v_lshl_add_u32 v{r.vVA+db}, v51, 5, v61"]
Q += ["v_lshrrev_b32 v61, 1, v1", "v_and_b32 v62, 1, v1", "v_lshl_add_u32 v62, v62, 1, v61"]
for s_ in range(4):
    Q += [f"s_add_u32 s68, s{sWave}, {s_}", "s_and_b32 s68, s68, 3", "s_lshl_b32 s68, s68, 2",
          "v_or_b32 v61, s68, v62", "v_xor_b32 v51, v61, v2", "v_lshlrev_b32 v51, 4, v51", f"v_lshl_add_u32 v{r.vKA+s_}, v2, 8, v51",
          "v_xor_b32 v51, v61, v63", "v_lshlrev_b32 v51, 4, v51", f"v_lshl_add_u32 v{vKM+s_}, v63, 8, v51"]
vCA = 124
Q += [f"s_add_u32 s67, s{sM0X}, {XSLOT[1]}", "v_lshl_add_u32 v62, v2, 2, s67", "v_lshlrev_b32 v61, 3, v2",
      f"s_lshl_b32 s1, s{sQb}, 2", f"s_add_u32 s1, s1, s{sWave}", "s_lshl_b32 s1, s1, 9", f"s_add_u32 s1, s1, {WS_STAT}"]
for s_ in range(4):
    Q += [f"s_add_u32 s68, s{sM0X}, {s_*8192}", "s_and_b32 s68, s68, 0x7fff", f"s_add_u32 s68, s68, {XSLOT[1]}", f"v_lshl_add_u32 v{vCA+s_}, v1, 4, s68"]
Q += ["v_mov_b32 v1, v20", "v_mov_b32 v2, v21"]
for i in range(128): Q.append(f"v_accvgpr_write_b32 a{r.aO+i}, 0")
PRE = list(Q); del Q[:]
import re as _re
ADDR = [l for l in PRE if not _re.match(rf"v_\w+ v({vKM}|{vKM+1}|{vKM+2}|{vKM+3}|{vCA}|{vCA+1}|{vCA+2}|{vCA+3}),", l) and "s1" not in l]
L1 = []
for st in range(1, opt["pre"]): L1 += wdma(st) + xdma(st)
L1 += f"""buffer_load_dwordx4 v[64:67], v3, s[{sX}:{sX+3}], s{sRow0} offen ; ln
buffer_load_dwordx4 v[68:71], v3, s[{sX}:{sX+3}], s{sRow0} offen offset:1024 ; ln
global_load_dwordx4 v[72:75], v3, s[{pWr}:{pWr+1}] ; ln
global_load_dword v23, v{vCS+2}, s[{pDbg}:{pDbg+1}] sc1 ; ln""".split("\n")
per = -(-len(PRE) // max(1, sum("lds" in l for l in L1)))
for l in L1:
    E(l)
    if l.startswith("s_add_u32 m0"): E("s_nop 0")
    if "lds" in l:
        for f in PRE[:per]: E(f)
        del PRE[:per]
for f in PRE: E(f)
for k in TOUCH.get(-1, ()): E(touch(k))
M(f"""
s_lshl_b32 s3, s{sHead}, 19
s_add_u32 s{sK}, s{pK}, s3
s_addc_u32 s{sK+1}, s{pK+1}, 0
s_mov_b32 s{sK+2}, 0x80000
s_mov_b32 s{sK+3}, 0x20000
s_add_u32 s{sV}, s{pV}, s3
s_addc_u32 s{sV+1}, s{pV+1}, 0
s_mov_b32 s{sV+2}, 0x80000
s_mov_b32 s{sV+3}, 0x20000
s_mov_b32 s{sW}, s{pWs}
s_mov_b32 s{sW+1}, s{pWs+1}
s_mov_b32 s{sW+2}, 0x10000000
s_mov_b32 s{sW+3}, 0x20000
s_mov_b32 s{r.sKoff}, 0
s_mov_b32 s{r.sVoff}, 0
s_mov_b32 s{sSpin}, 0x100000
s_add_u32 s{r.sM0V}, s{r.sM0K}, {r.VBASE}
s_lshl_b32 s3, s{sQb}, 8
s_lshr_b32 s{sRow0}, s{sRow0}, 10
s_add_u32 s{sRow0}, s{sRow0}, s3
""")
stamp(2, False)
aXN = 248
def unpack(dst, src, n=4):
    L = []
    for k in range(n):
        L += [f"v_lshlrev_b32 v{dst+2*k}, 16, v{src+k}", f"v_and_b32 v{dst+2*k+1}, 0xffff0000, v{src+k}"]
    return L
def wave_sum(reg, sdst):
    return [f"v_add_f32_dpp v{reg}, v{reg}, v{reg} {m} bank_mask:0xf" for m in
            ("quad_perm:[1,0,3,2] row_mask:0xf", "quad_perm:[2,3,0,1] row_mask:0xf", "row_half_mirror row_mask:0xf",
             "row_mirror row_mask:0xf", "row_bcast:15 row_mask:0xa", "row_bcast:31 row_mask:0xc")] + [f"v_readlane_b32 s{sdst}, v{reg}, 63"]
def rbf(x): return [f"v_cvt_pk_bf16_f32 v{x}, v{x}, v{x}", f"v_lshlrev_b32 v{x}, 16, v{x}"]
vE, vD, vWr, vO = 32, 40, 112, 120
Q.append([lambda: f"s_waitcnt vmcnt({S.vmn('ln')})", f"v_readfirstlane_b32 s{sNonce}, v23", "s_nop 0", f"s_cmp_eq_u32 s{sNonce}, 0",
          "s_cbranch_scc1 L_nonce_retry", "L_nonce_ok:"])
cold += ["L_nonce_retry:"] + spin("", "L_nonce_ok") + ["v_mov_b32 v48, 0", f"global_load_dword v23, v48, s[{pDbg}:{pDbg+1}] sc1", "s_waitcnt vmcnt(0)",
         f"v_readfirstlane_b32 s{sNonce}, v23", "s_nop 0", f"s_cmp_eq_u32 s{sNonce}, 0", "s_cbranch_scc1 L_nonce_retry", "s_branch L_nonce_ok"]
Q += ["v_mov_b32 v50, 0x3b000000"]
for k in range(2):
    Q += unpack(vE, 64 + 4*k)
    Q += [f"v_add_f32 v{vD+e}, v{vE+2*e}, v{vE+2*e+1}" for e in range(4)]
    Q += [f"v_add_f32 v{vD}, v{vD}, v{vD+1}", f"v_add_f32 v{vD+2}, v{vD+2}, v{vD+3}", f"v_add_f32 v48, v{vD}, v{vD+2}"]
    Q += wave_sum(48, 68) + ["v_mul_f32 v48, s68, v50"]
    Q += [f"v_sub_f32 v{vD+e}, v{vE+e}, v48" for e in range(8)]
    Q += [f"v_mul_f32 v49, v{vD}, v{vD}"] + [f"v_fmac_f32 v49, v{vD+e}, v{vD+e}" for e in range(1, 8)]
    Q += wave_sum(49, 68)
    Q += ["v_mul_f32 v49, s68, v50"] + rbf(49) + ["v_add_f32 v49, 0x3727c5ac, v49"] + rbf(49) + ["v_sqrt_f32 v49, v49"]
    Q += [f"v_mov_b32 v{vO+2*k+1}, s{sNonce}", f"v_cvt_pk_bf16_f32 v{vO+2*k}, v48, v49"]
Q += [f"s_lshl_b32 s68, s{sRow0}, 3", f"s_add_u32 s69, s68, {WS_KEY}", f"s_add_u32 s68, s68, {WS_STAT}"]
Q.append(["s_mov_b64 exec, 1", f"buffer_store_dwordx4 v[{vO}:{vO+3}], off, s[{sW}:{sW+3}], s68 sc1 ; s1", "s_mov_b64 exec, -1"])
Q += unpack(vWr, 72)
for k in range(2):
    Q += unpack(vE, 64 + 4*k) + [f"v_lshlrev_b32 v48, 16, v{vO+2*k}", f"v_and_b32 v49, 0xffff0000, v{vO+2*k}", "v_rcp_f32 v49, v49"]
    Q += [f"v_sub_f32 v{vE+e}, v{vE+e}, v48" for e in range(8)]
    Q += [f"v_cvt_pk_bf16_f32 v{vD+e}, v{vE+2*e}, v{vE+2*e+1}" for e in range(4)]
    Q += unpack(vE, vD)
    Q += [f"v_mul_f32 v{vE+e}, v{vE+e}, v49" for e in range(8)]
    Q += [f"v_cvt_pk_bf16_f32 v{vD+e}, v{vE+2*e}, v{vE+2*e+1}" for e in range(4)]
    Q += unpack(vE, vD)
    Q += [f"v_mul_f32 v49, v{vE}, v{vWr}"] + [f"v_fmac_f32 v49, v{vE+e}, v{vWr+e}" for e in range(1, 8)]
    Q += [f"s_lshl_b32 s67, s{sRow0}, 10", f"s_add_u32 s67, s67, {WS_XN}",
          f"buffer_store_dwordx4 v[{vD}:{vD+3}], v3, s[{sW}:{sW+3}], s67 offen offset:{k*1024} sc1 ; s1"]
    Q += wave_sum(49, 68) + [f"s_sub_u32 s67, {2047-k}, s{sRow0}", "v_mov_b32 v49, s68", "v_cvt_pk_bf16_f32 v49, v49, v49",
          "v_ashrrev_i32 v48, 31, v49", "v_or_b32 v48, 0x80000000, v48", "v_xor_b32 v49, v48, v49", "v_and_b32 v49, 0xffff0000, v49",
          f"v_or_b32 v{28+k}, s67, v49", f"v_mov_b32 v{30+k}, s{sNonce}", f"v_readfirstlane_b32 s{sKey0+k}, v{28+k}"]
Q.append(["s_mov_b64 exec, 1", f"buffer_store_dwordx4 v[28:31], off, s[{sW}:{sW+3}], s69 sc1 ; s1", "s_mov_b64 exec, -1"])
NFILL = len(Q); S1 = list(Q); del Q[:]
r.sKinc, r.sVinc = 34, 35
sMask2, sMask4 = 62, 63
sQt, sNt = 47, 32
sChunk = 69
sFb = 0
SET = f"""s_mov_b32 s{r.sKinc}, 0x4000
s_mov_b32 s{r.sVinc}, 0x4000
s_mov_b32 s{r.sIt}, 0
s_and_b32 s3, s2, 6
s_lshl_b32 s3, s3, 2
s_lshr_b32 s{sQt}, s2, 5
s_add_u32 s{sQt}, s{sQt}, s3
s_bfe_u32 s{sNt}, s2, 0x20003
s_and_b32 s3, s2, 1
s_lshl_b32 s3, s3, 2
s_add_u32 s{sNt}, s{sNt}, s3
s_lshl_b32 s3, s{sNt}, 7
s_lshl_b32 s67, s{sWave}, 20
s_add_u32 s3, s3, s67
s_sub_u32 s{sWq+2}, 0x400000, s3""".split("\n")
SET.append([f"s_add_u32 s{sWq}, s{pWo}, s3", f"s_addc_u32 s{sWq+1}, s{pWo+1}, 0"])
if opt["moe"]:
    SET += f"""s_and_b32 s3, s2, 7
s_mul_i32 s68, s3, 28
s_lshr_b32 s67, s2, 3
s_add_u32 s{sChunk}, s68, s67""".split("\n")
    SET.append(["s_cmp_ge_u32 s67, 28", f"s_cselect_b32 s{sChunk}, -1, s{sChunk}"])
    SET += f"""s_lshr_b32 s68, s68, 3
s_lshl_b32 s68, s68, 7
s_lshl_b32 s67, s67, 1
s_and_b32 s3, s{sWave}, 1
s_add_u32 s67, s67, s3
s_mul_i32 s67, s67, {8*3584}
s_add_u32 s68, s68, s67
v_bfe_u32 v112, v0, 2, 3
v_mul_u32_u24 v112, 3584, v112
v_and_b32 v113, 3, v0
v_lshl_add_u32 v112, v113, 7, v112
v_add_u32 v112, s68, v112""".split("\n")
    SET.append([f"s_cmp_lt_u32 s{sWave}, 2", f"s_cselect_b64 s[6:7], s[{pWg}:{pWg+1}], s[{pWu}:{pWu+1}]"])
    SET.append("global_load_dword v23, v112, s[6:7] ; t")
SET += [f"s_mov_b32 s{sFb}, 0", f"s_mov_b32 s{sMask2}, MASK2", f"s_mov_b32 s{sMask4}, MASK4"]
aXF, aWF = 128, 192
SMF = "v_smfmac_f32_16x16x64_bf16"
def acc(j, qb): return 128 + (3 - (j >> 1))*32 + qb*8 + (j & 1)*4
def xread(st, n):
    qb, ks = n >> 1, n & 1; slot = st % 3
    base = vXA + (2 if slot == 2 else 0) + ks
    off = (XSLOT[slot] - XSLOT[0] if slot != 2 else 0) + qb*2048
    return f"ds_read_b128 {a(aXF+(st&1)*32+n*4,4)}, v{base} offset:{off}"
def wread(st, j, n):
    ks, half = n >> 1, n & 1
    return f"ds_read_b64_tr_b16 {a(aWF+(j&3)*8+ks*4+half*2,2)}, v{vWA+j} offset:{(st%3)*16384 + ks*8192 + half*1024}"
def qmf(st, j):
    L = []
    if j < 2: L.append(f"{SMF} {v(vCS+4*j,4)}, {v(r.vOne,4)}, {a(aWF+(j&3)*8,8)}, v{r.vIdx}")
    for qb in range(4):
        for t in range(2):
            ks = t ^ (qb & 1)
            D = v(acc(j, qb), 4); C = "0" if (st == 0 and t == 0) else D
            L.append(f"{MF} {D}, {a(aWF+(j&3)*8+ks*4,4)}, {a(aXF+(st&1)*32+(qb*2+ks)*4,4)}, {C}")
    return L
E(f"s_waitcnt vmcnt({S.vmn('x0', 'w0')}) lgkmcnt(0)")
E("s_barrier")
stamp(3)
for n in range(8): E(xread(0, n))
for j in range(2):
    for n in range(4): E(wread(0, j, n))
pend = []
for st in range(opt["pre"], 3): pend += wdma(st) + xdma(st)
def vmn(*tags):
    assert not any(l.split(";")[-1].strip() in tags for l in pend), (tags, pend)
    return S.vmn(*tags)
def one_dma():
    while pend:
        l = pend.pop(0); E(l)
        if l.startswith("s_add_u32 m0"): E("s_nop 0")
        if l.startswith("buffer"): break
statld = [f"buffer_load_dwordx2 v[{vG+4*qb}:{vG+4*qb+1}], v61, s[{sW}:{sW+3}], s1 offen offset:{qb*128} sc1 ; st" for qb in range(4)]
since = [99]
def dma_slot(j, n, hasds):
    if pend and pend[0].startswith("s_"): return [pend.pop(0)]
    slots = {0: (1, 5, 7), 1: (1, 5, 7), 5: (4, 6), 6: (), 7: ()}.get(j, (1, 5))
    if opt["drate"] == 3: slots = {0: (1, 3, 5, 7), 1: (1, 5, 7), 5: (4, 6), 6: (), 7: ()}.get(j, (1, 3, 5))
    if pend and not hasds and (n in slots or "lds" not in pend[0]): return [pend.pop(0)]
    return []
vC = r.vL
def csread(s_): return [f"ds_read_b128 {v(vC+(s_&1)*8+4*jj,4)}, v{vCA+s_} offset:{jj*64}" for jj in range(2)]
CL2E = 1.4426950408889634 / (128 ** 0.5)
E("s_waitcnt lgkmcnt(4)")
for st in range(8):
    if st == 6:
        assert not any(f"s{sXoff}" in l or f"s{sWoff}" in l or f"s{sM0X}" in l or f"s{sM0W}" in l for l in pend)
        Q += SET
    pend[0:0] = [touch(k) for k in TOUCH.get(st, ())]
    if st + 3 < 8: pend += xdma(st + 3)
    if st == 5:
        pend += kdma(0)

    for j in range(8):
        L = qmf(st, j)
        if st*8 + j == opt["s1st"]: Q += S1
        ds = [None] * len(L); last = []
        if j < 6:
            o = 0
            for n in range(4): ds[o + (n if j == 5 else 2*n)] = wread(st, j + 2, n)
            if j < 5: last = ["s_waitcnt lgkmcnt(4)"]
            elif st < 7:
                tags = [f"x{st+1}", f"w{st+1}"]
                last = [lambda tags=tags: f"s_waitcnt vmcnt({vmn(*tags)}) lgkmcnt(0)", "s_barrier"]
            else: last = [lambda: f"s_waitcnt vmcnt({vmn('k0', 'st')}) lgkmcnt(0)", "s_barrier"]
        elif st < 7:
            seq = [xread(st + 1, n) for n in range(4)] + [wread(st + 1, 0, n) for n in range(4)] if j == 6 else \
                  [xread(st + 1, 4 + n) for n in range(4)] + [wread(st + 1, 1, n) for n in range(4)]
            ds = seq
            if j == 7: last = ["s_waitcnt lgkmcnt(4)"]
        else:
            seq = csread(0) + csread(1) + [f"ds_read_b128 {a(aWF+4*s_,4)}, v{vKM+s_}" for s_ in range(4)] if j == 6 else \
                  [X.kread(0, i) for i in range(8)]
            ds = seq
        if st == 7 and j == 2:
            Q += [f"v_add_f32 v{vCS}, v{vCS}, v{vCS+1}", f"v_add_f32 v{vCS+4}, v{vCS+4}, v{vCS+5}",
                  f"ds_write2_b32 v62, v{vCS}, v{vCS+4} offset0:0 offset1:16"]
        if st == 7 and j == 6:
            assert not Q, len(Q)
            Q.append([f"v_xor_b32 v{vG+2}, s{sNonce}, v{vG+1}", f"v_xor_b32 v{vG+6}, s{sNonce}, v{vG+5}"])
            Q.append([f"v_xor_b32 v{vG+10}, s{sNonce}, v{vG+9}", f"v_xor_b32 v{vG+14}, s{sNonce}, v{vG+13}"])
            del Q[:]
            chk = [f"v_xor_b32 v{vG+4*qb+2}, s{sNonce}, v{vG+4*qb+1}" for qb in range(4)] + \
                  [f"v_or3_b32 v{vG+2}, v{vG+2}, v{vG+6}, v{vG+10}", f"v_or_b32 v{vG+2}, v{vG+2}, v{vG+14}", f"v_cmp_ne_u32 vcc, 0, v{vG+2}"]
            Q += chk + ["s_cbranch_vccnz L_stat_retry", "L_stat_ok:"]
            cold += ["L_stat_retry:"] + spin("", "L_stat_ok") + [l.split(";")[0] for l in statld] + ["s_waitcnt vmcnt(0)"] + chk + ["s_cbranch_vccnz L_stat_retry", "s_branch L_stat_ok"]
            P_ = []
            for qb in range(4):
                g = vG + 4*qb
                P_.append([f"v_and_b32 v{g+1}, 0xffff0000, v{g}", f"v_lshlrev_b32 v{g}, 16, v{g}", f"v_rcp_f32 v{g+1}, v{g+1}",
                           f"v_sub_f32 v{g}, 0, v{g}", f"v_mul_f32 v{g+1}, {fbits(CL2E)}, v{g+1}"])
            for tup in zip(*P_): Q += list(tup)
        for n, m in enumerate(L):
            lead = []
            if n == len(L) - 1 and last:
                lead = ([ds[n]] if ds[n] else []) + last
            else:
                lead = dma_slot(j, n, ds[n] is not None) + ([ds[n]] if ds[n] else [])
            S.gap(m, lead)
        if j == 5:
            stamp(2)
            if st + 3 < 8: pend += wdma(st + 3)
            if st == 6: assert len(Q) <= len(SET)
            if st == 5: pend += kdma(1) + vdma(0) + kdma(2)
            if st == 6: pend[0:0] = statld; pend += vdma(1) + kdma(3) + vdma(2)
print("fillers", NFILL, "left", len(Q), "dma left", len(pend), file=sys.stderr)
for i in range(8, 16): E(X.kread(0, i))
S.drain()
stamp(3)
for s_ in range(4):
    E("s_waitcnt lgkmcnt(0)" if s_ != 1 else "s_nop 0")
    for qb in range(4):
        b = acc(2*s_, qb); st = vG + 4*qb
        for e in range(4):
            E(f"v_pk_fma_f32 v[{b+2*e}:{b+2*e+1}], v[{vC+(s_&1)*8+2*e}:{vC+(s_&1)*8+2*e+1}], v[{st}:{st+1}], v[{b+2*e}:{b+2*e+1}] op_sel:[0,0,0] op_sel_hi:[1,0,1]")
        if qb == 3 and s_ + 2 < 4:
            for l in csread(s_ + 2): E(l)
        for e in range(4):
            E(f"v_pk_mul_f32 v[{b+2*e}:{b+2*e+1}], v[{b+2*e}:{b+2*e+1}], v[{st}:{st+1}] op_sel:[0,1] op_sel_hi:[1,1]")
        q = r.vQ + qb*16 + s_*4
        for e in range(4): E(f"v_cvt_pk_bf16_f32 v{q+e}, v{b+2*e}, v{b+2*e+1}")
        one_dma()
    for qb in range(4):
        q = r.vQ + qb*16 + s_*4
        E(f"v_permlane16_swap_b32 v{q}, v{q+2}"); E(f"v_permlane16_swap_b32 v{q+1}, v{q+3}")
plain(pend); del pend[:]
stamp(2)
Q += [f"v_mov_b32 v{r.vL+i}, 0" for i in range(16)]
for qb in range(4):
    for s_ in range(4):
        D = v(r.vS + 48 + 4*qb, 4)
        S.gap(f"{MF} {D}, {a(aWF+4*s_,4)}, {v(r.vQ+qb*16+s_*4,4)}, {'0' if s_ == 0 else D}")
    if qb == 1:
        for q2 in range(4):
            b = r.vS + 48 + 4*q2
            Q += [f"v_max3_f32 v{b}, v{b}, v{b+1}, v{b+2}", f"v_max_f32 v{b}, v{b}, v{b+3}"] + [f"v_sub_f32 v{r.vM+4*q2+e}, 0, v{b}" for e in range(4)]
            if q2 == 1: hold = len(Q)
        tail = Q[hold:]; del Q[hold:]
Q += tail
S.drain()
E("s_nop 1")
stamp(3)
NT = 32
def emit_gaps(T, lo, hi, lead, mf):
    F = X.fillers(T, NT)
    for g in range(lo, hi):
        m = mf(g)
        if m: E(m)
        for f in lead.get(g, []):
            E(f)
            if not m and f.startswith("s_add_u32 m0"): E("s_nop 0")
        fs = F[g]
        if m and T == 0 and not fs and not lead.get(g): E("s_nop 0")
        if not m and fs and fs[0].startswith("v_cvt"): E("s_nop 0")
        for f in fs: E(f)
def gapsets(lo, hi):
    F = X.fillers(1, NT)
    ex = [g for g in range(lo, hi) if g in X.isexp]
    cv = [g for g in range(lo, hi) if g not in X.isexp and F[g]]
    em = [g for g in range(lo, hi) if g not in X.isexp and not F[g]]
    return ex, cv, em
NVE = 6
def pv_part(T, dmaslot, salu):
    lead = {}
    ex, cv, em = gapsets(64, 132)
    fg = sorted(cv + em)
    late = fg[-NVE:]
    em_e = [g for g in em if g not in late]
    L = X.dma(dmaslot) if dmaslot is not None else []
    dm = [L[i] for i in (1, 2, 3, 4, 6, 7, 8, 9)] if L else []
    step = len(em_e) / 8.0
    dg = [em_e[min(len(em_e) - 1, int(i*step) + 1)] for i in range(8)] if dm else []
    assert len(set(dg)) == len(dg)
    for s_, g in zip(dm, dg): lead.setdefault(g, []).append(s_)
    kg = [g for g in fg if g not in late and g not in dg]
    if T + 1 < NT:
        assert len(kg) >= 16
        for i in range(16): lead.setdefault(kg[i], []).append(X.kread(T + 1, i))
    if L:
        for mi, first in ((0, 0), (5, 4)):
            g = max(x for x in ex if x < dg[first]); lead.setdefault(g, []).append(L[mi])
            if first: assert g > dg[3]
        after = [x for x in ex if x > dg[7]]
        sal = [f"s_add_u32 s{r.sKoff}, s{r.sKoff}, s{r.sKinc}", f"s_add_u32 s{r.sVoff}, s{r.sVoff}, s{r.sVinc}"] + list(salu)
    else:
        after = ex[-8:]; sal = list(salu)
    assert len(after) > len(sal)
    for s_, g in zip(sal, after): lead.setdefault(g, []).append(s_)
    if T < NT:
        for i, g in enumerate(late): lead.setdefault(g, []).append(X.vread(T, i))
    assert 131 not in late
    if T + 1 < NT: lead.setdefault(131, []).insert(0, f"s_waitcnt lgkmcnt({NVE})")
    emit_gaps(T, 64, 132, lead, lambda g: X.pv(T - 1, g - 64) if T >= 1 else None)
def qk_part(T, sync=True):
    lead = {}
    ex, cv, em = gapsets(0, 64)
    fg = sorted(cv + em)
    if T >= 1:
        for i in range(NVE, 32): lead.setdefault(fg[i - NVE], []).append(X.vread(T - 1, i))
    if sync:
        lead.setdefault(63, []).append("s_waitcnt vmcnt(16) lgkmcnt(0)")
        lead[63].append("s_barrier")
    emit_gaps(T, 0, 64, lead, lambda g: X.qk(g) if T < NT else None)
def wpiece(n, a0):
    p = (pWg, pWu)[n]
    return f"""s_cmp_eq_u32 s{sChunk}, -1
s_cbranch_scc1 L_wp{n}
s_mul_i32 s3, s{sWave}, {128*3584}
s_lshl_b32 s67, s{sChunk}, 4
s_add_u32 s3, s3, s67
s_lshr_b32 s68, s{r.sM0K}, 1
v_mul_u32_u24 v{a0}, 3584, v0
s_add_u32 m0, s68, {0x24000 + n*0x2000}
v_add_u32 v{a0}, s3, v{a0}
global_load_lds_dwordx4 v{a0}, s[{p}:{p+1}]
s_add_u32 m0, s68, {0x24400 + n*0x2000}
v_add_u32 v{a0}, {64*3584}, v{a0}
global_load_lds_dwordx4 v{a0}, s[{p}:{p+1}]""".split("\n")
HOOK = {}
E("L_restart:")
if opt["moe"]:
    E(f"s_add_u32 s67, s{r.sM0K}, {WS_KEY}")
    pend += [f"s_add_u32 m0, s{r.sM0K}, 0x20000"] + [f"buffer_load_dwordx4 v3, s[{sW}:{sW+3}], s67 offen offset:{p*1024} sc1 lds ; keys" for p in range(4)]
pend += kdma(4) + vdma(3)
krel = sorted((48 + 4*(i >> 2) + ((3 - (i & 3)) if (i >> 2) & 1 else (i & 3)) + 1, i) for i in range(16))
vq = [X.vread(0, i) for i in range(NVE)]
ne, nc = 0, 0
for g in range(64):
    lead = []; budget = 2
    if g == 0: lead = [f"s_waitcnt vmcnt({vmn('k1', 'v0')})", "s_barrier"]
    else:
        if pend and pend[0].startswith("s_"): lead = [pend.pop(0)]
        elif pend and g % 4 == 2: lead = [pend.pop(0)]; budget = 0
        if budget:
            if vq and g < 8: lead += vq[:2]; del vq[:2]; budget = 0
            elif krel and krel[0][0] <= g and (2*nc + 2 < ne or len(krel) > 1 and krel[1][0] <= g):
                lead.append(X.kread(1, krel.pop(0)[1])); budget = 1
                if 2*nc + 2 >= ne: lead.append(X.kread(1, krel.pop(0)[1])); budget = 0
    if budget == 2 and g >= 4*(ne >> 2) + 7 and (ne - 2*nc < 5 or g >= 30):
        lead.append(X.exp(ne)); ne += 1
    else:
        while budget and 2*nc + 2 <= ne - (1 if False else 0) and nc < 30:
            lead.append(X.cvt(0, 2*nc + 1)); nc += 1; budget -= 1
    if not lead: lead = ["s_nop 0"]
    E(X.qk(g))
    for l in lead: E(l)
print("period0: exps", ne, "cvts", nc, "pend", len(pend), "krel", len(krel), "vq", len(vq), file=sys.stderr)
for _, i in krel: E(X.kread(1, i))
assert not vq and not pend
while ne < 61 or nc < 30:
    if 2*nc + 2 < ne or ne == 61: Q.append(X.cvt(0, 2*nc + 1)); nc += 1
    else: Q.append(X.exp(ne)); ne += 1
S.drain()
E("s_waitcnt lgkmcnt(0)")
if opt["moe"]: assert S.vmn("keys") >= 8
assert S.vmn("k2", "v1") >= 16
r.vVDl = [20, 21, 1, 2]
stamp(3)
A.raw(".p2align 6")
A.label("L_loop")
for u in range(1, 5):
    qk_part(u)
    sal = []
    if u == 2: sal = [f"s_bitcmp1_b32 s{sMask2}, s{r.sIt}"]
    if u == 3: sal = [f"s_cmp_ge_u32 s{r.sIt}, 6"]
    if u == 4: sal = [f"s_add_u32 s{r.sIt}, s{r.sIt}, 1", f"s_bitcmp1_b32 s{sMask4}, s{r.sIt}"]
    pv_part(u, u & 3, sal)
    if u == 2: E("s_cbranch_scc1 L_disp2"); E("L_ret2:")
    if u == 3: E("s_cbranch_scc1 L_disp3"); E("L_ret3:")
E("s_cbranch_scc0 L_loop")
E("s_branch L_disp4")
def wo_voff(dst):
    return f"""v_lshrrev_b32 v60, 3, v0
v_and_b32 v61, 7, v0
v_lshrrev_b32 v62, 1, v60
v_lshlrev_b32 v62, 1, v62
v_xor_b32 v62, v62, v61
v_lshlrev_b32 v62, 4, v62
v_lshl_add_u32 v{dst[0]}, v60, 10, v62""".split("\n") + [f"v_add_u32 v{dst[p]}, {7168*p}, v{dst[0]}" for p in range(1, 4)]
HOOK[27] = wo_voff([r.vKD + p for p in range(4)]) + [f"s_mov_b32 s{sK}, s{sWq}", f"s_mov_b32 s{sK+1}, s{sWq+1}", f"s_mov_b32 s{sK+2}, s{sWq+2}",
            f"s_mov_b32 s{r.sKoff}, 0", f"s_mov_b32 s{r.sKinc}, 0x8000"]
HOOK[28] = [f"v_mov_b32 v{r.vVDl[p]}, v{r.vKD+p}" for p in range(4)] + [f"s_mov_b32 s{sV}, s{sWq}", f"s_mov_b32 s{sV+1}, s{sWq+1}", f"s_mov_b32 s{sV+2}, s{sWq+2}",
            f"s_mov_b32 s{r.sVoff}, 0x10000", f"s_mov_b32 s{r.sKinc}, 0x10000", f"s_mov_b32 s{r.sVinc}, 0x10000"]
def H(T, txt): HOOK.setdefault(T, []).extend(l.strip() for l in txt.strip().split("\n") if l.strip())
SEL = [4, 5, 6, 7, 42, 43, 48, 49]; sSelMine = 66
TF, TP = opt['TF'], opt['TP']
NLOG2E = fbits(-1.4426950408889634)
if opt["moe"]:
    KQ = [128 + 4*n for n in range(15)] + [224]
    chk = ["v_mov_b32 v228, 0"] + [f"v_bitop3_b32 v228, v228, v{q+2}, s{sNonce} bitop3:0xf6" for q in KQ] + ["v_cmp_ne_u32 vcc, 0, v228"]
    H(2, "v_add_u32 v229, 0x20000, v3")
    HOOK[2] += [f"ds_read_b128 {v(q,4)}, v229 offset:{n*1024}" for n, q in enumerate(KQ)] + wpiece(0, 230) + ["L_wp0:", "s_waitcnt lgkmcnt(0)"] + chk
    H(2, f"""s_cbranch_vccnz L_key_retry
    L_key_ok:
    v_max_u32 v228, v{KQ[0]}, v{KQ[0]+1}""")
    HOOK[2] += [f"v_max3_u32 v228, v228, v{q}, v{q+1}" for q in KQ[1:]]
    H(2, f"""v_cmp_lt_u32 vcc, s{sKey0}, v228
    s_bcnt1_i32_b64 s3, vcc
    v_cmp_lt_u32 vcc, s{sKey0+1}, v228
    s_bcnt1_i32_b64 s67, vcc
    s_min_u32 s3, s3, s67
    s_cmp_lt_u32 s3, 8
    s_cbranch_scc1 L_rank
    L_rank_done:""")
    cold += ["L_key_retry:"] + spin("", "L_key_ok")
    for n, q in enumerate(KQ):
        if n % 4 == 0: cold += [f"s_mov_b32 s3, {WS_KEY + n*1024}"]
        cold += [f"buffer_load_dwordx4 {v(q,4)}, v3, s[{sW}:{sW+3}], s3 offen offset:{(n%4)*1024} sc1"]
    cold += ["s_waitcnt vmcnt(0)"] + chk + ["s_cbranch_vccnz L_key_retry", "s_branch L_key_ok"]
    cold += ["L_rank:", "s_mov_b32 s4, 0", "L_rank_row:", "s_mov_b32 s68, 0"]
    for q in KQ:
        for e in range(2): cold += [f"v_cmp_lt_u32 vcc, s{sKey0}, v{q+e}", "s_bcnt1_i32_b64 s3, vcc", "s_add_u32 s68, s68, s3"]
    cold += f"""s_cmp_ge_u32 s68, 8
s_cbranch_scc1 L_rank_next
s_not_b32 s3, s{sKey0}
s_xor_b32 s67, s{sKey0}, 0x80000000
s_bitcmp1_b32 s{sKey0}, 31
s_cselect_b32 s3, s67, s3
s_and_b32 s3, s3, 0xffff0000
v_mov_b32 v230, {NLOG2E}
v_mul_f32 v230, s3, v230
v_exp_f32 v230, v230
s_add_u32 s67, s{sRow0}, s4
v_add_f32 v230, 1.0, v230
v_rcp_f32 v230, v230
s_lshl_b32 s68, s68, 3
v_cvt_pk_bf16_f32 v230, v230, v230
v_and_b32 v230, 0xffff0000, v230
v_or_b32 v230, s67, v230
v_mov_b32 v231, s{sNonce}
s_add_u32 s68, s68, {WS_SEL}
s_mov_b64 exec, 1
buffer_store_dwordx2 v[230:231], off, s[{sW}:{sW+3}], s68 sc1
s_mov_b64 exec, -1
L_rank_next:
s_mov_b32 s{sKey0}, s{sKey0+1}
s_add_u32 s4, s4, 1
s_cmp_lt_u32 s4, 2
s_cbranch_scc1 L_rank_row
s_branch L_rank_done""".split("\n")
    selld = f"buffer_load_dwordx2 v[60:61], v128, s[{sW}:{sW+3}], 0 offen sc1"
    seladdr = ["v_and_b32 v128, 7, v0", "v_lshlrev_b32 v128, 3, v128", f"v_add_u32 v128, {WS_SEL}, v128"]
    HOOK[4] = seladdr + [selld]
    HOOK[4] += wpiece(1, 128)
    H(4, f"""v_lshrrev_b32 v130, 4, v0
    v_and_b32 v131, 15, v0
    v_lshlrev_b32 v131, 4, v131
    v_lshl_add_u32 v130, v130, 10, v131
    s_lshl_b32 s3, s{sChunk}, 13
    s_lshl_b32 s67, s{sWave}, 8
    s_add_u32 s3, s3, s67
    v_add_u32 v130, s3, v130
    s_add_u32 m0, s68, 0x22000
    v_add_u32 v131, 4096, v130
    global_load_lds_dwordx4 v130, s[{pWd}:{pWd+1}]
    s_add_u32 m0, s68, 0x22400
    s_nop 0
    global_load_lds_dwordx4 v131, s[{pWd}:{pWd+1}]
    L_wp1:""")
    H(6, f"""s_waitcnt vmcnt(16)
    v_cmp_ne_u32 vcc, s{sNonce}, v61
    s_cbranch_vccnz L_sel_retry
    L_sel_ok:
    s_and_b32 s3, s2, 1
    s_lshl_b32 s3, s3, 2
    s_add_u32 s3, s3, s{sWave}
    v_and_b32 v128, 0xffff, v60
    v_readlane_b32 s{sSelMine}, v60, s3""")
    HOOK[6] += [f"v_readlane_b32 s{SEL[t]}, v128, {t}" for t in range(8)]
    H(6, f"""v_lshrrev_b32 v129, 4, v0
    v_bfe_u32 v130, v0, 3, 1
    v_lshlrev_b32 v129, 4, v129
    v_lshl_add_u32 v129, v130, 6, v129
    v_lshl_add_u32 v128, v128, 10, v129
    s_lshl_b32 s3, s{sWave}, 8
    s_add_u32 s3, s3, {WS_XN}
    s_lshr_b32 s68, s{r.sM0K}, 1
    s_add_u32 m0, s68, 0x20000
    s_add_u32 s67, s3, 128
    buffer_load_dwordx4 v128, s[{sW}:{sW+3}], s3 offen sc1 lds
    s_add_u32 m0, s68, 0x20400
    s_nop 0
    buffer_load_dwordx4 v128, s[{sW}:{sW+3}], s67 offen sc1 lds""")
    cold += ["L_sel_retry:"] + spin("", "L_sel_ok") + seladdr + [selld, "s_waitcnt vmcnt(0)", f"v_cmp_ne_u32 vcc, s{sNonce}, v61",
             "s_cbranch_vccnz L_sel_retry", "s_branch L_sel_ok"]
    H(8, f"""s_cmp_eq_u32 s{sChunk}, -1
    s_cbranch_scc1 L_h8_done
    s_lshr_b32 s68, s{r.sM0K}, 1
    v_lshrrev_b32 v224, 4, v0
    v_and_b32 v225, 15, v0
    v_lshrrev_b32 v226, 2, v225
    v_and_b32 v227, 3, v0
    v_lshl_add_u32 v228, v224, 3, v226
    v_lshlrev_b32 v228, 4, v228
    v_and_b32 v229, 1, v0
    v_lshl_add_u32 v228, v229, 3, v228
    v_bfe_u32 v229, v0, 1, 1
    v_lshl_add_u32 v228, v229, 13, v228
    s_add_u32 s3, s68, 0x24000
    v_add_u32 v228, s3, v228
    v_and_b32 v229, 0x37, v0
    s_add_u32 s3, s68, 0x20000
    v_lshl_add_u32 v229, v229, 4, s3
    v_lshl_add_u32 v230, v224, 1, v226
    v_and_b32 v230, 7, v230
    v_lshlrev_b32 v230, 8, v230
    v_lshl_add_u32 v230, v227, 3, v230
    s_add_u32 s67, s68, 0x22000
    v_add_u32 v230, s67, v230
    STAMP
    s_waitcnt vmcnt(16)
    STAMP""")
    for ks in range(4):
        HOOK[8] += [f"ds_read_b64_tr_b16 v[{128+4*ks}:{129+4*ks}], v228 offset:{ks*512}", f"ds_read_b64_tr_b16 v[{130+4*ks}:{131+4*ks}], v228 offset:{ks*512+64}",
                    f"ds_read_b128 {v(144+4*ks,4)}, v229 offset:{(ks>>1)*1024 + (ks&1)*128}"]
    H(8, f"""v_lshl_add_u32 v231, v0, 4, s3
    v_lshrrev_b32 v232, 1, v224
    v_lshl_add_u32 v232, v232, 4, v225
    v_lshlrev_b32 v232, 4, v232
    v_and_b32 v233, 1, v224
    v_lshl_add_u32 v232, v233, 3, v232
    v_add_u32 v232, 0x20000, v232
    s_waitcnt lgkmcnt(0)""")
    for ks in range(4): HOOK[8] += [f"{MF} v[160:163], {v(128+4*ks,4)}, {v(144+4*ks,4)}, {'0' if ks == 0 else 'v[160:163]'}"]
    HOOK[8] += [f"ds_read_b64_tr_b16 v[{164+2*nb}:{165+2*nb}], v230 offset:{nb*32}" for nb in range(8)]
    H(8, f"""ds_write_b128 v231, v[160:163]
    s_waitcnt lgkmcnt(0)
    STAMP
    s_barrier
    STAMP""")
    for src in range(4):
        HOOK[8] += [f"ds_read_b64 v[{128+4*src}:{129+4*src}], v232 offset:{src*2048}", f"ds_read_b64 v[{130+4*src}:{131+4*src}], v232 offset:{src*2048+512}"]
    H(8, f"""v_and_b32 v233, 7, v0
    v_lshlrev_b32 v233, 4, v233
    v_lshl_add_u32 v233, v224, 7, v233
    v_lshrrev_b32 v234, 3, v225
    v_lshl_add_u32 v233, v234, 9, v233
    v_cmp_eq_u32 vcc, 0, v234
    s_lshl_b32 s3, s{sChunk}, 14
    s_add_u32 s3, s3, s{r.sM0K}
    s_add_u32 s3, s3, {WS_PART}
    v_mov_b32 v145, 0
    v_mov_b32 v147, 0
    s_waitcnt lgkmcnt(0)""")
    for e in range(4): HOOK[8] += [f"v_add_f32 v{128+e}, v{128+e}, v{132+e}", f"v_add_f32 v{136+e}, v{136+e}, v{140+e}"]
    for e in range(4): HOOK[8] += [f"v_add_f32 v{128+e}, v{128+e}, v{136+e}"]
    H(8, f"""v_cvt_pk_bf16_f32 v132, v128, v129
    v_cvt_pk_bf16_f32 v133, v130, v131""")
    HOOK[8] += unpack(128, 132, 2)
    H(8, f"""v_mul_f32 v132, {NLOG2E}, v128
    v_mul_f32 v133, {NLOG2E}, v129
    v_exp_f32 v132, v132
    v_exp_f32 v133, v133
    v_add_f32 v132, 1.0, v132
    v_add_f32 v133, 1.0, v133
    v_rcp_f32 v132, v132
    v_rcp_f32 v133, v133
    v_mul_f32 v128, v128, v132
    v_mul_f32 v129, v129, v133
    v_cvt_pk_bf16_f32 v132, v128, v129
    v_lshlrev_b32 v128, 16, v132
    v_and_b32 v129, 0xffff0000, v132
    v_mul_f32 v128, v128, v130
    v_mul_f32 v129, v129, v131
    v_cvt_pk_bf16_f32 v146, v128, v129
    v_cndmask_b32 v144, 0, v146, vcc
    v_cndmask_b32 v146, v146, 0, vcc
    s_nop 1""")
    for j in range(4):
        HOOK[8] += [f"v_mfma_f32_16x16x16_bf16 {v(128+4*j,4)}, v[{164+4*j}:{165+4*j}], v[144:145], 0",
                    f"v_mfma_f32_16x16x16_bf16 {v(128+4*j,4)}, v[{166+4*j}:{167+4*j}], v[146:147], {v(128+4*j,4)}"]
    H(8, "STAMP\ns_nop 4")
    for j in range(4): HOOK[8] += [f"buffer_store_dwordx4 {v(128+4*j,4)}, v233, s[{sW}:{sW+3}], s3 offen offset:{j*1024} sc1"]
    H(8, "s_nop 0\nL_h8_done:")
    H(TF, f"""s_cmp_eq_u32 s{sChunk}, -1
    s_cbranch_scc1 L_h10_done
    s_lshl_b32 s3, s{sWave}, 8
    s_add_u32 s3, s3, s{sChunk}
    s_lshl_b32 s3, s3, 2
    s_add_u32 s3, s3, {WS_FC}
    v_mov_b32 v128, s{sNonce}
    s_waitcnt vmcnt(16)
    s_mov_b64 exec, 1
    buffer_store_dword v128, off, s[{sW}:{sW+3}], s3 sc1
    s_mov_b64 exec, -1
    L_h10_done:""")
    fcaddr = ["v_min_u32 v128, 55, v0", "v_lshlrev_b32 v128, 4, v128", "s_lshr_b32 s3, s2, 6", "s_lshl_b32 s3, s3, 10", f"s_add_u32 s3, s3, {WS_FC}"]
    fcld = f"buffer_load_dwordx4 v[60:63], v128, s[{sW}:{sW+3}], s3 offen sc1"
    fcchk = [f"v_xor_b32 v129, s{sNonce}, v60"] + [f"v_bitop3_b32 v129, v129, v{61+e}, s{sNonce} bitop3:0xf6" for e in range(3)] + ["v_cmp_ne_u32 vcc, 0, v129"]
    HOOK.setdefault(TP, []).extend(fcaddr + [fcld])
    HOOK.setdefault(TP + 2, []).extend(["s_waitcnt vmcnt(16)"] + fcchk)
    H(TP + 2, f"""s_cbranch_vccnz L_fc_retry
    L_fc_ok:
    v_lshrrev_b32 v128, 2, v0
    v_and_b32 v129, 3, v0
    v_lshlrev_b32 v129, 4, v129
    v_lshl_add_u32 v128, v128, 14, v129
    s_lshl_b32 s3, s2, 6
    s_lshl_b32 s67, s{sWave}, 18
    s_add_u32 s3, s3, s67
    s_add_u32 s3, s3, {WS_PART}
    s_lshr_b32 s68, s{r.sM0K}, 2""")
    for k in range(4):
        HOOK[TP + 2] += [f"s_add_u32 m0, s68, {0x20000 + k*4096}", f"s_add_u32 s67, s3, {k << 20}"]
        if k == 3: HOOK[TP + 2] += [f"s_cmp_lt_u32 s{sWave}, 2", "s_cselect_b32 s67, s67, 0x40000000"]
        HOOK[TP + 2] += [f"buffer_load_dwordx4 v128, s[{sW}:{sW+3}], s67 offen sc1 lds"]
    cold += ["L_fc_retry:"] + spin("", "L_fc_ok") + fcaddr + [fcld, "s_waitcnt vmcnt(0)"] + fcchk + ["s_cbranch_vccnz L_fc_retry", "s_branch L_fc_ok"]
    H(TP + 5, f"""s_cmp_lg_u32 s{sFb}, 0
    s_cbranch_scc1 L_s4_done
    s_lshl_b32 s3, s{sWave}, 4
    s_add_u32 s3, s3, 0x20000
    v_lshl_add_u32 v144, v0, 6, s3""")
    HOOK[TP + 5] += [f"ds_read_b128 {v(128+4*k,4)}, v144 offset:{k*4096}" for k in range(4)]
    H(TP + 5, f"""s_and_b32 s3, s2, 1
    s_lshl_b32 s3, s3, 2
    s_add_u32 s3, s3, s{sWave}
    s_lshl_b32 s3, s3, 7
    s_lshr_b32 s67, s2, 1
    s_add_u32 s3, s3, s67
    s_lshl_b32 s3, s3, 4
    s_add_u32 s3, s3, {WS_UPD}
    s_and_b32 s67, s{sSelMine}, 0xffff0000
    s_waitcnt lgkmcnt(0)""")
    for e in range(4): HOOK[TP + 5] += [f"v_add_f32 v{128+e}, v{128+e}, v{132+e}", f"v_add_f32 v{136+e}, v{136+e}, v{140+e}"]
    for e in range(4): HOOK[TP + 5] += [f"v_add_f32 v{128+e}, v{128+e}, v{136+e}"]
    for tup in zip(*[wave_sum(128 + e, 0)[:-1] for e in range(4)]): HOOK[TP + 5] += list(tup)
    H(TP + 5, "v_cvt_pk_bf16_f32 v132, v128, v129\nv_cvt_pk_bf16_f32 v133, v130, v131")
    HOOK[TP + 5] += unpack(128, 132, 2) + [f"v_mul_f32 v{128+e}, s67, v{128+e}" for e in range(4)]
    H(TP + 5, f"""v_cvt_pk_bf16_f32 v132, v128, v129
    v_cvt_pk_bf16_f32 v133, v130, v131
    v_mov_b32 v134, s{sNonce}
    v_mov_b32 v135, s{sNonce}
    s_lshl_b64 exec, 1, 63
    buffer_store_dwordx4 v[132:135], off, s[{sW}:{sW+3}], s3 sc1
    s_mov_b64 exec, -1
    L_s4_done:""")
if opt["moeT"] < 18:
    for T in (2, 4, 6, 8, TF, TP, TP + 2, TP + 5):
        if T > opt["moeT"]:
            HOOK[T] = [l for l in HOOK[T] if l.endswith(":")]
    opt["moe"] = 0
if opt["wtouch"]:
    for n, T in enumerate(eval(opt_s["wT"])):
        if opt["varb"]:
            HOOK.setdefault(T, []).extend(["s_and_b32 s3, s2, 0xf8", "s_lshl_b32 s3, s3, 1", f"s_lshl_b32 s67, s{sWave}, 10", "s_add_u32 s3, s3, s67", f"s_add_u32 s3, s3, {512*n}",
                "s_lshl_b32 s3, s3, 1", "s_and_b32 s67, s2, 1", "s_add_u32 s3, s3, s67", "s_lshl_b32 s3, s3, 9",
                "v_lshrrev_b32 v180, 2, v0", "v_and_b32 v181, 3, v0", "v_lshlrev_b32 v181, 7, v181", "v_lshl_add_u32 v180, v180, 10, v181",
                "v_add_u32 v180, s3, v180", f"global_load_dword v23, v180, s[{pWo}:{pWo+1}]"])
        else:
            HOOK.setdefault(T, []).extend(["s_and_b32 s3, s2, 0xf8", f"s_lshl_b32 s67, s{sWave}, 10", "s_add_u32 s3, s3, s67", f"s_add_u32 s3, s3, {256*n}", "s_lshl_b32 s3, s3, 10",
                "v_lshl_add_u32 v180, v0, 7, s3", f"global_load_dword v23, v180, s[{pWo}:{pWo+1}]"])
if opt["stamp"] & 8:
    Ts = eval(opt_s["hs"])
    def st_(i): return [f"{CLK} s[{70+2*i}:{71+2*i}]", "s_waitcnt lgkmcnt(0)"]
    i = 1
    for T in Ts:
        body = []
        for l in HOOK[T]:
            if l.startswith("STAMP"):
                body += st_(i + 1); i += 1
            else: body.append(l)
        k = sum(l.startswith("STAMP") for l in HOOK[T])
        HOOK[T] = st_(i - k) + body + st_(i + 1); i += 2
    nstamp[0] = i
for T in HOOK: HOOK[T] = [l for l in HOOK[T] if not l.startswith("STAMP")]
def emit_hooks():
    m2 = m4 = 0
    for site, ret in ((2, "L_ret2"), (4, "L_loop")):
        Ts = sorted(T for T in HOOK if T % 4 == site % 4)
        E(f"L_disp{site}:")
        for T in Ts[:-1]:
            E(f"s_cmp_eq_u32 s{r.sIt}, {T // 4}"); E(f"s_cbranch_scc1 L_hook{T}")
        for T in Ts[-1:] + Ts[:-1]:
            E(f"L_hook{T}:")
            for l in HOOK[T]: E(l)
            E(f"s_branch {ret}")
        if not Ts: E(f"s_branch {ret}")
        if site == 2: m2 = sum(1 << (T // 4) for T in Ts)
        else: m4 = sum(1 << (T // 4) for T in Ts)
    E("L_hook27:")
    for l in HOOK[27]: E(l)
    E("s_branch L_ret3")
    return m2, m4
E("L_disp3:")
E(f"s_cmp_eq_u32 s{r.sIt}, 6")
E("s_cbranch_scc1 L_hook27")
A.label("L_tail")
S.vm[:] = ["wo0"]*4 + ["v31"]*4 + [f"wo{k}" for k in range(1, 7) for _ in range(4)]
sOoff = 63
vWo, vWr, vOq, vFl = r.vKD, 48, 4, 44
VA, VB, VC, AA, AB, AC, AD = ("v", 64), ("v", 128), ("v", 192), ("a", 0), ("a", 64), ("a", 128), ("a", 192)
def blk(B, off, n): return (v if B[0] == "v" else a)(B[1] + off, n)
WBLK = [AC, VA, AD, VC]; OBLK = [AB, VB]; ACC = AA
NU = 10
UNIT = [0, 1, 5, 2, 6, 3, 7, 8, 4, 9]
def wo_dma(kk):
    L = [f"s_add_u32 m0, s{r.sM0K}, {UNIT[kk % NU]*16384}"]
    L += [f"buffer_load_dwordx4 v{vWo+p}, s[{sWq}:{sWq+3}], s{sWoff} offen offset:{p*1024} lds ; wo{kk}" for p in range(4)]
    L += [f"s_add_u32 s{sWoff}, s{sWoff}, 0x8000"]
    return L
def wo_reads(kk):
    u = UNIT[kk % NU]; B = WBLK[(kk >> 2) & 3]
    return [f"ds_read_b64_tr_b16 {blk(B, (nb*4 + (kk & 3))*4 + 2*half, 2)}, v{vWr + 4*(u >> 2) + nb} offset:{(u & 3)*16384 + half*2048}"
            for nb in range(4) for half in range(2)]
def o_loads(h, qb):
    B = OBLK[h & 1]
    return [f"buffer_load_dwordx4 {blk(B, (qb*4 + i)*4, 4)}, v{vOq+qb}, s[{sW}:{sW+3}], s{sOoff} offen offset:{i*1024} sc1 ; o{h}_{qb}" for i in range(4)]
def o_next(): return [f"s_add_u32 s{sOoff}, s{sOoff}, 0x1000"]
setup = f"""
s_mov_b32 s{sWoff}, {7*0x8000}
s_lshl_b32 s{sOoff}, s{sQt}, 19
s_lshl_b32 s3, s{sWave}, 15
s_add_u32 s{sOoff}, s{sOoff}, s3
v_lshrrev_b32 v1, 4, v0
v_and_b32 v2, 15, v0
v_and_b32 v61, 7, v0
v_lshrrev_b32 v60, 2, v2
v_lshl_add_u32 v60, v1, 2, v60
v_bfe_u32 v62, v60, 1, 2
v_lshlrev_b32 v60, 7, v60
v_and_b32 v63, 3, v0
v_lshl_add_u32 v60, v63, 3, v60
v_add_u32 v60, s{r.sM0K}, v60
""".strip().split("\n")
for nb in range(4):
    setup += [f"v_xor_b32 v3, {nb}, v62", f"v_lshl_add_u32 v{vWr+nb}, v3, 5, v60",
              f"v_add_u32 v{vWr+4+nb}, 0x10000, v{vWr+nb}", f"v_add_u32 v{vWr+8+nb}, 0x20000, v{vWr+nb}"]
setup += [f"v_lshlrev_b32 v{vOq}, 4, v0"] + [f"v_add_u32 v{vOq+qb}, {qb*0x20000}, v{vOq}" for qb in range(1, 4)]
setup += [f"s_lshl_b32 s3, s{sQt}, 5", f"s_lshl_b32 s68, s{sWave}, 3", "s_add_u32 s3, s3, s68", "v_add_u32 v61, s3, v61",
          f"v_lshlrev_b32 v{vFl}, 7, v61", f"v_add_u32 v{vFl}, {WS_FLAG}, v{vFl}"]
qk_part(32, sync=False)
for l in setup: E(l)
M(f"""
s_lshl_b32 s3, s{sQb}, 2
s_add_u32 s3, s3, s{sWave}
s_lshl_b32 s69, s3, 5
s_add_u32 s69, s69, s{sHead}
s_lshl_b32 s69, s69, 7
s_add_u32 s69, s69, {WS_FLAG}
s_lshl_b32 s3, s3, 7
s_add_u32 s3, s3, s{sHead}
s_lshl_b32 s68, s3, 12
s_lshl_b32 s3, s{sWave}, 2
s_add_u32 s3, s3, 0x24000
v_lshl_add_u32 v192, v63, 12, s3
s_add_u32 s3, s{r.sM0K}, 0x24000
v_mov_b32 v193, s3
s_waitcnt vmcnt({S.vmn('wo3')}) lgkmcnt(0)
""")
pend += wo_dma(7)
rd0 = [l for kk in range(4) for l in wo_reads(kk)]
order = [16, 33, 50, 67] + [i for i in range(68) if i % 17 != 16]
L_ = r.vL
for n, i in enumerate(order):
    lead = []
    if n == 18:
        assert not Q
        lead = ["s_waitcnt lgkmcnt(0)", "s_barrier", "ds_read_b128 v[196:199], v193"]; nrd = len(rd0)
        pend += wo_dma(8)
    elif n == 24:
        lead = [f"s_waitcnt lgkmcnt({nrd - len(rd0)})"]
        Q += ["v_or3_b32 v196, v196, v197, v198", "v_or_b32 v196, v196, v199", "v_cmp_ne_u32 vcc, 0, v196", "s_cbranch_vccnz L_fallback", "L_safe:"]
        pend += wo_dma(9)
    else:
        if pend and pend[0].startswith("s_"): lead = [pend.pop(0)]
        elif pend and n % (5 if n < 22 else 10) == 1: lead = [pend.pop(0)]
        if not (lead and lead[0].startswith("buffer")) and not (9 <= n < 18) and not (24 <= n < 27): lead += rd0[:2]; del rd0[:2]
    if n == 9:
        Q += [f"v_add_f32 v{L_+4*qb}, v{L_+4*qb}, v{L_+4*qb+1}" for qb in range(4)]
        Q += [f"v_add_f32 v194, v{L_}, v{L_+4}", f"v_add_f32 v195, v{L_+8}, v{L_+12}", "v_add_f32 v194, v194, v195",
              f"v_cmp_ngt_f32 vcc, {'0' if opt['forcefb'] else '0x5f800000'}, v194", "s_or_b32 s3, vcc_lo, vcc_hi", "v_mov_b32 v194, s3", "ds_write_b32 v192, v194"]
    if n == 19: Q += [f"v_rcp_f32 v{60+qb}, v{L_+4*qb}" for qb in range(1)]
    if n == 26: Q += [f"v_rcp_f32 v{60+qb}, v{L_+4*qb}" for qb in range(1, 4)]
    def epi(qb):
        t = r.vS; o = r.vS + 32 + (qb & 1)*16
        L = []
        for i4 in range(4):
            L += [f"v_accvgpr_read_b32 v{t+8*i4+e}, a{r.aO+qb*32+8*i4+e}" for e in range(8)]
            L += [f"v_mul_f32 v{t+8*i4+e}, v{60+qb}, v{t+8*i4+e}" for e in range(8)]
            L += [f"v_cvt_pk_bf16_f32 v{o+4*i4+e}, v{t+8*i4+2*e}, v{t+8*i4+2*e+1}" for e in range(4)]
            L += [f"buffer_store_dwordx4 {v(o+4*i4,4)}, v{vOq+qb}, s[{sW}:{sW+3}], s68 offen offset:{i4*1024} sc1 ; ost"]
        return L
    if n == 26: Q += epi(0)
    if n == 38: Q += epi(1)
    S.gap(X.pv(31, i), lead)
stamp(1)
Q += epi(2) + epi(3)
assert not rd0
nextrd = [4]; nextdma = [NU + 3]
def wo_step(maxrd):
    kk = nextrd[0]
    if kk >= maxrd or any(l.endswith(f"; wo{kk}") for l in pend): return False
    E(f"s_waitcnt vmcnt({S.vmn(f'wo{kk}')})")
    for l in wo_reads(kk): E(l)
    nextrd[0] += 1
    if kk >= 1 and nextdma[0] < 32 and nextdma[0] - NU == kk - 1:
        E("s_waitcnt lgkmcnt(8)")
        pend.extend(wo_dma(nextdma[0])); nextdma[0] += 1
    return True
cnt = 0
while Q:
    f = Q.pop(0)
    while not S.ok(f): E("s_nop 0")
    E(f); cnt += 1
    if cnt % opt["epace"] == 0: one_dma()
stamp(1)
E("s_waitcnt lgkmcnt(0)")
for kk in range(NU, NU + 3): pend.extend(wo_dma(kk))
for _ in range(opt["npost"]):
    wo_step(16)
    for _ in range(4): one_dma()
M(f"""
v_mov_b32 v3, s{sNonce}
s_waitcnt vmcnt({S.vmn('ost')})
s_mov_b64 exec, 1
buffer_store_dword v3, off, s[{sW}:{sW+3}], s69 sc1 ; flag
s_mov_b64 exec, -1
""")
stamp(1)
vXo, vXr, vGp, vSt = 45, 20, 28, 46
M(f"""
s_lshl_b32 s3, s{sQt}, 2
s_add_u32 s3, s3, s{sWave}
s_lshl_b32 s3, s3, 4
v_lshrrev_b32 v60, 2, v0
v_add_u32 v60, s3, v60
v_lshlrev_b32 v61, 3, v60
v_add_u32 v61, {WS_STAT}, v61
s_lshl_b32 s3, s{sNt}, 7
v_and_b32 v63, 3, v0
v_lshl_add_u32 v62, v63, 5, s3
v_lshl_add_u32 v{vXo}, v60, 10, v62
global_load_dwordx4 v[{vXr}:{vXr+3}], v{vXo}, s[{pX}:{pX+1}] ; xf
global_load_dwordx4 v[{vXr+4}:{vXr+7}], v{vXo}, s[{pX}:{pX+1}] offset:16 ; xf
buffer_load_dwordx2 v[{vSt}:{vSt+1}], v61, s[{sW}:{sW+3}], 0 offen sc1 ; xf
""")
vU, vUa, vUt = 128, 144, 145
updld = [f"buffer_load_dwordx4 {v(vU+4*k,4)}, v{vUa}, s[{sW}:{sW+3}], s68 offen offset:{16*k} sc1" for k in range(4)]
updchk = [f"v_xor_b32 v146, s{sNonce}, v{vSt+1}"]
if opt["moe"]:
    E(f"v_mov_b32 v{vUa}, 0x200000")
    for t_ in range(8):
        E(f"v_cmp_eq_u32 vcc, s{SEL[t_]}, v60"); E(f"v_mov_b32 v146, {t_*32}"); E("s_nop 0"); E(f"v_cndmask_b32 v{vUa}, v{vUa}, v146, vcc")
    M(f"""
    v_cmp_gt_u32 vcc, 0x1000, v{vUa}
    v_add_u32 v{vUa}, v{vUa}, v63
    v_lshlrev_b32 v{vUa}, 6, v{vUa}
    v_mov_b32 v146, s{sNonce}
    v_cndmask_b32 v{vUt}, 0, v146, vcc
    v_mov_b32 v146, 0x40000000
    v_cndmask_b32 v{vUa}, v146, v{vUa}, vcc
    s_lshl_b32 s68, s{sNt}, 8
    s_add_u32 s68, s68, {WS_UPD}
    """)
    for l in updld: E(l + " ; xf")
    updchk += [f"v_bitop3_b32 v146, v146, v{vU+4*k+2}, v{vUt} bitop3:0xf6" for k in range(4)]
updchk += ["v_cmp_ne_u32 vcc, 0, v146"]
t = 36
cold += ["L_stf_retry:"] + spin("", "L_stf_ok") + [f"buffer_load_dwordx2 v[{vSt}:{vSt+1}], v61, s[{sW}:{sW+3}], 0 offen sc1"] + (updld if opt["moe"] else []) + ["s_waitcnt vmcnt(0)"] + \
        updchk + ["s_cbranch_vccnz L_stf_retry", "s_branch L_stf_ok"]
G = [lambda: f"s_waitcnt vmcnt({S.vmn('xf')})"] + updchk + ["s_cbranch_vccnz L_stf_retry", "L_stf_ok:", f"v_and_b32 v{vSt+1}, 0xffff0000, v{vSt}", f"v_lshlrev_b32 v{vSt}, 16, v{vSt}", f"v_rcp_f32 v{vSt+1}, v{vSt+1}"]
for hf in range(2):
    G += unpack(t, vXr + 4*hf)
    G += [f"v_sub_f32 v{t+e}, v{t+e}, v{vSt}" for e in range(8)]
    G += [f"v_cvt_pk_bf16_f32 v{8+e}, v{t+2*e}, v{t+2*e+1}" for e in range(4)] + unpack(t, 8)
    G += [f"v_mul_f32 v{t+e}, v{t+e}, v{vSt+1}" for e in range(8)]
    G += [f"v_cvt_pk_bf16_f32 v{8+e}, v{t+2*e}, v{t+2*e+1}" for e in range(4)] + unpack(t, 8)
    if opt["moe"]:
        G += unpack(8, vU + 8*hf, 2) + unpack(12, vU + 8*hf + 4, 2) + [f"v_add_f32 v{t+e}, v{t+e}, v{8+e}" for e in range(8)]
        G += [f"v_cvt_pk_bf16_f32 v{8+e}, v{t+2*e}, v{t+2*e+1}" for e in range(4)] + unpack(t, 8)
    G += [f"v_mul_f32 v{8+e}, {fbits(-1.4426950408889634)}, v{t+e}" for e in range(8)]
    G += [f"v_exp_f32 v{8+e}, v{8+e}" for e in range(8)]
    G += [f"v_add_f32 v{8+e}, 1.0, v{8+e}" for e in range(8)]
    G += [f"v_rcp_f32 v{8+e}, v{8+e}" for e in range(8)]
    G += [f"v_mul_f32 v{t+e}, v{t+e}, v{8+e}" for e in range(8)]
    G += [f"v_cvt_pk_bf16_f32 v{vGp+4*hf+e}, v{t+2*e}, v{t+2*e+1}" for e in range(4)]
def some_g(n):
    while G and n > 0:
        f = G.pop(0)
        if callable(f): f = f()
        while not f.endswith(":") and not S.ok(f): E("s_nop 0")
        E(f); n -= 1
        if f.startswith(("v_cmp", "s_cbranch")): n += 1
ndone = 0
while nextrd[0] < 16:
    assert wo_step(16)
    for _ in range(4):
        one_dma(); ndone += 1
        if ndone > 8: some_g(6)
E("s_waitcnt lgkmcnt(0)")
while nextdma[0] < 16 + NU: pend.extend(wo_dma(nextdma[0])); nextdma[0] += 1
nleft = lambda: sum(l.startswith("buffer") for l in pend)
while nleft() > opt["pollat"]: one_dma(); some_g(6)
E(f"buffer_load_dword v2, v{vFl}, s[{sW}:{sW+3}], 0 offen sc1 ; poll")
while pend: one_dma(); some_g(6)
some_g(999)
stamp(1)
M(f"""
s_waitcnt vmcnt({S.vmn('poll')})
v_cmp_ne_u32 vcc, s{sNonce}, v2
s_cbranch_vccnz L_oflag
L_oflag_ok:
""")
cold += ["L_oflag:"] + spin("", "L_oflag_ok") + [f"buffer_load_dword v2, v{vFl}, s[{sW}:{sW+3}], 0 offen sc1", "s_waitcnt vmcnt(0)",
         f"v_cmp_ne_u32 vcc, s{sNonce}, v2", "s_cbranch_vccnz L_oflag", "s_branch L_oflag_ok"]
stamp(5)
if opt["otouch"]:
    M(f"""
    v_bfe_u32 v60, v0, 2, 2
    v_lshlrev_b32 v60, 17, v60
    v_lshl_add_u32 v60, v1, 12, v60
    v_lshl_add_u32 v60, v63, 7, v60
    s_lshl_b32 s3, s{sNt}, 9
    s_add_u32 s3, s3, s{sOoff}
    s_add_u32 s68, s3, 0x4000
    buffer_load_dword v3, v60, s[{sW}:{sW+3}], s3 offen sc1
    """)
for h in range(2):
    for qb in range(4):
        for l in o_loads(h, qb): E(l)
        if opt["otouch"] and h*4 + qb == opt["otouch"]: E(f"buffer_load_dword v3, v60, s[{sW}:{sW+3}], s68 offen sc1")
    for l in o_next(): E(l)
stamp(1)
rdq = []
for h in range(8):
    Wb, Ob = WBLK[h & 3], OBLK[h & 1]
    for qb in range(4):
        ph, pq = (h, qb - 1) if qb else (h - 1, 3)
        if ph >= 0 and ph + 2 < 8:
            pend.extend(o_loads(ph + 2, pq))
            if pq == 3: pend.extend(o_next())
        if 1 <= h <= 4:
            kk = (h + 3)*4 + qb
            rdq = wo_reads(kk)
            w = [f"s_waitcnt vmcnt({vmn(f'wo{kk}', f'o{h}_{qb}')})"]
        else:
            rdq = []; w = [f"s_waitcnt vmcnt({vmn(f'o{h}_{qb}')})"]
        if h >= 4 and qb == 0 or (1 <= h <= 2): w[0] += " lgkmcnt(0)"
        if 1 <= h <= 2:
            kprev = (h + 3)*4 + qb - 1
            if kprev >= 16 and kprev + NU < 32: pend.extend(wo_dma(kprev + NU))
        E(w[0])
        if qb == 0: stamp(4)
        if h == 6 and qb == 0: E("s_barrier")
        for n in range(16):
            nb, i = n >> 2, n & 3
            if nb & 1: i = 3 - i
            D = blk(ACC, (qb*4 + nb)*4, 4)
            m = f"{MF} {D}, {blk(Wb, (nb*4 + i)*4, 4)}, {blk(Ob, (qb*4 + i)*4, 4)}, {'0' if h == 0 and n & 3 == 0 else D}"
            lead = []
            if n & 1 == 0 and n < 15:
                if pend and pend[0].startswith("s_"): lead.append(pend.pop(0))
                if rdq: lead.append(rdq.pop(0))
            elif pend:
                while pend and pend[0].startswith("s_") and not pend[0].startswith("s_add_u32 m0"): lead.append(pend.pop(0))
                if pend and not pend[0].startswith("s_"): lead.append(pend.pop(0))
            S.gap(m, lead)
        assert not rdq
assert not pend
stamp(5)
M(f"""
s_mul_i32 s3, s{sWave}, 4352
v_lshl_add_u32 v60, v0, 4, s3
s_lshl_b32 s3, s3, 2
v_mul_u32_u24 v61, 1088, v63
v_lshrrev_b32 v62, 2, v0
v_lshl_add_u32 v61, v62, 4, v61
v_add_u32 v61, s3, v61
""")
for qb in range(4):
    for nb in range(4): E(f"ds_write_b128 v60, {blk(ACC, (qb*4+nb)*4, 4)} offset:{qb*4*4352 + nb*1088}")
for l in unpack(128, vXr, 8) + unpack(144, vGp, 8): E(l)
E("s_waitcnt lgkmcnt(0)")
E("s_barrier")
for s_ in range(4):
    for g in range(4): E(f"ds_read_b128 {v(64+s_*16+g*4,4)}, v61 offset:{s_*4352 + g*256}")
E("s_waitcnt lgkmcnt(8)")
for e in range(16): E(f"v_add_f32 v{64+e}, v{64+e}, v{80+e}")
E("s_waitcnt lgkmcnt(0)")
for e in range(16): E(f"v_add_f32 v{96+e}, v{96+e}, v{112+e}")
for e in range(16): E(f"v_add_f32 v{64+e}, v{64+e}, v{96+e}")
for e in range(8): E(f"v_cvt_pk_bf16_f32 v{80+e}, v{64+2*e}, v{65+2*e}")
for l in unpack(64, 80, 8): E(l)
for e in range(16): E(f"v_mul_f32 v{64+e}, v{64+e}, v{144+e}")
for e in range(8): E(f"v_cvt_pk_bf16_f32 v{80+e}, v{64+2*e}, v{65+2*e}")
for l in unpack(64, 80, 8): E(l)
for e in range(16): E(f"v_add_f32 v{64+e}, v{64+e}, v{128+e}")
for e in range(8): E(f"v_cvt_pk_bf16_f32 v{80+e}, v{64+2*e}, v{65+2*e}")
E(f"global_store_dwordx4 v{vXo}, v[80:83], s[{pOut}:{pOut+1}]{POL[opt['ost']]}")
E(f"global_store_dwordx4 v{vXo}, v[84:87], s[{pOut}:{pOut+1}] offset:16{POL[opt['ost']]}")
stamp(1)
if opt["stamp"]: E("s_waitcnt vmcnt(0)")
stamp(1)
if opt["stamp"]:
    M(f"""
    s_lshl_b32 s3, s2, 2
    s_add_u32 s3, s3, s{sWave}
    s_lshl_b32 s3, s3, 7
    s_add_u32 s3, s3, {WS_T}
    v_mov_b32 v3, 0
    """)
    for i in range(32): E(f"v_mov_b32 v{4+i}, s{70+i}" if i < 2*nstamp[0] else f"v_mov_b32 v{4+i}, 0")
    for i in range(8): E(f"buffer_store_dwordx4 v[{4+4*i}:{7+4*i}], v3, s[{sW}:{sW+3}], s3 offen offset:{16*i}")
E("s_endpgm")
m2, m4 = emit_hooks()
r.vVDl = [20, 21, 20, 21]
M(f"""
L_fallback:
s_cmp_lg_u32 s{sFb}, 0
s_cbranch_scc1 L_safe
s_mov_b32 s{sFb}, 1
s_mov_b32 s{sMask2}, 0
s_mov_b32 s{sMask4}, 0x80
s_lshl_b32 s3, s{sHead}, 19
s_add_u32 s{sK}, s{pK}, s3
s_addc_u32 s{sK+1}, s{pK+1}, 0
s_mov_b32 s{sK+2}, 0x80000
s_add_u32 s{sV}, s{pV}, s3
s_addc_u32 s{sV+1}, s{pV+1}, 0
s_mov_b32 s{sV+2}, 0x80000
s_mov_b32 s{r.sKoff}, 0
s_mov_b32 s{r.sVoff}, 0
s_mov_b32 s{r.sKinc}, 0x4000
s_mov_b32 s{r.sVinc}, 0x4000
s_mov_b32 s{r.sIt}, 0
v_lshlrev_b32 v3, 4, v0
v_lshrrev_b32 v60, 2, v2
v_and_b32 v61, 1, v1
v_lshl_add_u32 v60, v61, 2, v60
v_and_b32 v63, 3, v0
s_waitcnt vmcnt(0) lgkmcnt(0)
s_barrier
""")
for l in ADDR: E(l)
for i in range(16): E(f"v_mov_b32 v{r.vM+i}, 0")
for i in range(16): E(f"v_mov_b32 v{r.vL+i}, 0")
for qb in range(4): E(f"v_mov_b32 v{60+qb}, 0xff800000")
E("L_fb_loop:")
plain(kdma(0))
M("s_waitcnt vmcnt(0)\ns_barrier")
for i in range(16): E(X.kread(0, i))
M("s_waitcnt lgkmcnt(0)\ns_barrier")
for g in range(64): E(X.qk(g))
E("s_nop 7")
for qb in range(4):
    for e in range(8): E(f"v_max3_f32 v{60+qb}, v{60+qb}, v{r.vS+16*qb+2*e}, v{r.vS+16*qb+2*e+1}")
M(f"""
s_cmp_lt_u32 s{r.sKoff}, 0x80000
s_cbranch_scc1 L_fb_loop
s_mov_b32 s{r.sKoff}, 0
""")
plain(kdma(0) + kdma(1) + vdma(0) + kdma(2) + vdma(1) + kdma(3) + vdma(2))
for sw in ("v_permlane32_swap_b32", "v_permlane16_swap_b32"):
    for qb in range(4): E(f"v_mov_b32 v{128+qb}, v{60+qb}")
    E("s_nop 1")
    for qb in range(4): E(f"{sw} v{128+qb}, v{60+qb}")
    E("s_nop 1")
    for qb in range(4): E(f"v_max_f32 v{60+qb}, v{60+qb}, v{128+qb}")
for qb in range(4):
    for e in range(4): E(f"v_sub_f32 v{r.vM+4*qb+e}, 0, v{60+qb}")
M("s_waitcnt vmcnt(0)\ns_barrier")
for i in range(16): E(X.kread(0, i))
M("s_waitcnt lgkmcnt(0)\ns_branch L_restart")
for l in cold: E(l)
A.label("L_end")
E("s_endpgm")
A.raw(f""".section .rodata,"a"
.p2align 6
.amdhsa_kernel {KN}_kernel
  .amdhsa_next_free_vgpr 512
  .amdhsa_next_free_sgpr 102
  .amdhsa_accum_offset 256
  .amdhsa_group_segment_fixed_size 0
  .amdhsa_kernarg_size 104
  .amdhsa_user_sgpr_count 2
  .amdhsa_user_sgpr_kernarg_segment_ptr 1
  .amdhsa_system_sgpr_workgroup_id_x 1
  .amdhsa_float_denorm_mode_32 3
.end_amdhsa_kernel""")
txt = A.text().replace("MASK2", hex(m2)).replace("MASK4", hex(m4))
bad = check_hazards(txt)
if bad: print("hazards:", len(bad), file=sys.stderr)
open(sys.argv[1], "w").write(txt)
```

```python
import re
class Asm:
    def __init__(self): self.lines = []
    def __call__(self, s):
        for l in s.split("\n"):
            l = l.strip()
            if l: self.lines.append("    " + l)
    def label(self, l): self.lines.append(l + ":")
    def raw(self, l): self.lines.append(l)
    def c(self, l): self.lines.append("    ; " + l)
    def text(self): return "\n".join(self.lines) + "\n"

def v(i, n=1): return f"v{i}" if n == 1 else f"v[{i}:{i+n-1}]"
def a(i, n=1): return f"a{i}" if n == 1 else f"a[{i}:{i+n-1}]"
def s(i, n=1): return f"s{i}" if n == 1 else f"s[{i}:{i+n-1}]"

_reg = re.compile(r"^-?(?:abs\()?\|?([vas])(?:(\d+)|\[(\d+):(\d+)\])\|?\)?$")
def regs(op):
    op = op.strip()
    if op in ("vcc", "exec", "m0", "scc"): return {op}
    if op in ("vcc_lo", "vcc_hi"): return {"vcc"}
    if op in ("exec_lo", "exec_hi"): return {"exec"}
    m = _reg.match(op)
    if not m: return set()
    k = m.group(1)
    if m.group(2) is not None: return {k + m.group(2)}
    return {k + str(i) for i in range(int(m.group(3)), int(m.group(4)) + 1)}

TRANS = ("v_exp_f32", "v_log_f32", "v_rcp_f32", "v_rsq_f32", "v_sqrt_f32", "v_sin_f32", "v_cos_f32", "v_rcp_iflag_f32")
class I:
    def __init__(self, line):
        self.line = line
        t = line.split(";")[0].strip()
        p = t.split(None, 1)
        self.op = p[0]
        rest = p[1] if len(p) > 1 else ""
        ops = [o.strip() for o in rest.split(",")] if rest else []
        if ops:
            last = ops[-1].split()
            self.mods = last[1:]
            ops[-1] = last[0] if last else ""
        else: self.mods = []
        self.ops = ops
        op = self.op
        self.mfma = op.startswith(("v_mfma", "v_smfmac"))
        self.valu = op.startswith("v_") and not self.mfma
        self.trans = any(op.startswith(x) for x in TRANS)
        self.dot = op.startswith("v_dot")
        self.ds = op.startswith("ds_")
        self.vmem = op.startswith(("buffer_", "global_"))
        self.salu = op.startswith("s_")
        self.dpp = "_dpp" in op or any(m.startswith(("row_", "quad_perm", "wave_")) for m in self.mods)
        self.permlane = op.startswith("v_permlane")
        self.w = set(); self.r = set(); self.srcc = set(); self.ab = set()
        R = [regs(o) for o in ops]
        U = lambda L: set().union(*L) if L else set()
        if self.mfma:
            self.w = R[0]; self.ab = R[1] | R[2]; self.srcc = R[3]
            if op.startswith("v_smfmac"): self.ab |= R[3]; self.srcc = R[0]
            self.r = self.ab | self.srcc
            self.passes = 8 if ("32x32" in op or op.startswith("v_smfmac")) else 4
        elif self.valu:
            if self.permlane or op.startswith("v_swap"):
                self.w = R[0] | R[1]; self.r = R[0] | R[1]
            elif op.startswith("v_cmpx"):
                self.w = R[0] | {"exec"}; self.r = U(R[1:])
            elif "_co_" in op or op.startswith("v_div_scale") or op.startswith("v_mad_u64"):
                self.w = R[0] | R[1]; self.r = U(R[2:])
            else:
                self.w = R[0]; self.r = U(R[1:])
                if op.startswith(("v_fmac", "v_dot2c", "v_writelane")) or self.dpp: self.r |= R[0]
                if op.startswith("v_div_fmas"): self.r |= {"vcc"}
        elif self.ds:
            if op.startswith(("ds_read", "ds_bpermute", "ds_swizzle", "ds_permute")) or "_rtn" in op:
                self.w = R[0]; self.r = U(R[1:])
            else: self.r = U(R)
        elif self.vmem:
            if "lds" in self.mods or "load_lds" in op: self.r = U(R) | {"m0"}
            elif "load" in op: self.w = R[0]; self.r = U(R[1:])
            elif "atomic" in op and "sc0" in self.mods:
                self.w = R[0]; self.r = U(R) if op.startswith("buffer") else U(R[1:])
            else: self.r = U(R)
        elif self.salu:
            if op.startswith(("s_cmp", "s_waitcnt", "s_barrier", "s_nop", "s_branch", "s_cbranch", "s_endpgm", "s_sleep", "s_setprio", "s_bitcmp")):
                self.r = U(R)
            else:
                self.w = R[0] if R else set(); self.r = U(R[1:])
                if "saveexec" in op: self.w |= {"exec"}
        self.states = 1
        if op == "s_nop": self.states = int(ops[0], 0) + 1
        self.widestore = self.vmem and ("store" in op) and ("x4" in op or "x3" in op)

def need(p, c):
    n = 0
    isv = lambda S: {x for x in S if x[0] in "va" and x not in ("vcc",)}
    iss = lambda S: {x for x in S if (x[0] == "s" and x != "scc") or x == "vcc"}
    if p.mfma:
        D = p.w; big = 12 if p.passes == 8 else 8
        if c.mfma:
            if D & c.ab: n = max(n, big)
            if D & c.srcc and not (D == c.srcc and p.passes == c.passes): n = max(n, big - 2)
            if D & c.w and not (D & c.srcc): n = max(n, big - 2)
        elif (c.valu or c.ds or c.vmem) and D & (c.r | c.w): n = max(n, big)
        if c.valu and p.srcc & c.w: n = max(n, 7 if p.passes == 8 else 3)
    if p.valu:
        if c.mfma and isv(p.w) & c.r: n = max(n, 3 if p.dot else 2)
        if p.dot and (c.valu or c.vmem or c.ds) and isv(p.w) & (c.r | c.w):
            same_c = c.op == p.op and c.dot and not (isv(p.w) & (regs(c.ops[1]) | regs(c.ops[2])))
            if not same_c: n = max(n, 3)
        if p.trans and (c.valu or c.mfma or c.vmem or c.ds) and not c.trans and isv(p.w) & c.r: n = max(n, 1)
        if p.trans and c.trans and isv(p.w) & c.r: n = max(n, 1)
        if c.dpp and isv(p.w) & c.r: n = max(n, 2)
        if c.permlane and isv(p.w) & c.r: n = max(n, 2)
        if c.op.startswith(("v_readlane", "v_readfirstlane")) and isv(p.w) & c.r: n = max(n, 1)
        if iss(p.w):
            if c.vmem and iss(p.w) & c.r: n = max(n, 5)
            if c.valu and iss(p.w) & c.r:
                n = max(n, 4 if c.op.startswith(("v_readlane", "v_writelane", "v_div_fmas")) else 2)
        if "exec" in p.w:
            if c.mfma or c.permlane or c.op.startswith(("v_readlane", "v_readfirstlane", "v_writelane")): n = max(n, 4)
            if c.dpp: n = max(n, 5)
    if p.salu and "m0" in p.w and "m0" in c.r and c.vmem: n = max(n, 1)
    if p.widestore and regs(p.ops[0] if p.op.startswith("buffer") else p.ops[1]) & c.w: n = max(n, 2)
    return n

def check_hazards(text, verbose=True):
    ins = []; labels = {}
    for l in text.split("\n"):
        t = l.split(";")[0].strip()
        if not t or t.startswith("."): continue
        if t.endswith(":"): labels[t[:-1]] = len(ins); continue
        ins.append(I(t))
    bad = []
    def succ(i):
        x = ins[i]
        if x.op == "s_endpgm": return []
        if x.op == "s_branch": return [labels[x.ops[0]]]
        if x.op == "s_cbranch_execz": return [i + 1]
        if x.op.startswith("s_cbranch"): return [labels[x.ops[0]], i + 1]
        return [i + 1] if i + 1 < len(ins) else []
    for i, p in enumerate(ins):
        if not (p.mfma or p.valu or p.widestore or (p.salu and "m0" in p.w)): continue
        maxd = 12 if p.mfma else 5
        stack = [(j, 0) for j in succ(i)]; seen = set()
        while stack:
            j, d = stack.pop()
            if (j, d) in seen or d >= maxd: continue
            seen.add((j, d))
            c = ins[j]
            n = need(p, c)
            if n > d: bad.append((i, j, n, d, p.line, c.line))
            for k in succ(j): stack.append((k, d + c.states))
    if verbose:
        for b in bad[:40]: print("HAZARD need %d have %d:\n   %s\n   %s" % (b[2], b[3], b[4], b[5]))
    return bad

class Stream:
    def __init__(self, A):
        self.A = A; self.q = []; self.hist = []; self.vm = []; self.lg = []
    def emit(self, l):
        if callable(l): l = l()
        if l.endswith(":"):
            self.A.label(l[:-1]); return
        self.A(l); c = I(l); self.hist.append(c); self.hist = self.hist[-14:]
        if c.vmem: self.vm.append(l.split(";")[1].strip() if ";" in l else "")
        if c.ds: self.lg.append(l.split(";")[1].strip() if ";" in l else "")
    def many(self, txt):
        for l in txt.split("\n"):
            l = l.strip()
            if l: self.emit(l)
    def vmn(self, *tags):
        idx = [i for i, t in enumerate(self.vm) if t in tags]
        assert idx, tags
        n = len(self.vm) - 1 - max(idx)
        n = min(n, 62)
        return n
    def lgn(self, *tags):
        idx = [i for i, t in enumerate(self.lg) if t in tags]
        assert idx, tags
        return min(14, len(self.lg) - 1 - max(idx))
    def ok(self, l):
        c = I(l); d = 0
        for p in reversed(self.hist):
            if need(p, c) > d: return False
            d += p.states
        return True
    def cost(self, l):
        c = I(l)
        if c.trans: return 2
        if c.vmem: return 2
        return 1
    def gap(self, mf, lead=(), budget=2, big=False, novm=False):
        self.emit(mf)
        first = True
        for f in lead:
            if callable(f): f = f()
            c = I(f)
            if not (c.salu and first): budget -= self.cost(f)
            self.emit(f); first = False
        while self.q and budget > 0:
            f = self.q[0]
            if callable(f): f = f()
            if f is None: break
            if isinstance(f, (list, tuple)):
                if (not first and not big) or novm: break
                if not self.ok(f[0]() if callable(f[0]) else f[0]): break
                for x in f: self.emit(x)
                self.q.pop(0); budget = budget - len(f) if big else 0; first = False; continue
            if f.endswith(":"):
                self.emit(f); self.q.pop(0); continue
            c = I(f)
            if (c.vmem or c.ds) and not first and not big: break
            if novm and (c.vmem or c.op == "s_waitcnt"): break
            if not self.ok(f):
                if first or big:
                    self.emit("s_nop 0"); first = False
                    if self.ok(f): continue
                break
            k = 0 if (c.salu and first) else self.cost(f)
            if k > budget: break
            self.emit(f); self.q.pop(0); budget -= k; first = False
            while self.q and isinstance(self.q[0], str) and self.q[0].endswith(":"): self.emit(self.q.pop(0))
    def drain(self):
        while self.q:
            f = self.q.pop(0)
            if callable(f): f = f()
            for x in (f if isinstance(f, (list, tuple)) else [f]):
                if callable(x): x = x()
                while not x.endswith(":") and not self.ok(x): self.emit("s_nop 0")
                self.emit(x)
```

```python
import sys, struct
from attn16 import *
KN = "recurrent_scan__mha_block_cached__moe_arch_mod__prompt"
opt = dict(holdrel=0, bgap=62, bsplit=1, bar=1, nodma=0, pad=0, holdp=0, holdt=0, forcefb=0, ntw=0, ost=0, tlb=1, varb=1, TF=18, TP=22, moeT=99, moe=1, pollat=8, wtouch=1, otouch=0, epace=40, npost=8, npre=24, look=3, zd=24, dlag=5, rot=0, s1st=5, cyc=0, stamp=0, snake=1, pvchain=1, G0=8, nt=1, ntq=0, sm=1, drate=4, pre=2)
opt_s = dict(touch="{}", hs="(2,4,6,18,22,24,27)", wT="(22,24)")
for x in sys.argv[2:]:
    k, val = x.split("=")
    if k in opt_s: opt_s[k] = val
    else: opt[k] = int(val)
A = Asm(); r = default_regs(); X = Attn(A, r, opt); S = Stream(A); E = S.emit; M = S.many
POL = ["", " nt", " sc1"]
def fbits(x): return hex(struct.unpack("<I", struct.pack("<f", x))[0])
WS_O = 0
WS_STAT = 16 << 20
WS_KEY = WS_STAT + 0x4000
WS_FLAG = WS_STAT + 0x10000
WS_SEL = WS_STAT + 0x8000
WS_FC = WS_STAT + 0x9000
WS_UPD = WS_STAT + 0xC000
WS_XN = 18 << 20
WS_PART = 20 << 20
WS_T = 64 << 20
sX, sK, sV, sW, sWq = 4, 8, 12, 16, 28
sWave, sHead, sQb = 20, 21, 22
sXoff, sWoff, sM0X, sM0W = 34, 35, 62, 63
pX, pK, pV, pWq, pWo, pWr, pWg, pWu, pWd, pOut, pDbg, pWs = 36, 38, 40, 42, 44, 48, 50, 52, 54, 56, 58, 60
sKey0, sRow0, sNonce = 64, 66, 46
sSpin = 33
def spin(label, ok): return [f"s_sub_u32 s{sSpin}, s{sSpin}, 1", f"s_cbranch_scc1 {ok}"]
cold = []
nstamp = [0]
CLK = "s_memtime" if opt["cyc"] else "s_memrealtime"
npoint = [0]
def hold_at():
    npoint[0] += 1
    if opt["holdp"] == npoint[0]:
        M(f"""
        L_hold:
        s_memrealtime s[98:99]
        s_waitcnt lgkmcnt(0)
        s_sub_u32 s98, s98, s{46 if opt['holdrel'] else 100}
        s_cmp_lt_u32 s98, {opt['holdt']*100}
        s_cbranch_scc1 L_hold
        """)
def stamp(lvl=1, wait=True):
    if lvl & 1: hold_at()
    if opt["stamp"] & lvl and nstamp[0] < 16:
        i = nstamp[0]; nstamp[0] += 1
        E(f"{CLK} s[{70+2*i}:{71+2*i}]")
        if wait: E("s_waitcnt lgkmcnt(0)")

A.raw("; @launch grid=(256,1,1) block=(256,1,1) lds=163840")
A.raw('.amdgcn_target "amdgcn-amd-amdhsa--gfx950"')
A.raw(".text"); A.raw(f".globl {KN}_kernel"); A.raw(".p2align 8"); A.raw(f".type {KN}_kernel,@function")
A.label(f"{KN}_kernel")
M(f"""
s_cmp_ge_u32 s2, 256
s_cbranch_scc1 L_end
s_load_dwordx16 s[36:51], s[0:1], 0
s_load_dwordx8 s[52:59], s[0:1], 64
s_load_dwordx2 s[60:61], s[0:1], 96
s_memrealtime s[68:69]
""")
if opt["stamp"]:
    E(f"{CLK} s[70:71]"); nstamp[0] = 1
if opt["holdp"]: E("s_memrealtime s[100:101]")
M(f"""
s_getpc_b64 s[32:33]
v_lshlrev_b32 v4, 7, v0
v_add_u32 v5, 0x8000, v4
v_min_u32 v5, L_end-{KN}_kernel-128, v5
v_lshrrev_b32 v1, 6, v0
v_and_b32 v0, 63, v0
global_load_dword v23, v4, s[32:33]
global_load_dword v23, v5, s[32:33]
v_readfirstlane_b32 s{sWave}, v1
s_and_b32 s3, s2, 7
s_lshl_b32 s3, s3, 2
s_bfe_u32 s{sHead}, s2, 0x20003
s_or_b32 s{sHead}, s{sHead}, s3
s_lshr_b32 s{sQb}, s2, 5
v_lshrrev_b32 v1, 4, v0
v_and_b32 v2, 15, v0
""")
vXD, vWD, vXA, vWA, vCS, vKM = 76, 84, 88, 92, 100, 108
vSX, vG = r.vL, r.vM
M(f"""
v_lshrrev_b32 v4, 3, v0
s_lshl_b32 s3, s{sWave}, 6
v_add_u32 v4, s3, v4
v_lshlrev_b32 v4, 10, v4
v_and_b32 v5, 7, v0
v_xor_b32 v6, v5, v1
v_xor_b32 v7, 4, v6
v_lshl_add_u32 v6, v6, 4, v4
v_lshl_add_u32 v7, v7, 4, v4
""")
for p in range(8): E(f"v_add_u32 v{vXD+p}, {p*8192 - (p&3)*1024}, v{6+(p&1)}")
M(f"""
s_lshl_b32 s3, s{sWave}, 4
v_add_u32 v4, s3, v1
v_lshlrev_b32 v4, 13, v4
v_lshlrev_b32 v5, 1, v1
v_xor_b32 v6, v5, v2
v_xor_b32 v7, 8, v6
v_lshl_add_u32 v6, v6, 4, v4
v_lshl_add_u32 v7, v7, 4, v4
""")
for p in range(4): E(f"v_add_u32 v{vWD+p}, {p*4*8192 - p*1024}, v{6+(p>>1)}")
M(f"""
s_lshl_b32 s{sM0X}, s{sWave}, 13
s_lshl_b32 s{r.sM0K}, s{sWave}, 12
s_add_u32 s{sM0W}, s{r.sM0K}, 0xC000
s_lshl_b32 s3, s{sHead}, 1
s_mul_i32 s3, s3, {1 if opt['rot'] & 1 else 0}
s_mul_i32 s67, s{sQb}, {1 if opt['rot'] & 2 else 0}
s_add_u32 s3, s3, s67
s_and_b32 s3, s3, 7
s_lshl_b32 s{sXoff}, s3, 7
s_lshl_b32 s{sWoff}, s3, 19
s_mov_b32 s{sX+2}, 0x40000
s_mov_b32 s{sX+3}, 0x20000
s_mov_b32 s{sWq+3}, 0x20000
s_lshl_b32 s3, s{sQb}, 18
s_lshl_b32 s67, s{sHead}, 8
s_sub_u32 s{sWq+2}, 0x400000, s67
s_waitcnt lgkmcnt(0)
s_add_u32 s{sX}, s{pX}, s3
s_addc_u32 s{sX+1}, s{pX+1}, 0
s_add_u32 s{sWq}, s{pWq}, s67
s_addc_u32 s{sWq+1}, s{pWq+1}, 0
s_or_b32 s3, s2, s{sWave}
s_cbranch_scc1 L_nononce
""")
A("s_or_b32 s68, s68, 1"); A("v_mov_b32 v4, 0"); A("v_mov_b32 v5, s68"); A(f"global_store_dword v4, v5, s[{pDbg}:{pDbg+1}] sc1")
E("L_nononce:")
stamp(2)
XSLOT = [0x18000, 0x20000, 0x4000]
def xdma(st):
    L = []
    for p in range(8):
        if p & 3 == 0: L.append(f"s_add_u32 m0, s{sM0X}, {XSLOT[st%3] + (p>>2)*4096}")
        L.append(f"buffer_load_dwordx4 v{vXD+p}, s[{sX}:{sX+3}], s{sXoff} offen offset:{(p&3)*1024}{POL[opt['ntq']]} lds ; x{st}")
    L.append(f"s_add_u32 s{sXoff}, s{sXoff}, 128")
    L.append(f"s_and_b32 s{sXoff}, s{sXoff}, 0x3ff")
    return L
def wdma(st):
    L = [f"s_add_u32 m0, s{sM0W}, {(st%3)*16384}"]
    for p in range(4):
        L.append(f"buffer_load_dwordx4 v{vWD+p}, s[{sWq}:{sWq+3}], s{sWoff} offen offset:{p*1024}{POL[opt['ntw']]} lds ; w{st}")
    L.append(f"s_add_u32 s{sWoff}, s{sWoff}, 0x80000")
    L.append(f"s_and_b32 s{sWoff}, s{sWoff}, 0x3fffff")
    return L
def tagged(L, t): return [l + " ; " + t if l.startswith("buffer") else l for l in L]
def kdma(T): return tagged(X.dma(T & 3)[:5], f"k{T}") + [f"s_add_u32 s{r.sKoff}, s{r.sKoff}, 0x4000"]
def vdma(T): return tagged(X.dma((T + 1) & 3)[5:], f"v{T}") + [f"s_add_u32 s{r.sVoff}, s{r.sVoff}, 0x4000"]
def plain(L):
    for l in L:
        E(l)
        if l.startswith("s_add_u32 m0"): E("s_nop 0")
TL = []
if opt["tlb"]:
    TL = [[f"s_lshl_b32 s67, s{sHead}, 19", f"s_load_dword s64, s[{pK}:{pK+1}], s67", f"s_load_dword s64, s[{pV}:{pV+1}], s67"],
          [f"s_mov_b32 s67, {WS_STAT}", f"s_load_dword s64, s[{pWs}:{pWs+1}], s67", f"s_mov_b32 s68, {WS_XN}", f"s_load_dword s64, s[{pWs}:{pWs+1}], s68"],
          [f"s_load_dword s64, s[{pWr}:{pWr+1}], 0", f"s_load_dword s64, s[{pDbg}:{pDbg+1}], 128", f"s_mov_b32 s67, 0x200000", f"s_load_dword s64, s[{pWq}:{pWq+1}], s67"]]
    if opt["tlb"] > 1:
        TL += [[f"s_load_dword s64, s[{pWg}:{pWg+1}], 0", f"s_load_dword s64, s[{pWu}:{pWu+1}], 0", f"s_load_dword s64, s[{pWd}:{pWd+1}], 0"],
               [f"s_load_dword s64, s[{pWo}:{pWo+1}], 0", f"s_load_dword s64, s[{pWo}:{pWo+1}], s67", f"s_load_dword s64, s[{pOut}:{pOut+1}], 0"],
               [f"s_lshl_b32 s67, s{sQb}, 21", f"s_load_dword s64, s[{pWs}:{pWs+1}], s67", f"s_mov_b32 s68, {WS_PART}", f"s_load_dword s64, s[{pWs}:{pWs+1}], s68"],
               [f"s_mov_b32 s67, {WS_PART + 0x200000}", f"s_load_dword s64, s[{pWs}:{pWs+1}], s67"]]
for l in wdma(0) + xdma(0):
    E(l)
    if l.startswith("s_add_u32 m0"): E("s_nop 0")
    if "lds" in l and TL:
        for f in TL.pop(0): E(f)
stamp(2, False)
M(f"""
v_lshrrev_b32 v4, 1, v2
v_xor_b32 v4, v4, v1
v_lshlrev_b32 v5, 7, v2
v_add_u32 v5, s{sM0X}, v5
v_lshl_add_u32 v6, v4, 4, v5
v_xor_b32 v4, 4, v4
v_lshl_add_u32 v7, v4, 4, v5
v_add_u32 v{vXA}, {XSLOT[0]}, v6
v_add_u32 v{vXA+1}, {XSLOT[0]}, v7
v_add_u32 v{vXA+2}, {XSLOT[2]}, v6
v_add_u32 v{vXA+3}, {XSLOT[2]}, v7
v_lshrrev_b32 v4, 2, v2
v_lshl_add_u32 v5, v1, 3, v4
v_lshlrev_b32 v5, 8, v5
v_and_b32 v63, 3, v0
v_lshl_add_u32 v5, v63, 3, v5
v_add_u32 v5, 0xC000, v5
v_and_b32 v6, 1, v1
v_lshl_add_u32 v60, v6, 2, v4
s_lshl_b32 s67, s{sWave}, 1
""")
for j in range(8):
    E(f"s_add_u32 s3, s67, {j}"); E("s_and_b32 s3, s3, 7")
    E("v_xor_b32 v6, s3, v60"); E(f"v_lshl_add_u32 v{vWA+j}, v6, 5, v5")
M(f"""
v_mov_b32 v62, 0x3f803f80
v_cmp_gt_u32 vcc, 2, v63
v_and_b32 v4, 1, v0
v_mov_b32 v5, 0x44444444
v_mov_b32 v6, 0xeeeeeeee
v_cndmask_b32 v{r.vOne}, 0, v62, vcc
v_cndmask_b32 v{r.vOne+1}, 0, v62, vcc
v_cndmask_b32 v{r.vOne+2}, 0, v62, vcc
v_cndmask_b32 v{r.vOne+3}, 0, v62, vcc
v_cmp_eq_u32 vcc, 1, v4
s_lshl_b32 s3, s{sHead}, 2
s_add_u32 s3, s3, s{sWave}
v_cndmask_b32 v{r.vIdx}, v5, v6, vcc
s_lshl_b32 s{sRow0}, s3, 11
v_lshlrev_b32 v3, 4, v0
""")
for i in range(8): E(f"v_mov_b32 v{vCS+i}, 0")
vTX, vTW, vTK = 52, 53, 54
M(f"""
s_and_b32 s3, s{sHead}, 3
s_lshl_b32 s3, s3, 2
s_add_u32 s3, s3, s{sWave}
s_lshl_b32 s3, s3, 14
v_lshlrev_b32 v{vTX}, 10, v2
v_lshl_add_u32 v{vTX}, v1, 7, v{vTX}
v_add_u32 v{vTX}, s3, v{vTX}
s_lshl_b32 s3, s{sQb}, 2
s_add_u32 s3, s3, s{sWave}
s_lshl_b32 s67, s3, 14
v_lshrrev_b32 v5, 2, v0
v_lshlrev_b32 v5, 19, v5
v_lshl_add_u32 v5, v4, 13, v5
v_bfe_u32 v6, v0, 1, 1
v_lshl_add_u32 v5, v6, 7, v5
v_add_u32 v{vTW}, s67, v5
s_lshl_b32 s3, s3, 9
v_lshrrev_b32 v5, 2, v0
v_lshlrev_b32 v5, 14, v5
v_lshl_add_u32 v5, v63, 7, v5
v_lshl_add_u32 v5, v1, 28, v5
v_add_u32 v{vTK}, s3, v5
""")
TWX = {}
for kinds in eval(opt_s["touch"]).values():
    for k in kinds:
        if k[0] == "w" and len(k) >= 3:
            TWX[k[1:3]] = 3 + len(TWX)
            lo, hi = int(k[1])*4, int(k[2])*4 + 4
            E(f"v_subrev_u32 v5, {lo}, v0"); E(f"v_cmp_gt_u32 vcc, {hi-lo}, v5"); E("v_mov_b32 v5, 0x40000000"); E("s_nop 0")
            E(f"v_cndmask_b32 v{vTW+TWX[k[1:3]]}, v5, v{vTW}, vcc")
def touch(kind):
    if kind[0] == "x": return f"buffer_load_dword v55, v{vTX}, s[{sX}:{sX+3}], 0 offen offset:{int(kind[1])*128} ; t"
    if kind[0] == "w":
        nt_ = " nt" if kind.endswith("n") else ""
        return f"buffer_load_dword v55, v{vTW + (0 if len(kind) < 3 else TWX[kind[1:3]])}, s[{sWq}:{sWq+3}], 0 offen{nt_} ; t"
    if kind[0] == "k": return f"buffer_load_dword v55, v{vTK}, s[{sK}:{sK+3}], 0 offen ; t"
    if kind[0] == "v": return f"buffer_load_dword v55, v{vTK}, s[{sV}:{sV+3}], 0 offen ; t"
TOUCH = eval(opt_s["touch"])
for k in TOUCH.get(-2, ()): E(touch(k))
stamp(2, False)
Q = S.q
Q += f"""v_lshlrev_b32 v61, 8, v1
v_add_u32 v61, s{r.sM0K}, v61
v_xor_b32 v62, v1, v2""".split("\n")
for p in range(4): Q += [f"v_xor_b32 v51, {4*p}, v62", f"v_lshl_add_u32 v{r.vKD+p}, v51, 4, v61"]
Q += ["v_lshlrev_b32 v62, 1, v1", "v_xor_b32 v62, v62, v2"]
for p in range(2): Q += [f"v_xor_b32 v51, {8*p}, v62", f"v_lshl_add_u32 v{r.vVD+p}, v51, 4, v61"]
Q += f"""v_lshrrev_b32 v61, 2, v2
v_lshl_add_u32 v61, v1, 2, v61
v_lshlrev_b32 v61, 8, v61
v_lshl_add_u32 v61, v63, 3, v61
v_add_u32 v61, {r.VBASE}, v61""".split("\n")
for db in range(8): Q += [f"v_xor_b32 v51, {db}, v60", f"v_lshl_add_u32 v{r.vVA+db}, v51, 5, v61"]
Q += ["v_lshrrev_b32 v61, 1, v1", "v_and_b32 v62, 1, v1", "v_lshl_add_u32 v62, v62, 1, v61"]
for s_ in range(4):
    Q += [f"s_add_u32 s68, s{sWave}, {s_}", "s_and_b32 s68, s68, 3", "s_lshl_b32 s68, s68, 2",
          "v_or_b32 v61, s68, v62", "v_xor_b32 v51, v61, v2", "v_lshlrev_b32 v51, 4, v51", f"v_lshl_add_u32 v{r.vKA+s_}, v2, 8, v51",
          "v_xor_b32 v51, v61, v63", "v_lshlrev_b32 v51, 4, v51", f"v_lshl_add_u32 v{vKM+s_}, v63, 8, v51"]
vCA = 124
Q += [f"s_add_u32 s67, s{sM0X}, {XSLOT[1]}", "v_lshl_add_u32 v62, v2, 2, s67", "v_lshlrev_b32 v61, 3, v2",
      f"s_lshl_b32 s1, s{sQb}, 2", f"s_add_u32 s1, s1, s{sWave}", "s_lshl_b32 s1, s1, 9", f"s_add_u32 s1, s1, {WS_STAT}"]
for s_ in range(4):
    Q += [f"s_add_u32 s68, s{sM0X}, {s_*8192}", "s_and_b32 s68, s68, 0x7fff", f"s_add_u32 s68, s68, {XSLOT[1]}", f"v_lshl_add_u32 v{vCA+s_}, v1, 4, s68"]
Q += ["v_mov_b32 v1, v20", "v_mov_b32 v2, v21"]
for i in range(128): Q.append(f"v_accvgpr_write_b32 a{r.aO+i}, 0")
PRE = list(Q); del Q[:]
import re as _re
ADDR = [l for l in PRE if not _re.match(rf"v_\w+ v({vKM}|{vKM+1}|{vKM+2}|{vKM+3}|{vCA}|{vCA+1}|{vCA+2}|{vCA+3}),", l) and "s1" not in l]
L1 = []
for st in range(1, opt["pre"]): L1 += wdma(st) + xdma(st)
L1 += f"""buffer_load_dwordx4 v[64:67], v3, s[{sX}:{sX+3}], s{sRow0} offen ; ln
buffer_load_dwordx4 v[68:71], v3, s[{sX}:{sX+3}], s{sRow0} offen offset:1024 ; ln
global_load_dwordx4 v[72:75], v3, s[{pWr}:{pWr+1}] ; ln
global_load_dword v23, v{vCS+2}, s[{pDbg}:{pDbg+1}] sc1 ; ln""".split("\n")
per = -(-len(PRE) // max(1, sum("lds" in l for l in L1)))
for l in L1:
    E(l)
    if l.startswith("s_add_u32 m0"): E("s_nop 0")
    if "lds" in l:
        for f in PRE[:per]: E(f)
        del PRE[:per]
for f in PRE: E(f)
for k in TOUCH.get(-1, ()): E(touch(k))
M(f"""
s_lshl_b32 s3, s{sHead}, 19
s_add_u32 s{sK}, s{pK}, s3
s_addc_u32 s{sK+1}, s{pK+1}, 0
s_mov_b32 s{sK+2}, 0x80000
s_mov_b32 s{sK+3}, 0x20000
s_add_u32 s{sV}, s{pV}, s3
s_addc_u32 s{sV+1}, s{pV+1}, 0
s_mov_b32 s{sV+2}, 0x80000
s_mov_b32 s{sV+3}, 0x20000
s_mov_b32 s{sW}, s{pWs}
s_mov_b32 s{sW+1}, s{pWs+1}
s_mov_b32 s{sW+2}, 0x10000000
s_mov_b32 s{sW+3}, 0x20000
s_mov_b32 s{r.sKoff}, 0
s_mov_b32 s{r.sVoff}, 0
s_mov_b32 s{sSpin}, 0x100000
s_add_u32 s{r.sM0V}, s{r.sM0K}, {r.VBASE}
s_lshl_b32 s3, s{sQb}, 8
s_lshr_b32 s{sRow0}, s{sRow0}, 10
s_add_u32 s{sRow0}, s{sRow0}, s3
""")
stamp(2, False)
aXN = 248
def unpack(dst, src, n=4):
    L = []
    for k in range(n):
        L += [f"v_lshlrev_b32 v{dst+2*k}, 16, v{src+k}", f"v_and_b32 v{dst+2*k+1}, 0xffff0000, v{src+k}"]
    return L
def wave_sum(reg, sdst):
    return [f"v_add_f32_dpp v{reg}, v{reg}, v{reg} {m} bank_mask:0xf" for m in
            ("quad_perm:[1,0,3,2] row_mask:0xf", "quad_perm:[2,3,0,1] row_mask:0xf", "row_half_mirror row_mask:0xf",
             "row_mirror row_mask:0xf", "row_bcast:15 row_mask:0xa", "row_bcast:31 row_mask:0xc")] + [f"v_readlane_b32 s{sdst}, v{reg}, 63"]
def rbf(x): return [f"v_cvt_pk_bf16_f32 v{x}, v{x}, v{x}", f"v_lshlrev_b32 v{x}, 16, v{x}"]
vE, vD, vWr, vO = 32, 40, 112, 120
Q.append([lambda: f"s_waitcnt vmcnt({S.vmn('ln')})", f"v_readfirstlane_b32 s{sNonce}, v23", "s_nop 0", f"s_cmp_eq_u32 s{sNonce}, 0",
          "s_cbranch_scc1 L_nonce_retry", "L_nonce_ok:"])
cold += ["L_nonce_retry:"] + spin("", "L_nonce_ok") + ["v_mov_b32 v48, 0", f"global_load_dword v23, v48, s[{pDbg}:{pDbg+1}] sc1", "s_waitcnt vmcnt(0)",
         f"v_readfirstlane_b32 s{sNonce}, v23", "s_nop 0", f"s_cmp_eq_u32 s{sNonce}, 0", "s_cbranch_scc1 L_nonce_retry", "s_branch L_nonce_ok"]
Q += ["v_mov_b32 v50, 0x3b000000"]
for k in range(2):
    Q += unpack(vE, 64 + 4*k)
    Q += [f"v_add_f32 v{vD+e}, v{vE+2*e}, v{vE+2*e+1}" for e in range(4)]
    Q += [f"v_add_f32 v{vD}, v{vD}, v{vD+1}", f"v_add_f32 v{vD+2}, v{vD+2}, v{vD+3}", f"v_add_f32 v48, v{vD}, v{vD+2}"]
    Q += wave_sum(48, 68) + ["v_mul_f32 v48, s68, v50"]
    Q += [f"v_sub_f32 v{vD+e}, v{vE+e}, v48" for e in range(8)]
    Q += [f"v_mul_f32 v49, v{vD}, v{vD}"] + [f"v_fmac_f32 v49, v{vD+e}, v{vD+e}" for e in range(1, 8)]
    Q += wave_sum(49, 68)
    Q += ["v_mul_f32 v49, s68, v50"] + rbf(49) + ["v_add_f32 v49, 0x3727c5ac, v49"] + rbf(49) + ["v_sqrt_f32 v49, v49"]
    Q += [f"v_mov_b32 v{vO+2*k+1}, s{sNonce}", f"v_cvt_pk_bf16_f32 v{vO+2*k}, v48, v49"]
Q += [f"s_lshl_b32 s68, s{sRow0}, 3", f"s_add_u32 s69, s68, {WS_KEY}", f"s_add_u32 s68, s68, {WS_STAT}"]
Q.append(["s_mov_b64 exec, 1", f"buffer_store_dwordx4 v[{vO}:{vO+3}], off, s[{sW}:{sW+3}], s68 sc1 ; s1", "s_mov_b64 exec, -1"])
Q += unpack(vWr, 72)
for k in range(2):
    Q += unpack(vE, 64 + 4*k) + [f"v_lshlrev_b32 v48, 16, v{vO+2*k}", f"v_and_b32 v49, 0xffff0000, v{vO+2*k}", "v_rcp_f32 v49, v49"]
    Q += [f"v_sub_f32 v{vE+e}, v{vE+e}, v48" for e in range(8)]
    Q += [f"v_cvt_pk_bf16_f32 v{vD+e}, v{vE+2*e}, v{vE+2*e+1}" for e in range(4)]
    Q += unpack(vE, vD)
    Q += [f"v_mul_f32 v{vE+e}, v{vE+e}, v49" for e in range(8)]
    Q += [f"v_cvt_pk_bf16_f32 v{vD+e}, v{vE+2*e}, v{vE+2*e+1}" for e in range(4)]
    Q += unpack(vE, vD)
    Q += [f"v_mul_f32 v49, v{vE}, v{vWr}"] + [f"v_fmac_f32 v49, v{vE+e}, v{vWr+e}" for e in range(1, 8)]
    Q += [f"s_lshl_b32 s67, s{sRow0}, 10", f"s_add_u32 s67, s67, {WS_XN}",
          f"buffer_store_dwordx4 v[{vD}:{vD+3}], v3, s[{sW}:{sW+3}], s67 offen offset:{k*1024} sc1 ; s1"]
    Q += wave_sum(49, 68) + [f"s_sub_u32 s67, {2047-k}, s{sRow0}", "v_mov_b32 v49, s68", "v_cvt_pk_bf16_f32 v49, v49, v49",
          "v_ashrrev_i32 v48, 31, v49", "v_or_b32 v48, 0x80000000, v48", "v_xor_b32 v49, v48, v49", "v_and_b32 v49, 0xffff0000, v49",
          f"v_or_b32 v{28+k}, s67, v49", f"v_mov_b32 v{30+k}, s{sNonce}", f"v_readfirstlane_b32 s{sKey0+k}, v{28+k}"]
Q.append(["s_mov_b64 exec, 1", f"buffer_store_dwordx4 v[28:31], off, s[{sW}:{sW+3}], s69 sc1 ; s1", "s_mov_b64 exec, -1"])
NFILL = len(Q); S1 = list(Q); del Q[:]
r.sKinc, r.sVinc = 34, 35
sMask2, sMask4 = 62, 63
sQt, sNt = 47, 32
sChunk = 69
sFb = 0
SET = f"""s_mov_b32 s{r.sKinc}, 0x4000
s_mov_b32 s{r.sVinc}, 0x4000
s_mov_b32 s{r.sIt}, 0
s_and_b32 s3, s2, 6
s_lshl_b32 s3, s3, 2
s_lshr_b32 s{sQt}, s2, 5
s_add_u32 s{sQt}, s{sQt}, s3
s_bfe_u32 s{sNt}, s2, 0x20003
s_and_b32 s3, s2, 1
s_lshl_b32 s3, s3, 2
s_add_u32 s{sNt}, s{sNt}, s3
s_lshl_b32 s3, s{sNt}, 7
s_lshl_b32 s67, s{sWave}, 20
s_add_u32 s3, s3, s67
s_sub_u32 s{sWq+2}, 0x400000, s3""".split("\n")
SET.append([f"s_add_u32 s{sWq}, s{pWo}, s3", f"s_addc_u32 s{sWq+1}, s{pWo+1}, 0"])
if opt["moe"]:
    SET += f"""s_and_b32 s3, s2, 7
s_mul_i32 s68, s3, 28
s_lshr_b32 s67, s2, 3
s_add_u32 s{sChunk}, s68, s67""".split("\n")
    SET.append(["s_cmp_ge_u32 s67, 28", f"s_cselect_b32 s{sChunk}, -1, s{sChunk}"])
    SET += f"""s_lshr_b32 s68, s68, 3
s_lshl_b32 s68, s68, 7
s_lshl_b32 s67, s67, 1
s_and_b32 s3, s{sWave}, 1
s_add_u32 s67, s67, s3
s_mul_i32 s67, s67, {8*3584}
s_add_u32 s68, s68, s67
v_bfe_u32 v112, v0, 2, 3
v_mul_u32_u24 v112, 3584, v112
v_and_b32 v113, 3, v0
v_lshl_add_u32 v112, v113, 7, v112
v_add_u32 v112, s68, v112""".split("\n")
    SET.append([f"s_cmp_lt_u32 s{sWave}, 2", f"s_cselect_b64 s[6:7], s[{pWg}:{pWg+1}], s[{pWu}:{pWu+1}]"])
    SET.append("global_load_dword v23, v112, s[6:7] ; t")
SET += [f"s_mov_b32 s{sFb}, 0", f"s_mov_b32 s{sMask2}, MASK2", f"s_mov_b32 s{sMask4}, MASK4"]
aXF, aWF = 128, 192
SMF = "v_smfmac_f32_16x16x64_bf16"
def acc(j, qb): return 128 + (3 - (j >> 1))*32 + qb*8 + (j & 1)*4
def xread(st, n):
    qb, ks = n >> 1, n & 1; slot = st % 3
    base = vXA + (2 if slot == 2 else 0) + ks
    off = (XSLOT[slot] - XSLOT[0] if slot != 2 else 0) + qb*2048
    return f"ds_read_b128 {a(aXF+(st&1)*32+n*4,4)}, v{base} offset:{off}"
def wread(st, j, n):
    ks, half = n >> 1, n & 1
    return f"ds_read_b64_tr_b16 {a(aWF+(j&3)*8+ks*4+half*2,2)}, v{vWA+j} offset:{(st%3)*16384 + ks*8192 + half*1024}"
def qmf(st, j):
    L = []
    if j < 2: L.append(f"{SMF} {v(vCS+4*j,4)}, {v(r.vOne,4)}, {a(aWF+(j&3)*8,8)}, v{r.vIdx}")
    for qb in range(4):
        for t in range(2):
            ks = t ^ (qb & 1)
            D = v(acc(j, qb), 4); C = "0" if (st == 0 and t == 0) else D
            L.append(f"{MF} {D}, {a(aWF+(j&3)*8+ks*4,4)}, {a(aXF+(st&1)*32+(qb*2+ks)*4,4)}, {C}")
    return L
E(f"s_waitcnt vmcnt({S.vmn('x0', 'w0')}) lgkmcnt(0)")
E("s_barrier")
stamp(3)
for n in range(8): E(xread(0, n))
for j in range(2):
    for n in range(4): E(wread(0, j, n))
pend = []
for st in range(opt["pre"], 3): pend += wdma(st) + xdma(st)
def vmn(*tags):
    assert not any(l.split(";")[-1].strip() in tags for l in pend), (tags, pend)
    return S.vmn(*tags)
def one_dma():
    while pend:
        l = pend.pop(0); E(l)
        if l.startswith("s_add_u32 m0"): E("s_nop 0")
        if l.startswith("buffer"): break
statld = [f"buffer_load_dwordx2 v[{vG+4*qb}:{vG+4*qb+1}], v61, s[{sW}:{sW+3}], s1 offen offset:{qb*128} sc1 ; st" for qb in range(4)]
since = [99]
def dma_slot(j, n, hasds):
    if pend and pend[0].startswith("s_"): return [pend.pop(0)]
    slots = {0: (1, 5, 7), 1: (1, 5, 7), 5: (4, 6), 6: (), 7: ()}.get(j, (1, 5))
    if opt["drate"] == 3: slots = {0: (1, 3, 5, 7), 1: (1, 5, 7), 5: (4, 6), 6: (), 7: ()}.get(j, (1, 3, 5))
    if pend and not hasds and (n in slots or "lds" not in pend[0]): return [pend.pop(0)]
    return []
vC = r.vL
def csread(s_): return [f"ds_read_b128 {v(vC+(s_&1)*8+4*jj,4)}, v{vCA+s_} offset:{jj*64}" for jj in range(2)]
CL2E = 1.4426950408889634 / (128 ** 0.5)
E("s_waitcnt lgkmcnt(4)")
for st in range(8):
    if st == 6:
        assert not any(f"s{sXoff}" in l or f"s{sWoff}" in l or f"s{sM0X}" in l or f"s{sM0W}" in l for l in pend)
        Q += SET
    pend[0:0] = [touch(k) for k in TOUCH.get(st, ())]
    if st + 3 < 8: pend += xdma(st + 3)
    if st == 5:
        pend += kdma(0)

    for j in range(8):
        L = qmf(st, j)
        if st*8 + j == opt["s1st"]: Q += S1
        ds = [None] * len(L); last = []
        if j < 6:
            o = 0
            for n in range(4): ds[o + (n if j == 5 else 2*n)] = wread(st, j + 2, n)
            if j < 5: last = ["s_waitcnt lgkmcnt(4)"]
            elif st < 7:
                tags = [f"x{st+1}", f"w{st+1}"]
                last = [lambda tags=tags: f"s_waitcnt vmcnt({vmn(*tags)}) lgkmcnt(0)", "s_barrier"]
            else: last = [lambda: f"s_waitcnt vmcnt({vmn('k0', 'st')}) lgkmcnt(0)", "s_barrier"]
        elif st < 7:
            seq = [xread(st + 1, n) for n in range(4)] + [wread(st + 1, 0, n) for n in range(4)] if j == 6 else \
                  [xread(st + 1, 4 + n) for n in range(4)] + [wread(st + 1, 1, n) for n in range(4)]
            ds = seq
            if j == 7: last = ["s_waitcnt lgkmcnt(4)"]
        else:
            seq = csread(0) + csread(1) + [f"ds_read_b128 {a(aWF+4*s_,4)}, v{vKM+s_}" for s_ in range(4)] if j == 6 else \
                  [X.kread(0, i) for i in range(8)]
            ds = seq
        if st == 7 and j == 2:
            Q += [f"v_add_f32 v{vCS}, v{vCS}, v{vCS+1}", f"v_add_f32 v{vCS+4}, v{vCS+4}, v{vCS+5}",
                  f"ds_write2_b32 v62, v{vCS}, v{vCS+4} offset0:0 offset1:16"]
        if st == 7 and j == 6:
            assert not Q, len(Q)
            Q.append([f"v_xor_b32 v{vG+2}, s{sNonce}, v{vG+1}", f"v_xor_b32 v{vG+6}, s{sNonce}, v{vG+5}"])
            Q.append([f"v_xor_b32 v{vG+10}, s{sNonce}, v{vG+9}", f"v_xor_b32 v{vG+14}, s{sNonce}, v{vG+13}"])
            del Q[:]
            chk = [f"v_xor_b32 v{vG+4*qb+2}, s{sNonce}, v{vG+4*qb+1}" for qb in range(4)] + \
                  [f"v_or3_b32 v{vG+2}, v{vG+2}, v{vG+6}, v{vG+10}", f"v_or_b32 v{vG+2}, v{vG+2}, v{vG+14}", f"v_cmp_ne_u32 vcc, 0, v{vG+2}"]
            Q += chk + ["s_cbranch_vccnz L_stat_retry", "L_stat_ok:"]
            cold += ["L_stat_retry:"] + spin("", "L_stat_ok") + [l.split(";")[0] for l in statld] + ["s_waitcnt vmcnt(0)"] + chk + ["s_cbranch_vccnz L_stat_retry", "s_branch L_stat_ok"]
            P_ = []
            for qb in range(4):
                g = vG + 4*qb
                P_.append([f"v_and_b32 v{g+1}, 0xffff0000, v{g}", f"v_lshlrev_b32 v{g}, 16, v{g}", f"v_rcp_f32 v{g+1}, v{g+1}",
                           f"v_sub_f32 v{g}, 0, v{g}", f"v_mul_f32 v{g+1}, {fbits(CL2E)}, v{g+1}"])
            for tup in zip(*P_): Q += list(tup)
        for n, m in enumerate(L):
            lead = []
            if n == len(L) - 1 and last:
                lead = ([ds[n]] if ds[n] else []) + last
            else:
                lead = dma_slot(j, n, ds[n] is not None) + ([ds[n]] if ds[n] else [])
            S.gap(m, lead)
        if j == 5:
            stamp(2)
            if st + 3 < 8: pend += wdma(st + 3)
            if st == 6: assert len(Q) <= len(SET)
            if st == 5: pend += kdma(1) + vdma(0) + kdma(2)
            if st == 6: pend[0:0] = statld; pend += vdma(1) + kdma(3) + vdma(2)
print("fillers", NFILL, "left", len(Q), "dma left", len(pend), file=sys.stderr)
for i in range(8, 16): E(X.kread(0, i))
S.drain()
stamp(3)
for s_ in range(4):
    E("s_waitcnt lgkmcnt(0)" if s_ != 1 else "s_nop 0")
    for qb in range(4):
        b = acc(2*s_, qb); st = vG + 4*qb
        for e in range(4):
            E(f"v_pk_fma_f32 v[{b+2*e}:{b+2*e+1}], v[{vC+(s_&1)*8+2*e}:{vC+(s_&1)*8+2*e+1}], v[{st}:{st+1}], v[{b+2*e}:{b+2*e+1}] op_sel:[0,0,0] op_sel_hi:[1,0,1]")
        if qb == 3 and s_ + 2 < 4:
            for l in csread(s_ + 2): E(l)
        for e in range(4):
            E(f"v_pk_mul_f32 v[{b+2*e}:{b+2*e+1}], v[{b+2*e}:{b+2*e+1}], v[{st}:{st+1}] op_sel:[0,1] op_sel_hi:[1,1]")
        q = r.vQ + qb*16 + s_*4
        for e in range(4): E(f"v_cvt_pk_bf16_f32 v{q+e}, v{b+2*e}, v{b+2*e+1}")
        one_dma()
    for qb in range(4):
        q = r.vQ + qb*16 + s_*4
        E(f"v_permlane16_swap_b32 v{q}, v{q+2}"); E(f"v_permlane16_swap_b32 v{q+1}, v{q+3}")
plain(pend); del pend[:]
stamp(2)
Q += [f"v_mov_b32 v{r.vL+i}, 0" for i in range(16)]
for qb in range(4):
    for s_ in range(4):
        D = v(r.vS + 48 + 4*qb, 4)
        S.gap(f"{MF} {D}, {a(aWF+4*s_,4)}, {v(r.vQ+qb*16+s_*4,4)}, {'0' if s_ == 0 else D}")
    if qb == 1:
        for q2 in range(4):
            b = r.vS + 48 + 4*q2
            Q += [f"v_max3_f32 v{b}, v{b}, v{b+1}, v{b+2}", f"v_max_f32 v{b}, v{b}, v{b+3}"] + [f"v_sub_f32 v{r.vM+4*q2+e}, 0, v{b}" for e in range(4)]
            if q2 == 1: hold = len(Q)
        tail = Q[hold:]; del Q[hold:]
Q += tail
S.drain()
E("s_nop 1")
stamp(3)
NT = 32
def emit_gaps(T, lo, hi, lead, mf):
    F = X.fillers(T, NT)
    for g in range(lo, hi):
        m = mf(g)
        if m: E(m)
        for f in lead.get(g, []):
            E(f)
            if not m and f.startswith("s_add_u32 m0"): E("s_nop 0")
        fs = F[g]
        if m and T == 0 and not fs and not lead.get(g): E("s_nop 0")
        if not m and fs and fs[0].startswith("v_cvt"): E("s_nop 0")
        for f in fs: E(f)
def gapsets(lo, hi):
    F = X.fillers(1, NT)
    ex = [g for g in range(lo, hi) if g in X.isexp]
    cv = [g for g in range(lo, hi) if g not in X.isexp and F[g]]
    em = [g for g in range(lo, hi) if g not in X.isexp and not F[g]]
    return ex, cv, em
NVE = 6
def pv_part(T, dmaslot, salu):
    lead = {}
    ex, cv, em = gapsets(64, 132)
    fg = sorted(cv + em)
    late = fg[-NVE:]
    em_e = [g for g in em if g not in late]
    L = X.dma(dmaslot) if dmaslot is not None else []
    dm = [L[i] for i in (1, 2, 3, 4, 6, 7, 8, 9)] if L else []
    step = len(em_e) / 8.0
    dg = [em_e[min(len(em_e) - 1, int(i*step) + 1)] for i in range(8)] if dm else []
    assert len(set(dg)) == len(dg)
    for s_, g in zip(dm, dg): lead.setdefault(g, []).append(s_)
    kg = [g for g in fg if g not in late and g not in dg]
    if T + 1 < NT:
        assert len(kg) >= 16
        for i in range(16): lead.setdefault(kg[i], []).append(X.kread(T + 1, i))
    if L:
        for mi, first in ((0, 0), (5, 4)):
            g = max(x for x in ex if x < dg[first]); lead.setdefault(g, []).append(L[mi])
            if first: assert g > dg[3]
        after = [x for x in ex if x > dg[7]]
        sal = [f"s_add_u32 s{r.sKoff}, s{r.sKoff}, s{r.sKinc}", f"s_add_u32 s{r.sVoff}, s{r.sVoff}, s{r.sVinc}"] + list(salu)
    else:
        after = ex[-8:]; sal = list(salu)
    assert len(after) > len(sal)
    for s_, g in zip(sal, after): lead.setdefault(g, []).append(s_)
    if T < NT:
        for i, g in enumerate(late): lead.setdefault(g, []).append(X.vread(T, i))
    assert 131 not in late
    if T + 1 < NT: lead.setdefault(131, []).insert(0, f"s_waitcnt lgkmcnt({NVE})")
    emit_gaps(T, 64, 132, lead, lambda g: X.pv(T - 1, g - 64) if T >= 1 else None)
def qk_part(T, sync=True, salu=None):
    lead = {}
    if salu: lead[61] = [salu]
    ex, cv, em = gapsets(0, 64)
    fg = sorted(cv + em)
    if T >= 1:
        for i in range(NVE, 32): lead.setdefault(fg[i - NVE], []).append(X.vread(T - 1, i))
    if sync:
        bg = opt["bgap"]
        if opt["bsplit"]:
            lead.setdefault(bg - 2, []).append("s_waitcnt vmcnt(16) lgkmcnt(0)")
            lead.setdefault(bg, []).append("s_barrier")
        else:
            lead.setdefault(bg, []).append("s_waitcnt vmcnt(16) lgkmcnt(0)")
            if opt["bar"]: lead[bg].append("s_barrier")
    emit_gaps(T, 0, 64, lead, lambda g: X.qk(g) if T < NT else None)
def wpiece(n, a0):
    p = (pWg, pWu)[n]
    return f"""s_cmp_eq_u32 s{sChunk}, -1
s_cbranch_scc1 L_wp{n}
s_mul_i32 s3, s{sWave}, {128*3584}
s_lshl_b32 s67, s{sChunk}, 4
s_add_u32 s3, s3, s67
s_lshr_b32 s68, s{r.sM0K}, 1
v_mul_u32_u24 v{a0}, 3584, v0
s_add_u32 m0, s68, {0x24000 + n*0x2000}
v_add_u32 v{a0}, s3, v{a0}
global_load_lds_dwordx4 v{a0}, s[{p}:{p+1}]
s_add_u32 m0, s68, {0x24400 + n*0x2000}
v_add_u32 v{a0}, {64*3584}, v{a0}
global_load_lds_dwordx4 v{a0}, s[{p}:{p+1}]""".split("\n")
HOOK = {}
E("L_restart:")
if opt["moe"]:
    E(f"s_add_u32 s67, s{r.sM0K}, {WS_KEY}")
    pend += [f"s_add_u32 m0, s{r.sM0K}, 0x20000"] + [f"buffer_load_dwordx4 v3, s[{sW}:{sW+3}], s67 offen offset:{p*1024} sc1 lds ; keys" for p in range(4)]
pend += kdma(4) + vdma(3)
krel = sorted((48 + 4*(i >> 2) + ((3 - (i & 3)) if (i >> 2) & 1 else (i & 3)) + 1, i) for i in range(16))
vq = [X.vread(0, i) for i in range(NVE)]
ne, nc = 0, 0
for g in range(64):
    lead = []; budget = 2
    if g == 0: lead = [f"s_waitcnt vmcnt({vmn('k1', 'v0')})", "s_barrier"]
    else:
        if pend and pend[0].startswith("s_"): lead = [pend.pop(0)]
        elif pend and g % 4 == 2: lead = [pend.pop(0)]; budget = 0
        if budget:
            if vq and g < 8: lead += vq[:2]; del vq[:2]; budget = 0
            elif krel and krel[0][0] <= g and (2*nc + 2 < ne or len(krel) > 1 and krel[1][0] <= g):
                lead.append(X.kread(1, krel.pop(0)[1])); budget = 1
                if 2*nc + 2 >= ne: lead.append(X.kread(1, krel.pop(0)[1])); budget = 0
    if budget == 2 and g >= 4*(ne >> 2) + 7 and (ne - 2*nc < 5 or g >= 30):
        lead.append(X.exp(ne)); ne += 1
    else:
        while budget and 2*nc + 2 <= ne - (1 if False else 0) and nc < 30:
            lead.append(X.cvt(0, 2*nc + 1)); nc += 1; budget -= 1
    if not lead: lead = ["s_nop 0"]
    E(X.qk(g))
    for l in lead: E(l)
print("period0: exps", ne, "cvts", nc, "pend", len(pend), "krel", len(krel), "vq", len(vq), file=sys.stderr)
for _, i in krel: E(X.kread(1, i))
assert not vq and not pend
while ne < 61 or nc < 30:
    if 2*nc + 2 < ne or ne == 61: Q.append(X.cvt(0, 2*nc + 1)); nc += 1
    else: Q.append(X.exp(ne)); ne += 1
S.drain()
E("s_waitcnt lgkmcnt(0)")
if opt["moe"]: assert S.vmn("keys") >= 8
assert S.vmn("k2", "v1") >= 16
r.vVDl = [20, 21, 1, 2]
stamp(3)
A.raw(".p2align 6")
for _ in range(opt["pad"]): E("s_nop 0")
A.label("L_loop")
for u in range(1, 5):
    qk_part(u, salu=(f"s_cmp_eq_u32 s{r.sIt}, 7" if u == 3 else None))
    if u == 3: E("s_cbranch_scc1 L_tail")
    sal = []
    if u == 2: sal = [f"s_bitcmp1_b32 s{sMask2}, s{r.sIt}"]
    if u == 3: sal = [f"s_cmp_eq_u32 s{r.sIt}, 6"]
    if u == 4: sal = [f"s_add_u32 s{r.sIt}, s{r.sIt}, 1", f"s_bitcmp1_b32 s{sMask4}, s{r.sIt}"]
    pv_part(u, None if opt["nodma"] else u & 3, sal)
    if u == 2: E("s_cbranch_scc1 L_disp2"); E("L_ret2:")
    if u == 3: E("s_cbranch_scc1 L_hook27"); E("L_ret3:")
E("s_cbranch_scc0 L_loop")
def wo_voff(dst):
    return f"""v_lshrrev_b32 v60, 3, v0
v_and_b32 v61, 7, v0
v_lshrrev_b32 v62, 1, v60
v_lshlrev_b32 v62, 1, v62
v_xor_b32 v62, v62, v61
v_lshlrev_b32 v62, 4, v62
v_lshl_add_u32 v{dst[0]}, v60, 10, v62""".split("\n") + [f"v_add_u32 v{dst[p]}, {7168*p}, v{dst[0]}" for p in range(1, 4)]
HOOK[27] = wo_voff([r.vKD + p for p in range(4)]) + [f"s_mov_b32 s{sK}, s{sWq}", f"s_mov_b32 s{sK+1}, s{sWq+1}", f"s_mov_b32 s{sK+2}, s{sWq+2}",
            f"s_mov_b32 s{r.sKoff}, 0", f"s_mov_b32 s{r.sKinc}, 0x8000"]
HOOK[28] = [f"v_mov_b32 v{r.vVDl[p]}, v{r.vKD+p}" for p in range(4)] + [f"s_mov_b32 s{sV}, s{sWq}", f"s_mov_b32 s{sV+1}, s{sWq+1}", f"s_mov_b32 s{sV+2}, s{sWq+2}",
            f"s_mov_b32 s{r.sVoff}, 0x10000", f"s_mov_b32 s{r.sKinc}, 0x10000", f"s_mov_b32 s{r.sVinc}, 0x10000"]
def H(T, txt): HOOK.setdefault(T, []).extend(l.strip() for l in txt.strip().split("\n") if l.strip())
SEL = [4, 5, 6, 7, 42, 43, 48, 49]; sSelMine = 66
TF, TP = opt['TF'], opt['TP']
NLOG2E = fbits(-1.4426950408889634)
if opt["moe"]:
    KQ = [128 + 4*n for n in range(15)] + [224]
    chk = ["v_mov_b32 v228, 0"] + [f"v_bitop3_b32 v228, v228, v{q+2}, s{sNonce} bitop3:0xf6" for q in KQ] + ["v_cmp_ne_u32 vcc, 0, v228"]
    H(2, "v_add_u32 v229, 0x20000, v3")
    HOOK[2] += [f"ds_read_b128 {v(q,4)}, v229 offset:{n*1024}" for n, q in enumerate(KQ)] + wpiece(0, 230) + ["L_wp0:", "s_waitcnt lgkmcnt(0)"] + chk
    H(2, f"""s_cbranch_vccnz L_key_retry
    L_key_ok:
    v_max_u32 v228, v{KQ[0]}, v{KQ[0]+1}""")
    HOOK[2] += [f"v_max3_u32 v228, v228, v{q}, v{q+1}" for q in KQ[1:]]
    H(2, f"""v_cmp_lt_u32 vcc, s{sKey0}, v228
    s_bcnt1_i32_b64 s3, vcc
    v_cmp_lt_u32 vcc, s{sKey0+1}, v228
    s_bcnt1_i32_b64 s67, vcc
    s_min_u32 s3, s3, s67
    s_cmp_lt_u32 s3, 8
    s_cbranch_scc1 L_rank
    L_rank_done:""")
    cold += ["L_key_retry:"] + spin("", "L_key_ok")
    for n, q in enumerate(KQ):
        if n % 4 == 0: cold += [f"s_mov_b32 s3, {WS_KEY + n*1024}"]
        cold += [f"buffer_load_dwordx4 {v(q,4)}, v3, s[{sW}:{sW+3}], s3 offen offset:{(n%4)*1024} sc1"]
    cold += ["s_waitcnt vmcnt(0)"] + chk + ["s_cbranch_vccnz L_key_retry", "s_branch L_key_ok"]
    cold += ["L_rank:", "s_mov_b32 s4, 0", "L_rank_row:", "s_mov_b32 s68, 0"]
    for q in KQ:
        for e in range(2): cold += [f"v_cmp_lt_u32 vcc, s{sKey0}, v{q+e}", "s_bcnt1_i32_b64 s3, vcc", "s_add_u32 s68, s68, s3"]
    cold += f"""s_cmp_ge_u32 s68, 8
s_cbranch_scc1 L_rank_next
s_not_b32 s3, s{sKey0}
s_xor_b32 s67, s{sKey0}, 0x80000000
s_bitcmp1_b32 s{sKey0}, 31
s_cselect_b32 s3, s67, s3
s_and_b32 s3, s3, 0xffff0000
v_mov_b32 v230, {NLOG2E}
v_mul_f32 v230, s3, v230
v_exp_f32 v230, v230
s_add_u32 s67, s{sRow0}, s4
v_add_f32 v230, 1.0, v230
v_rcp_f32 v230, v230
s_lshl_b32 s68, s68, 3
v_cvt_pk_bf16_f32 v230, v230, v230
v_and_b32 v230, 0xffff0000, v230
v_or_b32 v230, s67, v230
v_mov_b32 v231, s{sNonce}
s_add_u32 s68, s68, {WS_SEL}
s_mov_b64 exec, 1
buffer_store_dwordx2 v[230:231], off, s[{sW}:{sW+3}], s68 sc1
s_mov_b64 exec, -1
L_rank_next:
s_mov_b32 s{sKey0}, s{sKey0+1}
s_add_u32 s4, s4, 1
s_cmp_lt_u32 s4, 2
s_cbranch_scc1 L_rank_row
s_branch L_rank_done""".split("\n")
    selld = f"buffer_load_dwordx2 v[60:61], v128, s[{sW}:{sW+3}], 0 offen sc1"
    seladdr = ["v_and_b32 v128, 7, v0", "v_lshlrev_b32 v128, 3, v128", f"v_add_u32 v128, {WS_SEL}, v128"]
    HOOK[4] = seladdr + [selld]
    HOOK[4] += wpiece(1, 128)
    H(4, f"""v_lshrrev_b32 v130, 4, v0
    v_and_b32 v131, 15, v0
    v_lshlrev_b32 v131, 4, v131
    v_lshl_add_u32 v130, v130, 10, v131
    s_lshl_b32 s3, s{sChunk}, 13
    s_lshl_b32 s67, s{sWave}, 8
    s_add_u32 s3, s3, s67
    v_add_u32 v130, s3, v130
    s_add_u32 m0, s68, 0x22000
    v_add_u32 v131, 4096, v130
    global_load_lds_dwordx4 v130, s[{pWd}:{pWd+1}]
    s_add_u32 m0, s68, 0x22400
    s_nop 0
    global_load_lds_dwordx4 v131, s[{pWd}:{pWd+1}]
    L_wp1:""")
    H(6, f"""s_waitcnt vmcnt(16)
    v_cmp_ne_u32 vcc, s{sNonce}, v61
    s_cbranch_vccnz L_sel_retry
    L_sel_ok:
    s_and_b32 s3, s2, 1
    s_lshl_b32 s3, s3, 2
    s_add_u32 s3, s3, s{sWave}
    v_and_b32 v128, 0xffff, v60
    v_readlane_b32 s{sSelMine}, v60, s3""")
    HOOK[6] += [f"v_readlane_b32 s{SEL[t]}, v128, {t}" for t in range(8)]
    H(6, f"""v_lshrrev_b32 v129, 4, v0
    v_bfe_u32 v130, v0, 3, 1
    v_lshlrev_b32 v129, 4, v129
    v_lshl_add_u32 v129, v130, 6, v129
    v_lshl_add_u32 v128, v128, 10, v129
    s_lshl_b32 s3, s{sWave}, 8
    s_add_u32 s3, s3, {WS_XN}
    s_lshr_b32 s68, s{r.sM0K}, 1
    s_add_u32 m0, s68, 0x20000
    s_add_u32 s67, s3, 128
    buffer_load_dwordx4 v128, s[{sW}:{sW+3}], s3 offen sc1 lds
    s_add_u32 m0, s68, 0x20400
    s_nop 0
    buffer_load_dwordx4 v128, s[{sW}:{sW+3}], s67 offen sc1 lds""")
    cold += ["L_sel_retry:"] + spin("", "L_sel_ok") + seladdr + [selld, "s_waitcnt vmcnt(0)", f"v_cmp_ne_u32 vcc, s{sNonce}, v61",
             "s_cbranch_vccnz L_sel_retry", "s_branch L_sel_ok"]
    H(8, f"""s_cmp_eq_u32 s{sChunk}, -1
    s_cbranch_scc1 L_h8_done
    s_lshr_b32 s68, s{r.sM0K}, 1
    v_lshrrev_b32 v224, 4, v0
    v_and_b32 v225, 15, v0
    v_lshrrev_b32 v226, 2, v225
    v_and_b32 v227, 3, v0
    v_lshl_add_u32 v228, v224, 3, v226
    v_lshlrev_b32 v228, 4, v228
    v_and_b32 v229, 1, v0
    v_lshl_add_u32 v228, v229, 3, v228
    v_bfe_u32 v229, v0, 1, 1
    v_lshl_add_u32 v228, v229, 13, v228
    s_add_u32 s3, s68, 0x24000
    v_add_u32 v228, s3, v228
    v_and_b32 v229, 0x37, v0
    s_add_u32 s3, s68, 0x20000
    v_lshl_add_u32 v229, v229, 4, s3
    v_lshl_add_u32 v230, v224, 1, v226
    v_and_b32 v230, 7, v230
    v_lshlrev_b32 v230, 8, v230
    v_lshl_add_u32 v230, v227, 3, v230
    s_add_u32 s67, s68, 0x22000
    v_add_u32 v230, s67, v230
    STAMP
    s_waitcnt vmcnt(16)
    STAMP""")
    for ks in range(4):
        HOOK[8] += [f"ds_read_b64_tr_b16 v[{128+4*ks}:{129+4*ks}], v228 offset:{ks*512}", f"ds_read_b64_tr_b16 v[{130+4*ks}:{131+4*ks}], v228 offset:{ks*512+64}",
                    f"ds_read_b128 {v(144+4*ks,4)}, v229 offset:{(ks>>1)*1024 + (ks&1)*128}"]
    H(8, f"""v_lshl_add_u32 v231, v0, 4, s3
    v_lshrrev_b32 v232, 1, v224
    v_lshl_add_u32 v232, v232, 4, v225
    v_lshlrev_b32 v232, 4, v232
    v_and_b32 v233, 1, v224
    v_lshl_add_u32 v232, v233, 3, v232
    v_add_u32 v232, 0x20000, v232
    s_waitcnt lgkmcnt(0)""")
    for ks in range(4): HOOK[8] += [f"{MF} v[160:163], {v(128+4*ks,4)}, {v(144+4*ks,4)}, {'0' if ks == 0 else 'v[160:163]'}"]
    HOOK[8] += [f"ds_read_b64_tr_b16 v[{164+2*nb}:{165+2*nb}], v230 offset:{nb*32}" for nb in range(8)]
    H(8, f"""ds_write_b128 v231, v[160:163]
    s_waitcnt lgkmcnt(0)
    STAMP
    s_barrier
    STAMP""")
    for src in range(4):
        HOOK[8] += [f"ds_read_b64 v[{128+4*src}:{129+4*src}], v232 offset:{src*2048}", f"ds_read_b64 v[{130+4*src}:{131+4*src}], v232 offset:{src*2048+512}"]
    H(8, f"""v_and_b32 v233, 7, v0
    v_lshlrev_b32 v233, 4, v233
    v_lshl_add_u32 v233, v224, 7, v233
    v_lshrrev_b32 v234, 3, v225
    v_lshl_add_u32 v233, v234, 9, v233
    v_cmp_eq_u32 vcc, 0, v234
    s_lshl_b32 s3, s{sChunk}, 14
    s_add_u32 s3, s3, s{r.sM0K}
    s_add_u32 s3, s3, {WS_PART}
    v_mov_b32 v145, 0
    v_mov_b32 v147, 0
    s_waitcnt lgkmcnt(0)""")
    for e in range(4): HOOK[8] += [f"v_add_f32 v{128+e}, v{128+e}, v{132+e}", f"v_add_f32 v{136+e}, v{136+e}, v{140+e}"]
    for e in range(4): HOOK[8] += [f"v_add_f32 v{128+e}, v{128+e}, v{136+e}"]
    H(8, f"""v_cvt_pk_bf16_f32 v132, v128, v129
    v_cvt_pk_bf16_f32 v133, v130, v131""")
    HOOK[8] += unpack(128, 132, 2)
    H(8, f"""v_mul_f32 v132, {NLOG2E}, v128
    v_mul_f32 v133, {NLOG2E}, v129
    v_exp_f32 v132, v132
    v_exp_f32 v133, v133
    v_add_f32 v132, 1.0, v132
    v_add_f32 v133, 1.0, v133
    v_rcp_f32 v132, v132
    v_rcp_f32 v133, v133
    v_mul_f32 v128, v128, v132
    v_mul_f32 v129, v129, v133
    v_cvt_pk_bf16_f32 v132, v128, v129
    v_lshlrev_b32 v128, 16, v132
    v_and_b32 v129, 0xffff0000, v132
    v_mul_f32 v128, v128, v130
    v_mul_f32 v129, v129, v131
    v_cvt_pk_bf16_f32 v146, v128, v129
    v_cndmask_b32 v144, 0, v146, vcc
    v_cndmask_b32 v146, v146, 0, vcc
    s_nop 1""")
    for j in range(4):
        HOOK[8] += [f"v_mfma_f32_16x16x16_bf16 {v(128+4*j,4)}, v[{164+4*j}:{165+4*j}], v[144:145], 0",
                    f"v_mfma_f32_16x16x16_bf16 {v(128+4*j,4)}, v[{166+4*j}:{167+4*j}], v[146:147], {v(128+4*j,4)}"]
    H(8, "STAMP\ns_nop 4")
    for j in range(4): HOOK[8] += [f"buffer_store_dwordx4 {v(128+4*j,4)}, v233, s[{sW}:{sW+3}], s3 offen offset:{j*1024} sc1"]
    H(8, "s_nop 0\nL_h8_done:")
    H(TF, f"""s_cmp_eq_u32 s{sChunk}, -1
    s_cbranch_scc1 L_h10_done
    s_lshl_b32 s3, s{sWave}, 8
    s_add_u32 s3, s3, s{sChunk}
    s_lshl_b32 s3, s3, 2
    s_add_u32 s3, s3, {WS_FC}
    v_mov_b32 v128, s{sNonce}
    s_waitcnt vmcnt(16)
    s_mov_b64 exec, 1
    buffer_store_dword v128, off, s[{sW}:{sW+3}], s3 sc1
    s_mov_b64 exec, -1
    L_h10_done:""")
    fcaddr = ["v_min_u32 v128, 55, v0", "v_lshlrev_b32 v128, 4, v128", "s_lshr_b32 s3, s2, 6", "s_lshl_b32 s3, s3, 10", f"s_add_u32 s3, s3, {WS_FC}"]
    fcld = f"buffer_load_dwordx4 v[60:63], v128, s[{sW}:{sW+3}], s3 offen sc1"
    fcchk = [f"v_xor_b32 v129, s{sNonce}, v60"] + [f"v_bitop3_b32 v129, v129, v{61+e}, s{sNonce} bitop3:0xf6" for e in range(3)] + ["v_cmp_ne_u32 vcc, 0, v129"]
    HOOK.setdefault(TP, []).extend(fcaddr + [fcld])
    HOOK.setdefault(TP + 2, []).extend(["s_waitcnt vmcnt(16)"] + fcchk)
    H(TP + 2, f"""s_cbranch_vccnz L_fc_retry
    L_fc_ok:
    v_lshrrev_b32 v128, 2, v0
    v_and_b32 v129, 3, v0
    v_lshlrev_b32 v129, 4, v129
    v_lshl_add_u32 v128, v128, 14, v129
    s_lshl_b32 s3, s2, 6
    s_lshl_b32 s67, s{sWave}, 18
    s_add_u32 s3, s3, s67
    s_add_u32 s3, s3, {WS_PART}
    s_lshr_b32 s68, s{r.sM0K}, 2""")
    for k in range(4):
        HOOK[TP + 2] += [f"s_add_u32 m0, s68, {0x20000 + k*4096}", f"s_add_u32 s67, s3, {k << 20}"]
        if k == 3: HOOK[TP + 2] += [f"s_cmp_lt_u32 s{sWave}, 2", "s_cselect_b32 s67, s67, 0x40000000"]
        HOOK[TP + 2] += [f"buffer_load_dwordx4 v128, s[{sW}:{sW+3}], s67 offen sc1 lds"]
    cold += ["L_fc_retry:"] + spin("", "L_fc_ok") + fcaddr + [fcld, "s_waitcnt vmcnt(0)"] + fcchk + ["s_cbranch_vccnz L_fc_retry", "s_branch L_fc_ok"]
    H(TP + 5, f"""s_cmp_lg_u32 s{sFb}, 0
    s_cbranch_scc1 L_s4_done
    s_lshl_b32 s3, s{sWave}, 4
    s_add_u32 s3, s3, 0x20000
    v_lshl_add_u32 v144, v0, 6, s3""")
    HOOK[TP + 5] += [f"ds_read_b128 {v(128+4*k,4)}, v144 offset:{k*4096}" for k in range(4)]
    H(TP + 5, f"""s_and_b32 s3, s2, 1
    s_lshl_b32 s3, s3, 2
    s_add_u32 s3, s3, s{sWave}
    s_lshl_b32 s3, s3, 7
    s_lshr_b32 s67, s2, 1
    s_add_u32 s3, s3, s67
    s_lshl_b32 s3, s3, 4
    s_add_u32 s3, s3, {WS_UPD}
    s_and_b32 s67, s{sSelMine}, 0xffff0000
    s_waitcnt lgkmcnt(0)""")
    for e in range(4): HOOK[TP + 5] += [f"v_add_f32 v{128+e}, v{128+e}, v{132+e}", f"v_add_f32 v{136+e}, v{136+e}, v{140+e}"]
    for e in range(4): HOOK[TP + 5] += [f"v_add_f32 v{128+e}, v{128+e}, v{136+e}"]
    for tup in zip(*[wave_sum(128 + e, 0)[:-1] for e in range(4)]): HOOK[TP + 5] += list(tup)
    H(TP + 5, "v_cvt_pk_bf16_f32 v132, v128, v129\nv_cvt_pk_bf16_f32 v133, v130, v131")
    HOOK[TP + 5] += unpack(128, 132, 2) + [f"v_mul_f32 v{128+e}, s67, v{128+e}" for e in range(4)]
    H(TP + 5, f"""v_cvt_pk_bf16_f32 v132, v128, v129
    v_cvt_pk_bf16_f32 v133, v130, v131
    v_mov_b32 v134, s{sNonce}
    v_mov_b32 v135, s{sNonce}
    s_lshl_b64 exec, 1, 63
    buffer_store_dwordx4 v[132:135], off, s[{sW}:{sW+3}], s3 sc1
    s_mov_b64 exec, -1
    L_s4_done:""")
if opt["moeT"] < 18:
    for T in (2, 4, 6, 8, TF, TP, TP + 2, TP + 5):
        if T > opt["moeT"]:
            HOOK[T] = [l for l in HOOK[T] if l.endswith(":")]
    opt["moe"] = 0
if opt["wtouch"]:
    for n, T in enumerate(eval(opt_s["wT"])):
        if opt["varb"]:
            HOOK.setdefault(T, []).extend(["s_and_b32 s3, s2, 0xf8", "s_lshl_b32 s3, s3, 1", f"s_lshl_b32 s67, s{sWave}, 10", "s_add_u32 s3, s3, s67", f"s_add_u32 s3, s3, {512*n}",
                "s_lshl_b32 s3, s3, 1", "s_and_b32 s67, s2, 1", "s_add_u32 s3, s3, s67", "s_lshl_b32 s3, s3, 9",
                "v_lshrrev_b32 v180, 2, v0", "v_and_b32 v181, 3, v0", "v_lshlrev_b32 v181, 7, v181", "v_lshl_add_u32 v180, v180, 10, v181",
                "v_add_u32 v180, s3, v180", f"global_load_dword v23, v180, s[{pWo}:{pWo+1}]"])
        else:
            HOOK.setdefault(T, []).extend(["s_and_b32 s3, s2, 0xf8", f"s_lshl_b32 s67, s{sWave}, 10", "s_add_u32 s3, s3, s67", f"s_add_u32 s3, s3, {256*n}", "s_lshl_b32 s3, s3, 10",
                "v_lshl_add_u32 v180, v0, 7, s3", f"global_load_dword v23, v180, s[{pWo}:{pWo+1}]"])
if opt["stamp"] & 8:
    Ts = eval(opt_s["hs"])
    def st_(i): return [f"{CLK} s[{70+2*i}:{71+2*i}]", "s_waitcnt lgkmcnt(0)"]
    i = 1
    for T in Ts:
        body = []
        for l in HOOK[T]:
            if l.startswith("STAMP"):
                body += st_(i + 1); i += 1
            else: body.append(l)
        k = sum(l.startswith("STAMP") for l in HOOK[T])
        HOOK[T] = st_(i - k) + body + st_(i + 1); i += 2
    nstamp[0] = i
for T in HOOK: HOOK[T] = [l for l in HOOK[T] if not l.startswith("STAMP")]
def emit_hooks():
    msk = {}
    for site in (4, 2):
        Ts = sorted(T for T in HOOK if T % 4 == site % 4)
        msk[site] = sum(1 << (T // 4) for T in Ts)
        E(f"L_disp{site}:")
        first = min(HOOK)
        for T in Ts:
            if site == 2 and T == first: continue
            if T == Ts[-1] and not (site == 2 and first in Ts): E(f"s_branch L_hook{T}")
            else: E(f"s_cmp_eq_u32 s{r.sIt}, {T // 4}"); E(f"s_cbranch_scc1 L_hook{T}")
        if not Ts: E("s_branch " + ("L_ret2" if site == 2 else "L_loop"))
    for T in sorted(HOOK):
        E(f"L_hook{T}:")
        for l in HOOK[T]: E(l)
        E("s_branch " + {2: "L_ret2", 3: "L_ret3", 0: "L_loop"}[T % 4])
    return msk[2], msk[4]
m2, m4 = emit_hooks()
A.label("L_tail")
S.vm[:] = ["wo0"]*4 + ["v31"]*4 + [f"wo{k}" for k in range(1, 5) for _ in range(4)]
sOoff = 63
vWo, vWr, vOq, vFl = r.vKD, 48, 4, 44
VA, VB, VC, AA, AB, AC, AD = ("v", 64), ("v", 128), ("v", 192), ("a", 0), ("a", 64), ("a", 128), ("a", 192)
def blk(B, off, n): return (v if B[0] == "v" else a)(B[1] + off, n)
WBLK = [VA, AA, AD, VC]; ACC = AC
NU = 10
UNIT = [0, 1, 5, 2, 6, 3, 7, 8, 4, 9]
def wo_dma(kk):
    L = [f"s_add_u32 m0, s{r.sM0K}, {UNIT[kk % NU]*16384}"]
    L += [f"buffer_load_dwordx4 v{vWo+p}, s[{sWq}:{sWq+3}], s{sWoff} offen offset:{p*1024} lds ; wo{kk}" for p in range(4)]
    L += [f"s_add_u32 s{sWoff}, s{sWoff}, 0x8000"]
    return L
def wo_reads(kk):
    u = UNIT[kk % NU]; B = WBLK[(kk >> 2) & 3]
    return [f"ds_read_b64_tr_b16 {blk(B, (nb*4 + (kk & 3))*4 + 2*half, 2)}, v{vWr + 4*(u >> 2) + nb} offset:{(u & 3)*16384 + half*2048} ; r{kk}"
            for nb in range(4) for half in range(2)]
OBUF = [("a", 64), ("a", 80), ("a", 96), ("a", 112), ("v", 128), ("v", 144)][:opt["look"] + 1]
def o_loads(z):
    B = OBUF[z % len(OBUF)]
    L = [f"buffer_load_dwordx4 {blk(B, i*4, 4)}, v{vOq+(z&3)}, s[{sW}:{sW+3}], s{sOoff} offen offset:{i*1024} sc1 ; o{z}" for i in range(4)]
    return L + (o_next() if z & 3 == 3 else [])
def o_next(): return [f"s_add_u32 s{sOoff}, s{sOoff}, 0x1000"]
assert opt["look"] == 3
L_ = r.vL
vXo, vXr, vGf, vSt = 45, 144, 176, 46
vU, vRow, vSa, vC3, vUa, vUt, vT, vN = 160, 152, 153, 154, 155, 156, 157, 158
setup1 = f"""s_mov_b32 s{sWoff}, {5*0x8000}
s_lshl_b32 s3, s{sQb}, 2
s_add_u32 s3, s3, s{sWave}
s_lshl_b32 s69, s3, 5
s_add_u32 s69, s69, s{sHead}
s_lshl_b32 s69, s69, 7
s_add_u32 s69, s69, {WS_FLAG}
s_lshl_b32 s3, s3, 7
s_add_u32 s3, s3, s{sHead}
s_lshl_b32 s68, s3, 12
s_lshl_b32 s{sOoff}, s{sQt}, 19
s_lshl_b32 s3, s{sWave}, 15
s_add_u32 s{sOoff}, s{sOoff}, s3""".split("\n")
setupO = [f"v_mov_b32 v{vOq}, v3"] + [f"v_add_u32 v{vOq+qb}, {qb*0x20000}, v3" for qb in range(1, 4)]
setup2 = f"""v_lshrrev_b32 v1, 4, v0
v_and_b32 v2, 15, v0
v_and_b32 v9, 7, v0
v_lshrrev_b32 v8, 2, v2
v_lshl_add_u32 v8, v1, 2, v8
v_bfe_u32 v10, v8, 1, 2
v_lshlrev_b32 v8, 7, v8
v_and_b32 v{vC3}, 3, v0
v_lshl_add_u32 v8, v{vC3}, 3, v8
v_add_u32 v8, s{r.sM0K}, v8""".split("\n")
for nb in range(4):
    setup2 += [f"v_xor_b32 v11, {nb}, v10", f"v_lshl_add_u32 v{vWr+nb}, v11, 5, v8",
               f"v_add_u32 v{vWr+4+nb}, 0x10000, v{vWr+nb}", f"v_add_u32 v{vWr+8+nb}, 0x20000, v{vWr+nb}"]
setup2 += [f"s_lshl_b32 s3, s{sQt}, 5", f"s_lshl_b32 s67, s{sWave}, 3", "s_add_u32 s3, s3, s67", "v_add_u32 v9, s3, v9",
           f"v_lshlrev_b32 v{vFl}, 7, v9", f"v_add_u32 v{vFl}, {WS_FLAG}, v{vFl}",
           f"s_lshl_b32 s3, s{sWave}, 2", "s_add_u32 s3, s3, 0x24000", f"v_lshl_add_u32 v192, v{vC3}, 12, s3",
           f"s_add_u32 s3, s{r.sM0K}, 0x24000", "v_mov_b32 v193, s3"]
FS = f"""s_lshl_b32 s3, s{sQt}, 2
s_add_u32 s3, s3, s{sWave}
s_lshl_b32 s3, s3, 4
v_lshrrev_b32 v{vRow}, 2, v0
v_add_u32 v{vRow}, s3, v{vRow}
v_lshlrev_b32 v{vSa}, 3, v{vRow}
v_add_u32 v{vSa}, {WS_STAT}, v{vSa}
s_lshl_b32 s3, s{sNt}, 7
v_lshl_add_u32 v{vT}, v{vC3}, 5, s3
v_lshl_add_u32 v{vXo}, v{vRow}, 10, v{vT}
v_mov_b32 v{vN}, s{sNonce}
global_load_dwordx4 v[{vXr}:{vXr+3}], v{vXo}, s[{pX}:{pX+1}] ; xf
global_load_dwordx4 v[{vXr+4}:{vXr+7}], v{vXo}, s[{pX}:{pX+1}] offset:16 ; xf
buffer_load_dwordx2 v[{vSt}:{vSt+1}], v{vSa}, s[{sW}:{sW+3}], 0 offen sc1 ; xf""".split("\n")
updld = [f"buffer_load_dwordx4 {v(vU+4*k,4)}, v{vUa}, s[{sW}:{sW+3}], s67 offen offset:{16*k} sc1" for k in range(4)] if opt["moe"] else []
updchk = [f"v_xor_b32 v{vT}, s{sNonce}, v{vSt+1}"]
FU = []
if opt["moe"]:
    FU += [f"v_mov_b32 v{vUa}, 0x200000"]
    for t_ in range(8): FU += [f"v_cmp_eq_u32 vcc, s{SEL[t_]}, v{vRow}", f"v_mov_b32 v{vT}, {t_*32}", f"v_cndmask_b32 v{vUa}, v{vUa}, v{vT}, vcc"]
    FU += f"""v_cmp_gt_u32 vcc, 0x1000, v{vUa}
v_add_u32 v{vUa}, v{vUa}, v{vC3}
v_lshlrev_b32 v{vUa}, 6, v{vUa}
v_cndmask_b32 v{vUt}, 0, v{vN}, vcc
v_mov_b32 v{vT}, 0x40000000
v_cndmask_b32 v{vUa}, v{vT}, v{vUa}, vcc
s_lshl_b32 s67, s{sNt}, 8
s_add_u32 s67, s67, {WS_UPD}""".split("\n") + [l + " ; xf" for l in updld]
    updchk += [f"v_bitop3_b32 v{vT}, v{vT}, v{vU+4*k+2}, v{vUt} bitop3:0xf6" for k in range(4)]
updchk += [f"v_cmp_ne_u32 vcc, 0, v{vT}"]
def pv2(T, qb, db, ks):
    base = r.aV if T == 30 else r.aK
    D = a(r.aO + qb*32 + db*4, 4)
    return f"{MF} {D}, {a(base+4*(ks*8+db),4)}, {v(r.vP+(T&1)*32+qb*8+ks*4,4)}, {D}"
def v31(i): return X.vread(31, i).replace(a(r.aV + 4*(((i >> 1) & 1)*8 + (i >> 2)) + 2*(i & 1), 2), a(r.aK + 4*(((i >> 1) & 1)*8 + (i >> 2)) + 2*(i & 1), 2)) + f" ; v31_{i >> 2}"
nst = [0]
def epi(qb):
    L = []
    for i4 in range(4):
        t = r.vS; o = r.vS + 8 + (nst[0] & 1)*4; nst[0] += 1
        L += [f"v_accvgpr_read_b32 v{t+e}, a{r.aO+qb*32+8*i4+e}" for e in range(8)]
        L += [f"v_mul_f32 v{t+e}, v{60+qb}, v{t+e}" for e in range(8)]
        L += [f"v_cvt_pk_bf16_f32 v{o+e}, v{t+2*e}, v{t+2*e+1}" for e in range(4)]
        L += [f"buffer_store_dwordx4 {v(o,4)}, v{vOq+qb}, s[{sW}:{sW+3}], s68 offen offset:{i4*1024} sc1 ; ost"]
    return L
def smx(lo, hi):
    L = []
    for k in range(lo, hi):
        L.append(X.exp(k))
        if k % 2 == 0 and k > lo: L.append(X.cvt(31, k - 1))
    return L + [X.cvt(31, hi - 1)]
def rsum(qb): return [f"v_add_f32 v{L_+4*qb}, v{L_+4*qb}, v{L_+4*qb+1}", f"v_rcp_f32 v{60+qb}, v{L_+4*qb}"]
def dmaf(kk):
    L = wo_dma(kk)
    return [[L[0], "s_nop 0", L[1]], L[2], L[3], [L[4], L[5]]]
def weave(*lists):
    items = sorted(((i + 0.5) / len(L), n, i) for n, L in enumerate(lists) if L for i in range(len(L)))
    return [lists[n][i] for _, n, i in items]
def qcost(): return sum(len(f) if isinstance(f, list) else (1 if callable(f) else (0 if f.endswith(":") else S.cost(f))) for f in Q)
def chains(CH):
    for c, ch in enumerate(CH):
        for n, m in enumerate(ch):
            if n < len(ch) - 1: S.gap(m)
            else:
                left = len(CH) - c
                small = sum(2*(len(x) - 1) for x in CH[c+1:])
                S.gap(m, budget=max(2, -(-(qcost() - small*3//4) // left)), big=True)
    S.drain()
eg = X.sched()
assert eg[27] == 63
seq = [pv2(30, 0, j >> 1, (j & 1) ^ ((j >> 1) & 1)) for j in range(16)] + [X.pv(30, 16)]
su = list(setup1)
for n, m in enumerate(seq):
    E(m)
    if su: E(su.pop(0))
    if n < 16: E(v31(2*n)); E(v31(2*n + 1))
    else: E(X.cvt(31, 27)); E(setupO[0])
Q += smx(28, 32) + setupO[1:] + [None]
for n, m in enumerate([X.pv(31, 16)] + [pv2(31, 0, j >> 1, (j & 1) ^ ((j >> 1) & 1)) for j in range(16)]):
    lead = []
    if n in (0, 4, 8): lead = [f"s_waitcnt lgkmcnt({S.lgn('v31_' + str({0: 1, 4: 3, 8: 7}[n]))})"]
    if n == 9: Q.pop(); Q += rsum(0) + dmaf(5)
    S.gap(m, lead)
carry = list(Q); del Q[:]
def qchains(qb):
    CH = [[X.pv(30, 17*qb + 16), X.pv(31, 17*qb + 16)]]
    for db in range(8):
        o = [(30, 0), (30, 1), (31, 0), (31, 1)]
        CH.append([pv2(T, qb, db, ks) for T, ks in (o[::-1] if db & 1 else o)])
    return CH
Q += carry + weave(epi(0), smx(32, 48), dmaf(6)) + rsum(1)
chains(qchains(1))
Q += weave(epi(1), smx(48, 64) + setup2[-5:-5], dmaf(7), setup2) + rsum(2)
chains(qchains(2))
e2 = epi(2)
vote = rsum(3) + [f"v_add_f32 v194, v{L_}, v{L_+4}", f"v_add_f32 v195, v{L_+8}, v{L_+12}", "v_add_f32 v194, v194, v195",
        f"v_cmp_ngt_f32 vcc, {'0' if opt['forcefb'] else '0x5f800000'}, v194", "s_or_b32 s3, vcc_lo, vcc_hi", "v_mov_b32 v194, s3", "ds_write_b32 v192, v194"]
def wrd(kk): return [lambda: f"s_waitcnt vmcnt({S.vmn(f'wo{kk}')})"] + [list(p) for p in zip(wo_reads(kk)[0::2], wo_reads(kk)[1::2])]
Q += e2[:10] + vote + e2[10:30] + [["s_waitcnt lgkmcnt(0)", "s_barrier", "ds_read_b128 v[196:199], v193"]] + weave(e2[30:52], dmaf(8)) + \
     ["s_waitcnt lgkmcnt(0)", "v_or3_b32 v196, v196, v197, v198", "v_or_b32 v196, v196, v199", "v_cmp_ne_u32 vcc, 0, v196", "s_cbranch_vccnz L_fallback", "L_safe:"] + \
     weave(e2[52:], FS, wrd(0) + wrd(1))
chains(qchains(3))
stamp(1)
Q += weave(epi(3), dmaf(9), wrd(2) + wrd(3) + wrd(4) + wrd(5))
S.drain()
stamp(1)
NPRE = opt["npre"]
nextrd = [6]; nextdma = [NU]
def stage(nops, filler=()):
    filler = list(filler)
    per = -(-len(filler) // max(1, nops))
    for _ in range(nops):
        if not any(l.startswith("buffer") for l in pend):
            if nextdma[0] >= NPRE: break
            kk = nextdma[0]
            if nextrd[0] < min(16, kk - NU + 3):
                k2 = nextrd[0]
                E(f"s_waitcnt vmcnt({vmn(f'wo{k2}')})")
                for l in wo_reads(k2): E(l)
                nextrd[0] += 1
            E(f"s_waitcnt lgkmcnt({S.lgn(f'r{kk-NU}')})")
            pend.extend(wo_dma(kk)); nextdma[0] += 1
        one_dma()
        for f in filler[:per]:
            while not S.ok(f): E("s_nop 0")
            E(f)
        del filler[:per]
    for f in filler:
        while not S.ok(f): E("s_nop 0")
        E(f)
stage(opt["npost"], FU)
M(f"""
s_waitcnt vmcnt({S.vmn('ost')})
s_mov_b64 exec, 1
buffer_store_dword v{vN}, off, s[{sW}:{sW+3}], s69 sc1 ; flag
s_mov_b64 exec, -1
""")
stamp(1)
nleft = (NPRE - nextdma[0])*4 + sum(l.startswith("buffer") for l in pend)
stage(nleft - opt["pollat"])
E(f"buffer_load_dword v2, v{vFl}, s[{sW}:{sW+3}], 0 offen sc1 ; poll")
stage(opt["pollat"])
plain(pend); del pend[:]
stamp(1)
M(f"""
s_waitcnt vmcnt({S.vmn('poll')})
v_cmp_ne_u32 vcc, s{sNonce}, v2
s_cbranch_vccnz L_oflag
L_oflag_ok:
""")
cold += ["L_oflag:"] + spin("", "L_oflag_ok") + [f"buffer_load_dword v2, v{vFl}, s[{sW}:{sW+3}], 0 offen sc1", "s_waitcnt vmcnt(0)",
         f"v_cmp_ne_u32 vcc, s{sNonce}, v2", "s_cbranch_vccnz L_oflag", "s_branch L_oflag_ok"]
stamp(5)
LOOK = opt["look"]
for z in range(LOOK):
    for l in o_loads(z): E(l)
stamp(1)
t = 36
cold += ["L_stf_retry:"] + spin("", "L_stf_ok") + [f"buffer_load_dwordx2 v[{vSt}:{vSt+1}], v{vSa}, s[{sW}:{sW+3}], 0 offen sc1"] + updld + ["s_waitcnt vmcnt(0)"] + \
        updchk + ["s_cbranch_vccnz L_stf_retry", "s_branch L_stf_ok"]
G = updchk + ["s_cbranch_vccnz L_stf_retry", "L_stf_ok:", f"v_and_b32 v{vSt+1}, 0xffff0000, v{vSt}", f"v_lshlrev_b32 v{vSt}, 16, v{vSt}", f"v_rcp_f32 v{vSt+1}, v{vSt+1}"]
for hf in range(2):
    G += unpack(t, vXr + 4*hf)
    G += [f"v_sub_f32 v{t+e}, v{t+e}, v{vSt}" for e in range(8)]
    G += [f"v_cvt_pk_bf16_f32 v{8+e}, v{t+2*e}, v{t+2*e+1}" for e in range(4)] + unpack(t, 8)
    G += [f"v_mul_f32 v{t+e}, v{t+e}, v{vSt+1}" for e in range(8)]
    G += [f"v_cvt_pk_bf16_f32 v{8+e}, v{t+2*e}, v{t+2*e+1}" for e in range(4)] + unpack(t, 8)
    if opt["moe"]:
        G += unpack(8, vU + 8*hf, 2) + unpack(12, vU + 8*hf + 4, 2) + [f"v_add_f32 v{t+e}, v{t+e}, v{8+e}" for e in range(8)]
        G += [f"v_cvt_pk_bf16_f32 v{8+e}, v{t+2*e}, v{t+2*e+1}" for e in range(4)] + unpack(t, 8)
    G += [f"v_mul_f32 v{8+e}, {NLOG2E}, v{t+e}" for e in range(8)]
    G += [f"v_exp_f32 v{8+e}, v{8+e}" for e in range(8)]
    G += [f"v_add_f32 v{8+e}, 1.0, v{8+e}" for e in range(8)]
    G += [f"v_rcp_f32 v{8+e}, v{8+e}" for e in range(8)]
    G += [f"v_mul_f32 v{t+e}, v{t+e}, v{8+e}" for e in range(8)]
    G += [f"v_cvt_pk_bf16_f32 v{8+e}, v{t+2*e}, v{t+2*e+1}" for e in range(4)] + unpack(vGf + 8*hf, 8)
G += unpack(vU, vXr, 8)
G += [f"v_lshl_add_u32 v32, v0, 4, s{r.sM0K}"] + [f"v_xor_b32 v{32+nb}, {nb*1024 + nb*64}, v32" for nb in range(1, 4)]
G += ["v_lshrrev_b32 v31, 2, v0", f"v_lshlrev_b32 v30, 2, v{vC3}", "v_xor_b32 v31, v31, v30", "v_lshlrev_b32 v31, 4, v31", f"v_lshl_add_u32 v31, v{vC3}, 10, v31",
      f"s_lshl_b32 s3, s{sWave}, 14", "v_add_u32 v31, s3, v31"]
assert S.vmn("xf") >= S.vmn("poll")
Q += G
wq = []; dma_done = {kk: -99 for kk in range(NPRE)}
nw = (32 - NPRE)*4; ZD = opt["zd"]; issued = 0
for z in range(32):
    h, qb = z >> 2, z & 3
    Wb, Ob = WBLK[h & 3], OBUF[z % len(OBUF)]
    vtags = [f"o{z}"]; ltags = []
    rdq = []
    kk = nextrd[0]
    if kk < 32 and z >= (kk >> 2)*4 - 12 and kk in dma_done and (z - dma_done[kk] >= opt["dlag"] or (kk >> 2)*4 - z <= 4 - (kk & 3)):
        rdq = wo_reads(kk); vtags.append(f"wo{kk}"); nextrd[0] += 1
    if qb == 0:
        assert kk >= 4*h + 4, (z, kk)
        ltags += [f"r{4*h+3}"]
    ops = o_loads(z + LOOK) if z + LOOK < 32 else []
    want = min(nw, -(-nw*(z + 1) // ZD))
    wops = []
    while issued < want:
        if not wq:
            k2 = nextdma[0]
            if k2 - NU >= kk: break
            wq = wo_dma(k2); ltags.append(f"r{k2-NU}"); nextdma[0] += 1
        while wq:
            l = wq.pop(0); wops.append(l)
            if l.startswith("buffer"): issued += 1; break
        if len(wq) == 1: wops.append(wq.pop(0)); dma_done[nextdma[0] - 1] = z
    pend.extend(ops + wops)
    w = f"s_waitcnt vmcnt({S.vmn(*vtags)})"
    if ltags: w += f" lgkmcnt({S.lgn(*ltags)})"
    E(w)
    if qb == 0: stamp(4)
    wr = [f"ds_write_b128 v{32+nb}, {blk(ACC, ((qb-1)*4+nb)*4, 4)} offset:{(qb-1)*16384}" for nb in range(4)] if z > 28 else []
    if z == 29: assert not Q, len(Q)
    nbuf = sum(l.startswith("buffer") for l in pend)
    slots = [1 + 2*int(i*8/nbuf) for i in range(nbuf)] if nbuf else []
    for n in range(16):
        nb, i = n >> 2, n & 3
        if nb & 1: i = 3 - i
        D = blk(ACC, (qb*4 + nb)*4, 4)
        m = f"{MF} {D}, {blk(Wb, (nb*4 + i)*4, 4)}, {blk(Ob, i*4, 4)}, {'0' if h == 0 and n & 3 == 0 else D}"
        lead = []
        if n & 1 == 0:
            while pend and pend[0].startswith("s_"): lead.append(pend.pop(0))
            if rdq: lead.append(rdq.pop(0))
            elif wr and n & 3 == 2: lead.append(wr.pop(0))
        elif n in slots:
            lead.append(pend.pop(0))
            if n == 15:
                while pend: lead.append(pend.pop(0))
        S.gap(m, lead)
    assert not rdq and not pend and not wr, (z, pend)
assert nextrd[0] == 32
stamp(5)
for nb in range(4):
    l = f"ds_write_b128 v{32+nb}, {blk(ACC, (12+nb)*4, 4)} offset:{3*16384}"
    while not S.ok(l): E("s_nop 0")
    E(l)
E("s_waitcnt lgkmcnt(0)")
E("s_barrier")
for g in range(4):
    for s_ in range(4): E(f"ds_read_b128 {v(64+s_*16+g*4,4)}, v31 offset:{s_*4096 + g*256}")
for g in range(4):
    E(f"s_waitcnt lgkmcnt({12 - 4*g})")
    for e in range(4*g, 4*g + 4): E(f"v_add_f32 v{64+e}, v{64+e}, v{80+e}"); E(f"v_add_f32 v{96+e}, v{96+e}, v{112+e}")
    for e in range(4*g, 4*g + 4): E(f"v_add_f32 v{64+e}, v{64+e}, v{96+e}")
    for e in range(4*g, 4*g + 4): E(f"v_fma_f32 v{64+e}, v{64+e}, v{vGf+e}, v{vU+e}")
    for e in range(2*g, 2*g + 2): E(f"v_cvt_pk_bf16_f32 v{8+e}, v{64+2*e}, v{65+2*e}")
    if g & 1: E(f"global_store_dwordx4 v{vXo}, {v(8+4*(g>>1),4)}, s[{pOut}:{pOut+1}] offset:{16*(g>>1)}{POL[opt['ost']]}")
stamp(1)
if opt["stamp"]: E("s_waitcnt vmcnt(0)")
stamp(1)
if opt["stamp"]:
    M(f"""
    s_lshl_b32 s3, s2, 2
    s_add_u32 s3, s3, s{sWave}
    s_lshl_b32 s3, s3, 7
    s_add_u32 s3, s3, {WS_T}
    v_mov_b32 v3, 0
    """)
    for i in range(32): E(f"v_mov_b32 v{4+i}, s{70+i}" if i < 2*nstamp[0] else f"v_mov_b32 v{4+i}, 0")
    for i in range(8): E(f"buffer_store_dwordx4 v[{4+4*i}:{7+4*i}], v3, s[{sW}:{sW+3}], s3 offen offset:{16*i}")
E("s_endpgm")
r.vVDl = [20, 21, 20, 21]
M(f"""
L_fallback:
s_cmp_lg_u32 s{sFb}, 0
s_cbranch_scc1 L_safe
s_mov_b32 s{sFb}, 1
s_mov_b32 s{sMask2}, 0
s_mov_b32 s{sMask4}, 0x80
s_lshl_b32 s3, s{sHead}, 19
s_add_u32 s{sK}, s{pK}, s3
s_addc_u32 s{sK+1}, s{pK+1}, 0
s_mov_b32 s{sK+2}, 0x80000
s_add_u32 s{sV}, s{pV}, s3
s_addc_u32 s{sV+1}, s{pV+1}, 0
s_mov_b32 s{sV+2}, 0x80000
s_mov_b32 s{r.sKoff}, 0
s_mov_b32 s{r.sVoff}, 0
s_mov_b32 s{r.sKinc}, 0x4000
s_mov_b32 s{r.sVinc}, 0x4000
s_mov_b32 s{r.sIt}, 0
v_lshlrev_b32 v3, 4, v0
v_lshrrev_b32 v60, 2, v2
v_and_b32 v61, 1, v1
v_lshl_add_u32 v60, v61, 2, v60
v_and_b32 v63, 3, v0
s_waitcnt vmcnt(0) lgkmcnt(0)
s_barrier
""")
for l in ADDR: E(l)
for i in range(16): E(f"v_mov_b32 v{r.vM+i}, 0")
for i in range(16): E(f"v_mov_b32 v{r.vL+i}, 0")
for qb in range(4): E(f"v_mov_b32 v{60+qb}, 0xff800000")
E("L_fb_loop:")
plain(kdma(0))
M("s_waitcnt vmcnt(0)\ns_barrier")
for i in range(16): E(X.kread(0, i))
M("s_waitcnt lgkmcnt(0)\ns_barrier")
for g in range(64): E(X.qk(g))
E("s_nop 7")
for qb in range(4):
    for e in range(8): E(f"v_max3_f32 v{60+qb}, v{60+qb}, v{r.vS+16*qb+2*e}, v{r.vS+16*qb+2*e+1}")
M(f"""
s_cmp_lt_u32 s{r.sKoff}, 0x80000
s_cbranch_scc1 L_fb_loop
s_mov_b32 s{r.sKoff}, 0
""")
plain(kdma(0) + kdma(1) + vdma(0) + kdma(2) + vdma(1) + kdma(3) + vdma(2))
for sw in ("v_permlane32_swap_b32", "v_permlane16_swap_b32"):
    for qb in range(4): E(f"v_mov_b32 v{128+qb}, v{60+qb}")
    E("s_nop 1")
    for qb in range(4): E(f"{sw} v{128+qb}, v{60+qb}")
    E("s_nop 1")
    for qb in range(4): E(f"v_max_f32 v{60+qb}, v{60+qb}, v{128+qb}")
for qb in range(4):
    for e in range(4): E(f"v_sub_f32 v{r.vM+4*qb+e}, 0, v{60+qb}")
M("s_waitcnt vmcnt(0)\ns_barrier")
for i in range(16): E(X.kread(0, i))
M("s_waitcnt lgkmcnt(0)\ns_branch L_restart")
for l in cold: E(l)
A.label("L_end")
E("s_endpgm")
A.raw(f""".section .rodata,"a"
.p2align 6
.amdhsa_kernel {KN}_kernel
  .amdhsa_next_free_vgpr 512
  .amdhsa_next_free_sgpr 102
  .amdhsa_accum_offset 256
  .amdhsa_group_segment_fixed_size 0
  .amdhsa_kernarg_size 104
  .amdhsa_user_sgpr_count 2
  .amdhsa_user_sgpr_kernarg_segment_ptr 1
  .amdhsa_system_sgpr_workgroup_id_x 1
  .amdhsa_float_denorm_mode_32 3
.end_amdhsa_kernel""")
txt = A.text().replace("MASK2", hex(m2)).replace("MASK4", hex(m4))
bad = check_hazards(txt)
if bad: print("hazards:", len(bad), file=sys.stderr)
open(sys.argv[1], "w").write(txt)
```

```python
import sys, struct
from attn16 import *
KN = "recurrent_scan__mha_block_cached__moe_arch_mod__prompt"
opt = dict(xcc=0, map8=0, onerow=0, lnfirst=0, qrot=0, osp=0, fx=0, holdrel=0, bgap=62, bsplit=1, bar=1, nodma=0, pad=0, holdp=0, holdt=0, forcefb=0, ntw=0, ost=0, tlb=1, varb=1, TF=18, TP=22, moeT=99, moe=1, pollat=6, wtouch=1, otouch=0, epace=40, npost=8, npre=24, look=3, zd=24, dlag=5, rot=0, s1st=5, cyc=0, stamp=0, snake=1, pvchain=1, G0=8, nt=1, ntq=0, sm=1, drate=4, pre=2)
opt_s = dict(touch="{}", hs="(10,12,18,22,24,27,28)", wT="(22,24)")
for x in sys.argv[2:]:
    k, val = x.split("=")
    if k in opt_s: opt_s[k] = val
    else: opt[k] = int(val)
A = Asm(); r = default_regs(); X = Attn(A, r, opt); S = Stream(A); E = S.emit; M = S.many
POL = ["", " nt", " sc1"]
def fbits(x): return hex(struct.unpack("<I", struct.pack("<f", x))[0])
WS_O = 0
WS_STAT = 16 << 20
WS_KEY = WS_STAT + 0x4000
WS_FLAG = WS_STAT + 0x10000
WS_SEL = WS_STAT + 0x8000
WS_FC = WS_STAT + 0x9000
WS_UPD = WS_STAT + 0xC000
WS_XN = 18 << 20
WS_PART = 20 << 20
WS_T = 64 << 20
sX, sK, sV, sW, sWq = 4, 8, 12, 16, 28
sWave, sHead, sQb = 20, 21, 22
sXoff, sWoff, sM0X, sM0W = 34, 35, 62, 63
pX, pK, pV, pWq, pWo, pWr, pWg, pWu, pWd, pOut, pDbg, pWs = 36, 38, 40, 42, 44, 48, 50, 52, 54, 56, 58, 60
sKey0, sRow0, sNonce = 64, 66, 46
sSpin = 33
def spin(label, ok): return [f"s_sub_u32 s{sSpin}, s{sSpin}, 1", f"s_cbranch_scc1 {ok}"]
cold = []
nstamp = [0]
CLK = "s_memtime" if opt["cyc"] else "s_memrealtime"
npoint = [0]
def hold_at():
    npoint[0] += 1
    if opt["holdp"] == npoint[0]:
        M(f"""
        L_hold:
        s_memrealtime s[98:99]
        s_waitcnt lgkmcnt(0)
        s_sub_u32 s98, s98, s{46 if opt['holdrel'] else 100}
        s_cmp_lt_u32 s98, {opt['holdt']*100}
        s_cbranch_scc1 L_hold
        """)
def stamp(lvl=1, wait=True):
    if lvl & 1: hold_at()
    if opt["stamp"] & lvl and nstamp[0] < 16:
        i = nstamp[0]; nstamp[0] += 1
        E(f"{CLK} s[{70+2*i}:{71+2*i}]")
        if wait: E("s_waitcnt lgkmcnt(0)")

A.raw("; @launch grid=(256,1,1) block=(256,1,1) lds=163840")
A.raw('.amdgcn_target "amdgcn-amd-amdhsa--gfx950"')
A.raw(".text"); A.raw(f".globl {KN}_kernel"); A.raw(".p2align 8"); A.raw(f".type {KN}_kernel,@function")
A.label(f"{KN}_kernel")
M(f"""
s_cmp_ge_u32 s2, 256
s_cbranch_scc1 L_end
s_load_dwordx16 s[36:51], s[0:1], 0
s_load_dwordx8 s[52:59], s[0:1], 64
s_load_dwordx2 s[60:61], s[0:1], 96
s_memrealtime s[68:69]
""")
if opt["stamp"]:
    E(f"{CLK} s[70:71]"); nstamp[0] = 1
if opt["holdp"]: E("s_memrealtime s[100:101]")
M(f"""
s_getpc_b64 s[32:33]
v_lshrrev_b32 v1, 6, v0
v_and_b32 v0, 63, v0
s_and_b32 s3, s2, 0xf8
s_lshl_b32 s3, s3, 1
v_lshl_add_u32 v4, v1, 2, v0
v_add_lshl_u32 v4, v4, s3, 7
v_min_u32 v4, L_end-{KN}_kernel-128, v4
s_mov_b64 exec, 15
global_load_dword v23, v4, s[32:33]
s_mov_b64 exec, -1
v_readfirstlane_b32 s{sWave}, v1
s_and_b32 s3, s2, {6 if opt['map8'] else 7}
s_lshl_b32 s3, s3, 2
s_bfe_u32 s{sHead}, s2, {'0x30003' if opt['map8'] else '0x20003'}
s_or_b32 s{sHead}, s{sHead}, s3
s_lshr_b32 s{sQb}, s2, {6 if opt['map8'] else 5}
s_and_b32 s3, s2, {1 if opt['map8'] else 0}
s_lshl_b32 s3, s3, 2
s_or_b32 s{sQb}, s{sQb}, s3
v_lshrrev_b32 v1, 4, v0
v_and_b32 v2, 15, v0
""")
vXD, vWD, vXA, vWA, vCS, vKM = 76, 84, 88, 92, 100, 108
vSX, vG = r.vL, r.vM
M(f"""
v_lshrrev_b32 v4, 3, v0
s_lshl_b32 s3, s{sWave}, 6
v_add_u32 v4, s3, v4
v_lshlrev_b32 v4, 10, v4
v_and_b32 v5, 7, v0
v_xor_b32 v6, v5, v1
v_xor_b32 v7, 4, v6
v_lshl_add_u32 v6, v6, 4, v4
v_lshl_add_u32 v7, v7, 4, v4
""")
for p in range(8): E(f"v_add_u32 v{vXD+p}, {p*8192 - (p&3)*1024}, v{6+(p&1)}")
M(f"""
s_lshl_b32 s3, s{sWave}, 4
v_add_u32 v4, s3, v1
v_lshlrev_b32 v4, 13, v4
v_lshlrev_b32 v5, 1, v1
v_xor_b32 v6, v5, v2
v_xor_b32 v7, 8, v6
v_lshl_add_u32 v6, v6, 4, v4
v_lshl_add_u32 v7, v7, 4, v4
""")
for p in range(4): E(f"v_add_u32 v{vWD+p}, {p*4*8192 - p*1024}, v{6+(p>>1)}")
M(f"""
s_lshl_b32 s{sM0X}, s{sWave}, 13
s_lshl_b32 s{r.sM0K}, s{sWave}, 12
s_add_u32 s{sM0W}, s{r.sM0K}, 0xC000
s_mov_b32 s{sXoff}, 0
s_mov_b32 s{sWoff}, 0
s_mov_b32 s{sX+2}, 0x40000
s_mov_b32 s{sX+3}, 0x20000
s_mov_b32 s{sWq+3}, 0x20000
s_lshl_b32 s3, s{sQb}, 18
s_lshl_b32 s67, s{sHead}, 8
s_sub_u32 s{sWq+2}, 0x400000, s67
s_waitcnt lgkmcnt(0)
s_add_u32 s{sX}, s{pX}, s3
s_addc_u32 s{sX+1}, s{pX+1}, 0
s_add_u32 s{sWq}, s{pWq}, s67
s_addc_u32 s{sWq+1}, s{pWq+1}, 0
s_or_b32 s3, s2, s{sWave}
s_cbranch_scc1 L_nononce
""")
A("s_or_b32 s68, s68, 1"); A("v_mov_b32 v4, 0"); A("v_mov_b32 v5, s68"); A(f"global_store_dword v4, v5, s[{pDbg}:{pDbg+1}] sc1")
E("L_nononce:")
if opt["xcc"]:
    M(f"""s_cmp_ge_u32 s2, 8
    s_cbranch_scc1 L_noxcc
    s_getreg_b32 s3, hwreg(HW_REG_XCC_ID)
    s_add_u32 s3, s3, 100
    v_mov_b32 v5, s3
    s_lshl_b32 s3, s2, 2
    v_mov_b32 v4, s3""")
    A(f"global_store_dword v4, v5, s[{pDbg}:{pDbg+1}] offset:4")
    E("L_noxcc:")
stamp(2)
XSLOT = [0x18000, 0x20000, 0x4000]
def xdma(st):
    L = []
    for p in range(8):
        if p & 3 == 0: L.append(f"s_add_u32 m0, s{sM0X}, {XSLOT[st%3] + (p>>2)*4096}")
        L.append(f"buffer_load_dwordx4 v{vXD+p}, s[{sX}:{sX+3}], s{sXoff} offen offset:{(p&3)*1024}{POL[opt['ntq']]} lds ; x{st}")
    L.append(f"s_add_u32 s{sXoff}, s{sXoff}, 128")
    return L
def wdma(st):
    L = [f"s_add_u32 m0, s{sM0W}, {(st%3)*16384}"]
    for p in range(4):
        L.append(f"buffer_load_dwordx4 v{vWD+p}, s[{sWq}:{sWq+3}], s{sWoff} offen offset:{p*1024}{POL[opt['ntw']]} lds ; w{st}")
    L.append(f"s_add_u32 s{sWoff}, s{sWoff}, 0x80000")
    return L
def tagged(L, t): return [l + " ; " + t if l.startswith("buffer") else l for l in L]
def kdma(T): return tagged(X.dma(T & 3)[:5], f"k{T}") + [f"s_add_u32 s{r.sKoff}, s{r.sKoff}, 0x4000"]
def vdma(T): return tagged(X.dma((T + 1) & 3)[5:], f"v{T}") + [f"s_add_u32 s{r.sVoff}, s{r.sVoff}, 0x4000"]
def plain(L):
    for l in L:
        E(l)
        if l.startswith("s_add_u32 m0"): E("s_nop 0")
Q = S.q
vCA = 124
def xors(dst, n, step): return [f"v_xor_b32 v{dst+k}, {k*step}, v{dst}" for k in range(1, n)]
PRE = f"""v_lshlrev_b32 v3, 4, v0
s_lshl_b32 s3, s{sHead}, 2
s_add_u32 s3, s3, s{sWave}
s_lshl_b32 s{sRow0}, s3, 11
v_lshrrev_b32 v4, 1, v2
v_xor_b32 v4, v4, v1
v_lshl_add_u32 v5, v2, 7, s{sM0X}
v_lshl_add_u32 v6, v4, 4, v5
v_add_u32 v{vXA}, {XSLOT[0]}, v6
v_add_u32 v{vXA+2}, {XSLOT[2]}, v6
v_xor_b32 v{vXA+1}, 64, v{vXA}
v_xor_b32 v{vXA+3}, 64, v{vXA+2}
v_lshrrev_b32 v4, 2, v2
v_and_b32 v63, 3, v0
v_and_b32 v6, 1, v1
v_lshl_add_u32 v60, v6, 2, v4
v_lshl_add_u32 v5, v1, 3, v4
v_lshlrev_b32 v5, 8, v5
v_lshl_add_u32 v5, v63, 3, v5
v_lshl_add_u32 v5, v60, 5, v5
s_lshl_b32 s3, s{sWave}, 6
s_add_u32 s3, s3, 0xC000
v_xor_b32 v{vWA}, s3, v5""".split("\n") + xors(vWA, 8, 32)
PRE += [f"v_mov_b32 v{vCS+i}, 0" for i in range(8)]
PRE += f"""v_mov_b32 v62, 0x3f803f80
v_cmp_gt_u32 vcc, 2, v63
v_and_b32 v4, 1, v0
v_mov_b32 v5, 0x44444444
v_mov_b32 v6, 0xeeeeeeee
v_cndmask_b32 v{r.vOne}, 0, v62, vcc
v_cndmask_b32 v{r.vOne+1}, 0, v62, vcc
v_cndmask_b32 v{r.vOne+2}, 0, v62, vcc
v_cndmask_b32 v{r.vOne+3}, 0, v62, vcc
v_cmp_eq_u32 vcc, 1, v4
s_lshl_b32 s1, s{sQb}, 2
s_add_u32 s1, s1, s{sWave}
v_cndmask_b32 v{r.vIdx}, v5, v6, vcc
s_lshl_b32 s1, s1, 9
s_add_u32 s1, s1, {WS_STAT}""".split("\n")
def ozero(z): return [f"v_mfma_f32_32x32x16_bf16 {a(r.aO+16*i,16)}, {v(z,4)}, {v(z,4)}, 0" for i in range(8)]
ADDR = f"""v_lshl_add_u32 v61, v1, 8, s{r.sM0K}
v_xor_b32 v62, v1, v2
v_lshl_add_u32 v{r.vKD}, v62, 4, v61""".split("\n") + xors(r.vKD, 4, 64) + f"""v_lshlrev_b32 v62, 1, v1
v_xor_b32 v62, v62, v2
v_lshl_add_u32 v{r.vVD}, v62, 4, v61
v_xor_b32 v{r.vVD+1}, 128, v{r.vVD}
v_lshrrev_b32 v61, 2, v0
v_lshlrev_b32 v61, 8, v61
v_lshl_add_u32 v61, v63, 3, v61
v_lshl_add_u32 v61, v60, 5, v61
v_add_u32 v{r.vVA}, {r.VBASE}, v61""".split("\n") + xors(r.vVA, 8, 32) + f"""v_lshrrev_b32 v61, 1, v1
v_and_b32 v62, 1, v1
v_lshl_add_u32 v62, v62, 1, v61
v_lshl_add_u32 v62, s{sWave}, 2, v62
v_xor_b32 v61, v62, v2
v_lshlrev_b32 v61, 4, v61
v_lshl_add_u32 v{r.vKA}, v2, 8, v61""".split("\n") + xors(r.vKA, 4, 64)
VCOPY = ["v_mov_b32 v1, v20", "v_mov_b32 v2, v21"]
PRE2 = ADDR + f"""v_xor_b32 v61, v62, v63
v_lshlrev_b32 v61, 4, v61
v_lshl_add_u32 v{vKM}, v63, 8, v61""".split("\n") + xors(vKM, 4, 64)
PRE2 += [f"s_add_u32 s67, s{sM0X}, {XSLOT[1]}", "v_lshl_add_u32 v62, v2, 2, s67", "v_lshlrev_b32 v61, 3, v2", f"v_lshl_add_u32 v{vCA}, v1, 4, s67"] + xors(vCA, 4, 8192)
PRE2 += VCOPY
PRE2 += [f"s_lshl_b32 s3, s{sHead}, 19", [f"s_add_u32 s{sK}, s{pK}, s3", f"s_addc_u32 s{sK+1}, s{pK+1}, 0"], [f"s_add_u32 s{sV}, s{pV}, s3", f"s_addc_u32 s{sV+1}, s{pV+1}, 0"]]
PRE2 += f"""s_mov_b32 s{sK+2}, 0x80000
s_mov_b32 s{sK+3}, 0x20000
s_mov_b32 s{sV+2}, 0x80000
s_mov_b32 s{sV+3}, 0x20000
s_mov_b32 s{sW}, s{pWs}
s_mov_b32 s{sW+1}, s{pWs+1}
s_mov_b32 s{sW+2}, 0x10000000
s_mov_b32 s{sW+3}, 0x20000
s_mov_b32 s{r.sKoff}, 0
s_mov_b32 s{r.sVoff}, 0
s_mov_b32 s{sSpin}, 0x100000
s_add_u32 s{r.sM0V}, s{r.sM0K}, {r.VBASE}""".split("\n")
for n, m in enumerate(ozero(vCS + 4)): PRE2.insert(8*n + 2, m)
def issue(L, F):
    F = list(F); per = -(-len(F) // sum("lds" in l for l in L))
    for l in L:
        E(l)
        if l.startswith("s_add_u32 m0"): E("s_nop 0")
        if "lds" in l:
            for f in F[:per]:
                for x_ in (f if isinstance(f, list) else [f]): E(x_)
            del F[:per]
issue(wdma(0) + xdma(0), PRE)
stamp(2, False)
LN = f"""buffer_load_dwordx4 v[64:67], v3, s[{sX}:{sX+3}], s{sRow0} offen ; ln
buffer_load_dwordx4 v[68:71], v3, s[{sX}:{sX+3}], s{sRow0} offen offset:1024 ; ln
global_load_dwordx4 v[72:75], v3, s[{pWr}:{pWr+1}] ; ln""".split("\n")
L1 = []
for st in range(1, opt["pre"]): L1 += wdma(st) + xdma(st)
issue((LN if opt["lnfirst"] else []) + L1 + ([] if opt["lnfirst"] else LN), PRE2)
M(f"""
v_mov_b32 v55, 0
s_lshl_b32 s3, s{sQb}, 8
s_lshr_b32 s{sRow0}, s{sRow0}, 10
s_add_u32 s{sRow0}, s{sRow0}, s3
""")
stamp(2, False)
aXN = 248
def unpack(dst, src, n=4):
    L = []
    for k in range(n):
        L += [f"v_lshlrev_b32 v{dst+2*k}, 16, v{src+k}", f"v_and_b32 v{dst+2*k+1}, 0xffff0000, v{src+k}"]
    return L
def wave_sum(reg, sdst):
    return [f"v_add_f32_dpp v{reg}, v{reg}, v{reg} {m} bank_mask:0xf" for m in
            ("quad_perm:[1,0,3,2] row_mask:0xf", "quad_perm:[2,3,0,1] row_mask:0xf", "row_half_mirror row_mask:0xf",
             "row_mirror row_mask:0xf", "row_bcast:15 row_mask:0xa", "row_bcast:31 row_mask:0xc")] + [f"v_readlane_b32 s{sdst}, v{reg}, 63"]
def rbf(x): return [f"v_cvt_pk_bf16_f32 v{x}, v{x}, v{x}", f"v_lshlrev_b32 v{x}, 16, v{x}"]
vE, vD, vWr, vO = 32, 40, 112, 120
Q.append(lambda: f"s_waitcnt vmcnt({S.vmn('ln')})")
NONCE = [lambda: f"s_waitcnt vmcnt({S.vmn('nonce')})", f"v_readfirstlane_b32 s{sNonce}, v23", "s_nop 0", f"s_cmp_eq_u32 s{sNonce}, 0",
         "s_cbranch_scc1 L_nonce_retry", "L_nonce_ok:"]
cold += ["L_nonce_retry:"] + spin("", "L_nonce_ok") + [f"global_load_dword v23, v55, s[{pDbg}:{pDbg+1}] sc1", "s_waitcnt vmcnt(0)",
         f"v_readfirstlane_b32 s{sNonce}, v23", "s_nop 0", f"s_cmp_eq_u32 s{sNonce}, 0", "s_cbranch_scc1 L_nonce_retry", "s_branch L_nonce_ok"]
Q += ["v_mov_b32 v50, 0x3b000000"]
for k in range(2):
    Q += unpack(vE, 64 + 4*k)
    Q += [f"v_add_f32 v{vD+e}, v{vE+2*e}, v{vE+2*e+1}" for e in range(4)]
    Q += [f"v_add_f32 v{vD}, v{vD}, v{vD+1}", f"v_add_f32 v{vD+2}, v{vD+2}, v{vD+3}", f"v_add_f32 v48, v{vD}, v{vD+2}"]
    Q += wave_sum(48, 68) + ["v_mul_f32 v48, s68, v50"]
    Q += [f"v_sub_f32 v{vD+e}, v{vE+e}, v48" for e in range(8)]
    Q += [f"v_mul_f32 v49, v{vD}, v{vD}"] + [f"v_fmac_f32 v49, v{vD+e}, v{vD+e}" for e in range(1, 8)]
    Q += wave_sum(49, 68)
    Q += ["v_mul_f32 v49, s68, v50"] + rbf(49) + ["v_add_f32 v49, 0x3727c5ac, v49"] + rbf(49) + ["v_sqrt_f32 v49, v49"]
    Q += [f"v_cvt_pk_bf16_f32 v{vO+2*k}, v48, v49"]
Q += [NONCE, f"v_mov_b32 v{vO+1}, s{sNonce}", f"v_mov_b32 v{vO+3}, s{sNonce}"]
Q += [f"s_lshl_b32 s68, s{sRow0}, 3", f"s_add_u32 s65, s68, {WS_KEY}", f"s_add_u32 s68, s68, {WS_STAT}"]
Q.append(["s_mov_b64 exec, 1", f"buffer_store_dwordx4 v[{vO}:{vO+3}], off, s[{sW}:{sW+3}], s68 sc1 ; s1", "s_mov_b64 exec, -1"])
Q += unpack(vWr, 72)
for k in range(2):
    Q += unpack(vE, 64 + 4*k) + [f"v_lshlrev_b32 v48, 16, v{vO+2*k}", f"v_and_b32 v49, 0xffff0000, v{vO+2*k}", "v_rcp_f32 v49, v49"]
    Q += [f"v_sub_f32 v{vE+e}, v{vE+e}, v48" for e in range(8)]
    Q += [f"v_cvt_pk_bf16_f32 v{vD+e}, v{vE+2*e}, v{vE+2*e+1}" for e in range(4)]
    Q += unpack(vE, vD)
    Q += [f"v_mul_f32 v{vE+e}, v{vE+e}, v49" for e in range(8)]
    Q += [f"v_cvt_pk_bf16_f32 v{64+4*k+e}, v{vE+2*e}, v{vE+2*e+1}" for e in range(4)]
    Q += unpack(vE, 64 + 4*k)
    Q += [f"v_mul_f32 v49, v{vE}, v{vWr}"] + [f"v_fmac_f32 v49, v{vE+e}, v{vWr+e}" for e in range(1, 8)]
    Q += wave_sum(49, 68) + [f"s_sub_u32 s67, {2047-k}, s{sRow0}", "v_mov_b32 v49, s68", "v_cvt_pk_bf16_f32 v49, v49, v49",
          "v_ashrrev_i32 v48, 31, v49", "v_or_b32 v48, 0x80000000, v48", "v_xor_b32 v49, v48, v49", "v_and_b32 v49, 0xffff0000, v49",
          f"v_or_b32 v{72+k}, s67, v49", f"v_mov_b32 v{74+k}, s{sNonce}"]
Q += [f"s_lshl_b32 s64, s{sRow0}, 10", f"s_add_u32 s64, s64, {WS_XN}"]
XNST = [f"buffer_store_dwordx4 v[{64+4*k}:{67+4*k}], v3, s[{sW}:{sW+3}], s64 offen offset:{k*1024} sc1 ; xn" for k in range(2)]
KEYST = ["s_mov_b64 exec, 1", f"buffer_store_dwordx4 v[60:63], off, s[{sW}:{sW+3}], s65 sc1 ; s1", "s_mov_b64 exec, -1"]
NFILL = len(Q); S1 = list(Q); del Q[:]
r.sKinc, r.sVinc = 34, 35
sMask2, sMask4 = 62, 63
sQt, sNt = 47, 32
sChunk = 69
sFb = 0
SET = f"""s_mov_b32 s{r.sKinc}, 0x4000
s_mov_b32 s{r.sVinc}, 0x4000
s_mov_b32 s{r.sIt}, 0
s_and_b32 s3, s2, {6 if opt['varb'] else 7}
s_lshl_b32 s3, s3, 2
s_lshr_b32 s{sQt}, s2, {5 if opt['varb'] else 6}
s_add_u32 s{sQt}, s{sQt}, s3
s_bfe_u32 s{sNt}, s2, {'0x20003' if opt['varb'] else '0x30003'}
s_and_b32 s3, s2, {1 if opt['varb'] else 0}
s_lshl_b32 s3, s3, 2
s_add_u32 s{sNt}, s{sNt}, s3
s_lshl_b32 s3, s{sNt}, 7
s_lshl_b32 s67, s{sWave}, 20
s_add_u32 s3, s3, s67
s_sub_u32 s{sWq+2}, 0x400000, s3""".split("\n")
SET.append([f"s_add_u32 s{sWq}, s{pWo}, s3", f"s_addc_u32 s{sWq+1}, s{pWo+1}, 0"])
if opt["moe"]:
    SET += f"""s_and_b32 s3, s2, 7
s_mul_i32 s68, s3, 28
s_lshr_b32 s67, s2, 3
s_add_u32 s{sChunk}, s68, s67""".split("\n")
    SET += [f"s_mov_b32 s{sMask2}, MASK2F", f"s_mov_b32 s{sMask4}, MASK4F"]
    SET.append(["s_cmp_ge_u32 s67, 28", f"s_cselect_b32 s{sChunk}, -1, s{sChunk}"])
    SET.append(["s_cmp_ge_u32 s67, 28", f"s_cselect_b32 s{sMask2}, MASK2R, s{sMask2}", f"s_cselect_b32 s{sMask4}, MASK4R, s{sMask4}"])
    SET += f"""s_lshr_b32 s68, s68, 3
s_lshl_b32 s68, s68, 7
s_lshl_b32 s67, s67, 1
s_and_b32 s3, s{sWave}, 1
s_add_u32 s67, s67, s3
s_mul_i32 s67, s67, {8*3584}
s_add_u32 s68, s68, s67
v_bfe_u32 v112, v0, 2, 3
v_mul_u32_u24 v112, 3584, v112
v_and_b32 v113, 3, v0
v_lshl_add_u32 v112, v113, 7, v112
v_add_u32 v23, s68, v112""".split("\n")
    SET.append([f"s_cmp_lt_u32 s{sWave}, 2", f"s_cselect_b64 s[6:7], s[{pWg}:{pWg+1}], s[{pWu}:{pWu+1}]"])
else: SET += [f"s_mov_b32 s{sMask2}, MASK2F", f"s_mov_b32 s{sMask4}, MASK4F"]
SET += [f"s_mov_b32 s{sFb}, 0"]
aXF, aWF = 128, 192
SMF = "v_smfmac_f32_16x16x64_bf16"
def acc(j, qb): return 128 + (3 - (j >> 1))*32 + qb*8 + (j & 1)*4
def xread(st, n):
    qb, ks = n >> 1, n & 1; slot = st % 3
    base = vXA + (2 if slot == 2 else 0) + ks
    off = (XSLOT[slot] - XSLOT[0] if slot != 2 else 0) + qb*2048
    return f"ds_read_b128 {a(aXF+(st&1)*32+n*4,4)}, v{base} offset:{off}"
def wread(st, j, n):
    ks, half = n >> 1, n & 1
    return f"ds_read_b64_tr_b16 {a(aWF+(j&3)*8+ks*4+half*2,2)}, v{vWA+j} offset:{(st%3)*16384 + ks*8192 + half*1024}"
def qmf(st, j):
    L = []
    if j < 2: L.append(f"{SMF} {v(vCS+4*j,4)}, {v(r.vOne,4)}, {a(aWF+(j&3)*8,8)}, v{r.vIdx}")
    for qb in range(4):
        for t in range(2):
            ks = t ^ (qb & 1)
            D = v(acc(j, qb), 4); C = "0" if (st == 0 and t == 0) else D
            L.append(f"{MF} {D}, {a(aWF+(j&3)*8+ks*4,4)}, {a(aXF+(st&1)*32+(qb*2+ks)*4,4)}, {C}")
    return L
E(f"s_waitcnt vmcnt({S.vmn('x0', 'w0')}) lgkmcnt(0)")
E("s_barrier")
stamp(3)
for n in range(8): E(xread(0, n))
for j in range(2):
    for n in range(4): E(wread(0, j, n))
pend = []
for st in range(opt["pre"], 3): pend += wdma(st) + xdma(st)
def vmn(*tags):
    assert not any(l.split(";")[-1].strip() in tags for l in pend), (tags, pend)
    return S.vmn(*tags)
def one_dma():
    while pend:
        l = pend.pop(0); E(l)
        if l.startswith("s_add_u32 m0"): E("s_nop 0")
        if l.startswith("buffer"): break
statld = [f"buffer_load_dwordx2 v[{vG+4*qb}:{vG+4*qb+1}], v61, s[{sW}:{sW+3}], s1 offen offset:{qb*128} sc1 ; st" for qb in range(4)]
since = [99]
def dma_slot(j, n, hasds):
    if pend and pend[0].startswith("s_"): return [pend.pop(0)]
    slots = {0: (1, 5, 7), 1: (1, 5, 7), 5: (4, 6), 6: (), 7: ()}.get(j, (1, 5))
    if opt["drate"] == 3: slots = {0: (1, 3, 5, 7), 1: (1, 5, 7), 5: (4, 6), 6: (), 7: ()}.get(j, (1, 3, 5))
    if pend and not hasds and (n in slots or "lds" not in pend[0]): return [pend.pop(0)]
    return []
vC = r.vL
def csread(s_): return [f"ds_read_b128 {v(vC+(s_&1)*8+4*jj,4)}, v{vCA+s_} offset:{jj*64}" for jj in range(2)]
CL2E = 1.4426950408889634 / (128 ** 0.5)
E("s_waitcnt lgkmcnt(4)")
for st in range(8):
    if st == 6:
        assert not any(f"s{sXoff}" in l or f"s{sWoff}" in l or f"s{sM0X}" in l or f"s{sM0W}" in l for l in pend)
        Q += SET
    if st == 1: pend.insert(0, f"global_load_dword v23, v55, s[{pDbg}:{pDbg+1}] sc1 ; nonce")
    if st + 3 < 8: pend += xdma(st + 3)
    if st == 5:
        pend += kdma(0)

    for j in range(8):
        L = qmf(st, j)
        if st*8 + j == opt["s1st"]: Q += S1
        ds = [None] * len(L); last = []
        if j < 6:
            o = 0
            for n in range(4): ds[o + (n if j == 5 else 2*n)] = wread(st, j + 2, n)
            if j < 5: last = ["s_waitcnt lgkmcnt(4)"]
            elif st < 7:
                tags = [f"x{st+1}", f"w{st+1}"]
                last = [lambda tags=tags: f"s_waitcnt vmcnt({vmn(*tags)}) lgkmcnt(0)", "s_barrier"]
            else: last = [lambda: f"s_waitcnt vmcnt({vmn('k0', 'st')}) lgkmcnt(0)", "s_barrier"]
        elif st < 7:
            seq = [xread(st + 1, n) for n in range(4)] + [wread(st + 1, 0, n) for n in range(4)] if j == 6 else \
                  [xread(st + 1, 4 + n) for n in range(4)] + [wread(st + 1, 1, n) for n in range(4)]
            ds = seq
            if j == 7: last = ["s_waitcnt lgkmcnt(4)"]
        else:
            seq = csread(0) + csread(1) + [f"ds_read_b128 {a(aWF+4*s_,4)}, v{vKM+s_}" for s_ in range(4)] if j == 6 else \
                  [X.kread(0, i) for i in range(8)]
            ds = seq
        if st == 7 and j == 2:
            Q += [f"v_add_f32 v{vCS}, v{vCS}, v{vCS+1}", f"v_add_f32 v{vCS+4}, v{vCS+4}, v{vCS+5}",
                  f"ds_write2_b32 v62, v{vCS}, v{vCS+4} offset0:0 offset1:16"]
        if st == 7 and j == 6:
            assert not Q, len(Q)
            Q.append([f"v_xor_b32 v{vG+2}, s{sNonce}, v{vG+1}", f"v_xor_b32 v{vG+6}, s{sNonce}, v{vG+5}"])
            Q.append([f"v_xor_b32 v{vG+10}, s{sNonce}, v{vG+9}", f"v_xor_b32 v{vG+14}, s{sNonce}, v{vG+13}"])
            del Q[:]
            chk = [f"v_xor_b32 v{vG+4*qb+2}, s{sNonce}, v{vG+4*qb+1}" for qb in range(4)] + \
                  [f"v_or3_b32 v{vG+2}, v{vG+2}, v{vG+6}, v{vG+10}", f"v_or_b32 v{vG+2}, v{vG+2}, v{vG+14}", f"v_cmp_ne_u32 vcc, 0, v{vG+2}"]
            Q += chk + ["s_cbranch_vccnz L_stat_retry", "L_stat_ok:"]
            cold += ["L_stat_retry:"] + spin("", "L_stat_ok") + [l.split(";")[0] for l in statld] + ["s_waitcnt vmcnt(0)"] + chk + ["s_cbranch_vccnz L_stat_retry", "s_branch L_stat_ok"]
            P_ = []
            for qb in range(4):
                g = vG + 4*qb
                P_.append([f"v_and_b32 v{g+1}, 0xffff0000, v{g}", f"v_lshlrev_b32 v{g}, 16, v{g}", f"v_rcp_f32 v{g+1}, v{g+1}",
                           f"v_sub_f32 v{g}, 0, v{g}", f"v_mul_f32 v{g+1}, {fbits(CL2E)}, v{g+1}"])
            for tup in zip(*P_): Q += list(tup)
        for n, m in enumerate(L):
            lead = []
            if n == len(L) - 1 and last:
                lead = ([ds[n]] if ds[n] else []) + last
            else:
                lead = dma_slot(j, n, ds[n] is not None) + ([ds[n]] if ds[n] else [])
            S.gap(m, lead)
        if j == 5:
            stamp(2)
            if st + 3 < 8: pend += wdma(st + 3)
            if st == 6: assert len(Q) <= len(SET)
            if st == 5: pend += kdma(1) + vdma(0) + kdma(2)
            if st == 6: pend[0:0] = statld; pend += vdma(1) + kdma(3) + vdma(2)
print("fillers", NFILL, "left", len(Q), "dma left", len(pend), file=sys.stderr)
for i in range(8, 16): E(X.kread(0, i))
for l in XNST: E(l)
Q += [f"v_mov_b32 v{60+e}, v{72+e}" for e in range(4)]
S.drain()
stamp(3)
for s_ in range(4):
    E("s_waitcnt lgkmcnt(0)" if s_ != 1 else "s_nop 0")
    for qb in range(4):
        b = acc(2*s_, qb); st = vG + 4*qb
        for e in range(4):
            E(f"v_pk_fma_f32 v[{b+2*e}:{b+2*e+1}], v[{vC+(s_&1)*8+2*e}:{vC+(s_&1)*8+2*e+1}], v[{st}:{st+1}], v[{b+2*e}:{b+2*e+1}] op_sel:[0,0,0] op_sel_hi:[1,0,1]")
        if qb == 3 and s_ + 2 < 4:
            for l in csread(s_ + 2): E(l)
        for e in range(4):
            E(f"v_pk_mul_f32 v[{b+2*e}:{b+2*e+1}], v[{b+2*e}:{b+2*e+1}], v[{st}:{st+1}] op_sel:[0,1] op_sel_hi:[1,1]")
        q = r.vQ + qb*16 + s_*4
        for e in range(4): E(f"v_cvt_pk_bf16_f32 v{q+e}, v{b+2*e}, v{b+2*e+1}")
        one_dma()
    for qb in range(4):
        q = r.vQ + qb*16 + s_*4
        E(f"v_permlane16_swap_b32 v{q}, v{q+2}"); E(f"v_permlane16_swap_b32 v{q+1}, v{q+3}")
plain(pend); del pend[:]
stamp(2)
Q += [f"v_mov_b32 v{r.vL+i}, 0" for i in range(16)]
for qb in range(4):
    for s_ in range(4):
        D = v(r.vS + 48 + 4*qb, 4)
        S.gap(f"{MF} {D}, {a(aWF+4*s_,4)}, {v(r.vQ+qb*16+s_*4,4)}, {'0' if s_ == 0 else D}")
    if qb == 1:
        for q2 in range(4):
            b = r.vS + 48 + 4*q2
            Q += [f"v_max3_f32 v{b}, v{b}, v{b+1}, v{b+2}", f"v_max_f32 v{b}, v{b}, v{b+3}"] + [f"v_sub_f32 v{r.vM+4*q2+e}, 0, v{b}" for e in range(4)]
            if q2 == 1: hold = len(Q)
        tail = Q[hold:]; del Q[hold:]
Q += tail
S.drain()
E("s_nop 1")
stamp(3)
NT = 32
def emit_gaps(T, lo, hi, lead, mf):
    F = X.fillers(T, NT)
    for g in range(lo, hi):
        m = mf(g)
        if m: E(m)
        for f in lead.get(g, []):
            E(f)
            if not m and f.startswith("s_add_u32 m0"): E("s_nop 0")
        fs = F[g]
        if m and T == 0 and not fs and not lead.get(g): E("s_nop 0")
        if not m and fs and fs[0].startswith("v_cvt"): E("s_nop 0")
        for f in fs: E(f)
def gapsets(lo, hi):
    F = X.fillers(1, NT)
    ex = [g for g in range(lo, hi) if g in X.isexp]
    cv = [g for g in range(lo, hi) if g not in X.isexp and F[g]]
    em = [g for g in range(lo, hi) if g not in X.isexp and not F[g]]
    return ex, cv, em
NVE = 6
def pv_part(T, dmaslot, salu):
    lead = {}
    ex, cv, em = gapsets(64, 132)
    fg = sorted(cv + em)
    late = fg[-NVE:]
    em_e = [g for g in em if g not in late]
    L = X.dma(dmaslot) if dmaslot is not None else []
    dm = [L[i] for i in (1, 2, 3, 4, 6, 7, 8, 9)] if L else []
    step = len(em_e) / 8.0
    dg = [em_e[min(len(em_e) - 1, int(i*step) + 1)] for i in range(8)] if dm else []
    assert len(set(dg)) == len(dg)
    for s_, g in zip(dm, dg): lead.setdefault(g, []).append(s_)
    kg = [g for g in fg if g not in late and g not in dg]
    if T + 1 < NT:
        assert len(kg) >= 16
        for i in range(16): lead.setdefault(kg[i], []).append(X.kread(T + 1, i))
    if L:
        for mi, first in ((0, 0), (5, 4)):
            g = max(x for x in ex if x < dg[first]); lead.setdefault(g, []).append(L[mi])
            if first: assert g > dg[3]
        after = [x for x in ex if x > dg[7]]
        sal = [f"s_add_u32 s{r.sKoff}, s{r.sKoff}, s{r.sKinc}", f"s_add_u32 s{r.sVoff}, s{r.sVoff}, s{r.sVinc}"] + list(salu)
    else:
        after = ex[-8:]; sal = list(salu)
    assert len(after) > len(sal)
    for s_, g in zip(sal, after): lead.setdefault(g, []).append(s_)
    if T < NT:
        for i, g in enumerate(late): lead.setdefault(g, []).append(X.vread(T, i))
    assert 131 not in late
    if T + 1 < NT: lead.setdefault(131, []).insert(0, f"s_waitcnt lgkmcnt({NVE})")
    emit_gaps(T, 64, 132, lead, lambda g: X.pv(T - 1, g - 64) if T >= 1 else None)
def qk_part(T, sync=True, salu=None):
    lead = {}
    if salu: lead[61] = [salu]
    ex, cv, em = gapsets(0, 64)
    fg = sorted(cv + em)
    if T >= 1:
        for i in range(NVE, 32): lead.setdefault(fg[i - NVE], []).append(X.vread(T - 1, i))
    if sync:
        bg = opt["bgap"]
        if opt["bsplit"]:
            lead.setdefault(bg - 2, []).append("s_waitcnt vmcnt(16) lgkmcnt(0)")
            lead.setdefault(bg, []).append("s_barrier")
        else:
            lead.setdefault(bg, []).append("s_waitcnt vmcnt(16) lgkmcnt(0)")
            if opt["bar"]: lead[bg].append("s_barrier")
    emit_gaps(T, 0, 64, lead, lambda g: X.qk(g) if T < NT else None)
def wpiece(n, a0):
    p = (pWg, pWu)[n]
    return f"""s_cmp_eq_u32 s{sChunk}, -1
s_cbranch_scc1 L_wp{n}
s_mul_i32 s3, s{sWave}, {128*3584}
s_lshl_b32 s67, s{sChunk}, 4
s_add_u32 s3, s3, s67
s_lshr_b32 s68, s{r.sM0K}, 1
v_mul_u32_u24 v{a0}, 3584, v0
s_add_u32 m0, s68, {0x24000 + n*0x2000}
v_add_u32 v{a0}, s3, v{a0}
global_load_lds_dwordx4 v{a0}, s[{p}:{p+1}]
s_add_u32 m0, s68, {0x24400 + n*0x2000}
v_add_u32 v{a0}, {64*3584}, v{a0}
global_load_lds_dwordx4 v{a0}, s[{p}:{p+1}]""".split("\n")
HOOK = {}
if opt["onerow"]:
    M("v_and_b32 v224, 15, v0\nv_cmp_gt_u32 vcc, 2, v224\ns_nop 1")
    for e in range(4): E(f"v_cndmask_b32 v{r.vOne+e}, 0, v{r.vOne+e}, vcc")
    E("s_nop 1")
E("L_restart:")
pend += kdma(4) + vdma(3)
krel = sorted((48 + 4*(i >> 2) + ((3 - (i & 3)) if (i >> 2) & 1 else (i & 3)) + 1, i) for i in range(16))
vq = [X.vread(0, i) for i in range(NVE)]
ne, nc = 0, 0
for g in range(64):
    lead = []; budget = 2
    if g == 0: lead = [f"s_waitcnt vmcnt({vmn('k1', 'v0')})", "s_barrier"]
    else:
        if pend and pend[0].startswith("s_"): lead = [pend.pop(0)]
        elif pend and g % 4 == 2: lead = [pend.pop(0)]; budget = 0
        if budget:
            if vq and g < 8: lead += vq[:2]; del vq[:2]; budget = 0
            elif krel and krel[0][0] <= g and (2*nc + 2 < ne or len(krel) > 1 and krel[1][0] <= g):
                lead.append(X.kread(1, krel.pop(0)[1])); budget = 1
                if 2*nc + 2 >= ne: lead.append(X.kread(1, krel.pop(0)[1])); budget = 0
    if budget == 2 and g >= 4*(ne >> 2) + 7 and (ne - 2*nc < 5 or g >= 30):
        lead.append(X.exp(ne)); ne += 1
    else:
        while budget and 2*nc + 2 <= ne - (1 if False else 0) and nc < 30:
            lead.append(X.cvt(0, 2*nc + 1)); nc += 1; budget -= 1
    if not lead: lead = ["s_nop 0"]
    E(X.qk(g))
    for l in lead: E(l)
print("period0: exps", ne, "cvts", nc, "pend", len(pend), "krel", len(krel), "vq", len(vq), file=sys.stderr)
for _, i in krel: E(X.kread(1, i))
assert not vq and not pend
while ne < 61 or nc < 30:
    if 2*nc + 2 < ne or ne == 61: Q.append(X.cvt(0, 2*nc + 1)); nc += 1
    else: Q.append(X.exp(ne)); ne += 1
S.drain()
E("s_waitcnt lgkmcnt(0)")
if opt["moe"]:
    A(f"s_cmp_lg_u32 s{sFb}, 0"); A("s_cbranch_scc1 L_notouch")
    A(f"s_waitcnt vmcnt({S.vmn('xn')})")
    for l in KEYST: A(l)
    A("global_load_dword v23, v23, s[6:7]"); A.label("L_notouch")
assert S.vmn("k2", "v1") >= 16
r.vVDl = [20, 21, 1, 2]
stamp(3)
A.raw(".p2align 6")
for _ in range(opt["pad"]): E("s_nop 0")
A.label("L_loop")
for u in range(1, 5):
    qk_part(u, salu=(f"s_cmp_eq_u32 s{r.sIt}, 7" if u == 3 else None))
    if u == 3: E("s_cbranch_scc1 L_tail")
    sal = []
    if u == 2: sal = [f"s_bitcmp1_b32 s{sMask2}, s{r.sIt}"]
    if u == 3: sal = [f"s_cmp_eq_u32 s{r.sIt}, 6"]
    if u == 4: sal = [f"s_add_u32 s{r.sIt}, s{r.sIt}, 1", f"s_bitcmp1_b32 s{sMask4}, s{r.sIt}"]
    pv_part(u, None if opt["nodma"] else u & 3, sal)
    if u == 2: E("s_cbranch_scc1 L_disp2"); E("L_ret2:")
    if u == 3: E("s_cbranch_scc1 L_hook27"); E("L_ret3:")
E("s_cbranch_scc0 L_loop")
def wo_voff(dst):
    return f"""v_lshrrev_b32 v60, 3, v0
v_and_b32 v61, 7, v0
v_lshrrev_b32 v62, 1, v60
v_lshlrev_b32 v62, 1, v62
v_xor_b32 v62, v62, v61
v_lshlrev_b32 v62, 4, v62
v_lshl_add_u32 v{dst[0]}, v60, 10, v62""".split("\n") + [f"v_add_u32 v{dst[p]}, {7168*p}, v{dst[0]}" for p in range(1, 4)]
HOOK[27] = wo_voff([r.vKD + p for p in range(4)]) + [f"s_mov_b32 s{sK}, s{sWq}", f"s_mov_b32 s{sK+1}, s{sWq+1}", f"s_mov_b32 s{sK+2}, s{sWq+2}",
            f"s_mov_b32 s{r.sKoff}, 0", f"s_mov_b32 s{r.sKinc}, 0x8000"]
HOOK[28] = [f"v_mov_b32 v{r.vVDl[p]}, v{r.vKD+p}" for p in range(4)] + [f"s_mov_b32 s{sV}, s{sWq}", f"s_mov_b32 s{sV+1}, s{sWq+1}", f"s_mov_b32 s{sV+2}, s{sWq+2}",
            f"s_mov_b32 s{r.sVoff}, 0x10000", f"s_mov_b32 s{r.sKinc}, 0x10000", f"s_mov_b32 s{r.sVinc}, 0x10000"]
def H(T, txt): HOOK.setdefault(T, []).extend(l.strip() for l in txt.strip().split("\n") if l.strip())
SEL = [4, 5, 6, 7, 42, 43, 48, 49]; sSelMine = 66
TF, TP, TK, TS = opt['TF'], opt['TP'], 2, 10
ROLE = {}
NLOG2E = fbits(-1.4426950408889634)
if opt["moe"]:
    ROLE.update({TK: "R", TK + 4: "R", TS + 4: "F", TF: "F"})
    H(TK, f"""s_add_u32 m0, s{r.sM0K}, 0x20000
    s_add_u32 s3, s{r.sM0K}, {WS_KEY}""")
    HOOK[TK] += [f"buffer_load_dwordx4 v3, s[{sW}:{sW+3}], s3 offen offset:{p*1024} sc1 lds" for p in range(4)]
    KQ = [128 + 4*n for n in range(15)] + [224]
    chk = ["v_mov_b32 v228, 0"] + [f"v_bitop3_b32 v228, v228, v{q+2}, s{sNonce} bitop3:0xf6" for q in KQ] + ["v_cmp_ne_u32 vcc, 0, v228"]
    H(TK + 4, "v_add_u32 v229, 0x20000, v3")
    HOOK[TK + 4] += [f"ds_read_b128 {v(q,4)}, v229 offset:{n*1024}" for n, q in enumerate(KQ)]
    H(TK + 4, f"""s_and_b32 s3, s2, 7
    s_lshl_b32 s3, s3, 2
    s_bfe_u32 s67, s2, 0x20003
    s_add_u32 s3, s3, s67
    s_lshl_b32 s3, s3, 2
    s_add_u32 s3, s3, s{sWave}
    s_lshl_b32 s3, s3, 7
    v_bfe_u32 v232, v0, 1, 3
    v_and_b32 v233, 1, v0
    v_lshlrev_b32 v233, 2, v233
    v_lshl_add_u32 v232, v232, 4, v233
    v_add_u32 v232, s3, v232
    v_add_u32 v233, 0x20000, v232
    ds_read_b32 v234, v233
    s_waitcnt lgkmcnt(0)""")
    HOOK[TK + 4] += chk
    H(TK + 4, f"""s_cbranch_vccnz L_key_retry
    L_key_ok:
    v_mov_b32 v235, v234
    v_max_u32 v228, v{KQ[0]}, v{KQ[0]+1}""")
    mx = [f"v_max3_u32 v228, v228, v{q}, v{q+1}" for q in KQ[1:]]
    for n, m_ in enumerate(("quad_perm:[1,0,3,2]", "quad_perm:[2,3,0,1]", "row_half_mirror", "row_mirror")):
        mx.insert(3*n + 2, f"v_max_u32_dpp v235, v235, v235 {m_} row_mask:0xf bank_mask:0xf")
    HOOK[TK + 4] += mx
    H(TK + 4, f"""v_cmp_lt_u32 vcc, v235, v228
    s_bcnt1_i32_b64 s3, vcc
    s_cmp_lt_u32 s3, 8
    s_cbranch_scc1 L_rank
    L_rank_done:""")
    cold += ["L_key_retry:"] + spin("", "L_key_ok")
    for n, q in enumerate(KQ):
        if n % 4 == 0: cold += [f"s_mov_b32 s3, {WS_KEY + n*1024}"]
        cold += [f"buffer_load_dwordx4 {v(q,4)}, v3, s[{sW}:{sW+3}], s3 offen offset:{(n%4)*1024} sc1"]
    cold += ["s_waitcnt vmcnt(0)"] + chk + ["s_cbranch_vccnz L_key_retry", f"s_mov_b32 s3, {WS_KEY}",
             f"buffer_load_dword v234, v232, s[{sW}:{sW+3}], s3 offen sc1", "s_waitcnt vmcnt(0)", "s_branch L_key_ok"]
    cold += ["L_rank:", "s_mov_b32 s4, 0", "L_rank_row:", f"v_readlane_b32 s{sKey0}, v234, s4", "s_mov_b32 s68, 0", "s_nop 0",
             f"v_cmp_lt_u32 vcc, s{sKey0}, v228", "s_bcnt1_i32_b64 s3, vcc", "s_cmp_ge_u32 s3, 8", "s_cbranch_scc1 L_rank_next"]
    for q in KQ:
        for e in range(2): cold += [f"v_cmp_lt_u32 vcc, s{sKey0}, v{q+e}", "s_bcnt1_i32_b64 s3, vcc", "s_add_u32 s68, s68, s3"]
    cold += f"""s_cmp_ge_u32 s68, 8
s_cbranch_scc1 L_rank_next
s_not_b32 s3, s{sKey0}
s_xor_b32 s67, s{sKey0}, 0x80000000
s_bitcmp1_b32 s{sKey0}, 31
s_cselect_b32 s3, s67, s3
s_and_b32 s3, s3, 0xffff0000
v_mov_b32 v230, {NLOG2E}
v_mul_f32 v230, s3, v230
v_exp_f32 v230, v230
s_andn2_b32 s67, 0x7ff, s{sKey0}
v_add_f32 v230, 1.0, v230
v_rcp_f32 v230, v230
s_lshl_b32 s68, s68, 3
v_cvt_pk_bf16_f32 v230, v230, v230
v_and_b32 v230, 0xffff0000, v230
v_or_b32 v230, s67, v230
v_mov_b32 v231, s{sNonce}
s_add_u32 s68, s68, {WS_SEL}
s_mov_b64 exec, 1
buffer_store_dwordx2 v[230:231], off, s[{sW}:{sW+3}], s68 sc1
s_mov_b64 exec, -1
L_rank_next:
s_add_u32 s4, s4, 1
s_cmp_lt_u32 s4, 16
s_cbranch_scc1 L_rank_row
s_branch L_rank_done""".split("\n")
    selld = f"buffer_load_dwordx2 v[60:61], v128, s[{sW}:{sW+3}], 0 offen sc1"
    seladdr = ["v_and_b32 v128, 7, v0", "v_lshlrev_b32 v128, 3, v128", f"v_add_u32 v128, {WS_SEL}, v128"]
    HOOK[TS] = seladdr + [selld]
    HOOK[TS] += wpiece(0, 128)
    H(TS, f"""v_lshrrev_b32 v130, 4, v0
    v_and_b32 v131, 15, v0
    v_lshlrev_b32 v131, 4, v131
    v_lshl_add_u32 v130, v130, 10, v131
    s_lshl_b32 s3, s{sChunk}, 13
    s_lshl_b32 s67, s{sWave}, 8
    s_add_u32 s3, s3, s67
    v_add_u32 v130, s3, v130
    s_add_u32 m0, s68, 0x22000
    v_add_u32 v131, 4096, v130
    global_load_lds_dwordx4 v130, s[{pWd}:{pWd+1}]
    s_add_u32 m0, s68, 0x22400
    s_nop 0
    global_load_lds_dwordx4 v131, s[{pWd}:{pWd+1}]
    L_wp0:""")
    H(TS + 2, f"""s_waitcnt vmcnt(16)
    v_cmp_ne_u32 vcc, s{sNonce}, v61
    s_cbranch_vccnz L_sel_retry
    L_sel_ok:
    s_and_b32 s3, s2, 1
    s_lshl_b32 s3, s3, 2
    s_add_u32 s3, s3, s{sWave}
    v_and_b32 v128, 0xffff, v60
    v_readlane_b32 s{sSelMine}, v60, s3""")
    HOOK[TS + 2] += [f"v_readlane_b32 s{SEL[t]}, v128, {t}" for t in range(8)]
    HOOK[TS + 2] += wpiece(1, 129)
    H(TS + 2, f"""v_lshrrev_b32 v129, 4, v0
    v_bfe_u32 v130, v0, 3, 1
    v_lshlrev_b32 v129, 4, v129
    v_lshl_add_u32 v129, v130, 6, v129
    v_lshl_add_u32 v128, v128, 10, v129
    s_lshl_b32 s3, s{sWave}, 8
    s_add_u32 s3, s3, {WS_XN}
    s_add_u32 m0, s68, 0x20000
    s_add_u32 s67, s3, 128
    buffer_load_dwordx4 v128, s[{sW}:{sW+3}], s3 offen sc1 lds
    s_add_u32 m0, s68, 0x20400
    s_nop 0
    buffer_load_dwordx4 v128, s[{sW}:{sW+3}], s67 offen sc1 lds
    L_wp1:""")
    cold += ["L_sel_retry:"] + spin("", "L_sel_ok") + seladdr + [selld, "s_waitcnt vmcnt(0)", f"v_cmp_ne_u32 vcc, s{sNonce}, v61",
             "s_cbranch_vccnz L_sel_retry", "s_branch L_sel_ok"]
    H(TS + 4, f"""    s_lshr_b32 s68, s{r.sM0K}, 1
    v_lshrrev_b32 v224, 4, v0
    v_and_b32 v225, 15, v0
    v_lshrrev_b32 v226, 2, v225
    v_and_b32 v227, 3, v0
    v_lshl_add_u32 v228, v224, 3, v226
    v_lshlrev_b32 v228, 4, v228
    v_and_b32 v229, 1, v0
    v_lshl_add_u32 v228, v229, 3, v228
    v_bfe_u32 v229, v0, 1, 1
    v_lshl_add_u32 v228, v229, 13, v228
    s_add_u32 s3, s68, 0x24000
    v_add_u32 v228, s3, v228
    v_and_b32 v229, 0x37, v0
    s_add_u32 s3, s68, 0x20000
    v_lshl_add_u32 v229, v229, 4, s3
    v_lshl_add_u32 v230, v224, 1, v226
    v_and_b32 v230, 7, v230
    v_lshlrev_b32 v230, 8, v230
    v_lshl_add_u32 v230, v227, 3, v230
    s_add_u32 s67, s68, 0x22000
    v_add_u32 v230, s67, v230
    STAMP
    s_waitcnt vmcnt(16)
    STAMP""")
    for ks in range(4):
        HOOK[TS + 4] += [f"ds_read_b64_tr_b16 v[{128+4*ks}:{129+4*ks}], v228 offset:{ks*512}", f"ds_read_b64_tr_b16 v[{130+4*ks}:{131+4*ks}], v228 offset:{ks*512+64}",
                    f"ds_read_b128 {v(144+4*ks,4)}, v229 offset:{(ks>>1)*1024 + (ks&1)*128}"]
    H(TS + 4, f"""v_lshl_add_u32 v231, v0, 4, s3
    v_lshrrev_b32 v232, 1, v224
    v_lshl_add_u32 v232, v232, 4, v225
    v_lshlrev_b32 v232, 4, v232
    v_and_b32 v233, 1, v224
    v_lshl_add_u32 v232, v233, 3, v232
    v_add_u32 v232, 0x20000, v232
    s_waitcnt lgkmcnt(0)""")
    for ks in range(4): HOOK[TS + 4] += [f"{MF} v[160:163], {v(128+4*ks,4)}, {v(144+4*ks,4)}, {'0' if ks == 0 else 'v[160:163]'}"]
    HOOK[TS + 4] += [f"ds_read_b64_tr_b16 v[{164+2*nb}:{165+2*nb}], v230 offset:{nb*32}" for nb in range(8)]
    H(TS + 4, f"""ds_write_b128 v231, v[160:163]
    s_waitcnt lgkmcnt(0)
    STAMP
    s_barrier
    STAMP""")
    for src in range(4):
        HOOK[TS + 4] += [f"ds_read_b64 v[{128+4*src}:{129+4*src}], v232 offset:{src*2048}", f"ds_read_b64 v[{130+4*src}:{131+4*src}], v232 offset:{src*2048+512}"]
    H(TS + 4, f"""v_and_b32 v233, 7, v0
    v_lshlrev_b32 v233, 4, v233
    v_lshl_add_u32 v233, v224, 7, v233
    v_lshrrev_b32 v234, 3, v225
    v_lshl_add_u32 v233, v234, 9, v233
    v_cmp_eq_u32 vcc, 0, v234
    s_lshl_b32 s3, s{sChunk}, 14
    s_add_u32 s3, s3, s{r.sM0K}
    s_add_u32 s3, s3, {WS_PART}
    v_mov_b32 v145, 0
    v_mov_b32 v147, 0
    s_waitcnt lgkmcnt(0)""")
    for e in range(4): HOOK[TS + 4] += [f"v_add_f32 v{128+e}, v{128+e}, v{132+e}", f"v_add_f32 v{136+e}, v{136+e}, v{140+e}"]
    for e in range(4): HOOK[TS + 4] += [f"v_add_f32 v{128+e}, v{128+e}, v{136+e}"]
    H(TS + 4, f"""v_cvt_pk_bf16_f32 v132, v128, v129
    v_cvt_pk_bf16_f32 v133, v130, v131""")
    HOOK[TS + 4] += unpack(128, 132, 2)
    H(TS + 4, f"""v_mul_f32 v132, {NLOG2E}, v128
    v_mul_f32 v133, {NLOG2E}, v129
    v_exp_f32 v132, v132
    v_exp_f32 v133, v133
    v_add_f32 v132, 1.0, v132
    v_add_f32 v133, 1.0, v133
    v_rcp_f32 v132, v132
    v_rcp_f32 v133, v133
    v_mul_f32 v128, v128, v132
    v_mul_f32 v129, v129, v133
    v_cvt_pk_bf16_f32 v132, v128, v129
    v_lshlrev_b32 v128, 16, v132
    v_and_b32 v129, 0xffff0000, v132
    v_mul_f32 v128, v128, v130
    v_mul_f32 v129, v129, v131
    v_cvt_pk_bf16_f32 v146, v128, v129
    v_cndmask_b32 v144, 0, v146, vcc
    v_cndmask_b32 v146, v146, 0, vcc
    s_nop 1""")
    for j in range(4):
        HOOK[TS + 4] += [f"v_mfma_f32_16x16x16_bf16 {v(128+4*j,4)}, v[{164+4*j}:{165+4*j}], v[144:145], 0",
                    f"v_mfma_f32_16x16x16_bf16 {v(128+4*j,4)}, v[{166+4*j}:{167+4*j}], v[146:147], {v(128+4*j,4)}"]
    H(TS + 4, "STAMP\ns_nop 4")
    for j in range(4): HOOK[TS + 4] += [f"buffer_store_dwordx4 {v(128+4*j,4)}, v233, s[{sW}:{sW+3}], s3 offen offset:{j*1024} sc1"]
    H(TS + 4, "s_nop 0")
    H(TF, f"""    s_lshl_b32 s3, s{sWave}, 8
    s_add_u32 s3, s3, s{sChunk}
    s_lshl_b32 s3, s3, 2
    s_add_u32 s3, s3, {WS_FC}
    v_mov_b32 v128, s{sNonce}
    s_waitcnt vmcnt(16)
    s_mov_b64 exec, 1
    buffer_store_dword v128, off, s[{sW}:{sW+3}], s3 sc1
    s_mov_b64 exec, -1""")
    fcaddr = ["v_min_u32 v128, 55, v0", "v_lshlrev_b32 v128, 4, v128", "s_lshr_b32 s3, s2, 6", "s_lshl_b32 s3, s3, 10", f"s_add_u32 s3, s3, {WS_FC}"]
    fcld = f"buffer_load_dwordx4 v[60:63], v128, s[{sW}:{sW+3}], s3 offen sc1"
    fcchk = [f"v_xor_b32 v129, s{sNonce}, v60"] + [f"v_bitop3_b32 v129, v129, v{61+e}, s{sNonce} bitop3:0xf6" for e in range(3)] + ["v_cmp_ne_u32 vcc, 0, v129"]
    HOOK.setdefault(TP, []).extend(fcaddr + [fcld])
    HOOK.setdefault(TP + 2, []).extend(["s_waitcnt vmcnt(16)"] + fcchk)
    H(TP + 2, f"""s_cbranch_vccnz L_fc_retry
    L_fc_ok:
    v_lshrrev_b32 v128, 2, v0
    v_and_b32 v129, 3, v0
    v_lshlrev_b32 v129, 4, v129
    v_lshl_add_u32 v128, v128, 14, v129
    s_lshl_b32 s3, s2, 6
    s_lshl_b32 s67, s{sWave}, 18
    s_add_u32 s3, s3, s67
    s_add_u32 s3, s3, {WS_PART}
    s_lshr_b32 s68, s{r.sM0K}, 2""")
    for k in range(4):
        HOOK[TP + 2] += [f"s_add_u32 m0, s68, {0x20000 + k*4096}", f"s_add_u32 s67, s3, {k << 20}"]
        if k == 3: HOOK[TP + 2] += [f"s_cmp_lt_u32 s{sWave}, 2", "s_cselect_b32 s67, s67, 0x40000000"]
        HOOK[TP + 2] += [f"buffer_load_dwordx4 v128, s[{sW}:{sW+3}], s67 offen sc1 lds"]
    cold += ["L_fc_retry:"] + spin("", "L_fc_ok") + fcaddr + [fcld, "s_waitcnt vmcnt(0)"] + fcchk + ["s_cbranch_vccnz L_fc_retry", "s_branch L_fc_ok"]
    H(TP + 5, f"""s_cmp_lg_u32 s{sFb}, 0
    s_cbranch_scc1 L_s4_done
    s_lshl_b32 s3, s{sWave}, 4
    s_add_u32 s3, s3, 0x20000
    v_lshl_add_u32 v144, v0, 6, s3""")
    HOOK[TP + 5] += [f"ds_read_b128 {v(128+4*k,4)}, v144 offset:{k*4096}" for k in range(4)]
    H(TP + 5, f"""s_and_b32 s3, s2, 1
    s_lshl_b32 s3, s3, 2
    s_add_u32 s3, s3, s{sWave}
    s_lshl_b32 s3, s3, 7
    s_lshr_b32 s67, s2, 1
    s_add_u32 s3, s3, s67
    s_lshl_b32 s3, s3, 4
    s_add_u32 s3, s3, {WS_UPD}
    s_and_b32 s67, s{sSelMine}, 0xffff0000
    s_waitcnt lgkmcnt(0)""")
    for e in range(4): HOOK[TP + 5] += [f"v_add_f32 v{128+e}, v{128+e}, v{132+e}", f"v_add_f32 v{136+e}, v{136+e}, v{140+e}"]
    for e in range(4): HOOK[TP + 5] += [f"v_add_f32 v{128+e}, v{128+e}, v{136+e}"]
    for tup in zip(*[wave_sum(128 + e, 0)[:-1] for e in range(4)]): HOOK[TP + 5] += list(tup)
    H(TP + 5, "v_cvt_pk_bf16_f32 v132, v128, v129\nv_cvt_pk_bf16_f32 v133, v130, v131")
    HOOK[TP + 5] += unpack(128, 132, 2) + [f"v_mul_f32 v{128+e}, s67, v{128+e}" for e in range(4)]
    H(TP + 5, f"""v_cvt_pk_bf16_f32 v132, v128, v129
    v_cvt_pk_bf16_f32 v133, v130, v131
    v_mov_b32 v134, s{sNonce}
    v_mov_b32 v135, s{sNonce}
    s_lshl_b64 exec, 1, 63
    buffer_store_dwordx4 v[132:135], off, s[{sW}:{sW+3}], s3 sc1
    s_mov_b64 exec, -1
    L_s4_done:""")
if opt["wtouch"]:
    for n, T in enumerate(eval(opt_s["wT"])):
        if opt["varb"]:
            HOOK.setdefault(T, []).extend(["s_and_b32 s3, s2, 0xf8", "s_lshl_b32 s3, s3, 1", f"s_lshl_b32 s67, s{sWave}, 10", "s_add_u32 s3, s3, s67", f"s_add_u32 s3, s3, {512*n}",
                "s_lshl_b32 s3, s3, 1", "s_and_b32 s67, s2, 1", "s_add_u32 s3, s3, s67", "s_lshl_b32 s3, s3, 9",
                "v_lshrrev_b32 v180, 2, v0", "v_and_b32 v181, 3, v0", "v_lshlrev_b32 v181, 7, v181", "v_lshl_add_u32 v180, v180, 10, v181",
                "v_add_u32 v180, s3, v180", f"global_load_dword v23, v180, s[{pWo}:{pWo+1}]"])
        else:
            HOOK.setdefault(T, []).extend(["s_and_b32 s3, s2, 0xf8", f"s_lshl_b32 s67, s{sWave}, 10", "s_add_u32 s3, s3, s67", f"s_add_u32 s3, s3, {256*n}", "s_lshl_b32 s3, s3, 10",
                "v_lshl_add_u32 v180, v0, 7, s3", f"global_load_dword v23, v180, s[{pWo}:{pWo+1}]"])
if opt["stamp"] & 8:
    Ts = eval(opt_s["hs"])
    def st_(i): return [f"{CLK} s[{70+2*i}:{71+2*i}]", "s_waitcnt lgkmcnt(0)"]
    i = 1
    for T in Ts:
        body = []
        for l in HOOK[T]:
            if l.startswith("STAMP"):
                body += st_(i + 1); i += 1
            else: body.append(l)
        k = sum(l.startswith("STAMP") for l in HOOK[T])
        HOOK[T] = st_(i - k) + body + st_(i + 1); i += 2
    nstamp[0] = i
for T in HOOK: HOOK[T] = [l for l in HOOK[T] if not l.startswith("STAMP")]
def emit_hooks():
    msk = {}
    for site in (4, 2):
        Ts = sorted(T for T in HOOK if T % 4 == site % 4)
        msk[site] = {ro: sum(1 << (T // 4) for T in Ts if ROLE.get(T, ro) == ro) for ro in "FR"}
        E(f"L_disp{site}:")
        first = min(HOOK)
        for T in Ts:
            if site == 2 and T == first: continue
            if T == Ts[-1] and not (site == 2 and first in Ts): E(f"s_branch L_hook{T}")
            else: E(f"s_cmp_eq_u32 s{r.sIt}, {T // 4}"); E(f"s_cbranch_scc1 L_hook{T}")
        if not Ts: E("s_branch " + ("L_ret2" if site == 2 else "L_loop"))
    for T in sorted(HOOK):
        E(f"L_hook{T}:")
        for l in HOOK[T]: E(l)
        E("s_branch " + {2: "L_ret2", 3: "L_ret3", 0: "L_loop"}[T % 4])
    return msk[2], msk[4]
m2, m4 = emit_hooks()
A.label("L_tail")
S.vm[:] = ["wo0"]*4 + ["v31"]*4 + [f"wo{k}" for k in range(1, 5) for _ in range(4)]
sOoff = 63
vWo, vWr, vOq, vFl = r.vKD, 48, 4, 44
VA, VB, VC, AA, AB, AC, AD = ("v", 64), ("v", 128), ("v", 192), ("a", 0), ("a", 64), ("a", 128), ("a", 192)
def blk(B, off, n): return (v if B[0] == "v" else a)(B[1] + off, n)
WBLK = [VA, AA, AD, VC]; ACC = AC
NU = 10
UNIT = [0, 1, 5, 2, 6, 3, 7, 8, 4, 9]
def wo_dma(kk):
    L = [f"s_add_u32 m0, s{r.sM0K}, {UNIT[kk % NU]*16384}"]
    L += [f"buffer_load_dwordx4 v{vWo+p}, s[{sWq}:{sWq+3}], s{sWoff} offen offset:{p*1024} lds ; wo{kk}" for p in range(4)]
    L += [f"s_add_u32 s{sWoff}, s{sWoff}, 0x8000"]
    return L
def wo_reads(kk):
    u = UNIT[kk % NU]; B = WBLK[(kk >> 2) & 3]
    return [f"ds_read_b64_tr_b16 {blk(B, (nb*4 + (kk & 3))*4 + 2*half, 2)}, v{vWr + 4*(u >> 2) + nb} offset:{(u & 3)*16384 + half*2048} ; r{kk}"
            for nb in range(4) for half in range(2)]
OBUF = [("a", 64), ("a", 80), ("a", 96), ("a", 112), ("v", 128), ("v", 144)][:opt["look"] + 1]
def o_loads(z):
    B = OBUF[z % len(OBUF)]
    L = [f"buffer_load_dwordx4 {blk(B, i*4, 4)}, v{vOq+(z&3)}, s[{sW}:{sW+3}], s{sOoff} offen offset:{i*1024} sc1 ; o{z}" for i in range(4)]
    return L + (o_next() if z & 3 == 3 else [])
def o_next(): return [f"s_add_u32 s{sOoff}, s{sOoff}, 0x1000"]
L_ = r.vL
vXo, vXr, vGf, vSt = 45, 20, 176, 46
vU, vRow, vSa, vC3, vUa, vUt, vT, vN = 160, 12, 14, 3, 15, 11, 10, 13
setup1 = f"""s_mov_b32 s{sWoff}, {5*0x8000}
s_lshl_b32 s3, s{sQb}, 2
s_add_u32 s3, s3, s{sWave}
s_lshl_b32 s69, s3, 5
s_add_u32 s69, s69, s{sHead}
s_lshl_b32 s69, s69, 7
s_add_u32 s69, s69, {WS_FLAG}
s_lshl_b32 s3, s3, 7
s_add_u32 s3, s3, s{sHead}
s_lshl_b32 s68, s3, 12
s_lshl_b32 s{sOoff}, s{sQt}, 19
s_lshl_b32 s3, s{sWave}, 15
s_add_u32 s{sOoff}, s{sOoff}, s3""".split("\n")
setupO = [f"v_mov_b32 v{vOq}, v3"] + [f"v_add_u32 v{vOq+qb}, {qb*0x20000}, v3" for qb in range(1, 4)]
setup2 = f"""v_lshrrev_b32 v1, 4, v0
v_and_b32 v2, 15, v0
v_and_b32 v9, 7, v0
v_lshrrev_b32 v8, 2, v2
v_lshl_add_u32 v8, v1, 2, v8
v_bfe_u32 v10, v8, 1, 2
v_lshlrev_b32 v8, 7, v8
v_and_b32 v{vC3}, 3, v0
v_lshl_add_u32 v8, v{vC3}, 3, v8
v_add_u32 v8, s{r.sM0K}, v8""".split("\n")
for nb in range(4):
    setup2 += [f"v_xor_b32 v11, {nb}, v10", f"v_lshl_add_u32 v{vWr+nb}, v11, 5, v8",
               f"v_add_u32 v{vWr+4+nb}, 0x10000, v{vWr+nb}", f"v_add_u32 v{vWr+8+nb}, 0x20000, v{vWr+nb}"]
setup2 += [f"s_lshl_b32 s3, s{sQt}, 5", f"s_lshl_b32 s67, s{sWave}, 3", "s_add_u32 s3, s3, s67", "v_add_u32 v9, s3, v9",
           f"v_lshlrev_b32 v{vFl}, 7, v9", f"v_add_u32 v{vFl}, {WS_FLAG}, v{vFl}",
           f"s_lshl_b32 s3, s{sWave}, 2", "s_add_u32 s3, s3, 0x24000", f"v_lshl_add_u32 v192, v{vC3}, 12, s3",
           f"s_add_u32 s3, s{r.sM0K}, 0x24000", "v_mov_b32 v193, s3"]
FS = f"""s_and_b32 s1, s{sNt}, {opt['qrot']}
s_lshl_b32 s3, s{sQt}, 2
s_add_u32 s3, s3, s{sWave}
s_xor_b32 s3, s3, s1
s_lshl_b32 s1, s1, 17
s_lshl_b32 s3, s3, 4
v_lshrrev_b32 v{vRow}, 2, v0
v_add_u32 v{vRow}, s3, v{vRow}
v_lshlrev_b32 v{vSa}, 3, v{vRow}
v_add_u32 v{vSa}, {WS_STAT}, v{vSa}
s_lshl_b32 s3, s{sNt}, 7
v_lshl_add_u32 v{vT}, v{vC3}, 5, s3
v_lshl_add_u32 v{vXo}, v{vRow}, 10, v{vT}
v_mov_b32 v{vN}, s{sNonce}
global_load_dwordx4 v[{vXr}:{vXr+3}], v{vXo}, s[{pX}:{pX+1}] ; xf
global_load_dwordx4 v[{vXr+4}:{vXr+7}], v{vXo}, s[{pX}:{pX+1}] offset:16 ; xf
buffer_load_dwordx2 v[{vSt}:{vSt+1}], v{vSa}, s[{sW}:{sW+3}], 0 offen sc1 ; xf""".split("\n")
updld = [f"buffer_load_dwordx4 {v(vU+4*k,4)}, v{vUa}, s[{sW}:{sW+3}], s67 offen offset:{16*k} sc1" for k in range(4)] if opt["moe"] else []
updchk = [f"v_xor_b32 v{vT}, s{sNonce}, v{vSt+1}"]
FU = []
if opt["moe"]:
    FU += [f"v_mov_b32 v{vUa}, 0x200000"]
    for t_ in range(8): FU += [f"v_cmp_eq_u32 vcc, s{SEL[t_]}, v{vRow}", f"v_mov_b32 v{vT}, {t_*32}", f"v_cndmask_b32 v{vUa}, v{vUa}, v{vT}, vcc"]
    FU += f"""v_cmp_gt_u32 vcc, 0x1000, v{vUa}
v_add_u32 v{vUa}, v{vUa}, v{vC3}
v_lshlrev_b32 v{vUa}, 6, v{vUa}
v_cndmask_b32 v{vUt}, 0, v{vN}, vcc
v_mov_b32 v{vT}, 0x40000000
v_cndmask_b32 v{vUa}, v{vT}, v{vUa}, vcc
s_lshl_b32 s67, s{sNt}, 8
s_add_u32 s67, s67, {WS_UPD}""".split("\n") + [l + " ; xf" for l in updld]
    updchk += [f"v_bitop3_b32 v{vT}, v{vT}, v{vU+4*k+2}, v{vUt} bitop3:0xf6" for k in range(4)]
updchk += [f"v_cmp_ne_u32 vcc, 0, v{vT}"]
def pv2(T, qb, db, ks):
    base = r.aV if T == 30 else r.aK
    D = a(r.aO + qb*32 + db*4, 4)
    return f"{MF} {D}, {a(base+4*(ks*8+db),4)}, {v(r.vP+(T&1)*32+qb*8+ks*4,4)}, {D}"
def v31(i): return X.vread(31, i).replace(a(r.aV + 4*(((i >> 1) & 1)*8 + (i >> 2)) + 2*(i & 1), 2), a(r.aK + 4*(((i >> 1) & 1)*8 + (i >> 2)) + 2*(i & 1), 2)) + f" ; v31_{i >> 2}"
nst = [0]
OSP = [" sc1", " sc0 sc1", " sc1 nt", "", " nt"][opt["osp"]]
def epi(qb):
    L = []
    for i4 in range(4):
        t = r.vS; o = r.vS + 8 + (nst[0] & 1)*4; nst[0] += 1
        L += [f"v_accvgpr_read_b32 v{t+e}, a{r.aO+qb*32+8*i4+e}" for e in range(8)]
        L += [f"v_mul_f32 v{t+e}, v{60+qb}, v{t+e}" for e in range(8)]
        L += [f"v_cvt_pk_bf16_f32 v{o+e}, v{t+2*e}, v{t+2*e+1}" for e in range(4)]
        L += [f"buffer_store_dwordx4 {v(o,4)}, v{vOq+qb}, s[{sW}:{sW+3}], s68 offen offset:{i4*1024}{OSP} ; ost"]
    return L
def smx(lo, hi):
    L = []
    for k in range(lo, hi):
        L.append(X.exp(k))
        if k % 2 == 0 and k > lo: L.append(X.cvt(31, k - 1))
    return L + [X.cvt(31, hi - 1)]
def rsum(qb): return [f"v_add_f32 v{L_+4*qb}, v{L_+4*qb}, v{L_+4*qb+1}", f"v_rcp_f32 v{60+qb}, v{L_+4*qb}"]
def dmaf(kk):
    L = wo_dma(kk)
    return [[L[0], "s_nop 0", L[1]], L[2], L[3], [L[4], L[5]]]
def weave(*lists):
    items = sorted(((i + 0.5) / len(L), n, i) for n, L in enumerate(lists) if L for i in range(len(L)))
    return [lists[n][i] for _, n, i in items]
def qcost(): return sum(len(f) if isinstance(f, list) else (1 if callable(f) else (0 if f.endswith(":") else S.cost(f))) for f in Q)
def chains(CH):
    for c, ch in enumerate(CH):
        for n, m in enumerate(ch):
            if n < len(ch) - 1: S.gap(m)
            else:
                left = len(CH) - c
                small = sum(2*(len(x) - 1) for x in CH[c+1:])
                S.gap(m, budget=max(2, -(-(qcost() - small*3//4) // left)), big=True)
    S.drain()
eg = X.sched()
assert eg[27] == 63
seq = [pv2(30, 0, j >> 1, (j & 1) ^ ((j >> 1) & 1)) for j in range(16)] + [X.pv(30, 16)]
su = list(setup1)
for n, m in enumerate(seq):
    E(m)
    if su: E(su.pop(0))
    if n < 16: E(v31(2*n)); E(v31(2*n + 1))
    else: E(X.cvt(31, 27)); E(setupO[0])
Q += smx(28, 32) + setupO[1:] + [None]
for n, m in enumerate([X.pv(31, 16)] + [pv2(31, 0, j >> 1, (j & 1) ^ ((j >> 1) & 1)) for j in range(16)]):
    lead = []
    if n in (0, 4, 8): lead = [f"s_waitcnt lgkmcnt({S.lgn('v31_' + str({0: 1, 4: 3, 8: 7}[n]))})"]
    if n == 9: Q.pop(); Q += rsum(0) + dmaf(5)
    S.gap(m, lead)
carry = list(Q); del Q[:]
def qchains(qb):
    CH = [[X.pv(30, 17*qb + 16), X.pv(31, 17*qb + 16)]]
    for db in range(8):
        o = [(30, 0), (30, 1), (31, 0), (31, 1)]
        CH.append([pv2(T, qb, db, ks) for T, ks in (o[::-1] if db & 1 else o)])
    return CH
Q += carry + weave(epi(0), smx(32, 48), dmaf(6)) + rsum(1)
chains(qchains(1))
Q += weave(epi(1), smx(48, 64) + setup2[-5:-5], dmaf(7), setup2) + rsum(2)
chains(qchains(2))
e2 = epi(2)
vote = rsum(3) + [f"v_add_f32 v194, v{L_}, v{L_+4}", f"v_add_f32 v195, v{L_+8}, v{L_+12}", "v_add_f32 v194, v194, v195",
        f"v_cmp_ngt_f32 vcc, {'0' if opt['forcefb'] else '0x5f800000'}, v194", "s_or_b32 s3, vcc_lo, vcc_hi", "v_mov_b32 v194, s3", "ds_write_b32 v192, v194"]
def wrd(kk): return [lambda: f"s_waitcnt vmcnt({S.vmn(f'wo{kk}')})"] + [list(p) for p in zip(wo_reads(kk)[0::2], wo_reads(kk)[1::2])]
Q += e2[:10] + vote + e2[10:30] + [["s_waitcnt lgkmcnt(0)", "s_barrier", "ds_read_b128 v[196:199], v193"]] + weave(e2[30:52], dmaf(8)) + \
     ["s_waitcnt lgkmcnt(0)", "v_or3_b32 v196, v196, v197, v198", "v_or_b32 v196, v196, v199", "v_cmp_ne_u32 vcc, 0, v196", "s_cbranch_vccnz L_fallback", "L_safe:"] + \
     weave(e2[52:], FS, wrd(0) + wrd(1))
chains(qchains(3))
stamp(1)
xd = []
for kk in range(NU, NU + opt["fx"]): xd += [lambda kk=kk: f"s_waitcnt lgkmcnt({S.lgn(f'r{kk-NU}')})"] + dmaf(kk)
Q += weave(epi(3), dmaf(9) + xd, wrd(2) + wrd(3) + wrd(4) + wrd(5))
S.drain()
stamp(1)
NPRE = opt["npre"]
nextrd = [6]; nextdma = [NU + opt["fx"]]
def stage(nops, filler=()):
    filler = list(filler)
    per = -(-len(filler) // max(1, nops))
    for _ in range(nops):
        if not any(l.startswith("buffer") for l in pend):
            if nextdma[0] >= NPRE: break
            kk = nextdma[0]
            if nextrd[0] < min(16, kk - NU + 3):
                k2 = nextrd[0]
                E(f"s_waitcnt vmcnt({vmn(f'wo{k2}')})")
                for l in wo_reads(k2): E(l)
                nextrd[0] += 1
            E(f"s_waitcnt lgkmcnt({S.lgn(f'r{kk-NU}')})")
            pend.extend(wo_dma(kk)); nextdma[0] += 1
        one_dma()
        for f in filler[:per]:
            while not S.ok(f): E("s_nop 0")
            E(f)
        del filler[:per]
    for f in filler:
        while not S.ok(f): E("s_nop 0")
        E(f)
stage(opt["npost"], [f"v_xor_b32 v{vOq+k}, s1, v{vOq+k}" for k in range(4)] + FU)
if opt["osp"] >= 3:
    E(f"s_waitcnt vmcnt({S.vmn('ost')})"); E("buffer_wbl2 sc1 ; ost")
M(f"""
s_waitcnt vmcnt({S.vmn('ost')})
s_mov_b64 exec, 1
buffer_store_dword v{vN}, off, s[{sW}:{sW+3}], s69 sc1 ; flag
s_mov_b64 exec, -1
""")
stamp(1)
nleft = (NPRE - nextdma[0])*4 + sum(l.startswith("buffer") for l in pend)
stage(nleft - opt["pollat"])
E(f"buffer_load_dword v2, v{vFl}, s[{sW}:{sW+3}], 0 offen sc1 ; poll")
stage(opt["pollat"])
plain(pend); del pend[:]
stamp(1)
M(f"""
s_waitcnt vmcnt({S.vmn('poll')})
v_cmp_ne_u32 vcc, s{sNonce}, v2
s_cbranch_vccnz L_oflag
L_oflag_ok:
""")
cold += ["L_oflag:"] + spin("", "L_oflag_ok") + [f"buffer_load_dword v2, v{vFl}, s[{sW}:{sW+3}], 0 offen sc1", "s_waitcnt vmcnt(0)",
         f"v_cmp_ne_u32 vcc, s{sNonce}, v2", "s_cbranch_vccnz L_oflag", "s_branch L_oflag_ok"]
stamp(5)
LOOK = opt["look"]
for z in range(LOOK):
    for l in o_loads(z): E(l)
stamp(1)
t = 36
cold += ["L_stf_retry:"] + spin("", "L_stf_ok") + [f"buffer_load_dwordx2 v[{vSt}:{vSt+1}], v{vSa}, s[{sW}:{sW+3}], 0 offen sc1"] + updld + ["s_waitcnt vmcnt(0)"] + \
        updchk + ["s_cbranch_vccnz L_stf_retry", "s_branch L_stf_ok"]
G = updchk + ["s_cbranch_vccnz L_stf_retry", "L_stf_ok:", f"v_and_b32 v{vSt+1}, 0xffff0000, v{vSt}", f"v_lshlrev_b32 v{vSt}, 16, v{vSt}", f"v_rcp_f32 v{vSt+1}, v{vSt+1}"]
for hf in range(2):
    G += unpack(t, vXr + 4*hf)
    G += [f"v_sub_f32 v{t+e}, v{t+e}, v{vSt}" for e in range(8)]
    G += [f"v_cvt_pk_bf16_f32 v{8+e}, v{t+2*e}, v{t+2*e+1}" for e in range(4)] + unpack(t, 8)
    G += [f"v_mul_f32 v{t+e}, v{t+e}, v{vSt+1}" for e in range(8)]
    G += [f"v_cvt_pk_bf16_f32 v{8+e}, v{t+2*e}, v{t+2*e+1}" for e in range(4)] + unpack(t, 8)
    if opt["moe"]:
        G += unpack(8, vU + 8*hf, 2) + unpack(12, vU + 8*hf + 4, 2) + [f"v_add_f32 v{t+e}, v{t+e}, v{8+e}" for e in range(8)]
        G += [f"v_cvt_pk_bf16_f32 v{8+e}, v{t+2*e}, v{t+2*e+1}" for e in range(4)] + unpack(t, 8)
    G += [f"v_mul_f32 v{8+e}, {NLOG2E}, v{t+e}" for e in range(8)]
    G += [f"v_exp_f32 v{8+e}, v{8+e}" for e in range(8)]
    G += [f"v_add_f32 v{8+e}, 1.0, v{8+e}" for e in range(8)]
    G += [f"v_rcp_f32 v{8+e}, v{8+e}" for e in range(8)]
    G += [f"v_mul_f32 v{t+e}, v{t+e}, v{8+e}" for e in range(8)]
    G += [f"v_cvt_pk_bf16_f32 v{8+e}, v{t+2*e}, v{t+2*e+1}" for e in range(4)] + unpack(vGf + 8*hf, 8)
G += unpack(vU, vXr, 8)
G += [f"v_lshl_add_u32 v32, v0, 4, s{r.sM0K}"] + [f"v_xor_b32 v{32+nb}, {nb*1024 + nb*64}, v32" for nb in range(1, 4)]
G += ["v_lshrrev_b32 v31, 2, v0", f"v_lshlrev_b32 v30, 2, v{vC3}", "v_xor_b32 v31, v31, v30", "v_lshlrev_b32 v31, 4, v31", f"v_lshl_add_u32 v31, v{vC3}, 10, v31",
      f"s_lshl_b32 s3, s{sWave}, 14", "v_add_u32 v31, s3, v31"]
assert S.vmn("xf") >= S.vmn("poll")
Q += G
wq = []; dma_done = {kk: -99 for kk in range(NPRE)}
nw = (32 - NPRE)*4; ZD = opt["zd"]; issued = 0
for z in range(32):
    h, qb = z >> 2, z & 3
    Wb, Ob = WBLK[h & 3], OBUF[z % len(OBUF)]
    vtags = [f"o{z}"]; ltags = []
    rdq = []
    kk = nextrd[0]
    if kk < 32 and z >= (kk >> 2)*4 - 12 and kk in dma_done and (z - dma_done[kk] >= opt["dlag"] or (kk >> 2)*4 - z <= 4 - (kk & 3)):
        rdq = wo_reads(kk); vtags.append(f"wo{kk}"); nextrd[0] += 1
    if qb == 0:
        assert kk >= 4*h + 4, (z, kk)
        ltags += [f"r{4*h+3}"]
    ops = o_loads(z + LOOK) if z + LOOK < 32 else []
    want = min(nw, -(-nw*(z + 1) // ZD))
    wops = []
    while issued < want:
        if not wq:
            k2 = nextdma[0]
            if k2 - NU >= kk: break
            wq = wo_dma(k2); ltags.append(f"r{k2-NU}"); nextdma[0] += 1
        while wq:
            l = wq.pop(0); wops.append(l)
            if l.startswith("buffer"): issued += 1; break
        if len(wq) == 1: wops.append(wq.pop(0)); dma_done[nextdma[0] - 1] = z
    pend.extend(ops + wops)
    w = f"s_waitcnt vmcnt({S.vmn(*vtags)})"
    if ltags: w += f" lgkmcnt({S.lgn(*ltags)})"
    E(w)
    if qb == 0: stamp(4)
    wr = [f"ds_write_b128 v{32+nb}, {blk(ACC, ((qb-1)*4+nb)*4, 4)} offset:{(qb-1)*16384}" for nb in range(4)] if z > 28 else []
    if z == 29: assert not Q, len(Q)
    nbuf = sum(l.startswith("buffer") for l in pend)
    slots = [1 + 2*int(i*8/nbuf) for i in range(nbuf)] if nbuf else []
    for n in range(16):
        nb, i = n >> 2, n & 3
        if nb & 1: i = 3 - i
        D = blk(ACC, (qb*4 + nb)*4, 4)
        m = f"{MF} {D}, {blk(Wb, (nb*4 + i)*4, 4)}, {blk(Ob, i*4, 4)}, {'0' if h == 0 and n & 3 == 0 else D}"
        lead = []
        if n & 1 == 0:
            while pend and pend[0].startswith("s_"): lead.append(pend.pop(0))
            if rdq: lead.append(rdq.pop(0))
            elif wr and n & 3 == 2: lead.append(wr.pop(0))
        elif n in slots:
            lead.append(pend.pop(0))
            if n == 15:
                while pend: lead.append(pend.pop(0))
        S.gap(m, lead)
    assert not rdq and not pend and not wr, (z, pend)
assert nextrd[0] == 32
stamp(5)
for nb in range(4):
    l = f"ds_write_b128 v{32+nb}, {blk(ACC, (12+nb)*4, 4)} offset:{3*16384}"
    while not S.ok(l): E("s_nop 0")
    E(l)
E("s_waitcnt lgkmcnt(0)")
E("s_barrier")
for g in range(4):
    for s_ in range(4): E(f"ds_read_b128 {v(64+s_*16+g*4,4)}, v31 offset:{s_*4096 + g*256}")
for g in range(4):
    E(f"s_waitcnt lgkmcnt({12 - 4*g})")
    for e in range(4*g, 4*g + 4): E(f"v_add_f32 v{64+e}, v{64+e}, v{80+e}"); E(f"v_add_f32 v{96+e}, v{96+e}, v{112+e}")
    for e in range(4*g, 4*g + 4): E(f"v_add_f32 v{64+e}, v{64+e}, v{96+e}")
    for e in range(4*g, 4*g + 4): E(f"v_fma_f32 v{64+e}, v{64+e}, v{vGf+e}, v{vU+e}")
    for e in range(2*g, 2*g + 2): E(f"v_cvt_pk_bf16_f32 v{8+e}, v{64+2*e}, v{65+2*e}")
    if g & 1: E(f"global_store_dwordx4 v{vXo}, {v(8+4*(g>>1),4)}, s[{pOut}:{pOut+1}] offset:{16*(g>>1)}{POL[opt['ost']]}")
stamp(1)
if opt["stamp"]: E("s_waitcnt vmcnt(0)")
stamp(1)
if opt["stamp"]:
    M(f"""
    s_lshl_b32 s3, s2, 2
    s_add_u32 s3, s3, s{sWave}
    s_lshl_b32 s3, s3, 7
    s_add_u32 s3, s3, {WS_T}
    v_mov_b32 v3, 0
    """)
    for i in range(32): E(f"v_mov_b32 v{4+i}, s{70+i}" if i < 2*nstamp[0] else f"v_mov_b32 v{4+i}, 0")
    for i in range(8): E(f"buffer_store_dwordx4 v[{4+4*i}:{7+4*i}], v3, s[{sW}:{sW+3}], s3 offen offset:{16*i}")
E("s_endpgm")
r.vVDl = [20, 21, 20, 21]
M(f"""
L_fallback:
s_cmp_lg_u32 s{sFb}, 0
s_cbranch_scc1 L_safe
s_mov_b32 s{sFb}, 1
s_mov_b32 s{sMask2}, 0
s_mov_b32 s{sMask4}, 0x80
s_lshl_b32 s3, s{sHead}, 19
s_add_u32 s{sK}, s{pK}, s3
s_addc_u32 s{sK+1}, s{pK+1}, 0
s_mov_b32 s{sK+2}, 0x80000
s_add_u32 s{sV}, s{pV}, s3
s_addc_u32 s{sV+1}, s{pV+1}, 0
s_mov_b32 s{sV+2}, 0x80000
s_mov_b32 s{r.sKoff}, 0
s_mov_b32 s{r.sVoff}, 0
s_mov_b32 s{r.sKinc}, 0x4000
s_mov_b32 s{r.sVinc}, 0x4000
s_mov_b32 s{r.sIt}, 0
v_lshlrev_b32 v3, 4, v0
v_lshrrev_b32 v60, 2, v2
v_and_b32 v61, 1, v1
v_lshl_add_u32 v60, v61, 2, v60
v_and_b32 v63, 3, v0
s_waitcnt vmcnt(0) lgkmcnt(0)
s_barrier
""")
for l in ADDR + VCOPY: E(l)
for i in range(16): E(f"v_mov_b32 v{r.vM+i}, 0")
for i in range(16): E(f"v_mov_b32 v{r.vL+i}, 0")
for l in ozero(r.vM): E(l)
for qb in range(4): E(f"v_mov_b32 v{60+qb}, 0xff800000")
E("L_fb_loop:")
plain(kdma(0))
M("s_waitcnt vmcnt(0)\ns_barrier")
for i in range(16): E(X.kread(0, i))
M("s_waitcnt lgkmcnt(0)\ns_barrier")
for g in range(64): E(X.qk(g))
E("s_nop 7")
for qb in range(4):
    for e in range(8): E(f"v_max3_f32 v{60+qb}, v{60+qb}, v{r.vS+16*qb+2*e}, v{r.vS+16*qb+2*e+1}")
M(f"""
s_cmp_lt_u32 s{r.sKoff}, 0x80000
s_cbranch_scc1 L_fb_loop
s_mov_b32 s{r.sKoff}, 0
""")
plain(kdma(0) + kdma(1) + vdma(0) + kdma(2) + vdma(1) + kdma(3) + vdma(2))
for sw in ("v_permlane32_swap_b32", "v_permlane16_swap_b32"):
    for qb in range(4): E(f"v_mov_b32 v{128+qb}, v{60+qb}")
    E("s_nop 1")
    for qb in range(4): E(f"{sw} v{128+qb}, v{60+qb}")
    E("s_nop 1")
    for qb in range(4): E(f"v_max_f32 v{60+qb}, v{60+qb}, v{128+qb}")
for qb in range(4):
    for e in range(4): E(f"v_sub_f32 v{r.vM+4*qb+e}, 0, v{60+qb}")
M("s_waitcnt vmcnt(0)\ns_barrier")
for i in range(16): E(X.kread(0, i))
M("s_waitcnt lgkmcnt(0)\ns_branch L_restart")
for l in cold: E(l)
A.label("L_end")
E("s_endpgm")
A.raw(f""".section .rodata,"a"
.p2align 6
.amdhsa_kernel {KN}_kernel
  .amdhsa_next_free_vgpr 512
  .amdhsa_next_free_sgpr 102
  .amdhsa_accum_offset 256
  .amdhsa_group_segment_fixed_size 0
  .amdhsa_kernarg_size 104
  .amdhsa_user_sgpr_count 2
  .amdhsa_user_sgpr_kernarg_segment_ptr 1
  .amdhsa_system_sgpr_workgroup_id_x 1
  .amdhsa_float_denorm_mode_32 3
.end_amdhsa_kernel""")
txt = A.text()
for ro in "FR": txt = txt.replace("MASK2" + ro, hex(m2[ro])).replace("MASK4" + ro, hex(m4[ro]))
bad = check_hazards(txt)
if bad: print("hazards:", len(bad), file=sys.stderr)
open(sys.argv[1], "w").write(txt)
```

```python
import sys, struct
from attn16 import *
KN = "recurrent_scan__mha_block_cached__moe_arch_mod__prompt"
opt = dict(otch=0, nostore=0, flip=0, xcc=0, map8=0, onerow=0, lnfirst=0, qrot=0, osp=0, fx=0, holdrel=0, bgap=62, bsplit=1, bar=1, nodma=0, pad=0, holdp=0, holdt=0, forcefb=0, ntw=0, ost=0, tlb=1, varb=1, TF=18, TP=22, moeT=99, moe=1, pollat=6, wtouch=1, otouch=0, epace=40, npost=8, npre=24, look=3, zd=24, dlag=5, rot=0, s1st=5, cyc=0, stamp=0, snake=1, pvchain=1, G0=8, nt=1, ntq=0, sm=1, drate=4, pre=2)
opt_s = dict(oT="(20,26)", touch="{}", hs="(8,10,12,14,16,24,27)", wT="(27,28)")
for x in sys.argv[2:]:
    k, val = x.split("=")
    if k in opt_s: opt_s[k] = val
    else: opt[k] = int(val)
A = Asm(); r = default_regs(); X = Attn(A, r, opt); S = Stream(A); E = S.emit; M = S.many
POL = ["", " nt", " sc1"]
def fbits(x): return hex(struct.unpack("<I", struct.pack("<f", x))[0])
WS_O = 0
WS_STAT = 16 << 20
WS_KEY = WS_STAT + 0x4000
WS_FLAG = WS_STAT + 0x10000
WS_SEL = WS_STAT + 0x8000
WS_FC = WS_STAT + 0x9000
WS_UPD = WS_STAT + 0xC000
WS_XN = 18 << 20
WS_PART = 20 << 20
WS_T = 64 << 20
sX, sK, sV, sW, sWq = 4, 8, 12, 16, 28
sWave, sHead, sQb = 20, 21, 22
sXoff, sWoff, sM0X, sM0W = 34, 35, 62, 63
pX, pK, pV, pWq, pWo, pWr, pWg, pWu, pWd, pOut, pDbg, pWs = 36, 38, 40, 42, 44, 48, 50, 52, 54, 56, 58, 60
sKey0, sRow0, sNonce = 64, 66, 46
sSpin = 33
def spin(label, ok): return [f"s_cmp_eq_u32 s{sSpin}, 0", f"s_cbranch_scc1 {ok}", f"s_sub_u32 s{sSpin}, s{sSpin}, 1"]
cold = []
nstamp = [0]
CLK = "s_memtime" if opt["cyc"] else "s_memrealtime"
npoint = [0]
def hold_at():
    npoint[0] += 1
    if opt["holdp"] == npoint[0]:
        M(f"""
        L_hold:
        s_memrealtime s[98:99]
        s_waitcnt lgkmcnt(0)
        s_sub_u32 s98, s98, s{46 if opt['holdrel'] else 100}
        s_cmp_lt_u32 s98, {opt['holdt']*100}
        s_cbranch_scc1 L_hold
        """)
def stamp(lvl=1, wait=True):
    if lvl & 1: hold_at()
    if opt["stamp"] & lvl and nstamp[0] < 16:
        i = nstamp[0]; nstamp[0] += 1
        E(f"{CLK} s[{70+2*i}:{71+2*i}]")
        if wait: E("s_waitcnt lgkmcnt(0)")

A.raw("; @launch grid=(256,1,1) block=(256,1,1) lds=163840")
A.raw('.amdgcn_target "amdgcn-amd-amdhsa--gfx950"')
A.raw(".text"); A.raw(f".globl {KN}_kernel"); A.raw(".p2align 8"); A.raw(f".type {KN}_kernel,@function")
A.label(f"{KN}_kernel")
M(f"""
s_cmp_ge_u32 s2, 256
s_cbranch_scc1 L_end
s_load_dwordx16 s[36:51], s[0:1], 0
s_load_dwordx8 s[52:59], s[0:1], 64
s_load_dwordx2 s[60:61], s[0:1], 96
s_memrealtime s[68:69]
""")
if opt["stamp"]:
    E(f"{CLK} s[70:71]"); nstamp[0] = 1
if opt["holdp"]: E("s_memrealtime s[100:101]")
M(f"""
s_getpc_b64 s[32:33]
v_lshrrev_b32 v1, 6, v0
v_and_b32 v0, 63, v0
s_and_b32 s3, s2, 0xf8
s_lshl_b32 s3, s3, 1
v_lshl_add_u32 v4, v1, 2, v0
v_add_lshl_u32 v4, v4, s3, 7
v_min_u32 v4, L_end-{KN}_kernel-128, v4
s_mov_b64 exec, 15
global_load_dword v23, v4, s[32:33]
s_mov_b64 exec, -1
v_readfirstlane_b32 s{sWave}, v1
s_and_b32 s3, s2, {6 if opt['map8'] else 7}
s_lshl_b32 s3, s3, 2
s_bfe_u32 s{sHead}, s2, {'0x30003' if opt['map8'] else '0x20003'}
s_or_b32 s{sHead}, s{sHead}, s3
s_lshr_b32 s{sQb}, s2, {6 if opt['map8'] else 5}
s_and_b32 s3, s2, {1 if opt['map8'] else 0}
s_lshl_b32 s3, s3, 2
s_or_b32 s{sQb}, s{sQb}, s3
v_lshrrev_b32 v1, 4, v0
v_and_b32 v2, 15, v0
""")
vXD, vWD, vXA, vWA, vCS, vKM = 76, 84, 88, 92, 100, 108
vSX, vG = r.vL, r.vM
M(f"""
v_lshrrev_b32 v4, 3, v0
s_lshl_b32 s3, s{sWave}, 6
v_add_u32 v4, s3, v4
v_lshlrev_b32 v4, 10, v4
v_and_b32 v5, 7, v0
v_xor_b32 v6, v5, v1
v_xor_b32 v7, 4, v6
v_lshl_add_u32 v6, v6, 4, v4
v_lshl_add_u32 v7, v7, 4, v4
""")
for p in range(8): E(f"v_add_u32 v{vXD+p}, {p*8192 - (p&3)*1024}, v{6+(p&1)}")
M(f"""
s_lshl_b32 s3, s{sWave}, 4
v_add_u32 v4, s3, v1
v_lshlrev_b32 v4, 13, v4
v_lshlrev_b32 v5, 1, v1
v_xor_b32 v6, v5, v2
v_xor_b32 v7, 8, v6
v_lshl_add_u32 v6, v6, 4, v4
v_lshl_add_u32 v7, v7, 4, v4
""")
for p in range(4): E(f"v_add_u32 v{vWD+p}, {p*4*8192 - p*1024}, v{6+(p>>1)}")
M(f"""
s_lshl_b32 s{sM0X}, s{sWave}, 13
s_lshl_b32 s{r.sM0K}, s{sWave}, 12
s_add_u32 s{sM0W}, s{r.sM0K}, 0xC000
s_mov_b32 s{sXoff}, 0
s_mov_b32 s{sWoff}, 0
s_mov_b32 s{sX+2}, 0x40000
s_mov_b32 s{sX+3}, 0x20000
s_mov_b32 s{sWq+3}, 0x20000
s_lshl_b32 s3, s{sQb}, 18
s_lshl_b32 s67, s{sHead}, 8
s_sub_u32 s{sWq+2}, 0x400000, s67
s_waitcnt lgkmcnt(0)
s_add_u32 s{sX}, s{pX}, s3
s_addc_u32 s{sX+1}, s{pX+1}, 0
s_add_u32 s{sWq}, s{pWq}, s67
s_addc_u32 s{sWq+1}, s{pWq+1}, 0
s_or_b32 s3, s2, s{sWave}
s_cbranch_scc1 L_nononce
""")
A("s_getreg_b32 s3, hwreg(HW_REG_XCC_ID, 0, 1)"); A("s_lshl_b32 s68, s68, 2"); A("s_lshl_b32 s3, s3, 1"); A("s_or_b32 s68, s68, s3")
A("s_or_b32 s68, s68, 1"); A("v_mov_b32 v4, 0"); A("v_mov_b32 v5, s68"); A(f"global_store_dword v4, v5, s[{pDbg}:{pDbg+1}] sc1")
E("L_nononce:")
if opt["xcc"]:
    M(f"""s_cmp_ge_u32 s2, 8
    s_cbranch_scc1 L_noxcc
    s_getreg_b32 s3, hwreg(HW_REG_XCC_ID)
    s_add_u32 s3, s3, 100
    v_mov_b32 v5, s3
    s_lshl_b32 s3, s2, 2
    v_mov_b32 v4, s3""")
    A(f"global_store_dword v4, v5, s[{pDbg}:{pDbg+1}] offset:4")
    E("L_noxcc:")
stamp(2)
XSLOT = [0x18000, 0x20000, 0x4000]
def xdma(st):
    L = []
    for p in range(8):
        if p & 3 == 0: L.append(f"s_add_u32 m0, s{sM0X}, {XSLOT[st%3] + (p>>2)*4096}")
        L.append(f"buffer_load_dwordx4 v{vXD+p}, s[{sX}:{sX+3}], s{sXoff} offen offset:{(p&3)*1024}{POL[opt['ntq']]} lds ; x{st}")
    L.append(f"s_add_u32 s{sXoff}, s{sXoff}, 128")
    return L
def wdma(st):
    L = [f"s_add_u32 m0, s{sM0W}, {(st%3)*16384}"]
    for p in range(4):
        L.append(f"buffer_load_dwordx4 v{vWD+p}, s[{sWq}:{sWq+3}], s{sWoff} offen offset:{p*1024}{POL[opt['ntw']]} lds ; w{st}")
    L.append(f"s_add_u32 s{sWoff}, s{sWoff}, 0x80000")
    return L
def tagged(L, t): return [l + " ; " + t if l.startswith("buffer") else l for l in L]
def kdma(T): return tagged(X.dma(T & 3)[:5], f"k{T}") + [f"s_add_u32 s{r.sKoff}, s{r.sKoff}, 0x4000"]
def vdma(T): return tagged(X.dma((T + 1) & 3)[5:], f"v{T}") + [f"s_add_u32 s{r.sVoff}, s{r.sVoff}, 0x4000"]
def plain(L):
    for l in L:
        E(l)
        if l.startswith("s_add_u32 m0"): E("s_nop 0")
Q = S.q
vCA = 124
def xors(dst, n, step): return [f"v_xor_b32 v{dst+k}, {k*step}, v{dst}" for k in range(1, n)]
PRE = f"""v_lshlrev_b32 v3, 4, v0
s_lshl_b32 s3, s{sHead}, 2
s_add_u32 s3, s3, s{sWave}
s_lshl_b32 s{sRow0}, s3, 11
v_lshrrev_b32 v4, 1, v2
v_xor_b32 v4, v4, v1
v_lshl_add_u32 v5, v2, 7, s{sM0X}
v_lshl_add_u32 v6, v4, 4, v5
v_add_u32 v{vXA}, {XSLOT[0]}, v6
v_add_u32 v{vXA+2}, {XSLOT[2]}, v6
v_xor_b32 v{vXA+1}, 64, v{vXA}
v_xor_b32 v{vXA+3}, 64, v{vXA+2}
v_lshrrev_b32 v4, 2, v2
v_and_b32 v63, 3, v0
v_and_b32 v6, 1, v1
v_lshl_add_u32 v60, v6, 2, v4
v_lshl_add_u32 v5, v1, 3, v4
v_lshlrev_b32 v5, 8, v5
v_lshl_add_u32 v5, v63, 3, v5
v_lshl_add_u32 v5, v60, 5, v5
s_lshl_b32 s3, s{sWave}, 6
s_add_u32 s3, s3, 0xC000
v_xor_b32 v{vWA}, s3, v5""".split("\n") + xors(vWA, 8, 32)
PRE += [f"v_mov_b32 v{vCS+i}, 0" for i in range(8)]
PRE += f"""v_mov_b32 v62, 0x3f803f80
v_cmp_gt_u32 vcc, 2, v63
v_and_b32 v4, 1, v0
v_mov_b32 v5, 0x44444444
v_mov_b32 v6, 0xeeeeeeee
v_cndmask_b32 v{r.vOne}, 0, v62, vcc
v_cndmask_b32 v{r.vOne+1}, 0, v62, vcc
v_cndmask_b32 v{r.vOne+2}, 0, v62, vcc
v_cndmask_b32 v{r.vOne+3}, 0, v62, vcc
v_cmp_eq_u32 vcc, 1, v4
s_lshl_b32 s1, s{sQb}, 2
s_add_u32 s1, s1, s{sWave}
v_cndmask_b32 v{r.vIdx}, v5, v6, vcc
s_lshl_b32 s1, s1, 9
s_add_u32 s1, s1, {WS_STAT}""".split("\n")
def ozero(z): return [f"v_mfma_f32_32x32x16_bf16 {a(r.aO+16*i,16)}, {v(z,4)}, {v(z,4)}, 0" for i in range(8)]
ADDR = f"""v_lshl_add_u32 v61, v1, 8, s{r.sM0K}
v_xor_b32 v62, v1, v2
v_lshl_add_u32 v{r.vKD}, v62, 4, v61""".split("\n") + xors(r.vKD, 4, 64) + f"""v_lshlrev_b32 v62, 1, v1
v_xor_b32 v62, v62, v2
v_lshl_add_u32 v{r.vVD}, v62, 4, v61
v_xor_b32 v{r.vVD+1}, 128, v{r.vVD}
v_lshrrev_b32 v61, 2, v0
v_lshlrev_b32 v61, 8, v61
v_lshl_add_u32 v61, v63, 3, v61
v_lshl_add_u32 v61, v60, 5, v61
v_add_u32 v{r.vVA}, {r.VBASE}, v61""".split("\n") + xors(r.vVA, 8, 32) + f"""v_lshrrev_b32 v61, 1, v1
v_and_b32 v62, 1, v1
v_lshl_add_u32 v62, v62, 1, v61
v_lshl_add_u32 v62, s{sWave}, 2, v62
v_xor_b32 v61, v62, v2
v_lshlrev_b32 v61, 4, v61
v_lshl_add_u32 v{r.vKA}, v2, 8, v61""".split("\n") + xors(r.vKA, 4, 64)
VCOPY = ["v_mov_b32 v1, v20", "v_mov_b32 v2, v21"]
PRE2 = ADDR + f"""v_xor_b32 v61, v62, v63
v_lshlrev_b32 v61, 4, v61
v_lshl_add_u32 v{vKM}, v63, 8, v61""".split("\n") + xors(vKM, 4, 64)
PRE2 += [f"s_add_u32 s67, s{sM0X}, {XSLOT[1]}", "v_lshl_add_u32 v62, v2, 2, s67", "v_lshlrev_b32 v61, 3, v2", f"v_lshl_add_u32 v{vCA}, v1, 4, s67"] + xors(vCA, 4, 8192)
PRE2 += VCOPY
PRE2 += [f"s_lshl_b32 s3, s{sHead}, 19", [f"s_add_u32 s{sK}, s{pK}, s3", f"s_addc_u32 s{sK+1}, s{pK+1}, 0"], [f"s_add_u32 s{sV}, s{pV}, s3", f"s_addc_u32 s{sV+1}, s{pV+1}, 0"]]
PRE2 += f"""s_mov_b32 s{sK+2}, 0x80000
s_mov_b32 s{sK+3}, 0x20000
s_mov_b32 s{sV+2}, 0x80000
s_mov_b32 s{sV+3}, 0x20000
s_mov_b32 s{sW}, s{pWs}
s_mov_b32 s{sW+1}, s{pWs+1}
s_mov_b32 s{sW+2}, 0x10000000
s_mov_b32 s{sW+3}, 0x20000
s_mov_b32 s{r.sKoff}, 0
s_mov_b32 s{r.sVoff}, 0
s_mov_b32 s{sSpin}, 0x100000
s_add_u32 s{r.sM0V}, s{r.sM0K}, {r.VBASE}""".split("\n")
for n, m in enumerate(ozero(vCS + 4)): PRE2.insert(8*n + 2, m)
def issue(L, F):
    F = list(F); per = -(-len(F) // sum("lds" in l for l in L))
    for l in L:
        E(l)
        if l.startswith("s_add_u32 m0"): E("s_nop 0")
        if "lds" in l:
            for f in F[:per]:
                for x_ in (f if isinstance(f, list) else [f]): E(x_)
            del F[:per]
issue(wdma(0) + xdma(0), PRE)
stamp(2, False)
LN = f"""buffer_load_dwordx4 v[64:67], v3, s[{sX}:{sX+3}], s{sRow0} offen ; ln
buffer_load_dwordx4 v[68:71], v3, s[{sX}:{sX+3}], s{sRow0} offen offset:1024 ; ln
global_load_dwordx4 v[72:75], v3, s[{pWr}:{pWr+1}] ; ln""".split("\n")
L1 = []
for st in range(1, opt["pre"]): L1 += wdma(st) + xdma(st)
issue((LN if opt["lnfirst"] else []) + L1 + ([] if opt["lnfirst"] else LN), PRE2)
M(f"""
v_mov_b32 v55, 0
s_lshl_b32 s3, s{sQb}, 8
s_lshr_b32 s{sRow0}, s{sRow0}, 10
s_add_u32 s{sRow0}, s{sRow0}, s3
""")
stamp(2, False)
aXN = 248
def unpack(dst, src, n=4):
    L = []
    for k in range(n):
        L += [f"v_lshlrev_b32 v{dst+2*k}, 16, v{src+k}", f"v_and_b32 v{dst+2*k+1}, 0xffff0000, v{src+k}"]
    return L
def wave_sum(reg, sdst):
    return [f"v_add_f32_dpp v{reg}, v{reg}, v{reg} {m} bank_mask:0xf" for m in
            ("quad_perm:[1,0,3,2] row_mask:0xf", "quad_perm:[2,3,0,1] row_mask:0xf", "row_half_mirror row_mask:0xf",
             "row_mirror row_mask:0xf", "row_bcast:15 row_mask:0xa", "row_bcast:31 row_mask:0xc")] + [f"v_readlane_b32 s{sdst}, v{reg}, 63"]
def rbf(x): return [f"v_cvt_pk_bf16_f32 v{x}, v{x}, v{x}", f"v_lshlrev_b32 v{x}, 16, v{x}"]
vE, vD, vWr, vO = 32, 40, 112, 120
Q.append(lambda: f"s_waitcnt vmcnt({S.vmn('ln')})")
NONCE = [lambda: f"s_waitcnt vmcnt({S.vmn('nonce')})", f"v_readfirstlane_b32 s{sNonce}, v23", "s_nop 0", f"s_cmp_eq_u32 s{sNonce}, 0",
         "s_cbranch_scc1 L_nonce_retry", "L_nonce_ok:"]
cold += ["L_nonce_retry:"] + spin("", "L_nonce_ok") + [f"global_load_dword v23, v55, s[{pDbg}:{pDbg+1}] sc1", "s_waitcnt vmcnt(0)",
         f"v_readfirstlane_b32 s{sNonce}, v23", "s_nop 0", f"s_cmp_eq_u32 s{sNonce}, 0", "s_cbranch_scc1 L_nonce_retry", "s_branch L_nonce_ok"]
Q += ["v_mov_b32 v50, 0x3b000000"]
for k in range(2):
    Q += unpack(vE, 64 + 4*k)
    Q += [f"v_add_f32 v{vD+e}, v{vE+2*e}, v{vE+2*e+1}" for e in range(4)]
    Q += [f"v_add_f32 v{vD}, v{vD}, v{vD+1}", f"v_add_f32 v{vD+2}, v{vD+2}, v{vD+3}", f"v_add_f32 v48, v{vD}, v{vD+2}"]
    Q += wave_sum(48, 68) + ["v_mul_f32 v48, s68, v50"]
    Q += [f"v_sub_f32 v{vD+e}, v{vE+e}, v48" for e in range(8)]
    Q += [f"v_mul_f32 v49, v{vD}, v{vD}"] + [f"v_fmac_f32 v49, v{vD+e}, v{vD+e}" for e in range(1, 8)]
    Q += wave_sum(49, 68)
    Q += ["v_mul_f32 v49, s68, v50"] + rbf(49) + ["v_add_f32 v49, 0x3727c5ac, v49"] + rbf(49) + ["v_sqrt_f32 v49, v49"]
    Q += [f"v_cvt_pk_bf16_f32 v{vO+2*k}, v48, v49"]
Q += [NONCE, f"v_mov_b32 v{vO+1}, s{sNonce}", f"v_mov_b32 v{vO+3}, s{sNonce}"]
Q += [f"s_lshl_b32 s68, s{sRow0}, 3", f"s_add_u32 s65, s68, {WS_KEY}", f"s_add_u32 s68, s68, {WS_STAT}"]
Q.append(["s_mov_b64 exec, 1", f"buffer_store_dwordx4 v[{vO}:{vO+3}], off, s[{sW}:{sW+3}], s68 sc1 ; s1", "s_mov_b64 exec, -1"])
Q += unpack(vWr, 72)
for k in range(2):
    Q += unpack(vE, 64 + 4*k) + [f"v_lshlrev_b32 v48, 16, v{vO+2*k}", f"v_and_b32 v49, 0xffff0000, v{vO+2*k}", "v_rcp_f32 v49, v49"]
    Q += [f"v_sub_f32 v{vE+e}, v{vE+e}, v48" for e in range(8)]
    Q += [f"v_cvt_pk_bf16_f32 v{vD+e}, v{vE+2*e}, v{vE+2*e+1}" for e in range(4)]
    Q += unpack(vE, vD)
    Q += [f"v_mul_f32 v{vE+e}, v{vE+e}, v49" for e in range(8)]
    Q += [f"v_cvt_pk_bf16_f32 v{64+4*k+e}, v{vE+2*e}, v{vE+2*e+1}" for e in range(4)]
    Q += unpack(vE, 64 + 4*k)
    Q += [f"v_mul_f32 v49, v{vE}, v{vWr}"] + [f"v_fmac_f32 v49, v{vE+e}, v{vWr+e}" for e in range(1, 8)]
    Q += wave_sum(49, 68) + [f"s_sub_u32 s67, {2047-k}, s{sRow0}", "v_mov_b32 v49, s68", "v_cvt_pk_bf16_f32 v49, v49, v49",
          "v_ashrrev_i32 v48, 31, v49", "v_or_b32 v48, 0x80000000, v48", "v_xor_b32 v49, v48, v49", "v_and_b32 v49, 0xffff0000, v49",
          f"v_or_b32 v{72+k}, s67, v49", f"v_mov_b32 v{74+k}, s{sNonce}"]
Q += [f"s_lshl_b32 s64, s{sRow0}, 10", f"s_add_u32 s64, s64, {WS_XN}"]
XNST = [f"buffer_store_dwordx4 v[{64+4*k}:{67+4*k}], v3, s[{sW}:{sW+3}], s64 offen offset:{k*1024} sc1 ; xn" for k in range(2)]
KEYST = ["s_mov_b64 exec, 1", f"buffer_store_dwordx4 v[60:63], off, s[{sW}:{sW+3}], s65 sc1 ; s1", "s_mov_b64 exec, -1"]
NFILL = len(Q); S1 = list(Q); del Q[:]
r.sKinc, r.sVinc = 34, 35
sMask2, sMask4 = 62, 63
sQt, sNt = 47, 32
sChunk, sSlow = 69, 66
sFb = 0
SET = f"""s_mov_b32 s{r.sKinc}, 0x4000
s_mov_b32 s{r.sVinc}, 0x4000
s_mov_b32 s{r.sIt}, 0
s_and_b32 s3, s2, {6 if opt['varb'] else 7}
s_lshl_b32 s3, s3, 2
s_lshr_b32 s{sQt}, s2, {5 if opt['varb'] else 6}
s_add_u32 s{sQt}, s{sQt}, s3
s_bfe_u32 s{sNt}, s2, {'0x20003' if opt['varb'] else '0x30003'}
s_and_b32 s3, s2, {1 if opt['varb'] else 0}
s_lshl_b32 s3, s3, 2
s_add_u32 s{sNt}, s{sNt}, s3
s_lshl_b32 s3, s{sNt}, 7
s_lshl_b32 s67, s{sWave}, 20
s_add_u32 s3, s3, s67
s_sub_u32 s{sWq+2}, 0x400000, s3""".split("\n")
SET.append([f"s_add_u32 s{sWq}, s{pWo}, s3", f"s_addc_u32 s{sWq+1}, s{pWo+1}, 0"])
if opt["moe"]:
    SET += f"""s_bfe_u32 s3, s2, 0x20001
s_mul_i32 s68, s3, 28
s_lshr_b32 s67, s2, 3
s_add_u32 s{sChunk}, s68, s67
s_lshr_b32 s3, s{sNonce}, 1
s_xor_b32 s3, s3, s2
s_xor_b32 s{sSlow}, s3, {opt['flip']}""".split("\n")
    SET += [f"s_mov_b32 s{sMask2}, MASK2F", f"s_mov_b32 s{sMask4}, MASK4F"]
    SET.append(["s_cmp_ge_u32 s67, 28", f"s_cselect_b32 s{sChunk}, -1, s{sChunk}"])
    SET.append(["s_cmp_ge_u32 s67, 28", f"s_cselect_b32 s{sMask2}, MASK2R, s{sMask2}", f"s_cselect_b32 s{sMask4}, MASK4R, s{sMask4}"])
    SET.append([f"s_and_b32 s{sSlow}, s{sSlow}, 1", f"s_cselect_b32 s{sMask2}, MASK2S, s{sMask2}", f"s_cselect_b32 s{sMask4}, MASK4S, s{sMask4}"])
    SET += f"""s_lshl_b32 s68, s68, 5
s_lshl_b32 s67, s67, 1
s_and_b32 s3, s{sWave}, 1
s_add_u32 s67, s67, s3
s_mul_i32 s67, s67, {8*3584}
s_add_u32 s68, s68, s67
v_lshrrev_b32 v112, 3, v0
v_mul_u32_u24 v112, 3584, v112
v_and_b32 v113, 7, v0
v_min_u32 v113, 6, v113
v_lshl_add_u32 v112, v113, 7, v112
v_add_u32 v23, s68, v112""".split("\n")
    SET.append([f"s_cmp_lt_u32 s{sWave}, 2", f"s_cselect_b64 s[6:7], s[{pWg}:{pWg+1}], s[{pWu}:{pWu+1}]"])
else: SET += [f"s_mov_b32 s{sMask2}, MASK2F", f"s_mov_b32 s{sMask4}, MASK4F"]
SET += [f"s_mov_b32 s{sFb}, 0"]
aXF, aWF = 128, 192
SMF = "v_smfmac_f32_16x16x64_bf16"
def acc(j, qb): return 128 + (3 - (j >> 1))*32 + qb*8 + (j & 1)*4
def xread(st, n):
    qb, ks = n >> 1, n & 1; slot = st % 3
    base = vXA + (2 if slot == 2 else 0) + ks
    off = (XSLOT[slot] - XSLOT[0] if slot != 2 else 0) + qb*2048
    return f"ds_read_b128 {a(aXF+(st&1)*32+n*4,4)}, v{base} offset:{off}"
def wread(st, j, n):
    ks, half = n >> 1, n & 1
    return f"ds_read_b64_tr_b16 {a(aWF+(j&3)*8+ks*4+half*2,2)}, v{vWA+j} offset:{(st%3)*16384 + ks*8192 + half*1024}"
def qmf(st, j):
    L = []
    if j < 2: L.append(f"{SMF} {v(vCS+4*j,4)}, {v(r.vOne,4)}, {a(aWF+(j&3)*8,8)}, v{r.vIdx}")
    for qb in range(4):
        for t in range(2):
            ks = t ^ (qb & 1)
            D = v(acc(j, qb), 4); C = "0" if (st == 0 and t == 0) else D
            L.append(f"{MF} {D}, {a(aWF+(j&3)*8+ks*4,4)}, {a(aXF+(st&1)*32+(qb*2+ks)*4,4)}, {C}")
    return L
E(f"s_waitcnt vmcnt({S.vmn('x0', 'w0')}) lgkmcnt(0)")
E("s_barrier")
stamp(3)
for n in range(8): E(xread(0, n))
for j in range(2):
    for n in range(4): E(wread(0, j, n))
pend = []
for st in range(opt["pre"], 3): pend += wdma(st) + xdma(st)
def vmn(*tags):
    assert not any(l.split(";")[-1].strip() in tags for l in pend), (tags, pend)
    return S.vmn(*tags)
def one_dma():
    while pend:
        l = pend.pop(0); E(l)
        if l.startswith("s_add_u32 m0"): E("s_nop 0")
        if l.startswith("buffer"): break
statld = [f"buffer_load_dwordx2 v[{vG+4*qb}:{vG+4*qb+1}], v61, s[{sW}:{sW+3}], s1 offen offset:{qb*128} sc1 ; st" for qb in range(4)]
since = [99]
def dma_slot(j, n, hasds):
    if pend and pend[0].startswith("s_"): return [pend.pop(0)]
    slots = {0: (1, 5, 7), 1: (1, 5, 7), 5: (4, 6), 6: (), 7: ()}.get(j, (1, 5))
    if opt["drate"] == 3: slots = {0: (1, 3, 5, 7), 1: (1, 5, 7), 5: (4, 6), 6: (), 7: ()}.get(j, (1, 3, 5))
    if pend and not hasds and (n in slots or "lds" not in pend[0]): return [pend.pop(0)]
    return []
vC = r.vL
def csread(s_): return [f"ds_read_b128 {v(vC+(s_&1)*8+4*jj,4)}, v{vCA+s_} offset:{jj*64}" for jj in range(2)]
CL2E = 1.4426950408889634 / (128 ** 0.5)
E("s_waitcnt lgkmcnt(4)")
for st in range(8):
    if st == 6:
        assert not any(f"s{sXoff}" in l or f"s{sWoff}" in l or f"s{sM0X}" in l or f"s{sM0W}" in l for l in pend)
        Q += SET
    if st == 1: pend.insert(0, f"global_load_dword v23, v55, s[{pDbg}:{pDbg+1}] sc1 ; nonce")
    if st + 3 < 8: pend += xdma(st + 3)
    if st == 5:
        pend += kdma(0)

    for j in range(8):
        L = qmf(st, j)
        if st*8 + j == opt["s1st"]: Q += S1
        ds = [None] * len(L); last = []
        if j < 6:
            o = 0
            for n in range(4): ds[o + (n if j == 5 else 2*n)] = wread(st, j + 2, n)
            if j < 5: last = ["s_waitcnt lgkmcnt(4)"]
            elif st < 7:
                tags = [f"x{st+1}", f"w{st+1}"]
                last = [lambda tags=tags: f"s_waitcnt vmcnt({vmn(*tags)}) lgkmcnt(0)", "s_barrier"]
            else: last = [lambda: f"s_waitcnt vmcnt({vmn('k0', 'st')}) lgkmcnt(0)", "s_barrier"]
        elif st < 7:
            seq = [xread(st + 1, n) for n in range(4)] + [wread(st + 1, 0, n) for n in range(4)] if j == 6 else \
                  [xread(st + 1, 4 + n) for n in range(4)] + [wread(st + 1, 1, n) for n in range(4)]
            ds = seq
            if j == 7: last = ["s_waitcnt lgkmcnt(4)"]
        else:
            seq = csread(0) + csread(1) + [f"ds_read_b128 {a(aWF+4*s_,4)}, v{vKM+s_}" for s_ in range(4)] if j == 6 else \
                  [X.kread(0, i) for i in range(8)]
            ds = seq
        if st == 7 and j == 2:
            Q += [f"v_add_f32 v{vCS}, v{vCS}, v{vCS+1}", f"v_add_f32 v{vCS+4}, v{vCS+4}, v{vCS+5}",
                  f"ds_write2_b32 v62, v{vCS}, v{vCS+4} offset0:0 offset1:16"]
        if st == 7 and j == 6:
            assert not Q, len(Q)
            Q.append([f"v_xor_b32 v{vG+2}, s{sNonce}, v{vG+1}", f"v_xor_b32 v{vG+6}, s{sNonce}, v{vG+5}"])
            Q.append([f"v_xor_b32 v{vG+10}, s{sNonce}, v{vG+9}", f"v_xor_b32 v{vG+14}, s{sNonce}, v{vG+13}"])
            del Q[:]
            chk = [f"v_xor_b32 v{vG+4*qb+2}, s{sNonce}, v{vG+4*qb+1}" for qb in range(4)] + \
                  [f"v_or3_b32 v{vG+2}, v{vG+2}, v{vG+6}, v{vG+10}", f"v_or_b32 v{vG+2}, v{vG+2}, v{vG+14}", f"v_cmp_ne_u32 vcc, 0, v{vG+2}"]
            Q += chk + ["s_cbranch_vccnz L_stat_retry", "L_stat_ok:"]
            cold += ["L_stat_retry:"] + spin("", "L_stat_ok") + [l.split(";")[0] for l in statld] + ["s_waitcnt vmcnt(0)"] + chk + ["s_cbranch_vccnz L_stat_retry", "s_branch L_stat_ok"]
            P_ = []
            for qb in range(4):
                g = vG + 4*qb
                P_.append([f"v_and_b32 v{g+1}, 0xffff0000, v{g}", f"v_lshlrev_b32 v{g}, 16, v{g}", f"v_rcp_f32 v{g+1}, v{g+1}",
                           f"v_sub_f32 v{g}, 0, v{g}", f"v_mul_f32 v{g+1}, {fbits(CL2E)}, v{g+1}"])
            for tup in zip(*P_): Q += list(tup)
        for n, m in enumerate(L):
            lead = []
            if n == len(L) - 1 and last:
                lead = ([ds[n]] if ds[n] else []) + last
            else:
                lead = dma_slot(j, n, ds[n] is not None) + ([ds[n]] if ds[n] else [])
            S.gap(m, lead)
        if j == 5:
            stamp(2)
            if st + 3 < 8: pend += wdma(st + 3)
            if st == 6: assert len(Q) <= len(SET)
            if st == 5: pend += kdma(1) + vdma(0) + kdma(2)
            if st == 6: pend[0:0] = statld; pend += vdma(1) + kdma(3) + vdma(2)
print("fillers", NFILL, "left", len(Q), "dma left", len(pend), file=sys.stderr)
for i in range(8, 16): E(X.kread(0, i))
for l in XNST: E(l)
Q += [f"v_mov_b32 v{60+e}, v{72+e}" for e in range(4)]
S.drain()
stamp(3)
for s_ in range(4):
    E("s_waitcnt lgkmcnt(0)" if s_ != 1 else "s_nop 0")
    for qb in range(4):
        b = acc(2*s_, qb); st = vG + 4*qb
        for e in range(4):
            E(f"v_pk_fma_f32 v[{b+2*e}:{b+2*e+1}], v[{vC+(s_&1)*8+2*e}:{vC+(s_&1)*8+2*e+1}], v[{st}:{st+1}], v[{b+2*e}:{b+2*e+1}] op_sel:[0,0,0] op_sel_hi:[1,0,1]")
        if qb == 3 and s_ + 2 < 4:
            for l in csread(s_ + 2): E(l)
        for e in range(4):
            E(f"v_pk_mul_f32 v[{b+2*e}:{b+2*e+1}], v[{b+2*e}:{b+2*e+1}], v[{st}:{st+1}] op_sel:[0,1] op_sel_hi:[1,1]")
        q = r.vQ + qb*16 + s_*4
        for e in range(4): E(f"v_cvt_pk_bf16_f32 v{q+e}, v{b+2*e}, v{b+2*e+1}")
        one_dma()
    for qb in range(4):
        q = r.vQ + qb*16 + s_*4
        E(f"v_permlane16_swap_b32 v{q}, v{q+2}"); E(f"v_permlane16_swap_b32 v{q+1}, v{q+3}")
plain(pend); del pend[:]
stamp(2)
Q += [f"v_mov_b32 v{r.vL+i}, 0" for i in range(16)]
for qb in range(4):
    for s_ in range(4):
        D = v(r.vS + 48 + 4*qb, 4)
        S.gap(f"{MF} {D}, {a(aWF+4*s_,4)}, {v(r.vQ+qb*16+s_*4,4)}, {'0' if s_ == 0 else D}")
    if qb == 1:
        for q2 in range(4):
            b = r.vS + 48 + 4*q2
            Q += [f"v_max3_f32 v{b}, v{b}, v{b+1}, v{b+2}", f"v_max_f32 v{b}, v{b}, v{b+3}"] + [f"v_sub_f32 v{r.vM+4*q2+e}, 0, v{b}" for e in range(4)]
            if q2 == 1: hold = len(Q)
        tail = Q[hold:]; del Q[hold:]
Q += tail
S.drain()
E("s_nop 1")
stamp(3)
NT = 32
def emit_gaps(T, lo, hi, lead, mf):
    F = X.fillers(T, NT)
    for g in range(lo, hi):
        m = mf(g)
        if m: E(m)
        for f in lead.get(g, []):
            E(f)
            if not m and f.startswith("s_add_u32 m0"): E("s_nop 0")
        fs = F[g]
        if m and T == 0 and not fs and not lead.get(g): E("s_nop 0")
        if not m and fs and fs[0].startswith("v_cvt"): E("s_nop 0")
        for f in fs: E(f)
def gapsets(lo, hi):
    F = X.fillers(1, NT)
    ex = [g for g in range(lo, hi) if g in X.isexp]
    cv = [g for g in range(lo, hi) if g not in X.isexp and F[g]]
    em = [g for g in range(lo, hi) if g not in X.isexp and not F[g]]
    return ex, cv, em
NVE = 6
def pv_part(T, dmaslot, salu):
    lead = {}
    ex, cv, em = gapsets(64, 132)
    fg = sorted(cv + em)
    late = fg[-NVE:]
    em_e = [g for g in em if g not in late]
    L = X.dma(dmaslot) if dmaslot is not None else []
    dm = [L[i] for i in (1, 2, 3, 4, 6, 7, 8, 9)] if L else []
    step = len(em_e) / 8.0
    dg = [em_e[min(len(em_e) - 1, int(i*step) + 1)] for i in range(8)] if dm else []
    assert len(set(dg)) == len(dg)
    for s_, g in zip(dm, dg): lead.setdefault(g, []).append(s_)
    kg = [g for g in fg if g not in late and g not in dg]
    if T + 1 < NT:
        assert len(kg) >= 16
        for i in range(16): lead.setdefault(kg[i], []).append(X.kread(T + 1, i))
    if L:
        for mi, first in ((0, 0), (5, 4)):
            g = max(x for x in ex if x < dg[first]); lead.setdefault(g, []).append(L[mi])
            if first: assert g > dg[3]
        after = [x for x in ex if x > dg[7]]
        sal = [f"s_add_u32 s{r.sKoff}, s{r.sKoff}, s{r.sKinc}", f"s_add_u32 s{r.sVoff}, s{r.sVoff}, s{r.sVinc}"] + list(salu)
    else:
        after = ex[-8:]; sal = list(salu)
    assert len(after) > len(sal)
    for s_, g in zip(sal, after): lead.setdefault(g, []).append(s_)
    if T < NT:
        for i, g in enumerate(late): lead.setdefault(g, []).append(X.vread(T, i))
    assert 131 not in late
    if T + 1 < NT: lead.setdefault(131, []).insert(0, f"s_waitcnt lgkmcnt({NVE})")
    emit_gaps(T, 64, 132, lead, lambda g: X.pv(T - 1, g - 64) if T >= 1 else None)
def qk_part(T, sync=True, salu=None):
    lead = {}
    if salu: lead[61] = [salu]
    ex, cv, em = gapsets(0, 64)
    fg = sorted(cv + em)
    if T >= 1:
        for i in range(NVE, 32): lead.setdefault(fg[i - NVE], []).append(X.vread(T - 1, i))
    if sync:
        bg = opt["bgap"]
        if opt["bsplit"]:
            lead.setdefault(bg - 2, []).append("s_waitcnt vmcnt(16) lgkmcnt(0)")
            lead.setdefault(bg, []).append("s_barrier")
        else:
            lead.setdefault(bg, []).append("s_waitcnt vmcnt(16) lgkmcnt(0)")
            if opt["bar"]: lead[bg].append("s_barrier")
    emit_gaps(T, 0, 64, lead, lambda g: X.qk(g) if T < NT else None)
HOOK = {}
if opt["onerow"]:
    M("v_and_b32 v224, 15, v0\nv_cmp_gt_u32 vcc, 2, v224\ns_nop 1")
    for e in range(4): E(f"v_cndmask_b32 v{r.vOne+e}, 0, v{r.vOne+e}, vcc")
    E("s_nop 1")
E("L_restart:")
pend += kdma(4) + vdma(3)
krel = sorted((48 + 4*(i >> 2) + ((3 - (i & 3)) if (i >> 2) & 1 else (i & 3)) + 1, i) for i in range(16))
vq = [X.vread(0, i) for i in range(NVE)]
ne, nc = 0, 0
for g in range(64):
    lead = []; budget = 2
    if g == 0: lead = [f"s_waitcnt vmcnt({vmn('k1', 'v0')})", "s_barrier"]
    else:
        if pend and pend[0].startswith("s_"): lead = [pend.pop(0)]
        elif pend and g % 4 == 2: lead = [pend.pop(0)]; budget = 0
        if budget:
            if vq and g < 8: lead += vq[:2]; del vq[:2]; budget = 0
            elif krel and krel[0][0] <= g and (2*nc + 2 < ne or len(krel) > 1 and krel[1][0] <= g):
                lead.append(X.kread(1, krel.pop(0)[1])); budget = 1
                if 2*nc + 2 >= ne: lead.append(X.kread(1, krel.pop(0)[1])); budget = 0
    if budget == 2 and g >= 4*(ne >> 2) + 7 and (ne - 2*nc < 5 or g >= 30):
        lead.append(X.exp(ne)); ne += 1
    else:
        while budget and 2*nc + 2 <= ne - (1 if False else 0) and nc < 30:
            lead.append(X.cvt(0, 2*nc + 1)); nc += 1; budget -= 1
    if not lead: lead = ["s_nop 0"]
    E(X.qk(g))
    for l in lead: E(l)
print("period0: exps", ne, "cvts", nc, "pend", len(pend), "krel", len(krel), "vq", len(vq), file=sys.stderr)
for _, i in krel: E(X.kread(1, i))
assert not vq and not pend
while ne < 61 or nc < 30:
    if 2*nc + 2 < ne or ne == 61: Q.append(X.cvt(0, 2*nc + 1)); nc += 1
    else: Q.append(X.exp(ne)); ne += 1
S.drain()
E("s_waitcnt lgkmcnt(0)")
if opt["moe"]:
    A(f"s_cmp_lg_u32 s{sFb}, 0"); A("s_cbranch_scc1 L_notouch")
    A(f"s_waitcnt vmcnt({S.vmn('xn')})")
    for l in KEYST: A(l)
    A(f"s_cmp_lg_u32 s{sSlow}, 0"); A("s_cbranch_scc1 L_notouch")
    A("global_load_dword v23, v23, s[6:7]"); A.label("L_notouch")
assert S.vmn("k2", "v1") >= 16
r.vVDl = [20, 21, 1, 2]
stamp(3)
A.raw(".p2align 6")
for _ in range(opt["pad"]): E("s_nop 0")
A.label("L_loop")
for u in range(1, 5):
    qk_part(u, salu=(f"s_cmp_eq_u32 s{r.sIt}, 7" if u == 3 else None))
    if u == 3: E("s_cbranch_scc1 L_tail")
    sal = []
    if u == 2: sal = [f"s_bitcmp1_b32 s{sMask2}, s{r.sIt}"]
    if u == 3: sal = [f"s_cmp_eq_u32 s{r.sIt}, 6"]
    if u == 4: sal = [f"s_add_u32 s{r.sIt}, s{r.sIt}, 1", f"s_bitcmp1_b32 s{sMask4}, s{r.sIt}"]
    pv_part(u, None if opt["nodma"] else u & 3, sal)
    if u == 2: E("s_cbranch_scc1 L_disp2"); E("L_ret2:")
    if u == 3: E("s_cbranch_scc1 L_hook27"); E("L_ret3:")
E("s_cbranch_scc0 L_loop")
def wo_voff(dst):
    return f"""v_lshrrev_b32 v180, 3, v0
v_and_b32 v181, 7, v0
v_lshrrev_b32 v182, 1, v180
v_lshlrev_b32 v182, 1, v182
v_xor_b32 v182, v182, v181
v_lshlrev_b32 v182, 4, v182
v_lshl_add_u32 v{dst[0]}, v180, 10, v182""".split("\n") + [f"v_add_u32 v{dst[p]}, {7168*p}, v{dst[0]}" for p in range(1, 4)]
HOOK[27] = wo_voff([r.vKD + p for p in range(4)]) + [f"s_mov_b32 s{sK}, s{sWq}", f"s_mov_b32 s{sK+1}, s{sWq+1}", f"s_mov_b32 s{sK+2}, s{sWq+2}",
            f"s_mov_b32 s{r.sKoff}, 0", f"s_mov_b32 s{r.sKinc}, 0x8000"]
HOOK[28] = [f"v_mov_b32 v{r.vVDl[p]}, v{r.vKD+p}" for p in range(4)] + [f"s_mov_b32 s{sV}, s{sWq}", f"s_mov_b32 s{sV+1}, s{sWq+1}", f"s_mov_b32 s{sV+2}, s{sWq+2}",
            f"s_mov_b32 s{r.sVoff}, 0x10000", f"s_mov_b32 s{r.sKinc}, 0x10000", f"s_mov_b32 s{r.sVinc}, 0x10000"]
def H(T, txt): HOOK.setdefault(T, []).extend(l.strip() for l in txt.strip().split("\n") if l.strip())
SEL = [4, 5, 6, 7, 42, 43, 48, 49]
TF, TP, TK, TS = opt['TF'], opt['TP'], 2, 8
ROLE = {}
NLOG2E = fbits(-1.4426950408889634)
if opt["moe"]:
    ROLE.update({TK: "R", TK + 2: "R", TS: "FR", TS + 2: "FR", TS + 4: "F", TS + 6: "F", TS + 8: "F", TF: "F", TP: "FR", TP + 2: "FR"})
    H(TK, f"""s_add_u32 m0, s{r.sM0K}, 0x20000
    s_add_u32 s3, s{r.sM0K}, {WS_KEY}""")
    HOOK[TK] += [f"buffer_load_dwordx4 v3, s[{sW}:{sW+3}], s3 offen offset:{p*1024} sc1 lds" for p in range(4)]
    KQ = [128 + 4*n for n in range(15)] + [224]
    chk = ["v_mov_b32 v228, 0"] + [f"v_bitop3_b32 v228, v228, v{q+2}, s{sNonce} bitop3:0xf6" for q in KQ] + ["v_cmp_ne_u32 vcc, 0, v228"]
    H(TK + 2, "v_add_u32 v229, 0x20000, v3\ns_waitcnt vmcnt(16)\ns_barrier")
    HOOK[TK + 2] += [f"ds_read_b128 {v(q,4)}, v229 offset:{n*1024}" for n, q in enumerate(KQ)]
    H(TK + 2, f"""s_and_b32 s3, s2, 6
    s_lshl_b32 s3, s3, 1
    s_bfe_u32 s67, s2, 0x20003
    s_add_u32 s3, s3, s67
    s_lshl_b32 s3, s3, 2
    s_add_u32 s3, s3, s{sWave}
    s_lshl_b32 s3, s3, 8
    v_bfe_u32 v232, v0, 1, 4
    v_and_b32 v233, 1, v0
    v_lshlrev_b32 v233, 2, v233
    v_lshl_add_u32 v232, v232, 4, v233
    v_add_u32 v232, s3, v232
    v_add_u32 v233, 0x20000, v232
    ds_read_b32 v234, v233
    s_waitcnt lgkmcnt(0)""")
    HOOK[TK + 2] += chk
    H(TK + 2, f"""s_cbranch_vccnz L_key_retry
    L_key_ok:
    v_mov_b32 v235, v234
    v_max_u32 v228, v{KQ[0]}, v{KQ[0]+1}""")
    mx = [f"v_max3_u32 v228, v228, v{q}, v{q+1}" for q in KQ[1:]]
    for n, m_ in enumerate(("quad_perm:[1,0,3,2]", "quad_perm:[2,3,0,1]", "row_half_mirror", "row_mirror")):
        mx.insert(3*n + 2, f"v_max_u32_dpp v235, v235, v235 {m_} row_mask:0xf bank_mask:0xf")
    HOOK[TK + 2] += mx
    H(TK + 2, f"""v_readlane_b32 s3, v235, 0
    v_readlane_b32 s67, v235, 16
    s_max_u32 s3, s3, s67
    v_cmp_lt_u32 vcc, s3, v228
    s_bcnt1_i32_b64 s3, vcc
    s_cmp_lt_u32 s3, 8
    s_cbranch_scc1 L_rank
    L_rank_done:""")
    cold += ["L_key_retry:"] + spin("", "L_key_ok")
    for n, q in enumerate(KQ):
        if n % 4 == 0: cold += [f"s_mov_b32 s3, {WS_KEY + n*1024}"]
        cold += [f"buffer_load_dwordx4 {v(q,4)}, v3, s[{sW}:{sW+3}], s3 offen offset:{(n%4)*1024} sc1"]
    cold += ["s_waitcnt vmcnt(0)"] + chk + ["s_cbranch_vccnz L_key_retry", f"s_mov_b32 s3, {WS_KEY}",
             f"buffer_load_dword v234, v232, s[{sW}:{sW+3}], s3 offen sc1", "s_waitcnt vmcnt(0)", "s_branch L_key_ok"]
    cold += ["L_rank:", "s_mov_b32 s4, 0", "L_rank_row:", f"v_readlane_b32 s{sKey0}, v234, s4", "s_mov_b32 s68, 0", "s_nop 0",
             f"v_cmp_lt_u32 vcc, s{sKey0}, v228", "s_bcnt1_i32_b64 s3, vcc", "s_cmp_ge_u32 s3, 8", "s_cbranch_scc1 L_rank_next"]
    for q in KQ:
        for e in range(2): cold += [f"v_cmp_lt_u32 vcc, s{sKey0}, v{q+e}", "s_bcnt1_i32_b64 s3, vcc", "s_add_u32 s68, s68, s3"]
    cold += f"""s_cmp_ge_u32 s68, 8
s_cbranch_scc1 L_rank_next
s_not_b32 s3, s{sKey0}
s_xor_b32 s67, s{sKey0}, 0x80000000
s_bitcmp1_b32 s{sKey0}, 31
s_cselect_b32 s3, s67, s3
s_and_b32 s3, s3, 0xffff0000
v_mov_b32 v230, {NLOG2E}
v_mul_f32 v230, s3, v230
v_exp_f32 v230, v230
s_andn2_b32 s67, 0x7ff, s{sKey0}
v_add_f32 v230, 1.0, v230
v_rcp_f32 v230, v230
s_lshl_b32 s68, s68, 3
v_cvt_pk_bf16_f32 v230, v230, v230
v_and_b32 v230, 0xffff0000, v230
v_or_b32 v230, s67, v230
v_mov_b32 v231, s{sNonce}
s_add_u32 s68, s68, {WS_SEL}
s_mov_b64 exec, 1
buffer_store_dwordx2 v[230:231], off, s[{sW}:{sW+3}], s68 sc1
s_mov_b64 exec, -1
L_rank_next:
s_add_u32 s4, s4, 1
s_cmp_lt_u32 s4, 32
s_cbranch_scc1 L_rank_row
s_branch L_rank_done""".split("\n")
    def gu_dma(p):
        L = f"""s_mul_i32 s3, s{sWave}, {128*3584}
s_lshl_b32 s67, s{sChunk}, 5
s_add_u32 s3, s3, s67
v_lshrrev_b32 v184, 1, v0
v_and_b32 v185, 8, v184
v_xor_b32 v185, v185, v0
v_lshrrev_b32 v184, 1, v185
v_mul_u32_u24 v184, 3584, v184
v_and_b32 v185, 16, v3
v_add3_u32 v184, v184, v185, s3""".split("\n")
        for k in range(4):
            L += [f"s_add_u32 m0, s{r.sM0K}, {0x24000 + k*1024}", "s_nop 0" if k == 0 else f"v_add_u32 v184, {32*3584}, v184",
                  f"global_load_lds_dwordx4 v184, s[{p}:{p+1}]"]
        return L
    selld = f"buffer_load_dwordx2 v[60:61], v128, s[{sW}:{sW+3}], 0 offen sc1"
    seladdr = ["v_and_b32 v128, 7, v0", "v_lshlrev_b32 v128, 3, v128", f"v_add_u32 v128, {WS_SEL}, v128"]
    HOOK[TS] = seladdr + [selld, f"s_cmp_eq_u32 s{sChunk}, -1", "s_cbranch_scc1 L_wp0"] + gu_dma(pWg) + ["L_wp0:"]
    H(TS + 2, f"""s_waitcnt vmcnt(16)
    v_cmp_ne_u32 vcc, s{sNonce}, v61
    s_cbranch_vccnz L_sel_retry
    L_sel_ok:
    v_and_b32 v128, 0xffff, v60
    v_and_b32 v129, 48, v0
    v_bfe_u32 v130, v0, 3, 1
    v_lshl_add_u32 v129, v130, 6, v129
    v_lshl_add_u32 v128, v128, 10, v129
    s_lshl_b32 s3, s{sWave}, 8
    s_add_u32 s3, s3, {WS_XN}
    s_lshr_b32 s68, s{r.sM0K}, 1
    s_add_u32 m0, s68, 0x20000
    s_add_u32 s67, s3, 128
    buffer_load_dwordx4 v128, s[{sW}:{sW+3}], s3 offen sc1 lds
    s_add_u32 m0, s68, 0x20400
    s_nop 0
    buffer_load_dwordx4 v128, s[{sW}:{sW+3}], s67 offen sc1 lds""")
    cold += ["L_sel_retry:"] + spin("", "L_sel_ok") + seladdr + [selld, "s_waitcnt vmcnt(0)", f"v_cmp_ne_u32 vcc, s{sNonce}, v61",
             "s_cbranch_vccnz L_sel_retry", "s_branch L_sel_ok"]
    def gu_step(T, scratch, nxt):
        H(T, f"""v_and_b32 v224, 48, v0
        v_and_b32 v225, 15, v0
        v_lshlrev_b32 v225, 3, v225
        v_lshl_add_u32 v224, v224, 4, v225
        v_and_b32 v225, 16, v0
        v_lshl_add_u32 v224, v225, 3, v224
        s_add_u32 s3, s{r.sM0K}, 0x24000
        v_add_u32 v224, s3, v224
        v_xor_b32 v225, 128, v224
        s_lshr_b32 s68, s{r.sM0K}, 1
        v_and_b32 v226, 0x370, v3
        s_add_u32 s3, s68, 0x20000
        v_add_u32 v226, s3, v226
        s_waitcnt vmcnt(16)""")
        for ks in range(4):
            HOOK[T] += [f"ds_read_b64_tr_b16 v[{128+4*ks}:{129+4*ks}], v224 offset:{ks*1024}", f"ds_read_b64_tr_b16 v[{130+4*ks}:{131+4*ks}], v225 offset:{ks*1024}",
                        f"ds_read_b128 {v(144+4*ks,4)}, v226 offset:{(ks>>1)*1024 + (ks&1)*128}"]
        n0 = next(i for i, l in enumerate(nxt) if l.startswith("s_add_u32 m0"))
        HOOK[T] += [f"s_lshr_b32 s68, s{r.sM0K}, 2", f"s_add_u32 s68, s68, {scratch}", "v_add_u32 v227, s68, v3"] + nxt[:n0] + ["s_waitcnt lgkmcnt(0)"]
        HOOK[T] += [f"{MF} v[160:163], {v(128+4*ks,4)}, {v(144+4*ks,4)}, {'0' if ks == 0 else 'v[160:163]'}" for ks in range(4)]
        HOOK[T] += nxt[n0:] + ["ds_write_b128 v227, v[160:163]"]
    gu_step(TS + 4, 0x22000, gu_dma(pWu))
    dn = f"""s_lshl_b32 s3, s{sChunk}, 14
s_lshl_b32 s67, s{sWave}, 8
s_add_u32 s3, s3, s67
v_and_b32 v184, 0xff, v{r.vVD}
v_and_b32 v185, 48, v0
v_lshl_add_u32 v184, v185, 6, v184
v_add_u32 v184, s3, v184
v_xor_b32 v185, 128, v184
v_add_u32 v185, 0x1000, v185""".split("\n")
    for k in range(4):
        dn += [f"s_add_u32 m0, s{r.sM0K}, {0x24000 + k*1024}", "s_nop 0" if k < 2 else f"v_add_u32 v{184+(k&1)}, 0x2000, v{184+(k&1)}",
               f"global_load_lds_dwordx4 v{184+(k&1)}, s[{pWd}:{pWd+1}]"]
    gu_step(TS + 6, 0x23000, dn)
    T3 = TS + 8
    H(T3, f"v_add_u32 v224, 0x22000, v3\ns_add_u32 s3, s{r.sM0K}, {0x24000 - r.VBASE}")
    HOOK[T3] += [f"ds_read_b128 {v(128+4*n,4)}, v224 offset:{n*1024}" for n in range(8)]
    HOOK[T3] += [f"v_add_u32 v{228+nb}, s3, v{r.vVA+nb}" for nb in range(8)] + ["s_waitcnt vmcnt(16)"]
    HOOK[T3] += [f"ds_read_b64_tr_b16 v[{164+2*nb}:{165+2*nb}], v{228+nb}" for nb in range(8)]
    H(T3, f"""v_and_b32 v225, 0x70, v3
    v_and_b32 v226, 48, v0
    v_lshl_add_u32 v225, v226, 3, v225
    v_and_b32 v226, 8, v0
    v_lshl_add_u32 v225, v226, 6, v225
    v_cmp_eq_u32 vcc, 0, v226
    s_lshl_b32 s3, s{sChunk}, 14
    s_add_u32 s3, s3, s{r.sM0K}
    s_add_u32 s3, s3, {WS_PART}
    s_waitcnt lgkmcnt(8)""")
    for b_ in (128, 144):
        for e in range(4): HOOK[T3] += [f"v_add_f32 v{b_+e}, v{b_+e}, v{b_+4+e}", f"v_add_f32 v{b_+8+e}, v{b_+8+e}, v{b_+12+e}"]
        for e in range(4): HOOK[T3] += [f"v_add_f32 v{b_+e}, v{b_+e}, v{b_+8+e}"]
        HOOK[T3] += [f"v_cvt_pk_bf16_f32 v{b_+4+e}, v{b_+2*e}, v{b_+2*e+1}" for e in range(2)] + unpack(b_, b_ + 4, 2)
    for op_ in (f"v_mul_f32 v{{t}}, {NLOG2E}, v{{g}}", "v_exp_f32 v{t}, v{t}", "v_add_f32 v{t}, 1.0, v{t}", "v_rcp_f32 v{t}, v{t}", "v_mul_f32 v{g}, v{g}, v{t}"):
        HOOK[T3] += [op_.format(t=132 + e, g=128 + e) for e in range(4)]
    HOOK[T3] += [f"v_cvt_pk_bf16_f32 v{132+e}, v{128+2*e}, v{129+2*e}" for e in range(2)] + unpack(128, 132, 2)
    HOOK[T3] += [f"v_mul_f32 v{128+e}, v{128+e}, v{144+e}" for e in range(4)]
    H(T3, """v_cvt_pk_bf16_f32 v146, v128, v129
    v_cvt_pk_bf16_f32 v147, v130, v131
    v_cndmask_b32 v144, 0, v146, vcc
    v_cndmask_b32 v145, 0, v147, vcc
    v_cndmask_b32 v146, v146, 0, vcc
    v_cndmask_b32 v147, v147, 0, vcc
    s_waitcnt lgkmcnt(0)""")
    for j in range(4):
        HOOK[T3] += [f"v_mfma_f32_16x16x16_bf16 {v(128+4*j,4)}, v[{164+4*j}:{165+4*j}], v[144:145], 0",
                     f"v_mfma_f32_16x16x16_bf16 {v(128+4*j,4)}, v[{166+4*j}:{167+4*j}], v[146:147], {v(128+4*j,4)}"]
    H(T3, "s_nop 4")
    for j in range(4): HOOK[T3] += [f"buffer_store_dwordx4 {v(128+4*j,4)}, v225, s[{sW}:{sW+3}], s3 offen offset:{j*1024} sc1"]
    H(T3, "s_nop 0")
    H(TF, f"""s_lshl_b32 s3, s{sWave}, 7
    s_add_u32 s3, s3, s{sChunk}
    s_lshl_b32 s3, s3, 2
    s_add_u32 s3, s3, {WS_FC}
    v_mov_b32 v128, s{sNonce}
    s_waitcnt vmcnt(16)
    s_mov_b64 exec, 1
    buffer_store_dword v128, off, s[{sW}:{sW+3}], s3 sc1
    s_mov_b64 exec, -1""")
    fcaddr = ["v_min_u32 v128, 55, v0", "v_lshlrev_b32 v128, 3, v128", "s_lshr_b32 s3, s2, 6", "s_lshl_b32 s3, s3, 9", f"s_add_u32 s3, s3, {WS_FC}"]
    fcld = f"buffer_load_dwordx2 v[62:63], v128, s[{sW}:{sW+3}], s3 offen sc1"
    fcchk = [f"v_xor_b32 v129, s{sNonce}, v62", f"v_bitop3_b32 v129, v129, v63, s{sNonce} bitop3:0xf6", "v_cmp_ne_u32 vcc, 0, v129"]
    HOOK.setdefault(TP, []).extend(fcaddr + [fcld])
    HOOK.setdefault(TP + 2, []).extend(["s_waitcnt vmcnt(16)"] + fcchk)
    H(TP + 2, f"""s_cbranch_vccnz L_fc_retry
    L_fc_ok:
    v_lshrrev_b32 v128, 3, v0
    v_xor_b32 v129, v128, v0
    v_and_b32 v129, 7, v129
    v_lshlrev_b32 v129, 4, v129
    v_lshl_add_u32 v128, v128, 14, v129
    s_lshr_b32 s3, s2, 1
    s_lshl_b32 s3, s3, 7
    s_lshl_b32 s67, s{sWave}, 17
    s_add_u32 s3, s3, s67
    s_add_u32 s3, s3, {WS_PART}
    s_lshr_b32 s68, s{r.sM0K}, 2""")
    for k in range(4):
        HOOK[TP + 2] += [f"s_add_u32 m0, s68, {0x20000 + k*4096}", f"s_add_u32 s67, s3, {k << 19}"]
        if k == 3: HOOK[TP + 2] += [f"s_cmp_lt_u32 s{sWave}, 2", "s_cselect_b32 s67, s67, 0x40000000"]
        HOOK[TP + 2] += [f"buffer_load_dwordx4 v128, s[{sW}:{sW+3}], s67 offen sc1 lds"]
    cold += ["L_fc_retry:"] + spin("", "L_fc_ok") + fcaddr + [fcld, "s_waitcnt vmcnt(0)"] + fcchk + ["s_cbranch_vccnz L_fc_retry", "s_branch L_fc_ok"]
    T4 = TP + 5
    H(T4, f"""s_or_b32 s3, s{sFb}, s{sSlow}
    s_cbranch_scc1 L_s4_done
    s_lshl_b32 s68, s{sWave}, 1
    v_lshrrev_b32 v145, 5, v0
    v_add_u32 v145, s68, v145
    v_xor_b32 v144, v145, v0
    v_and_b32 v144, 7, v144
    v_and_b32 v146, 31, v0
    v_lshl_add_u32 v144, v146, 3, v144
    v_lshlrev_b32 v144, 4, v144
    v_add_u32 v144, 0x20000, v144""")
    HOOK[T4] += [f"ds_read_b128 {v(128+4*k,4)}, v144 offset:{k*4096}" for k in range(4)]
    H(T4, f"""v_lshlrev_b32 v146, 2, v145
    ds_bpermute_b32 v147, v146, v60
    v_lshlrev_b32 v145, 11, v145
    s_lshr_b32 s3, s2, 1
    s_lshl_b32 s3, s3, 4
    s_add_u32 s3, s3, {WS_UPD}
    s_waitcnt lgkmcnt(0)""")
    for e in range(4): HOOK[T4] += [f"v_add_f32 v{128+e}, v{128+e}, v{132+e}", f"v_add_f32 v{136+e}, v{136+e}, v{140+e}"]
    for e in range(4): HOOK[T4] += [f"v_add_f32 v{128+e}, v{128+e}, v{136+e}"]
    for tup in zip(*[wave_sum(128 + e, 0)[:-2] for e in range(4)]): HOOK[T4] += list(tup)
    H(T4, "v_and_b32 v147, 0xffff0000, v147\nv_cvt_pk_bf16_f32 v132, v128, v129\nv_cvt_pk_bf16_f32 v133, v130, v131")
    HOOK[T4] += unpack(128, 132, 2) + [f"v_mul_f32 v{128+e}, v147, v{128+e}" for e in range(4)]
    H(T4, f"""v_cvt_pk_bf16_f32 v132, v128, v129
    v_cvt_pk_bf16_f32 v133, v130, v131
    v_mov_b32 v134, s{sNonce}
    v_mov_b32 v135, s{sNonce}
    s_mov_b32 exec_lo, 0x80000000
    s_mov_b32 exec_hi, 0x80000000
    buffer_store_dwordx4 v[132:135], v145, s[{sW}:{sW+3}], s3 offen sc1
    s_mov_b64 exec, -1
    L_s4_done:""")
if opt["wtouch"]:
    for n, T in enumerate(eval(opt_s["wT"])):
        if opt["varb"]:
            HOOK.setdefault(T, []).extend(["s_and_b32 s3, s2, 0xf8", "s_lshl_b32 s3, s3, 1", f"s_lshl_b32 s67, s{sWave}, 10", "s_add_u32 s3, s3, s67", f"s_add_u32 s3, s3, {512*n}",
                "s_lshl_b32 s3, s3, 1", "s_and_b32 s67, s2, 1", "s_add_u32 s3, s3, s67", "s_lshl_b32 s3, s3, 9",
                "v_lshrrev_b32 v180, 2, v0", "v_and_b32 v181, 3, v0", "v_lshlrev_b32 v181, 7, v181", "v_lshl_add_u32 v180, v180, 10, v181",
                "v_add_u32 v180, s3, v180", f"global_load_dword v23, v180, s[{pWo}:{pWo+1}]"])
        else:
            HOOK.setdefault(T, []).extend(["s_and_b32 s3, s2, 0xf8", f"s_lshl_b32 s67, s{sWave}, 10", "s_add_u32 s3, s3, s67", f"s_add_u32 s3, s3, {256*n}", "s_lshl_b32 s3, s3, 10",
                "v_lshl_add_u32 v180, v0, 7, s3", f"global_load_dword v23, v180, s[{pWo}:{pWo+1}]"])
if opt["otch"]:
    for n, T in enumerate(eval(opt_s["oT"])):
        HOOK.setdefault(T, []).extend([f"s_lshl_b32 s3, s{sQb}, 2", f"s_add_u32 s3, s3, s{sWave}", "s_lshl_b32 s3, s3, 7", f"s_add_u32 s3, s3, s{sHead}", "s_lshl_b32 s3, s3, 12",
            f"s_add_u32 s3, s3, {n*0x40000}", "v_lshrrev_b32 v180, 5, v0", "v_and_b32 v181, 31, v0", "v_lshlrev_b32 v181, 7, v181", "v_lshl_add_u32 v180, v180, 17, v181",
            f"buffer_load_dword v23, v180, s[{sW}:{sW+3}], s3 offen{['', '', ' sc1', ' nt', ' sc0 sc1'][opt['otch']]}"])
if opt["stamp"] & 8:
    Ts = eval(opt_s["hs"])
    def st_(i): return [f"{CLK} s[{70+2*i}:{71+2*i}]", "s_waitcnt lgkmcnt(0)"]
    i = 1
    for T in Ts:
        body = []
        for l in HOOK[T]:
            if l.startswith("STAMP"):
                body += st_(i + 1); i += 1
            else: body.append(l)
        k = sum(l.startswith("STAMP") for l in HOOK[T])
        HOOK[T] = st_(i - k) + body + st_(i + 1); i += 2
    nstamp[0] = i
for T in HOOK: HOOK[T] = [l for l in HOOK[T] if not l.startswith("STAMP")]
def emit_hooks():
    msk = {}
    for site in (4, 2):
        Ts = sorted(T for T in HOOK if T % 4 == site % 4)
        msk[site] = {ro: sum(1 << (T // 4) for T in Ts if ro in ROLE.get(T, ro)) for ro in "FRS"}
        E(f"L_disp{site}:")
        first = min(HOOK)
        for T in Ts:
            if site == 2 and T == first: continue
            if T == Ts[-1] and not (site == 2 and first in Ts): E(f"s_branch L_hook{T}")
            else: E(f"s_cmp_eq_u32 s{r.sIt}, {T // 4}"); E(f"s_cbranch_scc1 L_hook{T}")
        if not Ts: E("s_branch " + ("L_ret2" if site == 2 else "L_loop"))
    for T in sorted(HOOK):
        E(f"L_hook{T}:")
        for l in HOOK[T]: E(l)
        E("s_branch " + {2: "L_ret2", 3: "L_ret3", 0: "L_loop"}[T % 4])
    return msk[2], msk[4]
m2, m4 = emit_hooks()
A.label("L_tail")
S.vm[:] = ["wo0"]*4 + ["v31"]*4 + [f"wo{k}" for k in range(1, 5) for _ in range(4)]
sOoff = 63
vWo, vWr, vOq, vFl = r.vKD, 48, 4, 44
VA, VB, VC, AA, AB, AC, AD = ("v", 64), ("v", 128), ("v", 192), ("a", 0), ("a", 64), ("a", 128), ("a", 192)
def blk(B, off, n): return (v if B[0] == "v" else a)(B[1] + off, n)
WBLK = [VA, AA, AD, VC]; ACC = AC
NU = 10
UNIT = [0, 1, 5, 2, 6, 3, 7, 8, 4, 9]
def wo_dma(kk):
    L = [f"s_add_u32 m0, s{r.sM0K}, {UNIT[kk % NU]*16384}"]
    L += [f"buffer_load_dwordx4 v{vWo+p}, s[{sWq}:{sWq+3}], s{sWoff} offen offset:{p*1024} lds ; wo{kk}" for p in range(4)]
    L += [f"s_add_u32 s{sWoff}, s{sWoff}, 0x8000"]
    return L
def wo_reads(kk):
    u = UNIT[kk % NU]; B = WBLK[(kk >> 2) & 3]
    return [f"ds_read_b64_tr_b16 {blk(B, (nb*4 + (kk & 3))*4 + 2*half, 2)}, v{vWr + 4*(u >> 2) + nb} offset:{(u & 3)*16384 + half*2048} ; r{kk}"
            for nb in range(4) for half in range(2)]
OBUF = [("a", 64), ("a", 80), ("a", 96), ("a", 112), ("v", 128), ("v", 144)][:opt["look"] + 1]
def o_loads(z):
    B = OBUF[z % len(OBUF)]
    L = [f"buffer_load_dwordx4 {blk(B, i*4, 4)}, v{vOq+(z&3)}, s[{sW}:{sW+3}], s{sOoff} offen offset:{i*1024} sc1 ; o{z}" for i in range(4)]
    return L + (o_next() if z & 3 == 3 else [])
def o_next(): return [f"s_add_u32 s{sOoff}, s{sOoff}, 0x1000"]
L_ = r.vL
vXo, vXr, vGf, vSt = 45, 20, 176, 46
vU, vRow, vSa, vC3, vUa, vUt, vT, vN = 160, 12, 14, 3, 15, 11, 10, 13
setup1 = f"""s_mov_b32 s{sWoff}, {5*0x8000}
s_lshl_b32 s3, s{sQb}, 2
s_add_u32 s3, s3, s{sWave}
s_lshl_b32 s69, s3, 5
s_add_u32 s69, s69, s{sHead}
s_lshl_b32 s69, s69, 7
s_add_u32 s69, s69, {WS_FLAG}
s_lshl_b32 s3, s3, 7
s_add_u32 s3, s3, s{sHead}
s_lshl_b32 s68, s3, 12
s_lshl_b32 s{sOoff}, s{sQt}, 19
s_lshl_b32 s3, s{sWave}, 15
s_add_u32 s{sOoff}, s{sOoff}, s3""".split("\n")
setupO = [f"v_mov_b32 v{vOq}, v3"] + [f"v_add_u32 v{vOq+qb}, {qb*0x20000}, v3" for qb in range(1, 4)]
setup2 = f"""v_lshrrev_b32 v1, 4, v0
v_and_b32 v2, 15, v0
v_and_b32 v9, 7, v0
v_lshrrev_b32 v8, 2, v2
v_lshl_add_u32 v8, v1, 2, v8
v_bfe_u32 v10, v8, 1, 2
v_lshlrev_b32 v8, 7, v8
v_and_b32 v{vC3}, 3, v0
v_lshl_add_u32 v8, v{vC3}, 3, v8
v_add_u32 v8, s{r.sM0K}, v8""".split("\n")
for nb in range(4):
    setup2 += [f"v_xor_b32 v11, {nb}, v10", f"v_lshl_add_u32 v{vWr+nb}, v11, 5, v8",
               f"v_add_u32 v{vWr+4+nb}, 0x10000, v{vWr+nb}", f"v_add_u32 v{vWr+8+nb}, 0x20000, v{vWr+nb}"]
setup2 += [f"s_lshl_b32 s3, s{sQt}, 5", f"s_lshl_b32 s67, s{sWave}, 3", "s_add_u32 s3, s3, s67", "v_add_u32 v9, s3, v9",
           f"v_lshlrev_b32 v{vFl}, 7, v9", f"v_add_u32 v{vFl}, {WS_FLAG}, v{vFl}",
           f"s_lshl_b32 s3, s{sWave}, 2", "s_add_u32 s3, s3, 0x24000", f"v_lshl_add_u32 v192, v{vC3}, 12, s3",
           f"s_add_u32 s3, s{r.sM0K}, 0x24000", "v_mov_b32 v193, s3"]
FS = f"""s_and_b32 s1, s{sNt}, {opt['qrot']}
s_lshl_b32 s3, s{sQt}, 2
s_add_u32 s3, s3, s{sWave}
s_xor_b32 s3, s3, s1
s_lshl_b32 s1, s1, 17
s_lshl_b32 s3, s3, 4
v_lshrrev_b32 v{vRow}, 2, v0
v_add_u32 v{vRow}, s3, v{vRow}
v_lshlrev_b32 v{vSa}, 3, v{vRow}
v_add_u32 v{vSa}, {WS_STAT}, v{vSa}
s_lshl_b32 s3, s{sNt}, 7
v_lshl_add_u32 v{vT}, v{vC3}, 5, s3
v_lshl_add_u32 v{vXo}, v{vRow}, 10, v{vT}
v_mov_b32 v{vN}, s{sNonce}
global_load_dwordx4 v[{vXr}:{vXr+3}], v{vXo}, s[{pX}:{pX+1}] ; xf
global_load_dwordx4 v[{vXr+4}:{vXr+7}], v{vXo}, s[{pX}:{pX+1}] offset:16 ; xf
buffer_load_dwordx2 v[{vSt}:{vSt+1}], v{vSa}, s[{sW}:{sW+3}], 0 offen sc1 ; xf""".split("\n")
updld = [f"buffer_load_dwordx4 {v(vU+4*k,4)}, v{vUa}, s[{sW}:{sW+3}], s67 offen offset:{16*k} sc1" for k in range(4)] if opt["moe"] else []
updchk = [f"v_xor_b32 v{vT}, s{sNonce}, v{vSt+1}"]
FU = []
if opt["moe"]:
    selld2 = f"buffer_load_dwordx2 v[200:201], v202, s[{sW}:{sW+3}], 0 offen sc1"
    setup2[0:0] = ["v_and_b32 v202, 7, v0", "v_lshlrev_b32 v202, 3, v202", f"v_add_u32 v202, {WS_SEL}, v202", selld2 + " ; sel"]
    FU += [lambda: f"s_waitcnt vmcnt({S.vmn('sel')})", f"v_cmp_ne_u32 vcc, s{sNonce}, v201", "s_cbranch_vccnz L_sel2_retry", "L_sel2_ok:", "v_and_b32 v200, 0xffff, v200"]
    cold += ["L_sel2_retry:"] + spin("", "L_sel2_ok") + [selld2, "s_waitcnt vmcnt(0)", f"v_cmp_ne_u32 vcc, s{sNonce}, v201",
             "s_cbranch_vccnz L_sel2_retry", "s_branch L_sel2_ok"]
    FU += [f"v_mov_b32 v{vUa}, 0x200000"] + [f"v_readlane_b32 s{SEL[t_]}, v200, {t_}" for t_ in range(8)]
    for t_ in range(8): FU += [f"v_cmp_eq_u32 vcc, s{SEL[t_]}, v{vRow}", f"v_mov_b32 v{vT}, {t_*32}", f"v_cndmask_b32 v{vUa}, v{vUa}, v{vT}, vcc"]
    FU += f"""v_cmp_gt_u32 vcc, 0x1000, v{vUa}
v_add_u32 v{vUa}, v{vUa}, v{vC3}
v_lshlrev_b32 v{vUa}, 6, v{vUa}
v_cndmask_b32 v{vUt}, 0, v{vN}, vcc
v_mov_b32 v{vT}, 0x40000000
v_cndmask_b32 v{vUa}, v{vT}, v{vUa}, vcc
s_lshl_b32 s67, s{sNt}, 8
s_add_u32 s67, s67, {WS_UPD}""".split("\n") + [l + " ; xf" for l in updld]
    updchk += [f"v_bitop3_b32 v{vT}, v{vT}, v{vU+4*k+2}, v{vUt} bitop3:0xf6" for k in range(4)]
updchk += [f"v_cmp_ne_u32 vcc, 0, v{vT}"]
def pv2(T, qb, db, ks):
    base = r.aV if T == 30 else r.aK
    D = a(r.aO + qb*32 + db*4, 4)
    return f"{MF} {D}, {a(base+4*(ks*8+db),4)}, {v(r.vP+(T&1)*32+qb*8+ks*4,4)}, {D}"
def v31(i): return X.vread(31, i).replace(a(r.aV + 4*(((i >> 1) & 1)*8 + (i >> 2)) + 2*(i & 1), 2), a(r.aK + 4*(((i >> 1) & 1)*8 + (i >> 2)) + 2*(i & 1), 2)) + f" ; v31_{i >> 2}"
nst = [0]
OSP = [" sc1", " sc0 sc1", " sc1 nt", "", " nt"][opt["osp"]]
def epi(qb):
    L = []
    for i4 in range(4):
        t = r.vS; o = r.vS + 8 + (nst[0] & 1)*4; nst[0] += 1
        L += [f"v_accvgpr_read_b32 v{t+e}, a{r.aO+qb*32+8*i4+e}" for e in range(8)]
        L += [f"v_mul_f32 v{t+e}, v{60+qb}, v{t+e}" for e in range(8)]
        L += [f"v_cvt_pk_bf16_f32 v{o+e}, v{t+2*e}, v{t+2*e+1}" for e in range(4)]
        L += [f"buffer_store_dwordx4 {v(o,4)}, v{vOq+qb}, s[{sW}:{sW+3}], s68 offen offset:{i4*1024}{OSP} ; ost" if not (opt["nostore"] and nst[0] < 16) else "s_nop 1"]
    return L
def smx(lo, hi):
    L = []
    for k in range(lo, hi):
        L.append(X.exp(k))
        if k % 2 == 0 and k > lo: L.append(X.cvt(31, k - 1))
    return L + [X.cvt(31, hi - 1)]
def rsum(qb): return [f"v_add_f32 v{L_+4*qb}, v{L_+4*qb}, v{L_+4*qb+1}", f"v_rcp_f32 v{60+qb}, v{L_+4*qb}"]
def dmaf(kk):
    L = wo_dma(kk)
    return [[L[0], "s_nop 0", L[1]], L[2], L[3], [L[4], L[5]]]
def weave(*lists):
    items = sorted(((i + 0.5) / len(L), n, i) for n, L in enumerate(lists) if L for i in range(len(L)))
    return [lists[n][i] for _, n, i in items]
def qcost(): return sum(len(f) if isinstance(f, list) else (1 if callable(f) else (0 if f.endswith(":") else S.cost(f))) for f in Q)
def chains(CH):
    for c, ch in enumerate(CH):
        for n, m in enumerate(ch):
            if n < len(ch) - 1: S.gap(m)
            else:
                left = len(CH) - c
                small = sum(2*(len(x) - 1) for x in CH[c+1:])
                S.gap(m, budget=max(2, -(-(qcost() - small*3//4) // left)), big=True)
    S.drain()
eg = X.sched()
assert eg[27] == 63
stamp(16)
seq = [pv2(30, 0, j >> 1, (j & 1) ^ ((j >> 1) & 1)) for j in range(16)] + [X.pv(30, 16)]
su = list(setup1)
for n, m in enumerate(seq):
    E(m)
    if su: E(su.pop(0))
    if n < 16: E(v31(2*n)); E(v31(2*n + 1))
    else: E(X.cvt(31, 27)); E(setupO[0])
Q += smx(28, 32) + setupO[1:] + [None]
for n, m in enumerate([X.pv(31, 16)] + [pv2(31, 0, j >> 1, (j & 1) ^ ((j >> 1) & 1)) for j in range(16)]):
    lead = []
    if n in (0, 4, 8): lead = [f"s_waitcnt lgkmcnt({S.lgn('v31_' + str({0: 1, 4: 3, 8: 7}[n]))})"]
    if n == 9: Q.pop(); Q += rsum(0) + dmaf(5)
    S.gap(m, lead)
carry = list(Q); del Q[:]
stamp(16)
def qchains(qb):
    CH = [[X.pv(30, 17*qb + 16), X.pv(31, 17*qb + 16)]]
    for db in range(8):
        o = [(30, 0), (30, 1), (31, 0), (31, 1)]
        CH.append([pv2(T, qb, db, ks) for T, ks in (o[::-1] if db & 1 else o)])
    return CH
Q += carry + weave(epi(0), smx(32, 48), dmaf(6)) + rsum(1)
chains(qchains(1))
stamp(16)
Q += weave(epi(1), smx(48, 64) + setup2[-5:-5], dmaf(7), setup2) + rsum(2)
chains(qchains(2))
stamp(16)
e2 = epi(2)
vote = rsum(3) + [f"v_add_f32 v194, v{L_}, v{L_+4}", f"v_add_f32 v195, v{L_+8}, v{L_+12}", "v_add_f32 v194, v194, v195",
        f"v_cmp_ngt_f32 vcc, {'0' if opt['forcefb'] else '0x5f800000'}, v194", "s_or_b32 s3, vcc_lo, vcc_hi", "v_mov_b32 v194, s3", "ds_write_b32 v192, v194"]
def wrd(kk): return [lambda: f"s_waitcnt vmcnt({S.vmn(f'wo{kk}')})"] + [list(p) for p in zip(wo_reads(kk)[0::2], wo_reads(kk)[1::2])]
Q += e2[:10] + vote + e2[10:30] + [["s_waitcnt lgkmcnt(0)", "s_barrier", "ds_read_b128 v[196:199], v193"]] + weave(e2[30:52], dmaf(8)) + \
     ["s_waitcnt lgkmcnt(0)", "v_or3_b32 v196, v196, v197, v198", "v_or_b32 v196, v196, v199", "v_cmp_ne_u32 vcc, 0, v196", "s_cbranch_vccnz L_fallback", "L_safe:"] + \
     weave(e2[52:], FS, wrd(0) + wrd(1))
chains(qchains(3))
stamp(17)
xd = []
for kk in range(NU, NU + opt["fx"]): xd += [lambda kk=kk: f"s_waitcnt lgkmcnt({S.lgn(f'r{kk-NU}')})"] + dmaf(kk)
Q += weave(epi(3), dmaf(9) + xd, wrd(2) + wrd(3) + wrd(4) + wrd(5))
S.drain()
stamp(17)
NPRE = opt["npre"]
nextrd = [6]; nextdma = [NU + opt["fx"]]
def stage(nops, filler=()):
    filler = list(filler)
    per = -(-len(filler) // max(1, nops))
    for _ in range(nops):
        if not any(l.startswith("buffer") for l in pend):
            if nextdma[0] >= NPRE: break
            kk = nextdma[0]
            if nextrd[0] < min(16, kk - NU + 3):
                k2 = nextrd[0]
                E(f"s_waitcnt vmcnt({vmn(f'wo{k2}')})")
                for l in wo_reads(k2): E(l)
                nextrd[0] += 1
            E(f"s_waitcnt lgkmcnt({S.lgn(f'r{kk-NU}')})")
            pend.extend(wo_dma(kk)); nextdma[0] += 1
        one_dma()
        k_ = per
        while k_ < len(filler) and isinstance(filler[k_], str) and filler[k_].endswith(":"): k_ += 1
        Q.extend(filler[:k_]); S.drain()
        del filler[:k_]
    Q.extend(filler); S.drain()
stage(opt["npost"], [f"v_xor_b32 v{vOq+k}, s1, v{vOq+k}" for k in range(4)] + FU)
if opt["osp"] >= 3:
    E(f"s_waitcnt vmcnt({S.vmn('ost')})"); E("buffer_wbl2 sc1 ; ost")
M(f"""
s_waitcnt vmcnt({S.vmn('ost')})
s_mov_b64 exec, 1
buffer_store_dword v{vN}, off, s[{sW}:{sW+3}], s69 sc1 ; flag
s_mov_b64 exec, -1
""")
stamp(1)
nleft = (NPRE - nextdma[0])*4 + sum(l.startswith("buffer") for l in pend)
stage(nleft - opt["pollat"])
E(f"buffer_load_dword v2, v{vFl}, s[{sW}:{sW+3}], 0 offen sc1 ; poll")
stage(opt["pollat"])
plain(pend); del pend[:]
stamp(1)
M(f"""
s_waitcnt vmcnt({S.vmn('poll')})
v_cmp_ne_u32 vcc, s{sNonce}, v2
s_cbranch_vccnz L_oflag
L_oflag_ok:
""")
cold += ["L_oflag:"] + spin("", "L_oflag_ok") + [f"buffer_load_dword v2, v{vFl}, s[{sW}:{sW+3}], 0 offen sc1", "s_waitcnt vmcnt(0)",
         f"v_cmp_ne_u32 vcc, s{sNonce}, v2", "s_cbranch_vccnz L_oflag", "s_branch L_oflag_ok"]
stamp(5)
LOOK = opt["look"]
for z in range(LOOK):
    for l in o_loads(z): E(l)
stamp(1)
t = 36
cold += ["L_stf_retry:"] + spin("", "L_stf_ok") + [f"buffer_load_dwordx2 v[{vSt}:{vSt+1}], v{vSa}, s[{sW}:{sW+3}], 0 offen sc1"] + updld + ["s_waitcnt vmcnt(0)"] + \
        updchk + ["s_cbranch_vccnz L_stf_retry", "s_branch L_stf_ok"]
G = updchk + ["s_cbranch_vccnz L_stf_retry", "L_stf_ok:", f"v_and_b32 v{vSt+1}, 0xffff0000, v{vSt}", f"v_lshlrev_b32 v{vSt}, 16, v{vSt}", f"v_rcp_f32 v{vSt+1}, v{vSt+1}"]
for hf in range(2):
    G += unpack(t, vXr + 4*hf)
    G += [f"v_sub_f32 v{t+e}, v{t+e}, v{vSt}" for e in range(8)]
    G += [f"v_cvt_pk_bf16_f32 v{8+e}, v{t+2*e}, v{t+2*e+1}" for e in range(4)] + unpack(t, 8)
    G += [f"v_mul_f32 v{t+e}, v{t+e}, v{vSt+1}" for e in range(8)]
    G += [f"v_cvt_pk_bf16_f32 v{8+e}, v{t+2*e}, v{t+2*e+1}" for e in range(4)] + unpack(t, 8)
    if opt["moe"]:
        G += unpack(8, vU + 8*hf, 2) + unpack(12, vU + 8*hf + 4, 2) + [f"v_add_f32 v{t+e}, v{t+e}, v{8+e}" for e in range(8)]
        G += [f"v_cvt_pk_bf16_f32 v{8+e}, v{t+2*e}, v{t+2*e+1}" for e in range(4)] + unpack(t, 8)
    G += [f"v_mul_f32 v{8+e}, {NLOG2E}, v{t+e}" for e in range(8)]
    G += [f"v_exp_f32 v{8+e}, v{8+e}" for e in range(8)]
    G += [f"v_add_f32 v{8+e}, 1.0, v{8+e}" for e in range(8)]
    G += [f"v_rcp_f32 v{8+e}, v{8+e}" for e in range(8)]
    G += [f"v_mul_f32 v{t+e}, v{t+e}, v{8+e}" for e in range(8)]
    G += [f"v_cvt_pk_bf16_f32 v{8+e}, v{t+2*e}, v{t+2*e+1}" for e in range(4)] + unpack(vGf + 8*hf, 8)
G += unpack(vU, vXr, 8)
G += [f"v_lshl_add_u32 v32, v0, 4, s{r.sM0K}"] + [f"v_xor_b32 v{32+nb}, {nb*1024 + nb*64}, v32" for nb in range(1, 4)]
G += ["v_lshrrev_b32 v31, 2, v0", f"v_lshlrev_b32 v30, 2, v{vC3}", "v_xor_b32 v31, v31, v30", "v_lshlrev_b32 v31, 4, v31", f"v_lshl_add_u32 v31, v{vC3}, 10, v31",
      f"s_lshl_b32 s3, s{sWave}, 14", "v_add_u32 v31, s3, v31"]
assert S.vmn("xf") >= S.vmn("poll")
Q += G
wq = []; dma_done = {kk: -99 for kk in range(NPRE)}
nw = (32 - NPRE)*4; ZD = opt["zd"]; issued = 0
for z in range(32):
    h, qb = z >> 2, z & 3
    Wb, Ob = WBLK[h & 3], OBUF[z % len(OBUF)]
    vtags = [f"o{z}"]; ltags = []
    rdq = []
    kk = nextrd[0]
    if kk < 32 and z >= (kk >> 2)*4 - 12 and kk in dma_done and (z - dma_done[kk] >= opt["dlag"] or (kk >> 2)*4 - z <= 4 - (kk & 3)):
        rdq = wo_reads(kk); vtags.append(f"wo{kk}"); nextrd[0] += 1
    if qb == 0:
        assert kk >= 4*h + 4, (z, kk)
        ltags += [f"r{4*h+3}"]
    ops = o_loads(z + LOOK) if z + LOOK < 32 else []
    want = min(nw, -(-nw*(z + 1) // ZD))
    wops = []
    while issued < want:
        if not wq:
            k2 = nextdma[0]
            if k2 - NU >= kk: break
            wq = wo_dma(k2); ltags.append(f"r{k2-NU}"); nextdma[0] += 1
        while wq:
            l = wq.pop(0); wops.append(l)
            if l.startswith("buffer"): issued += 1; break
        if len(wq) == 1: wops.append(wq.pop(0)); dma_done[nextdma[0] - 1] = z
    pend.extend(ops + wops)
    w = f"s_waitcnt vmcnt({S.vmn(*vtags)})"
    if ltags: w += f" lgkmcnt({S.lgn(*ltags)})"
    E(w)
    if qb == 0: stamp(4)
    wr = [f"ds_write_b128 v{32+nb}, {blk(ACC, ((qb-1)*4+nb)*4, 4)} offset:{(qb-1)*16384}" for nb in range(4)] if z > 28 else []
    if z == 29: assert not Q, len(Q)
    nbuf = sum(l.startswith("buffer") for l in pend)
    slots = [1 + 2*int(i*8/nbuf) for i in range(nbuf)] if nbuf else []
    for n in range(16):
        nb, i = n >> 2, n & 3
        if nb & 1: i = 3 - i
        D = blk(ACC, (qb*4 + nb)*4, 4)
        m = f"{MF} {D}, {blk(Wb, (nb*4 + i)*4, 4)}, {blk(Ob, i*4, 4)}, {'0' if h == 0 and n & 3 == 0 else D}"
        lead = []
        if n & 1 == 0:
            while pend and pend[0].startswith("s_"): lead.append(pend.pop(0))
            if rdq: lead.append(rdq.pop(0))
            elif wr and n & 3 == 2: lead.append(wr.pop(0))
        elif n in slots:
            lead.append(pend.pop(0))
            if n == 15:
                while pend: lead.append(pend.pop(0))
        S.gap(m, lead)
    assert not rdq and not pend and not wr, (z, pend)
assert nextrd[0] == 32
stamp(5)
for nb in range(4):
    l = f"ds_write_b128 v{32+nb}, {blk(ACC, (12+nb)*4, 4)} offset:{3*16384}"
    while not S.ok(l): E("s_nop 0")
    E(l)
E("s_waitcnt lgkmcnt(0)")
E("s_barrier")
for g in range(4):
    for s_ in range(4): E(f"ds_read_b128 {v(64+s_*16+g*4,4)}, v31 offset:{s_*4096 + g*256}")
for g in range(4):
    E(f"s_waitcnt lgkmcnt({12 - 4*g})")
    for e in range(4*g, 4*g + 4): E(f"v_add_f32 v{64+e}, v{64+e}, v{80+e}"); E(f"v_add_f32 v{96+e}, v{96+e}, v{112+e}")
    for e in range(4*g, 4*g + 4): E(f"v_add_f32 v{64+e}, v{64+e}, v{96+e}")
    for e in range(4*g, 4*g + 4): E(f"v_fma_f32 v{64+e}, v{64+e}, v{vGf+e}, v{vU+e}")
    for e in range(2*g, 2*g + 2): E(f"v_cvt_pk_bf16_f32 v{8+e}, v{64+2*e}, v{65+2*e}")
    if g & 1: E(f"global_store_dwordx4 v{vXo}, {v(8+4*(g>>1),4)}, s[{pOut}:{pOut+1}] offset:{16*(g>>1)}{POL[opt['ost']]}")
stamp(1)
if opt["stamp"]: E("s_waitcnt vmcnt(0)")
stamp(1)
if opt["stamp"]:
    M(f"""
    s_lshl_b32 s3, s2, 2
    s_add_u32 s3, s3, s{sWave}
    s_lshl_b32 s3, s3, 7
    s_add_u32 s3, s3, {WS_T}
    v_mov_b32 v3, 0
    """)
    for i in range(32): E(f"v_mov_b32 v{4+i}, s{70+i}" if i < 2*nstamp[0] else f"v_mov_b32 v{4+i}, 0")
    for i in range(8): E(f"buffer_store_dwordx4 v[{4+4*i}:{7+4*i}], v3, s[{sW}:{sW+3}], s3 offen offset:{16*i}")
E("s_endpgm")
r.vVDl = [20, 21, 20, 21]
M(f"""
L_fallback:
s_cmp_lg_u32 s{sFb}, 0
s_cbranch_scc1 L_safe
s_mov_b32 s{sFb}, 1
s_mov_b32 s{sMask2}, 0
s_mov_b32 s{sMask4}, 0x80
s_lshl_b32 s3, s{sHead}, 19
s_add_u32 s{sK}, s{pK}, s3
s_addc_u32 s{sK+1}, s{pK+1}, 0
s_mov_b32 s{sK+2}, 0x80000
s_add_u32 s{sV}, s{pV}, s3
s_addc_u32 s{sV+1}, s{pV+1}, 0
s_mov_b32 s{sV+2}, 0x80000
s_mov_b32 s{r.sKoff}, 0
s_mov_b32 s{r.sVoff}, 0
s_mov_b32 s{r.sKinc}, 0x4000
s_mov_b32 s{r.sVinc}, 0x4000
s_mov_b32 s{r.sIt}, 0
v_lshlrev_b32 v3, 4, v0
v_lshrrev_b32 v60, 2, v2
v_and_b32 v61, 1, v1
v_lshl_add_u32 v60, v61, 2, v60
v_and_b32 v63, 3, v0
s_waitcnt vmcnt(0) lgkmcnt(0)
s_barrier
""")
for l in ADDR + VCOPY: E(l)
for i in range(16): E(f"v_mov_b32 v{r.vM+i}, 0")
for i in range(16): E(f"v_mov_b32 v{r.vL+i}, 0")
for l in ozero(r.vM): E(l)
for qb in range(4): E(f"v_mov_b32 v{60+qb}, 0xff800000")
E("L_fb_loop:")
plain(kdma(0))
M("s_waitcnt vmcnt(0)\ns_barrier")
for i in range(16): E(X.kread(0, i))
M("s_waitcnt lgkmcnt(0)\ns_barrier")
for g in range(64): E(X.qk(g))
E("s_nop 7")
for qb in range(4):
    for e in range(8): E(f"v_max3_f32 v{60+qb}, v{60+qb}, v{r.vS+16*qb+2*e}, v{r.vS+16*qb+2*e+1}")
M(f"""
s_cmp_lt_u32 s{r.sKoff}, 0x80000
s_cbranch_scc1 L_fb_loop
s_mov_b32 s{r.sKoff}, 0
""")
plain(kdma(0) + kdma(1) + vdma(0) + kdma(2) + vdma(1) + kdma(3) + vdma(2))
for sw in ("v_permlane32_swap_b32", "v_permlane16_swap_b32"):
    for qb in range(4): E(f"v_mov_b32 v{128+qb}, v{60+qb}")
    E("s_nop 1")
    for qb in range(4): E(f"{sw} v{128+qb}, v{60+qb}")
    E("s_nop 1")
    for qb in range(4): E(f"v_max_f32 v{60+qb}, v{60+qb}, v{128+qb}")
for qb in range(4):
    for e in range(4): E(f"v_sub_f32 v{r.vM+4*qb+e}, 0, v{60+qb}")
M("s_waitcnt vmcnt(0)\ns_barrier")
for i in range(16): E(X.kread(0, i))
M("s_waitcnt lgkmcnt(0)\ns_branch L_restart")
for l in cold: E(l)
A.label("L_end")
E("s_endpgm")
A.raw(f""".section .rodata,"a"
.p2align 6
.amdhsa_kernel {KN}_kernel
  .amdhsa_next_free_vgpr 512
  .amdhsa_next_free_sgpr 102
  .amdhsa_accum_offset 256
  .amdhsa_group_segment_fixed_size 0
  .amdhsa_kernarg_size 104
  .amdhsa_user_sgpr_count 2
  .amdhsa_user_sgpr_kernarg_segment_ptr 1
  .amdhsa_system_sgpr_workgroup_id_x 1
  .amdhsa_float_denorm_mode_32 3
.end_amdhsa_kernel""")
txt = A.text()
for ro in "FRS": txt = txt.replace("MASK2" + ro, hex(m2[ro])).replace("MASK4" + ro, hex(m4[ro]))
bad = check_hazards(txt)
if bad: print("hazards:", len(bad), file=sys.stderr)
open(sys.argv[1], "w").write(txt)
```

```python
import sys, struct
from attn16 import *
KN = "recurrent_scan__mha_block_cached__moe_arch_mod__prompt"
opt = dict(tg0=1, dhold=0, shift=16, perm=1, exper=0, kv6=3, wqt=0, wqlo=2, wqpos=0, otch=0, nostore=0, flip=0, xcc=0, map8=0, onerow=0, lnfirst=0, qrot=0, osp=0, fx=0, holdrel=0, bgap=62, bsplit=1, bar=1, nodma=0, pad=0, holdp=0, holdt=0, forcefb=0, ntw=0, ost=0, tlb=1, varb=1, TF=18, TP=22, moeT=99, moe=1, pollat=6, wtouch=1, otouch=0, epace=40, npost=8, npre=24, look=3, zd=24, dlag=5, rot=0, s1st=5, cyc=0, stamp=0, snake=1, pvchain=1, G0=8, nt=1, ntq=0, sm=1, drate=4, pre=2)
opt_s = dict(tg="[]", oT="(20,26)", touch="{}", hs="(8,10,12,14,16,24,27)", wT="(27,28)")
for x in sys.argv[2:]:
    k, val = x.split("=")
    if k in opt_s: opt_s[k] = val
    else: opt[k] = int(val)
A = Asm(); r = default_regs(); X = Attn(A, r, opt); S = Stream(A); E = S.emit; M = S.many
POL = ["", " nt", " sc1"]
def fbits(x): return hex(struct.unpack("<I", struct.pack("<f", x))[0])
WS_O = 0
WS_STAT = 16 << 20
WS_KEY = WS_STAT + 0x4000
WS_FLAG = WS_STAT + 0x10000
WS_SEL = WS_STAT + 0x8000
WS_FC = WS_STAT + 0x9000
WS_UPD = WS_STAT + 0xC000
WS_XN = 18 << 20
WS_PART = 20 << 20
WS_T = 64 << 20
sX, sK, sV, sW, sWq = 4, 8, 12, 16, 28
sWave, sHead, sQb = 20, 21, 22
sXoff, sWoff, sM0X, sM0W = 34, 35, 62, 63
pX, pK, pV, pWq, pWo, pWr, pWg, pWu, pWd, pOut, pDbg, pWs = 36, 38, 40, 42, 44, 48, 50, 52, 54, 56, 58, 60
sKey0, sRow0, sNonce = 64, 66, 46
sSpin = 33
def spin(label, ok): return [f"s_cmp_eq_u32 s{sSpin}, 0", f"s_cbranch_scc1 {ok}", f"s_sub_u32 s{sSpin}, s{sSpin}, 1"]
cold = []
nstamp = [0]
CLK = "s_memtime" if opt["cyc"] else "s_memrealtime"
npoint = [0]
def hold_at():
    npoint[0] += 1
    if opt["holdp"] == npoint[0]:
        M(f"""
        L_hold:
        s_memrealtime s[98:99]
        s_waitcnt lgkmcnt(0)
        s_sub_u32 s98, s98, s{46 if opt['holdrel'] else 100}
        s_cmp_lt_u32 s98, {opt['holdt']*100}
        s_cbranch_scc1 L_hold
        """)
def stamp(lvl=1, wait=True):
    if lvl & 1: hold_at()
    if opt["stamp"] & lvl and nstamp[0] < 16:
        i = nstamp[0]; nstamp[0] += 1
        E(f"{CLK} s[{70+2*i}:{71+2*i}]")
        if wait: E("s_waitcnt lgkmcnt(0)")

A.raw("; @launch grid=(256,1,1) block=(256,1,1) lds=163840")
A.raw('.amdgcn_target "amdgcn-amd-amdhsa--gfx950"')
A.raw(".text"); A.raw(f".globl {KN}_kernel"); A.raw(".p2align 8"); A.raw(f".type {KN}_kernel,@function")
A.label(f"{KN}_kernel")
M(f"""
s_cmp_ge_u32 s2, 256
s_cbranch_scc1 L_end
s_load_dwordx16 s[36:51], s[0:1], 0
s_load_dwordx8 s[52:59], s[0:1], 64
s_load_dwordx2 s[60:61], s[0:1], 96
s_memrealtime s[68:69]
""")
if opt["stamp"]:
    E(f"{CLK} s[70:71]"); nstamp[0] = 1
if opt["holdp"]: E("s_memrealtime s[100:101]")
M(f"""
s_getpc_b64 s[32:33]
v_lshrrev_b32 v1, 6, v0
v_and_b32 v0, 63, v0
s_and_b32 s3, s2, 0xf8
s_lshl_b32 s3, s3, 1
v_lshl_add_u32 v4, v1, 2, v0
v_add_lshl_u32 v4, v4, s3, 7
v_min_u32 v4, L_end-{KN}_kernel-128, v4
s_mov_b64 exec, 15
global_load_dword v23, v4, s[32:33]
s_mov_b64 exec, -1
v_readfirstlane_b32 s{sWave}, v1
s_and_b32 s3, s2, {6 if opt['map8'] else 7}
s_lshl_b32 s3, s3, 2
s_bfe_u32 s{sHead}, s2, {'0x30003' if opt['map8'] else '0x20003'}
s_or_b32 s{sHead}, s{sHead}, s3
s_lshr_b32 s{sQb}, s2, {6 if opt['map8'] else 5}
s_and_b32 s3, s2, {1 if opt['map8'] else 0}
s_lshl_b32 s3, s3, 2
s_or_b32 s{sQb}, s{sQb}, s3
v_lshrrev_b32 v1, 4, v0
v_and_b32 v2, 15, v0
""")
vXD, vWD, vXA, vWA, vCS, vKM = 76, 84, 88, 92, 100, 108
vSX, vG = r.vL, r.vM
M(f"""
v_lshrrev_b32 v4, 3, v0
s_lshl_b32 s3, s{sWave}, 6
v_add_u32 v4, s3, v4
v_lshlrev_b32 v4, 10, v4
v_and_b32 v5, 7, v0
v_xor_b32 v6, v5, v1
v_xor_b32 v7, 4, v6
v_lshl_add_u32 v6, v6, 4, v4
v_lshl_add_u32 v7, v7, 4, v4
""")
for p in range(8): E(f"v_add_u32 v{vXD+p}, {p*8192 - (p&3)*1024}, v{6+(p&1)}")
M(f"""
s_lshl_b32 s3, s{sWave}, 4
v_add_u32 v4, s3, v1
v_lshlrev_b32 v4, 13, v4
v_lshlrev_b32 v5, 1, v1
v_xor_b32 v6, v5, v2
v_xor_b32 v7, 8, v6
v_lshl_add_u32 v6, v6, 4, v4
v_lshl_add_u32 v7, v7, 4, v4
""")
for p in range(4): E(f"v_add_u32 v{vWD+p}, {p*4*8192 - p*1024}, v{6+(p>>1)}")
M(f"""
s_lshl_b32 s{sM0X}, s{sWave}, 13
s_lshl_b32 s{r.sM0K}, s{sWave}, 12
s_add_u32 s{sM0W}, s{r.sM0K}, 0xC000
s_mov_b32 s{sXoff}, 0
s_mov_b32 s{sWoff}, 0
s_mov_b32 s{sX+2}, 0x40000
s_mov_b32 s{sX+3}, 0x20000
s_mov_b32 s{sWq+3}, 0x20000
s_lshl_b32 s3, s{sQb}, 18
s_lshl_b32 s67, s{sHead}, 8
s_sub_u32 s{sWq+2}, 0x400000, s67
s_waitcnt lgkmcnt(0)
s_add_u32 s{sX}, s{pX}, s3
s_addc_u32 s{sX+1}, s{pX+1}, 0
s_add_u32 s{sWq}, s{pWq}, s67
s_addc_u32 s{sWq+1}, s{pWq+1}, 0
s_or_b32 s3, s2, s{sWave}
s_cbranch_scc1 L_nononce
""")
A("s_getreg_b32 s3, hwreg(HW_REG_XCC_ID, 0, 1)"); A("s_lshl_b32 s68, s68, 2"); A("s_lshl_b32 s3, s3, 1"); A("s_or_b32 s68, s68, s3")
A("s_or_b32 s68, s68, 1"); A("v_mov_b32 v4, 0"); A("v_mov_b32 v5, s68"); A(f"global_store_dword v4, v5, s[{pDbg}:{pDbg+1}] sc1")
E("L_nononce:")
if opt["xcc"]:
    M(f"""s_cmp_ge_u32 s2, 8
    s_cbranch_scc1 L_noxcc
    s_getreg_b32 s3, hwreg(HW_REG_XCC_ID)
    s_add_u32 s3, s3, 100
    v_mov_b32 v5, s3
    s_lshl_b32 s3, s2, 2
    v_mov_b32 v4, s3""")
    A(f"global_store_dword v4, v5, s[{pDbg}:{pDbg+1}] offset:4")
    E("L_noxcc:")
stamp(2)
XSLOT = [0x18000, 0x20000, 0x4000]
def xdma(st):
    L = []
    for p in range(8):
        if p & 3 == 0: L.append(f"s_add_u32 m0, s{sM0X}, {XSLOT[st%3] + (p>>2)*4096}")
        L.append(f"buffer_load_dwordx4 v{vXD+p}, s[{sX}:{sX+3}], s{sXoff} offen offset:{(p&3)*1024}{POL[opt['ntq']]} lds ; x{st}")
    L.append(f"s_add_u32 s{sXoff}, s{sXoff}, 128")
    return L
def wdma(st):
    L = [f"s_add_u32 m0, s{sM0W}, {(st%3)*16384}"]
    for p in range(4):
        L.append(f"buffer_load_dwordx4 v{vWD+p}, s[{sWq}:{sWq+3}], s{sWoff} offen offset:{p*1024}{POL[opt['ntw']]} lds ; w{st}")
    L.append(f"s_add_u32 s{sWoff}, s{sWoff}, 0x80000")
    return L
def tagged(L, t): return [l + " ; " + t if l.startswith("buffer") else l for l in L]
def kdma(T): return tagged(X.dma(T & 3)[:5], f"k{T}") + [f"s_add_u32 s{r.sKoff}, s{r.sKoff}, 0x4000"]
def vdma(T): return tagged(X.dma((T + 1) & 3)[5:], f"v{T}") + [f"s_add_u32 s{r.sVoff}, s{r.sVoff}, 0x4000"]
def plain(L):
    for l in L:
        E(l)
        if l.startswith("s_add_u32 m0"): E("s_nop 0")
Q = S.q
vCA = 124
def xors(dst, n, step): return [f"v_xor_b32 v{dst+k}, {k*step}, v{dst}" for k in range(1, n)]
PRE = f"""v_lshlrev_b32 v3, 4, v0
s_lshl_b32 s3, s{sHead}, 2
s_add_u32 s3, s3, s{sWave}
s_lshl_b32 s{sRow0}, s3, 11
v_lshrrev_b32 v4, 1, v2
v_xor_b32 v4, v4, v1
v_lshl_add_u32 v5, v2, 7, s{sM0X}
v_lshl_add_u32 v6, v4, 4, v5
v_add_u32 v{vXA}, {XSLOT[0]}, v6
v_add_u32 v{vXA+2}, {XSLOT[2]}, v6
v_xor_b32 v{vXA+1}, 64, v{vXA}
v_xor_b32 v{vXA+3}, 64, v{vXA+2}
v_lshrrev_b32 v4, 2, v2
v_and_b32 v63, 3, v0
v_and_b32 v6, 1, v1
v_lshl_add_u32 v60, v6, 2, v4
v_lshl_add_u32 v5, v1, 3, v4
v_lshlrev_b32 v5, 8, v5
v_lshl_add_u32 v5, v63, 3, v5
v_lshl_add_u32 v5, v60, 5, v5
s_lshl_b32 s3, s{sWave}, 6
s_add_u32 s3, s3, 0xC000
v_xor_b32 v{vWA}, s3, v5""".split("\n") + xors(vWA, 8, 32)
PRE += [f"v_mov_b32 v{vCS+i}, 0" for i in range(8)]
PRE += f"""v_mov_b32 v62, 0x3f803f80
v_cmp_gt_u32 vcc, 2, v63
v_and_b32 v4, 1, v0
v_mov_b32 v5, 0x44444444
v_mov_b32 v6, 0xeeeeeeee
v_cndmask_b32 v{r.vOne}, 0, v62, vcc
v_cndmask_b32 v{r.vOne+1}, 0, v62, vcc
v_cndmask_b32 v{r.vOne+2}, 0, v62, vcc
v_cndmask_b32 v{r.vOne+3}, 0, v62, vcc
v_cmp_eq_u32 vcc, 1, v4
s_lshl_b32 s1, s{sQb}, 2
s_add_u32 s1, s1, s{sWave}
v_cndmask_b32 v{r.vIdx}, v5, v6, vcc
s_lshl_b32 s1, s1, 9
s_add_u32 s1, s1, {WS_STAT}""".split("\n")
def ozero(z): return [f"v_mfma_f32_32x32x16_bf16 {a(r.aO+16*i,16)}, {v(z,4)}, {v(z,4)}, 0" for i in range(8)]
ADDR = f"""v_lshl_add_u32 v61, v1, 8, s{r.sM0K}
v_xor_b32 v62, v1, v2
v_lshl_add_u32 v{r.vKD}, v62, 4, v61""".split("\n") + xors(r.vKD, 4, 64) + f"""v_lshlrev_b32 v62, 1, v1
v_xor_b32 v62, v62, v2
v_lshl_add_u32 v{r.vVD}, v62, 4, v61
v_xor_b32 v{r.vVD+1}, 128, v{r.vVD}
v_lshrrev_b32 v61, 2, v0
v_lshlrev_b32 v61, 8, v61
v_lshl_add_u32 v61, v63, 3, v61
v_lshl_add_u32 v61, v60, 5, v61
v_add_u32 v{r.vVA}, {r.VBASE}, v61""".split("\n") + xors(r.vVA, 8, 32) + f"""v_lshrrev_b32 v61, 1, v1
v_and_b32 v62, 1, v1
v_lshl_add_u32 v62, v62, 1, v61
v_lshl_add_u32 v62, s{sWave}, 2, v62
v_xor_b32 v61, v62, v2
v_lshlrev_b32 v61, 4, v61
v_lshl_add_u32 v{r.vKA}, v2, 8, v61""".split("\n") + xors(r.vKA, 4, 64)
VCOPY = ["v_mov_b32 v1, v20", "v_mov_b32 v2, v21"]
PRE2 = ADDR + f"""v_xor_b32 v61, v62, v63
v_lshlrev_b32 v61, 4, v61
v_lshl_add_u32 v{vKM}, v63, 8, v61""".split("\n") + xors(vKM, 4, 64)
PRE2 += [f"s_add_u32 s67, s{sM0X}, {XSLOT[1]}", "v_lshl_add_u32 v62, v2, 2, s67", "v_lshlrev_b32 v61, 3, v2", f"v_lshl_add_u32 v{vCA}, v1, 4, s67"] + xors(vCA, 4, 8192)
PRE2 += VCOPY
PRE2 += [f"s_lshl_b32 s3, s{sHead}, 19", [f"s_add_u32 s{sK}, s{pK}, s3", f"s_addc_u32 s{sK+1}, s{pK+1}, 0"], [f"s_add_u32 s{sV}, s{pV}, s3", f"s_addc_u32 s{sV+1}, s{pV+1}, 0"]]
PRE2 += f"""s_mov_b32 s{sK+2}, 0x80000
s_mov_b32 s{sK+3}, 0x20000
s_mov_b32 s{sV+2}, 0x80000
s_mov_b32 s{sV+3}, 0x20000
s_mov_b32 s{sW}, s{pWs}
s_mov_b32 s{sW+1}, s{pWs+1}
s_mov_b32 s{sW+2}, 0x10000000
s_mov_b32 s{sW+3}, 0x20000
s_mov_b32 s{r.sKoff}, 0
s_mov_b32 s{r.sVoff}, 0
s_mov_b32 s{sSpin}, 0x100000
s_add_u32 s{r.sM0V}, s{r.sM0K}, {r.VBASE}""".split("\n")
for n, m in enumerate(ozero(vCS + 4)): PRE2.insert(8*n + 2, m)
def issue(L, F):
    F = list(F); per = -(-len(F) // sum("lds" in l for l in L))
    for l in L:
        E(l)
        if l.startswith("s_add_u32 m0"): E("s_nop 0")
        if "lds" in l:
            for f in F[:per]:
                for x_ in (f if isinstance(f, list) else [f]): E(x_)
            del F[:per]
issue(wdma(0) + xdma(0), PRE)
stamp(2, False)
LN = f"""buffer_load_dwordx4 v[64:67], v3, s[{sX}:{sX+3}], s{sRow0} offen ; ln
buffer_load_dwordx4 v[68:71], v3, s[{sX}:{sX+3}], s{sRow0} offen offset:1024 ; ln
global_load_dwordx4 v[72:75], v3, s[{pWr}:{pWr+1}] ; ln""".split("\n")
L1 = []
for st in range(1, opt["pre"]): L1 += wdma(st) + xdma(st)
issue(L1 + LN, PRE2)
M(f"""
v_mov_b32 v55, 0
s_lshl_b32 s3, s{sQb}, 8
s_lshr_b32 s{sRow0}, s{sRow0}, 10
s_add_u32 s{sRow0}, s{sRow0}, s3
""")
stamp(2, False)
aXN = 248
def unpack(dst, src, n=4):
    L = []
    for k in range(n):
        L += [f"v_lshlrev_b32 v{dst+2*k}, 16, v{src+k}", f"v_and_b32 v{dst+2*k+1}, 0xffff0000, v{src+k}"]
    return L
def wave_sum(reg, sdst):
    return [f"v_add_f32_dpp v{reg}, v{reg}, v{reg} {m} bank_mask:0xf" for m in
            ("quad_perm:[1,0,3,2] row_mask:0xf", "quad_perm:[2,3,0,1] row_mask:0xf", "row_half_mirror row_mask:0xf",
             "row_mirror row_mask:0xf", "row_bcast:15 row_mask:0xa", "row_bcast:31 row_mask:0xc")] + [f"v_readlane_b32 s{sdst}, v{reg}, 63"]
def rbf(x): return [f"v_cvt_pk_bf16_f32 v{x}, v{x}, v{x}", f"v_lshlrev_b32 v{x}, 16, v{x}"]
vE, vD, vWr, vO = 32, 40, 112, 120
Q.append(lambda: f"s_waitcnt vmcnt({S.vmn('ln')})")
NONCE = [lambda: f"s_waitcnt vmcnt({S.vmn('nonce')})", f"v_readfirstlane_b32 s{sNonce}, v23", "s_nop 0", f"s_cmp_eq_u32 s{sNonce}, 0",
         "s_cbranch_scc1 L_nonce_retry", "L_nonce_ok:"]
cold += ["L_nonce_retry:"] + spin("", "L_nonce_ok") + [f"global_load_dword v23, v55, s[{pDbg}:{pDbg+1}] sc1", "s_waitcnt vmcnt(0)",
         f"v_readfirstlane_b32 s{sNonce}, v23", "s_nop 0", f"s_cmp_eq_u32 s{sNonce}, 0", "s_cbranch_scc1 L_nonce_retry", "s_branch L_nonce_ok"]
Q += ["v_mov_b32 v50, 0x3b000000"]
for k in range(2):
    Q += unpack(vE, 64 + 4*k)
    Q += [f"v_add_f32 v{vD+e}, v{vE+2*e}, v{vE+2*e+1}" for e in range(4)]
    Q += [f"v_add_f32 v{vD}, v{vD}, v{vD+1}", f"v_add_f32 v{vD+2}, v{vD+2}, v{vD+3}", f"v_add_f32 v48, v{vD}, v{vD+2}"]
    Q += wave_sum(48, 68) + ["v_mul_f32 v48, s68, v50"]
    Q += [f"v_sub_f32 v{vD+e}, v{vE+e}, v48" for e in range(8)]
    Q += [f"v_mul_f32 v49, v{vD}, v{vD}"] + [f"v_fmac_f32 v49, v{vD+e}, v{vD+e}" for e in range(1, 8)]
    Q += wave_sum(49, 68)
    Q += ["v_mul_f32 v49, s68, v50"] + rbf(49) + ["v_add_f32 v49, 0x3727c5ac, v49"] + rbf(49) + ["v_sqrt_f32 v49, v49"]
    Q += [f"v_cvt_pk_bf16_f32 v{vO+2*k}, v48, v49"]
Q += [NONCE, f"v_mov_b32 v{vO+1}, s{sNonce}", f"v_mov_b32 v{vO+3}, s{sNonce}"]
Q += [f"s_lshl_b32 s68, s{sRow0}, 3", f"s_add_u32 s65, s68, {WS_KEY}", f"s_add_u32 s68, s68, {WS_STAT}"]
Q.append(["s_mov_b64 exec, 1", f"buffer_store_dwordx4 v[{vO}:{vO+3}], off, s[{sW}:{sW+3}], s68 sc1 ; s1", "s_mov_b64 exec, -1"])
Q += unpack(vWr, 72)
for k in range(2):
    Q += unpack(vE, 64 + 4*k) + [f"v_lshlrev_b32 v48, 16, v{vO+2*k}", f"v_and_b32 v49, 0xffff0000, v{vO+2*k}", "v_rcp_f32 v49, v49"]
    Q += [f"v_sub_f32 v{vE+e}, v{vE+e}, v48" for e in range(8)]
    Q += [f"v_cvt_pk_bf16_f32 v{vD+e}, v{vE+2*e}, v{vE+2*e+1}" for e in range(4)]
    Q += unpack(vE, vD)
    Q += [f"v_mul_f32 v{vE+e}, v{vE+e}, v49" for e in range(8)]
    Q += [f"v_cvt_pk_bf16_f32 v{64+4*k+e}, v{vE+2*e}, v{vE+2*e+1}" for e in range(4)]
    Q += unpack(vE, 64 + 4*k)
    Q += [f"v_mul_f32 v49, v{vE}, v{vWr}"] + [f"v_fmac_f32 v49, v{vE+e}, v{vWr+e}" for e in range(1, 8)]
    Q += wave_sum(49, 68) + [f"s_sub_u32 s67, {2047-k}, s{sRow0}", "v_mov_b32 v49, s68", "v_cvt_pk_bf16_f32 v49, v49, v49",
          "v_ashrrev_i32 v48, 31, v49", "v_or_b32 v48, 0x80000000, v48", "v_xor_b32 v49, v48, v49", "v_and_b32 v49, 0xffff0000, v49",
          f"v_or_b32 v{72+k}, s67, v49", f"v_mov_b32 v{74+k}, s{sNonce}"]
Q += [f"s_lshl_b32 s64, s{sRow0}, 10", f"s_add_u32 s64, s64, {WS_XN}"]
XNST = [f"buffer_store_dwordx4 v[{64+4*k}:{67+4*k}], v3, s[{sW}:{sW+3}], s64 offen offset:{k*1024} sc1 ; xn" for k in range(2)]
KEYST = ["s_mov_b64 exec, 1", f"buffer_store_dwordx4 v[60:63], off, s[{sW}:{sW+3}], s65 sc1 ; s1", "s_mov_b64 exec, -1"]
NFILL = len(Q); S1 = list(Q); del Q[:]
r.sKinc, r.sVinc = 34, 35
sMask2, sMask4 = 62, 63
sQt, sNt = 47, 32
sChunk, sSlow = 69, 66
sFb = 0
SET = f"""s_mov_b32 s{r.sKinc}, 0x4000
s_mov_b32 s{r.sVinc}, 0x4000
s_mov_b32 s{r.sIt}, 0
s_and_b32 s3, s2, {6 if opt['varb'] else 7}
s_lshl_b32 s3, s3, 2
s_lshr_b32 s{sQt}, s2, {5 if opt['varb'] else 6}
s_add_u32 s{sQt}, s{sQt}, s3
s_bfe_u32 s{sNt}, s2, {'0x20003' if opt['varb'] else '0x30003'}
s_and_b32 s3, s2, {1 if opt['varb'] else 0}
s_lshl_b32 s3, s3, 2
s_add_u32 s{sNt}, s{sNt}, s3
s_lshl_b32 s3, s{sNt}, 7
s_lshl_b32 s67, s{sWave}, 20
s_add_u32 s3, s3, s67
s_sub_u32 s{sWq+2}, 0x400000, s3""".split("\n")
SET.append([f"s_add_u32 s{sWq}, s{pWo}, s3", f"s_addc_u32 s{sWq+1}, s{pWo+1}, 0"])
if opt["moe"]:
    SET += f"""s_bfe_u32 s3, s2, 0x20001
s_mul_i32 s68, s3, 28
s_lshr_b32 s67, s2, 3
s_add_u32 s{sChunk}, s68, s67
s_lshr_b32 s3, s{sNonce}, 1
s_xor_b32 s3, s3, s2
s_xor_b32 s{sSlow}, s3, {opt['flip']}""".split("\n")
    SET += [f"s_mov_b32 s{sMask2}, MASK2F", f"s_mov_b32 s{sMask4}, MASK4F"]
    SET.append(["s_cmp_ge_u32 s67, 28", f"s_cselect_b32 s{sChunk}, -1, s{sChunk}"])
    SET.append(["s_cmp_ge_u32 s67, 28", f"s_cselect_b32 s{sMask2}, MASK2R, s{sMask2}", f"s_cselect_b32 s{sMask4}, MASK4R, s{sMask4}"])
    SET.append([f"s_and_b32 s{sSlow}, s{sSlow}, 1", f"s_cselect_b32 s{sMask2}, MASK2S, s{sMask2}", f"s_cselect_b32 s{sMask4}, MASK4S, s{sMask4}"])
    SET += f"""s_lshl_b32 s68, s68, 5
s_lshl_b32 s67, s67, 1
s_and_b32 s3, s{sWave}, 1
s_add_u32 s67, s67, s3
s_mul_i32 s67, s67, {8*3584}
s_add_u32 s68, s68, s67
v_lshrrev_b32 v112, 3, v0
v_mul_u32_u24 v112, 3584, v112
v_and_b32 v113, 7, v0
v_min_u32 v113, 6, v113
v_lshl_add_u32 v112, v113, 7, v112
v_add_u32 v23, s68, v112""".split("\n")
    SET.append([f"s_cmp_lt_u32 s{sWave}, 2", f"s_cselect_b64 s[6:7], s[{pWg}:{pWg+1}], s[{pWu}:{pWu+1}]"])
else: SET += [f"s_mov_b32 s{sMask2}, MASK2F", f"s_mov_b32 s{sMask4}, MASK4F"]
SET += [f"s_mov_b32 s{sFb}, 0"]
aXF, aWF = 128, 192
SMF = "v_smfmac_f32_16x16x64_bf16"
def acc(j, qb): return 128 + (3 - (j >> 1))*32 + qb*8 + (j & 1)*4
def xread(st, n):
    qb, ks = n >> 1, n & 1; slot = st % 3
    base = vXA + (2 if slot == 2 else 0) + ks
    off = (XSLOT[slot] - XSLOT[0] if slot != 2 else 0) + qb*2048
    return f"ds_read_b128 {a(aXF+(st&1)*32+n*4,4)}, v{base} offset:{off}"
def wread(st, j, n):
    ks, half = n >> 1, n & 1
    return f"ds_read_b64_tr_b16 {a(aWF+(j&3)*8+ks*4+half*2,2)}, v{vWA+j} offset:{(st%3)*16384 + ks*8192 + half*1024}"
def qmf(st, j):
    L = []
    if j < 2: L.append(f"{SMF} {v(vCS+4*j,4)}, {v(r.vOne,4)}, {a(aWF+(j&3)*8,8)}, v{r.vIdx}")
    for qb in range(4):
        for t in range(2):
            ks = t ^ (qb & 1)
            D = v(acc(j, qb), 4); C = "0" if (st == 0 and t == 0) else D
            L.append(f"{MF} {D}, {a(aWF+(j&3)*8+ks*4,4)}, {a(aXF+(st&1)*32+(qb*2+ks)*4,4)}, {C}")
    return L
E(f"s_waitcnt vmcnt({S.vmn('x0', 'w0')}) lgkmcnt(0)")
E("s_barrier")
stamp(3)
for n in range(8): E(xread(0, n))
for j in range(2):
    for n in range(4): E(wread(0, j, n))
pend = []
for st in range(opt["pre"], 3): pend += wdma(st) + xdma(st)
def vmn(*tags):
    assert not any(l.split(";")[-1].strip() in tags for l in pend), (tags, pend)
    return S.vmn(*tags)
def one_dma():
    while pend:
        l = pend.pop(0); E(l)
        if l.startswith("s_add_u32 m0"): E("s_nop 0")
        if l.startswith("buffer"): break
statld = [f"buffer_load_dwordx2 v[{vG+4*qb}:{vG+4*qb+1}], v61, s[{sW}:{sW+3}], s1 offen offset:{qb*128} sc1 ; st" for qb in range(4)]
since = [99]
def dma_slot(j, n, hasds):
    if pend and pend[0].startswith("s_"): return [pend.pop(0)]
    slots = {0: (1, 5, 7), 1: (1, 5, 7), 5: (4, 6), 6: (), 7: ()}.get(j, (1, 5))
    if opt["drate"] == 3: slots = {0: (1, 3, 5, 7), 1: (1, 5, 7), 5: (4, 6), 6: (), 7: ()}.get(j, (1, 3, 5))
    if pend and not hasds and (n in slots or "lds" not in pend[0]): return [pend.pop(0)]
    return []
vC = r.vL
def csread(s_): return [f"ds_read_b128 {v(vC+(s_&1)*8+4*jj,4)}, v{vCA+s_} offset:{jj*64}" for jj in range(2)]
CL2E = 1.4426950408889634 / (128 ** 0.5)
E("s_waitcnt lgkmcnt(4)")
for st in range(8):
    if st == 6:
        assert not any(f"s{sXoff}" in l or f"s{sWoff}" in l or f"s{sM0X}" in l or f"s{sM0W}" in l for l in pend)
        Q += SET
    if st == 1: pend.insert(0, f"global_load_dword v23, v55, s[{pDbg}:{pDbg+1}] sc1 ; nonce")
    if st + 3 < 8: pend += xdma(st + 3)
    if st == 5:
        pend += kdma(0)

    for j in range(8):
        L = qmf(st, j)
        if st*8 + j == opt["s1st"]: Q += S1
        ds = [None] * len(L); last = []
        if j < 6:
            o = 0
            for n in range(4): ds[o + (n if j == 5 else 2*n)] = wread(st, j + 2, n)
            if j < 5: last = ["s_waitcnt lgkmcnt(4)"]
            elif st < 7:
                tags = [f"x{st+1}", f"w{st+1}"]
                last = [lambda tags=tags: f"s_waitcnt vmcnt({vmn(*tags)}) lgkmcnt(0)", "s_barrier"]
            else: last = [lambda: f"s_waitcnt vmcnt({vmn('k0', 'st')}) lgkmcnt(0)", "s_barrier"]
        elif st < 7:
            seq = [xread(st + 1, n) for n in range(4)] + [wread(st + 1, 0, n) for n in range(4)] if j == 6 else \
                  [xread(st + 1, 4 + n) for n in range(4)] + [wread(st + 1, 1, n) for n in range(4)]
            ds = seq
            if j == 7: last = ["s_waitcnt lgkmcnt(4)"]
        else:
            seq = csread(0) + csread(1) + [f"ds_read_b128 {a(aWF+4*s_,4)}, v{vKM+s_}" for s_ in range(4)] if j == 6 else \
                  [X.kread(0, i) for i in range(8)]
            ds = seq
        if st == 7 and j == 2:
            Q += [f"v_add_f32 v{vCS}, v{vCS}, v{vCS+1}", f"v_add_f32 v{vCS+4}, v{vCS+4}, v{vCS+5}",
                  f"ds_write2_b32 v62, v{vCS}, v{vCS+4} offset0:0 offset1:16"]
        if st == 7 and j == 6:
            assert not Q, len(Q)
            Q.append([f"v_xor_b32 v{vG+2}, s{sNonce}, v{vG+1}", f"v_xor_b32 v{vG+6}, s{sNonce}, v{vG+5}"])
            Q.append([f"v_xor_b32 v{vG+10}, s{sNonce}, v{vG+9}", f"v_xor_b32 v{vG+14}, s{sNonce}, v{vG+13}"])
            del Q[:]
            chk = [f"v_xor_b32 v{vG+4*qb+2}, s{sNonce}, v{vG+4*qb+1}" for qb in range(4)] + \
                  [f"v_or3_b32 v{vG+2}, v{vG+2}, v{vG+6}, v{vG+10}", f"v_or_b32 v{vG+2}, v{vG+2}, v{vG+14}", f"v_cmp_ne_u32 vcc, 0, v{vG+2}"]
            Q += chk + ["s_cbranch_vccnz L_stat_retry", "L_stat_ok:"]
            cold += ["L_stat_retry:"] + spin("", "L_stat_ok") + [l.split(";")[0] for l in statld] + ["s_waitcnt vmcnt(0)"] + chk + ["s_cbranch_vccnz L_stat_retry", "s_branch L_stat_ok"]
            P_ = []
            for qb in range(4):
                g = vG + 4*qb
                P_.append([f"v_and_b32 v{g+1}, 0xffff0000, v{g}", f"v_lshlrev_b32 v{g}, 16, v{g}", f"v_rcp_f32 v{g+1}, v{g+1}",
                           f"v_sub_f32 v{g}, 0, v{g}", f"v_mul_f32 v{g+1}, {fbits(CL2E)}, v{g+1}"])
            for tup in zip(*P_): Q += list(tup)
        for n, m in enumerate(L):
            lead = []
            if n == len(L) - 1 and last:
                lead = ([ds[n]] if ds[n] else []) + last
            else:
                lead = dma_slot(j, n, ds[n] is not None) + ([ds[n]] if ds[n] else [])
            S.gap(m, lead)
        if j == 5:
            stamp(2)
            if st + 3 < 8: pend += wdma(st + 3)
            if st == 6: assert len(Q) <= len(SET)
            kv = [kdma(1), vdma(0), kdma(2), vdma(1), kdma(3), vdma(2)]
            if st == 5: pend += sum(kv[:opt["kv6"]], [])
            if st == 6: pend[0:0] = statld; pend += sum(kv[opt["kv6"]:], [])
print("fillers", NFILL, "left", len(Q), "dma left", len(pend), file=sys.stderr)
for i in range(8, 16): E(X.kread(0, i))
for l in XNST: E(l)
Q += [f"v_mov_b32 v{60+e}, v{72+e}" for e in range(4)]
S.drain()
stamp(3)
for s_ in range(4):
    E("s_waitcnt lgkmcnt(0)" if s_ != 1 else "s_nop 0")
    for qb in range(4):
        b = acc(2*s_, qb); st = vG + 4*qb
        for e in range(4):
            E(f"v_pk_fma_f32 v[{b+2*e}:{b+2*e+1}], v[{vC+(s_&1)*8+2*e}:{vC+(s_&1)*8+2*e+1}], v[{st}:{st+1}], v[{b+2*e}:{b+2*e+1}] op_sel:[0,0,0] op_sel_hi:[1,0,1]")
        if qb == 3 and s_ + 2 < 4:
            for l in csread(s_ + 2): E(l)
        for e in range(4):
            E(f"v_pk_mul_f32 v[{b+2*e}:{b+2*e+1}], v[{b+2*e}:{b+2*e+1}], v[{st}:{st+1}] op_sel:[0,1] op_sel_hi:[1,1]")
        q = r.vQ + qb*16 + s_*4
        for e in range(4): E(f"v_cvt_pk_bf16_f32 v{q+e}, v{b+2*e}, v{b+2*e+1}")
        one_dma()
    for qb in range(4):
        q = r.vQ + qb*16 + s_*4
        E(f"v_permlane16_swap_b32 v{q}, v{q+2}"); E(f"v_permlane16_swap_b32 v{q+1}, v{q+3}")
plain(pend); del pend[:]
stamp(2)
Q += [f"v_mov_b32 v{r.vL+i}, 0" for i in range(16)]
for qb in range(4):
    for s_ in range(4):
        D = v(r.vS + 48 + 4*qb, 4)
        S.gap(f"{MF} {D}, {a(aWF+4*s_,4)}, {v(r.vQ+qb*16+s_*4,4)}, {'0' if s_ == 0 else D}")
    if qb == 1:
        for q2 in range(4):
            b = r.vS + 48 + 4*q2
            Q += [f"v_max3_f32 v{b}, v{b}, v{b+1}, v{b+2}", f"v_max_f32 v{b}, v{b}, v{b+3}"] + [f"v_sub_f32 v{r.vM+4*q2+e}, {fbits(-float(opt['shift']))}, v{b}" for e in range(4)]
            if q2 == 1: hold = len(Q)
        tail = Q[hold:]; del Q[hold:]
Q += tail
S.drain()
E("s_nop 1")
stamp(3)
NT = 32
def emit_gaps(T, lo, hi, lead, mf):
    F = X.fillers(T, NT)
    for g in range(lo, hi):
        m = mf(g)
        if m: E(m)
        for f in lead.get(g, []):
            E(f)
            if not m and f.startswith("s_add_u32 m0"): E("s_nop 0")
        fs = F[g]
        if m and T == 0 and not fs and not lead.get(g): E("s_nop 0")
        if not m and fs and fs[0].startswith("v_cvt"): E("s_nop 0")
        for f in fs: E(f)
def gapsets(lo, hi):
    F = X.fillers(1, NT)
    ex = [g for g in range(lo, hi) if g in X.isexp]
    cv = [g for g in range(lo, hi) if g not in X.isexp and F[g]]
    em = [g for g in range(lo, hi) if g not in X.isexp and not F[g]]
    return ex, cv, em
NVE = 6
def pv_part(T, dmaslot, salu):
    lead = {}
    ex, cv, em = gapsets(64, 132)
    fg = sorted(cv + em)
    late = fg[-NVE:]
    em_e = [g for g in em if g not in late]
    L = X.dma(dmaslot) if dmaslot is not None else []
    dm = [L[i] for i in (1, 2, 3, 4, 6, 7, 8, 9)] if L else []
    step = len(em_e) / 8.0
    dg = [em_e[min(len(em_e) - 1, int(i*step) + 1)] for i in range(8)] if dm else []
    assert len(set(dg)) == len(dg)
    for s_, g in zip(dm, dg): lead.setdefault(g, []).append(s_)
    kg = [g for g in fg if g not in late and g not in dg]
    if T + 1 < NT:
        assert len(kg) >= 16
        for i in range(16): lead.setdefault(kg[i], []).append(X.kread(T + 1, i))
    if L:
        for mi, first in ((0, 0), (5, 4)):
            g = max(x for x in ex if x < dg[first]); lead.setdefault(g, []).append(L[mi])
            if first: assert g > dg[3]
        after = [x for x in ex if x > dg[7]]
        sal = [f"s_add_u32 s{r.sKoff}, s{r.sKoff}, s{r.sKinc}", f"s_add_u32 s{r.sVoff}, s{r.sVoff}, s{r.sVinc}"] + list(salu)
    else:
        after = ex[-8:]; sal = list(salu)
    assert len(after) > len(sal)
    for s_, g in zip(sal, after): lead.setdefault(g, []).append(s_)
    if T < NT:
        for i, g in enumerate(late): lead.setdefault(g, []).append(X.vread(T, i))
    assert 131 not in late
    if T + 1 < NT: lead.setdefault(131, []).insert(0, f"s_waitcnt lgkmcnt({NVE})")
    emit_gaps(T, 64, 132, lead, lambda g: X.pv(T - 1, g - 64) if T >= 1 else None)
def qk_part(T, sync=True, salu=None):
    lead = {}
    if salu: lead[61] = [salu]
    ex, cv, em = gapsets(0, 64)
    fg = sorted(cv + em)
    if T >= 1:
        for i in range(NVE, 32): lead.setdefault(fg[i - NVE], []).append(X.vread(T - 1, i))
    if sync:
        bg = opt["bgap"]
        if opt["bsplit"]:
            lead.setdefault(bg - 2, []).append("s_waitcnt vmcnt(16) lgkmcnt(0)")
            lead.setdefault(bg, []).append("s_barrier")
        else:
            lead.setdefault(bg, []).append("s_waitcnt vmcnt(16) lgkmcnt(0)")
            if opt["bar"]: lead[bg].append("s_barrier")
    emit_gaps(T, 0, 64, lead, lambda g: X.qk(g) if T < NT else None)
HOOK = {}
if opt["onerow"]:
    M("v_and_b32 v224, 15, v0\nv_cmp_gt_u32 vcc, 2, v224\ns_nop 1")
    for e in range(4): E(f"v_cndmask_b32 v{r.vOne+e}, 0, v{r.vOne+e}, vcc")
    E("s_nop 1")
if opt["perm"]: E(f"s_mov_b32 s{r.sPerm}, 0x07060302")
E("L_restart:")
pend += kdma(4) + vdma(3)
krel = sorted((48 + 4*(i >> 2) + ((3 - (i & 3)) if (i >> 2) & 1 else (i & 3)) + 1, i) for i in range(16))
vq = [X.vread(0, i) for i in range(NVE)]
ne, nc = 0, 0
for g in range(64):
    lead = []; budget = 2
    if g == 0: lead = [f"s_waitcnt vmcnt({vmn('k1', 'v0')})", "s_barrier"]
    else:
        if pend and pend[0].startswith("s_"): lead = [pend.pop(0)]
        elif pend and g % 4 == 2: lead = [pend.pop(0)]; budget = 0
        if budget:
            if vq and g < 8: lead += vq[:2]; del vq[:2]; budget = 0
            elif krel and krel[0][0] <= g and (2*nc + 2 < ne or len(krel) > 1 and krel[1][0] <= g):
                lead.append(X.kread(1, krel.pop(0)[1])); budget = 1
                if 2*nc + 2 >= ne: lead.append(X.kread(1, krel.pop(0)[1])); budget = 0
    if budget == 2 and g >= 4*(ne >> 2) + 7 and (ne - 2*nc < 5 or g >= 30):
        lead.append(X.exp(ne)); ne += 1
    else:
        while budget and 2*nc + 2 <= ne - (1 if False else 0) and nc < 30:
            lead.append(X.cvt(0, 2*nc + 1)); nc += 1; budget -= 1
    if not lead: lead = ["s_nop 0"]
    E(X.qk(g))
    for l in lead: E(l)
print("period0: exps", ne, "cvts", nc, "pend", len(pend), "krel", len(krel), "vq", len(vq), file=sys.stderr)
for _, i in krel: E(X.kread(1, i))
assert not vq and not pend
while ne < 61 or nc < 30:
    if 2*nc + 2 < ne or ne == 61: Q.append(X.cvt(0, 2*nc + 1)); nc += 1
    else: Q.append(X.exp(ne)); ne += 1
S.drain()
E("s_waitcnt lgkmcnt(0)")
if opt["moe"]:
    A(f"s_cmp_lg_u32 s{sFb}, 0"); A("s_cbranch_scc1 L_notouch")
    A(f"s_waitcnt vmcnt({S.vmn('xn')})")
    for l in KEYST: A(l)
    A(f"s_cmp_lg_u32 s{sSlow}, 0"); A("s_cbranch_scc1 L_notouch")
    A("global_load_dword v23, v23, s[6:7]"); A.label("L_notouch")
assert S.vmn("k2", "v1") >= 16
r.vVDl = [20, 21, 1, 2]
stamp(3)
A.raw(".p2align 6")
for _ in range(opt["pad"]): E("s_nop 0")
A.label("L_loop")
for u in range(1, 5):
    qk_part(u, salu=(f"s_cmp_eq_u32 s{r.sIt}, 7" if u == 3 else None))
    if u == 3: E("s_cbranch_scc1 L_tail")
    sal = []
    if u == 2: sal = [f"s_bitcmp1_b32 s{sMask2}, s{r.sIt}"]
    if u == 3: sal = [f"s_cmp_eq_u32 s{r.sIt}, 6"]
    if u == 4: sal = [f"s_add_u32 s{r.sIt}, s{r.sIt}, 1", f"s_bitcmp1_b32 s{sMask4}, s{r.sIt}"]
    pv_part(u, None if opt["nodma"] else u & 3, sal)
    if u == 2: E("s_cbranch_scc1 L_disp2"); E("L_ret2:")
    if u == 3: E("s_cbranch_scc1 L_hook27"); E("L_ret3:")
E("s_cbranch_scc0 L_loop")
def wo_voff(dst):
    return f"""v_lshrrev_b32 v180, 3, v0
v_and_b32 v181, 7, v0
v_lshrrev_b32 v182, 1, v180
v_lshlrev_b32 v182, 1, v182
v_xor_b32 v182, v182, v181
v_lshlrev_b32 v182, 4, v182
v_lshl_add_u32 v{dst[0]}, v180, 10, v182""".split("\n") + [f"v_add_u32 v{dst[p]}, {7168*p}, v{dst[0]}" for p in range(1, 4)]
HOOK[27] = wo_voff([r.vKD + p for p in range(4)]) + [f"s_mov_b32 s{sK}, s{sWq}", f"s_mov_b32 s{sK+1}, s{sWq+1}", f"s_mov_b32 s{sK+2}, s{sWq+2}",
            f"s_mov_b32 s{r.sKoff}, 0", f"s_mov_b32 s{r.sKinc}, 0x8000"]
HOOK[28] = [f"v_mov_b32 v{r.vVDl[p]}, v{r.vKD+p}" for p in range(4)] + [f"s_mov_b32 s{sV}, s{sWq}", f"s_mov_b32 s{sV+1}, s{sWq+1}", f"s_mov_b32 s{sV+2}, s{sWq+2}",
            f"s_mov_b32 s{r.sVoff}, 0x10000", f"s_mov_b32 s{r.sKinc}, 0x10000", f"s_mov_b32 s{r.sVinc}, 0x10000"]
def H(T, txt): HOOK.setdefault(T, []).extend(l.strip() for l in txt.strip().split("\n") if l.strip())
SEL = [4, 5, 6, 7, 42, 43, 48, 49]
TF, TP, TK, TS = opt['TF'], opt['TP'], 2, 8
ROLE = {}
NLOG2E = fbits(-1.4426950408889634)
if opt["moe"]:
    ROLE.update({TK: "R", TK + 2: "R", TS: "FR", TS + 2: "FR", TS + 4: "F", TS + 6: "F", TS + 8: "F", TF: "F", TP: "FR", TP + 2: "FR"})
    H(TK, f"""s_add_u32 m0, s{r.sM0K}, 0x20000
    s_add_u32 s3, s{r.sM0K}, {WS_KEY}""")
    HOOK[TK] += [f"buffer_load_dwordx4 v3, s[{sW}:{sW+3}], s3 offen offset:{p*1024} sc1 lds" for p in range(4)]
    KQ = [128 + 4*n for n in range(15)] + [224]
    chk = ["v_mov_b32 v228, 0"] + [f"v_bitop3_b32 v228, v228, v{q+2}, s{sNonce} bitop3:0xf6" for q in KQ] + ["v_cmp_ne_u32 vcc, 0, v228"]
    H(TK + 2, "v_add_u32 v229, 0x20000, v3\ns_waitcnt vmcnt(16)\ns_barrier")
    HOOK[TK + 2] += [f"ds_read_b128 {v(q,4)}, v229 offset:{n*1024}" for n, q in enumerate(KQ)]
    H(TK + 2, f"""s_and_b32 s3, s2, 6
    s_lshl_b32 s3, s3, 1
    s_bfe_u32 s67, s2, 0x20003
    s_add_u32 s3, s3, s67
    s_lshl_b32 s3, s3, 2
    s_add_u32 s3, s3, s{sWave}
    s_lshl_b32 s3, s3, 8
    v_bfe_u32 v232, v0, 1, 4
    v_and_b32 v233, 1, v0
    v_lshlrev_b32 v233, 2, v233
    v_lshl_add_u32 v232, v232, 4, v233
    v_add_u32 v232, s3, v232
    v_add_u32 v233, 0x20000, v232
    ds_read_b32 v234, v233
    s_waitcnt lgkmcnt(0)""")
    HOOK[TK + 2] += chk
    H(TK + 2, f"""s_cbranch_vccnz L_key_retry
    L_key_ok:
    v_mov_b32 v235, v234
    v_max_u32 v228, v{KQ[0]}, v{KQ[0]+1}""")
    mx = [f"v_max3_u32 v228, v228, v{q}, v{q+1}" for q in KQ[1:]]
    for n, m_ in enumerate(("quad_perm:[1,0,3,2]", "quad_perm:[2,3,0,1]", "row_half_mirror", "row_mirror")):
        mx.insert(3*n + 2, f"v_max_u32_dpp v235, v235, v235 {m_} row_mask:0xf bank_mask:0xf")
    HOOK[TK + 2] += mx
    H(TK + 2, f"""v_readlane_b32 s3, v235, 0
    v_readlane_b32 s67, v235, 16
    s_max_u32 s3, s3, s67
    v_cmp_lt_u32 vcc, s3, v228
    s_bcnt1_i32_b64 s3, vcc
    s_cmp_lt_u32 s3, 8
    s_cbranch_scc1 L_rank
    L_rank_done:""")
    cold += ["L_key_retry:"] + spin("", "L_key_ok")
    for n, q in enumerate(KQ):
        if n % 4 == 0: cold += [f"s_mov_b32 s3, {WS_KEY + n*1024}"]
        cold += [f"buffer_load_dwordx4 {v(q,4)}, v3, s[{sW}:{sW+3}], s3 offen offset:{(n%4)*1024} sc1"]
    cold += ["s_waitcnt vmcnt(0)"] + chk + ["s_cbranch_vccnz L_key_retry", f"s_mov_b32 s3, {WS_KEY}",
             f"buffer_load_dword v234, v232, s[{sW}:{sW+3}], s3 offen sc1", "s_waitcnt vmcnt(0)", "s_branch L_key_ok"]
    cold += ["L_rank:", "s_mov_b32 s4, 0", "L_rank_row:", f"v_readlane_b32 s{sKey0}, v234, s4", "s_mov_b32 s68, 0", "s_nop 0",
             f"v_cmp_lt_u32 vcc, s{sKey0}, v228", "s_bcnt1_i32_b64 s3, vcc", "s_cmp_ge_u32 s3, 8", "s_cbranch_scc1 L_rank_next"]
    for q in KQ:
        for e in range(2): cold += [f"v_cmp_lt_u32 vcc, s{sKey0}, v{q+e}", "s_bcnt1_i32_b64 s3, vcc", "s_add_u32 s68, s68, s3"]
    cold += f"""s_cmp_ge_u32 s68, 8
s_cbranch_scc1 L_rank_next
s_not_b32 s3, s{sKey0}
s_xor_b32 s67, s{sKey0}, 0x80000000
s_bitcmp1_b32 s{sKey0}, 31
s_cselect_b32 s3, s67, s3
s_and_b32 s3, s3, 0xffff0000
v_mov_b32 v230, {NLOG2E}
v_mul_f32 v230, s3, v230
v_exp_f32 v230, v230
s_andn2_b32 s67, 0x7ff, s{sKey0}
v_add_f32 v230, 1.0, v230
v_rcp_f32 v230, v230
s_lshl_b32 s68, s68, 3
v_cvt_pk_bf16_f32 v230, v230, v230
v_and_b32 v230, 0xffff0000, v230
v_or_b32 v230, s67, v230
v_mov_b32 v231, s{sNonce}
s_add_u32 s68, s68, {WS_SEL}
s_mov_b64 exec, 1
buffer_store_dwordx2 v[230:231], off, s[{sW}:{sW+3}], s68 sc1
s_mov_b64 exec, -1
L_rank_next:
s_add_u32 s4, s4, 1
s_cmp_lt_u32 s4, 32
s_cbranch_scc1 L_rank_row
s_branch L_rank_done""".split("\n")
    def gu_dma(p):
        L = f"""s_mul_i32 s3, s{sWave}, {128*3584}
s_lshl_b32 s67, s{sChunk}, 5
s_add_u32 s3, s3, s67
v_lshrrev_b32 v184, 1, v0
v_and_b32 v185, 8, v184
v_xor_b32 v185, v185, v0
v_lshrrev_b32 v184, 1, v185
v_mul_u32_u24 v184, 3584, v184
v_and_b32 v185, 16, v3
v_add3_u32 v184, v184, v185, s3""".split("\n")
        for k in range(4):
            L += [f"s_add_u32 m0, s{r.sM0K}, {0x24000 + k*1024}", "s_nop 0" if k == 0 else f"v_add_u32 v184, {32*3584}, v184",
                  f"global_load_lds_dwordx4 v184, s[{p}:{p+1}]"]
        return L
    selld = f"buffer_load_dwordx2 v[60:61], v128, s[{sW}:{sW+3}], 0 offen sc1"
    seladdr = ["v_and_b32 v128, 7, v0", "v_lshlrev_b32 v128, 3, v128", f"v_add_u32 v128, {WS_SEL}, v128"]
    HOOK[TS] = seladdr + [selld, f"s_cmp_eq_u32 s{sChunk}, -1", "s_cbranch_scc1 L_wp0"] + gu_dma(pWg) + ["L_wp0:"]
    H(TS + 2, f"""s_waitcnt vmcnt(16)
    v_cmp_ne_u32 vcc, s{sNonce}, v61
    s_cbranch_vccnz L_sel_retry
    L_sel_ok:
    v_and_b32 v128, 0xffff, v60
    v_and_b32 v129, 48, v0
    v_bfe_u32 v130, v0, 3, 1
    v_lshl_add_u32 v129, v130, 6, v129
    v_lshl_add_u32 v128, v128, 10, v129
    s_lshl_b32 s3, s{sWave}, 8
    s_add_u32 s3, s3, {WS_XN}
    s_lshr_b32 s68, s{r.sM0K}, 1
    s_add_u32 m0, s68, 0x20000
    s_add_u32 s67, s3, 128
    buffer_load_dwordx4 v128, s[{sW}:{sW+3}], s3 offen sc1 lds
    s_add_u32 m0, s68, 0x20400
    s_nop 0
    buffer_load_dwordx4 v128, s[{sW}:{sW+3}], s67 offen sc1 lds""")
    cold += ["L_sel_retry:"] + spin("", "L_sel_ok") + seladdr + [selld, "s_waitcnt vmcnt(0)", f"v_cmp_ne_u32 vcc, s{sNonce}, v61",
             "s_cbranch_vccnz L_sel_retry", "s_branch L_sel_ok"]
    def gu_step(T, scratch, nxt):
        H(T, f"""v_and_b32 v224, 48, v0
        v_and_b32 v225, 15, v0
        v_lshlrev_b32 v225, 3, v225
        v_lshl_add_u32 v224, v224, 4, v225
        v_and_b32 v225, 16, v0
        v_lshl_add_u32 v224, v225, 3, v224
        s_add_u32 s3, s{r.sM0K}, 0x24000
        v_add_u32 v224, s3, v224
        v_xor_b32 v225, 128, v224
        s_lshr_b32 s68, s{r.sM0K}, 1
        v_and_b32 v226, 0x370, v3
        s_add_u32 s3, s68, 0x20000
        v_add_u32 v226, s3, v226
        s_waitcnt vmcnt(16)""")
        for ks in range(4):
            HOOK[T] += [f"ds_read_b64_tr_b16 v[{128+4*ks}:{129+4*ks}], v224 offset:{ks*1024}", f"ds_read_b64_tr_b16 v[{130+4*ks}:{131+4*ks}], v225 offset:{ks*1024}",
                        f"ds_read_b128 {v(144+4*ks,4)}, v226 offset:{(ks>>1)*1024 + (ks&1)*128}"]
        n0 = next(i for i, l in enumerate(nxt) if l.startswith("s_add_u32 m0"))
        HOOK[T] += [f"s_lshr_b32 s68, s{r.sM0K}, 2", f"s_add_u32 s68, s68, {scratch}", "v_add_u32 v227, s68, v3"] + nxt[:n0] + ["s_waitcnt lgkmcnt(0)"]
        HOOK[T] += [f"{MF} v[160:163], {v(128+4*ks,4)}, {v(144+4*ks,4)}, {'0' if ks == 0 else 'v[160:163]'}" for ks in range(4)]
        HOOK[T] += nxt[n0:] + ["ds_write_b128 v227, v[160:163]"]
    gu_step(TS + 4, 0x22000, gu_dma(pWu))
    dn = f"""s_lshl_b32 s3, s{sChunk}, 14
s_lshl_b32 s67, s{sWave}, 8
s_add_u32 s3, s3, s67
v_and_b32 v184, 0xff, v{r.vVD}
v_and_b32 v185, 48, v0
v_lshl_add_u32 v184, v185, 6, v184
v_add_u32 v184, s3, v184
v_xor_b32 v185, 128, v184
v_add_u32 v185, 0x1000, v185""".split("\n")
    for k in range(4):
        dn += [f"s_add_u32 m0, s{r.sM0K}, {0x24000 + k*1024}", "s_nop 0" if k < 2 else f"v_add_u32 v{184+(k&1)}, 0x2000, v{184+(k&1)}",
               f"global_load_lds_dwordx4 v{184+(k&1)}, s[{pWd}:{pWd+1}]"]
    gu_step(TS + 6, 0x23000, dn)
    T3 = TS + 8
    H(T3, f"v_add_u32 v224, 0x22000, v3\ns_add_u32 s3, s{r.sM0K}, {0x24000 - r.VBASE}")
    HOOK[T3] += [f"ds_read_b128 {v(128+4*n,4)}, v224 offset:{n*1024}" for n in range(8)]
    HOOK[T3] += [f"v_add_u32 v{228+nb}, s3, v{r.vVA+nb}" for nb in range(8)] + ["s_waitcnt vmcnt(16)"]
    HOOK[T3] += [f"ds_read_b64_tr_b16 v[{164+2*nb}:{165+2*nb}], v{228+nb}" for nb in range(8)]
    H(T3, f"""v_and_b32 v225, 0x70, v3
    v_and_b32 v226, 48, v0
    v_lshl_add_u32 v225, v226, 3, v225
    v_and_b32 v226, 8, v0
    v_lshl_add_u32 v225, v226, 6, v225
    v_cmp_eq_u32 vcc, 0, v226
    s_lshl_b32 s3, s{sChunk}, 14
    s_add_u32 s3, s3, s{r.sM0K}
    s_add_u32 s3, s3, {WS_PART}
    s_waitcnt lgkmcnt(8)""")
    for b_ in (128, 144):
        for e in range(4): HOOK[T3] += [f"v_add_f32 v{b_+e}, v{b_+e}, v{b_+4+e}", f"v_add_f32 v{b_+8+e}, v{b_+8+e}, v{b_+12+e}"]
        for e in range(4): HOOK[T3] += [f"v_add_f32 v{b_+e}, v{b_+e}, v{b_+8+e}"]
        HOOK[T3] += [f"v_cvt_pk_bf16_f32 v{b_+4+e}, v{b_+2*e}, v{b_+2*e+1}" for e in range(2)] + unpack(b_, b_ + 4, 2)
    for op_ in (f"v_mul_f32 v{{t}}, {NLOG2E}, v{{g}}", "v_exp_f32 v{t}, v{t}", "v_add_f32 v{t}, 1.0, v{t}", "v_rcp_f32 v{t}, v{t}", "v_mul_f32 v{g}, v{g}, v{t}"):
        HOOK[T3] += [op_.format(t=132 + e, g=128 + e) for e in range(4)]
    HOOK[T3] += [f"v_cvt_pk_bf16_f32 v{132+e}, v{128+2*e}, v{129+2*e}" for e in range(2)] + unpack(128, 132, 2)
    HOOK[T3] += [f"v_mul_f32 v{128+e}, v{128+e}, v{144+e}" for e in range(4)]
    H(T3, """v_cvt_pk_bf16_f32 v146, v128, v129
    v_cvt_pk_bf16_f32 v147, v130, v131
    v_cndmask_b32 v144, 0, v146, vcc
    v_cndmask_b32 v145, 0, v147, vcc
    v_cndmask_b32 v146, v146, 0, vcc
    v_cndmask_b32 v147, v147, 0, vcc
    s_waitcnt lgkmcnt(0)""")
    for j in range(4):
        HOOK[T3] += [f"v_mfma_f32_16x16x16_bf16 {v(128+4*j,4)}, v[{164+4*j}:{165+4*j}], v[144:145], 0",
                     f"v_mfma_f32_16x16x16_bf16 {v(128+4*j,4)}, v[{166+4*j}:{167+4*j}], v[146:147], {v(128+4*j,4)}"]
    H(T3, "s_nop 4")
    for j in range(4): HOOK[T3] += [f"buffer_store_dwordx4 {v(128+4*j,4)}, v225, s[{sW}:{sW+3}], s3 offen offset:{j*1024} sc1"]
    H(T3, "s_nop 0")
    H(TF, f"""s_lshl_b32 s3, s{sWave}, 7
    s_add_u32 s3, s3, s{sChunk}
    s_lshl_b32 s3, s3, 2
    s_add_u32 s3, s3, {WS_FC}
    v_mov_b32 v128, s{sNonce}
    s_waitcnt vmcnt(16)
    s_mov_b64 exec, 1
    buffer_store_dword v128, off, s[{sW}:{sW+3}], s3 sc1
    s_mov_b64 exec, -1""")
    fcaddr = ["v_min_u32 v128, 55, v0", "v_lshlrev_b32 v128, 3, v128", "s_lshr_b32 s3, s2, 6", "s_lshl_b32 s3, s3, 9", f"s_add_u32 s3, s3, {WS_FC}"]
    fcld = f"buffer_load_dwordx2 v[62:63], v128, s[{sW}:{sW+3}], s3 offen sc1"
    fcchk = [f"v_xor_b32 v129, s{sNonce}, v62", f"v_bitop3_b32 v129, v129, v63, s{sNonce} bitop3:0xf6", "v_cmp_ne_u32 vcc, 0, v129"]
    HOOK.setdefault(TP, []).extend(fcaddr + [fcld])
    HOOK.setdefault(TP + 2, []).extend(["s_waitcnt vmcnt(16)"] + fcchk)
    H(TP + 2, f"""s_cbranch_vccnz L_fc_retry
    L_fc_ok:
    v_lshrrev_b32 v128, 3, v0
    v_xor_b32 v129, v128, v0
    v_and_b32 v129, 7, v129
    v_lshlrev_b32 v129, 4, v129
    v_lshl_add_u32 v128, v128, 14, v129
    s_lshr_b32 s3, s2, 1
    s_lshl_b32 s3, s3, 7
    s_lshl_b32 s67, s{sWave}, 17
    s_add_u32 s3, s3, s67
    s_add_u32 s3, s3, {WS_PART}
    s_lshr_b32 s68, s{r.sM0K}, 2""")
    for k in range(4):
        HOOK[TP + 2] += [f"s_add_u32 m0, s68, {0x20000 + k*4096}", f"s_add_u32 s67, s3, {k << 19}"]
        if k == 3: HOOK[TP + 2] += [f"s_cmp_lt_u32 s{sWave}, 2", "s_cselect_b32 s67, s67, 0x40000000"]
        HOOK[TP + 2] += [f"buffer_load_dwordx4 v128, s[{sW}:{sW+3}], s67 offen sc1 lds"]
    cold += ["L_fc_retry:"] + spin("", "L_fc_ok") + fcaddr + [fcld, "s_waitcnt vmcnt(0)"] + fcchk + ["s_cbranch_vccnz L_fc_retry", "s_branch L_fc_ok"]
    T4 = TP + 5
    H(T4, f"""s_or_b32 s3, s{sFb}, s{sSlow}
    s_cbranch_scc1 L_s4_done
    s_lshl_b32 s68, s{sWave}, 1
    v_lshrrev_b32 v145, 5, v0
    v_add_u32 v145, s68, v145
    v_xor_b32 v144, v145, v0
    v_and_b32 v144, 7, v144
    v_and_b32 v146, 31, v0
    v_lshl_add_u32 v144, v146, 3, v144
    v_lshlrev_b32 v144, 4, v144
    v_add_u32 v144, 0x20000, v144""")
    HOOK[T4] += [f"ds_read_b128 {v(128+4*k,4)}, v144 offset:{k*4096}" for k in range(4)]
    H(T4, f"""v_lshlrev_b32 v146, 2, v145
    ds_bpermute_b32 v147, v146, v60
    v_lshlrev_b32 v145, 11, v145
    s_lshr_b32 s3, s2, 1
    s_lshl_b32 s3, s3, 4
    s_add_u32 s3, s3, {WS_UPD}
    s_waitcnt lgkmcnt(0)""")
    for e in range(4): HOOK[T4] += [f"v_add_f32 v{128+e}, v{128+e}, v{132+e}", f"v_add_f32 v{136+e}, v{136+e}, v{140+e}"]
    for e in range(4): HOOK[T4] += [f"v_add_f32 v{128+e}, v{128+e}, v{136+e}"]
    for tup in zip(*[wave_sum(128 + e, 0)[:-2] for e in range(4)]): HOOK[T4] += list(tup)
    H(T4, "v_and_b32 v147, 0xffff0000, v147\nv_cvt_pk_bf16_f32 v132, v128, v129\nv_cvt_pk_bf16_f32 v133, v130, v131")
    HOOK[T4] += unpack(128, 132, 2) + [f"v_mul_f32 v{128+e}, v147, v{128+e}" for e in range(4)]
    H(T4, f"""v_cvt_pk_bf16_f32 v132, v128, v129
    v_cvt_pk_bf16_f32 v133, v130, v131
    v_mov_b32 v134, s{sNonce}
    v_mov_b32 v135, s{sNonce}
    s_mov_b32 exec_lo, 0x80000000
    s_mov_b32 exec_hi, 0x80000000
    buffer_store_dwordx4 v[132:135], v145, s[{sW}:{sW+3}], s3 offen sc1
    s_mov_b64 exec, -1
    L_s4_done:""")
if opt["wtouch"]:
    for n, T in enumerate(eval(opt_s["wT"])):
        if opt["varb"]:
            HOOK.setdefault(T, []).extend(["s_and_b32 s3, s2, 0xf8", "s_lshl_b32 s3, s3, 1", f"s_lshl_b32 s67, s{sWave}, 10", "s_add_u32 s3, s3, s67", f"s_add_u32 s3, s3, {512*n}",
                "s_lshl_b32 s3, s3, 1", "s_and_b32 s67, s2, 1", "s_add_u32 s3, s3, s67", "s_lshl_b32 s3, s3, 9",
                "v_lshrrev_b32 v180, 2, v0", "v_and_b32 v181, 3, v0", "v_lshlrev_b32 v181, 7, v181", "v_lshl_add_u32 v180, v180, 10, v181",
                "v_add_u32 v180, s3, v180", f"global_load_dword v23, v180, s[{pWo}:{pWo+1}]"])
        else:
            HOOK.setdefault(T, []).extend(["s_and_b32 s3, s2, 0xf8", f"s_lshl_b32 s67, s{sWave}, 10", "s_add_u32 s3, s3, s67", f"s_add_u32 s3, s3, {256*n}", "s_lshl_b32 s3, s3, 10",
                "v_lshl_add_u32 v180, v0, 7, s3", f"global_load_dword v23, v180, s[{pWo}:{pWo+1}]"])
if opt["otch"]:
    for n, T in enumerate(eval(opt_s["oT"])):
        HOOK.setdefault(T, []).extend([f"s_lshl_b32 s3, s{sQb}, 2", f"s_add_u32 s3, s3, s{sWave}", "s_lshl_b32 s3, s3, 7", f"s_add_u32 s3, s3, s{sHead}", "s_lshl_b32 s3, s3, 12",
            f"s_add_u32 s3, s3, {n*0x40000}", "v_lshrrev_b32 v180, 5, v0", "v_and_b32 v181, 31, v0", "v_lshlrev_b32 v181, 7, v181", "v_lshl_add_u32 v180, v180, 17, v181",
            f"buffer_load_dword v23, v180, s[{sW}:{sW+3}], s3 offen{['', '', ' sc1', ' nt', ' sc0 sc1'][opt['otch']]}"])
if opt["stamp"] & 8:
    Ts = eval(opt_s["hs"])
    def st_(i): return [f"{CLK} s[{70+2*i}:{71+2*i}]", "s_waitcnt lgkmcnt(0)"]
    i = 1
    for T in Ts:
        body = []
        for l in HOOK[T]:
            if l.startswith("STAMP"):
                body += st_(i + 1); i += 1
            else: body.append(l)
        k = sum(l.startswith("STAMP") for l in HOOK[T])
        HOOK[T] = st_(i - k) + body + st_(i + 1); i += 2
    nstamp[0] = i
for T in HOOK: HOOK[T] = [l for l in HOOK[T] if not l.startswith("STAMP")]
def emit_hooks():
    msk = {}
    for site in (4, 2):
        Ts = sorted(T for T in HOOK if T % 4 == site % 4)
        msk[site] = {ro: sum(1 << (T // 4) for T in Ts if ro in ROLE.get(T, ro)) for ro in "FRS"}
        E(f"L_disp{site}:")
        first = min(HOOK)
        for T in Ts:
            if site == 2 and T == first: continue
            if T == Ts[-1] and not (site == 2 and first in Ts): E(f"s_branch L_hook{T}")
            else: E(f"s_cmp_eq_u32 s{r.sIt}, {T // 4}"); E(f"s_cbranch_scc1 L_hook{T}")
        if not Ts: E("s_branch " + ("L_ret2" if site == 2 else "L_loop"))
    for T in sorted(HOOK):
        E(f"L_hook{T}:")
        for l in HOOK[T]: E(l)
        E("s_branch " + {2: "L_ret2", 3: "L_ret3", 0: "L_loop"}[T % 4])
    return msk[2], msk[4]
m2, m4 = emit_hooks()
A.label("L_tail")
S.vm[:] = ["wo0"]*4 + ["v31"]*4 + [f"wo{k}" for k in range(1, 5) for _ in range(4)]
sOoff = 63
vWo, vWr, vOq, vFl = r.vKD, 48, 4, 44
VA, VB, VC, AA, AB, AC, AD = ("v", 64), ("v", 128), ("v", 192), ("a", 0), ("a", 64), ("a", 128), ("a", 192)
def blk(B, off, n): return (v if B[0] == "v" else a)(B[1] + off, n)
WBLK = [VA, AA, AD, VC]; ACC = AC
NU = 10
UNIT = [0, 1, 5, 2, 6, 3, 7, 8, 4, 9]
def wo_dma(kk):
    L = [f"s_add_u32 m0, s{r.sM0K}, {UNIT[kk % NU]*16384}"]
    L += [f"buffer_load_dwordx4 v{vWo+p}, s[{sWq}:{sWq+3}], s{sWoff} offen offset:{p*1024} lds ; wo{kk}" for p in range(4)]
    L += [f"s_add_u32 s{sWoff}, s{sWoff}, 0x8000"]
    return L
def wo_reads(kk):
    u = UNIT[kk % NU]; B = WBLK[(kk >> 2) & 3]
    return [f"ds_read_b64_tr_b16 {blk(B, (nb*4 + (kk & 3))*4 + 2*half, 2)}, v{vWr + 4*(u >> 2) + nb} offset:{(u & 3)*16384 + half*2048} ; r{kk}"
            for nb in range(4) for half in range(2)]
OBUF = [("a", 64), ("a", 80), ("a", 96), ("a", 112), ("v", 128), ("v", 144)][:opt["look"] + 1]
def o_loads(z):
    B = OBUF[z % len(OBUF)]
    L = [f"buffer_load_dwordx4 {blk(B, i*4, 4)}, v{vOq+(z&3)}, s[{sW}:{sW+3}], s{sOoff} offen offset:{i*1024} sc1 ; o{z}" for i in range(4)]
    return L + (o_next() if z & 3 == 3 else [])
def o_next(): return [f"s_add_u32 s{sOoff}, s{sOoff}, 0x1000"]
L_ = r.vL
vXo, vXr, vGf, vSt = 45, 20, 176, 46
vU, vRow, vSa, vC3, vUa, vUt, vT, vN = 160, 12, 14, 3, 15, 11, 10, 13
setup1 = f"""s_mov_b32 s{sWoff}, {5*0x8000}
s_lshl_b32 s3, s{sQb}, 2
s_add_u32 s3, s3, s{sWave}
s_lshl_b32 s69, s3, 5
s_add_u32 s69, s69, s{sHead}
s_lshl_b32 s69, s69, 7
s_add_u32 s69, s69, {WS_FLAG}
s_lshl_b32 s3, s3, 7
s_add_u32 s3, s3, s{sHead}
s_lshl_b32 s68, s3, 12
s_lshl_b32 s{sOoff}, s{sQt}, 19
s_lshl_b32 s3, s{sWave}, 15
s_add_u32 s{sOoff}, s{sOoff}, s3""".split("\n")
setupO = [f"v_mov_b32 v{vOq}, v3"] + [f"v_add_u32 v{vOq+qb}, {qb*0x20000}, v3" for qb in range(1, 4)]
setup2 = f"""v_lshrrev_b32 v1, 4, v0
v_and_b32 v2, 15, v0
v_and_b32 v9, 7, v0
v_lshrrev_b32 v8, 2, v2
v_lshl_add_u32 v8, v1, 2, v8
v_bfe_u32 v10, v8, 1, 2
v_lshlrev_b32 v8, 7, v8
v_and_b32 v{vC3}, 3, v0
v_lshl_add_u32 v8, v{vC3}, 3, v8
v_add_u32 v8, s{r.sM0K}, v8""".split("\n")
for nb in range(4):
    setup2 += [f"v_xor_b32 v11, {nb}, v10", f"v_lshl_add_u32 v{vWr+nb}, v11, 5, v8",
               f"v_add_u32 v{vWr+4+nb}, 0x10000, v{vWr+nb}", f"v_add_u32 v{vWr+8+nb}, 0x20000, v{vWr+nb}"]
setup2 += [f"s_lshl_b32 s3, s{sQt}, 5", f"s_lshl_b32 s67, s{sWave}, 3", "s_add_u32 s3, s3, s67", "v_add_u32 v9, s3, v9",
           f"v_lshlrev_b32 v{vFl}, 7, v9", f"v_add_u32 v{vFl}, {WS_FLAG}, v{vFl}",
           f"s_lshl_b32 s3, s{sWave}, 2", "s_add_u32 s3, s3, 0x24000", f"v_lshl_add_u32 v192, v{vC3}, 12, s3",
           f"s_add_u32 s3, s{r.sM0K}, 0x24000", "v_mov_b32 v193, s3"]
FS = f"""s_and_b32 s1, s{sNt}, {opt['qrot']}
s_lshl_b32 s3, s{sQt}, 2
s_add_u32 s3, s3, s{sWave}
s_xor_b32 s3, s3, s1
s_lshl_b32 s1, s1, 17
s_lshl_b32 s3, s3, 4
v_lshrrev_b32 v{vRow}, 2, v0
v_add_u32 v{vRow}, s3, v{vRow}
v_lshlrev_b32 v{vSa}, 3, v{vRow}
v_add_u32 v{vSa}, {WS_STAT}, v{vSa}
s_lshl_b32 s3, s{sNt}, 7
v_lshl_add_u32 v{vT}, v{vC3}, 5, s3
v_lshl_add_u32 v{vXo}, v{vRow}, 10, v{vT}
v_mov_b32 v{vN}, s{sNonce}
global_load_dwordx4 v[{vXr}:{vXr+3}], v{vXo}, s[{pX}:{pX+1}] ; xf
global_load_dwordx4 v[{vXr+4}:{vXr+7}], v{vXo}, s[{pX}:{pX+1}] offset:16 ; xf
buffer_load_dwordx2 v[{vSt}:{vSt+1}], v{vSa}, s[{sW}:{sW+3}], 0 offen sc1 ; xf""".split("\n")
updld = [f"buffer_load_dwordx4 {v(vU+4*k,4)}, v{vUa}, s[{sW}:{sW+3}], s67 offen offset:{16*k} sc1" for k in range(4)] if opt["moe"] else []
updchk = [f"v_xor_b32 v{vT}, s{sNonce}, v{vSt+1}"]
FU = []
if opt["moe"]:
    selld2 = f"buffer_load_dwordx2 v[200:201], v202, s[{sW}:{sW+3}], 0 offen sc1"
    setup2[0:0] = ["v_and_b32 v202, 7, v0", "v_lshlrev_b32 v202, 3, v202", f"v_add_u32 v202, {WS_SEL}, v202", selld2 + " ; sel"]
    FU += [lambda: f"s_waitcnt vmcnt({S.vmn('sel')})", f"v_cmp_ne_u32 vcc, s{sNonce}, v201", "s_cbranch_vccnz L_sel2_retry", "L_sel2_ok:", "v_and_b32 v200, 0xffff, v200"]
    cold += ["L_sel2_retry:"] + spin("", "L_sel2_ok") + [selld2, "s_waitcnt vmcnt(0)", f"v_cmp_ne_u32 vcc, s{sNonce}, v201",
             "s_cbranch_vccnz L_sel2_retry", "s_branch L_sel2_ok"]
    FU += [f"v_mov_b32 v{vUa}, 0x200000"] + [f"v_readlane_b32 s{SEL[t_]}, v200, {t_}" for t_ in range(8)]
    for t_ in range(8): FU += [f"v_cmp_eq_u32 vcc, s{SEL[t_]}, v{vRow}", f"v_mov_b32 v{vT}, {t_*32}", f"v_cndmask_b32 v{vUa}, v{vUa}, v{vT}, vcc"]
    FU += f"""v_cmp_gt_u32 vcc, 0x1000, v{vUa}
v_add_u32 v{vUa}, v{vUa}, v{vC3}
v_lshlrev_b32 v{vUa}, 6, v{vUa}
v_cndmask_b32 v{vUt}, 0, v{vN}, vcc
v_mov_b32 v{vT}, 0x40000000
v_cndmask_b32 v{vUa}, v{vT}, v{vUa}, vcc
s_lshl_b32 s67, s{sNt}, 8
s_add_u32 s67, s67, {WS_UPD}""".split("\n") + [l + " ; xf" for l in updld]
    updchk += [f"v_bitop3_b32 v{vT}, v{vT}, v{vU+4*k+2}, v{vUt} bitop3:0xf6" for k in range(4)]
updchk += [f"v_cmp_ne_u32 vcc, 0, v{vT}"]
def pv2(T, qb, db, ks):
    base = r.aV if T == 30 else r.aK
    D = a(r.aO + qb*32 + db*4, 4)
    return f"{MF} {D}, {a(base+4*(ks*8+db),4)}, {v(r.vP+(T&1)*32+qb*8+ks*4,4)}, {D}"
def v31(i): return X.vread(31, i).replace(a(r.aV + 4*(((i >> 1) & 1)*8 + (i >> 2)) + 2*(i & 1), 2), a(r.aK + 4*(((i >> 1) & 1)*8 + (i >> 2)) + 2*(i & 1), 2)) + f" ; v31_{i >> 2}"
nst = [0]
OSP = [" sc1", " sc0 sc1", " sc1 nt", "", " nt"][opt["osp"]]
def epi(qb):
    L = []
    for i4 in range(4):
        t = r.vS; o = r.vS + 8 + (nst[0] & 1)*4; nst[0] += 1
        L += [f"v_accvgpr_read_b32 v{t+e}, a{r.aO+qb*32+8*i4+e}" for e in range(8)]
        L += [f"v_mul_f32 v{t+e}, v{60+qb}, v{t+e}" for e in range(8)]
        L += [f"v_cvt_pk_bf16_f32 v{o+e}, v{t+2*e}, v{t+2*e+1}" for e in range(4)]
        L += [f"buffer_store_dwordx4 {v(o,4)}, v{vOq+qb}, s[{sW}:{sW+3}], s68 offen offset:{i4*1024}{OSP} ; ost" if not (opt["nostore"] and nst[0] < 16) else "s_nop 1"]
    return L
def smx(lo, hi):
    L = []
    for k in range(lo, hi):
        L.append(X.exp(k))
        if k % 2 == 0 and k > lo: L.append(X.cvt(31, k - 1))
    return L + [X.cvt(31, hi - 1)]
def rsum(qb): return [f"v_add_f32 v{L_+4*qb}, v{L_+4*qb}, v{L_+4*qb+1}", f"v_rcp_f32 v{60+qb}, v{L_+4*qb}"]
def dmaf(kk):
    L = wo_dma(kk)
    return [[L[0], "s_nop 0", L[1]], L[2], L[3], [L[4], L[5]]]
def weave(*lists):
    items = sorted(((i + 0.5) / len(L), n, i) for n, L in enumerate(lists) if L for i in range(len(L)))
    return [lists[n][i] for _, n, i in items]
def qcost(): return sum(len(f) if isinstance(f, list) else (1 if callable(f) else (0 if f.endswith(":") else S.cost(f))) for f in Q)
def chains(CH):
    for c, ch in enumerate(CH):
        for n, m in enumerate(ch):
            if n < len(ch) - 1: S.gap(m)
            else:
                left = len(CH) - c
                small = sum(2*(len(x) - 1) for x in CH[c+1:])
                S.gap(m, budget=max(2, -(-(qcost() - small*3//4) // left)), big=True)
    S.drain()
eg = X.sched()
assert eg[27] == 63
stamp(16)
seq = [pv2(30, 0, j >> 1, (j & 1) ^ ((j >> 1) & 1)) for j in range(16)] + [X.pv(30, 16)]
su = list(setup1)
for n, m in enumerate(seq):
    E(m)
    if su: E(su.pop(0))
    if n < 16: E(v31(2*n)); E(v31(2*n + 1))
    else: E(X.cvt(31, 27)); E(setupO[0])
Q += smx(28, 32) + setupO[1:] + [None]
for n, m in enumerate([X.pv(31, 16)] + [pv2(31, 0, j >> 1, (j & 1) ^ ((j >> 1) & 1)) for j in range(16)]):
    lead = []
    if n in (0, 4, 8): lead = [f"s_waitcnt lgkmcnt({S.lgn('v31_' + str({0: 1, 4: 3, 8: 7}[n]))})"]
    if n == 9: Q.pop(); Q += rsum(0) + dmaf(5)
    S.gap(m, lead)
carry = list(Q); del Q[:]
stamp(16)
def qchains(qb):
    CH = [[X.pv(30, 17*qb + 16), X.pv(31, 17*qb + 16)]]
    for db in range(8):
        o = [(30, 0), (30, 1), (31, 0), (31, 1)]
        CH.append([pv2(T, qb, db, ks) for T, ks in (o[::-1] if db & 1 else o)])
    return CH
Q += carry + weave(epi(0), smx(32, 48), dmaf(6)) + rsum(1)
chains(qchains(1))
stamp(16)
Q += weave(epi(1), smx(48, 64) + setup2[-5:-5], dmaf(7), setup2) + rsum(2)
chains(qchains(2))
stamp(16)
e2 = epi(2)
vote = rsum(3) + [f"v_add_f32 v194, v{L_}, v{L_+4}", f"v_add_f32 v195, v{L_+8}, v{L_+12}", "v_add_f32 v194, v194, v195",
        f"v_cmp_ngt_f32 vcc, {'0' if opt['forcefb'] else '0x5f800000'}, v194", "s_or_b32 s3, vcc_lo, vcc_hi", "v_mov_b32 v194, s3", "ds_write_b32 v192, v194"]
def wrd(kk): return [lambda: f"s_waitcnt vmcnt({S.vmn(f'wo{kk}')})"] + [list(p) for p in zip(wo_reads(kk)[0::2], wo_reads(kk)[1::2])]
Q += e2[:10] + vote + e2[10:30] + [["s_waitcnt lgkmcnt(0)", "s_barrier", "ds_read_b128 v[196:199], v193"]] + weave(e2[30:52], dmaf(8)) + \
     ["s_waitcnt lgkmcnt(0)", "v_or3_b32 v196, v196, v197, v198", "v_or_b32 v196, v196, v199", "v_cmp_ne_u32 vcc, 0, v196", "s_cbranch_vccnz L_fallback" if not opt["exper"] else "s_nop 0", "L_safe:"] + \
     weave(e2[52:], FS, wrd(0) + wrd(1))
chains(qchains(3))
stamp(17)
xd = []
for kk in range(NU, NU + opt["fx"]): xd += [lambda kk=kk: f"s_waitcnt lgkmcnt({S.lgn(f'r{kk-NU}')})"] + dmaf(kk)
Q += weave(epi(3), dmaf(9) + xd, wrd(2) + wrd(3) + wrd(4) + wrd(5))
S.drain()
stamp(17)
NPRE = opt["npre"]
nextrd = [6]; nextdma = [NU + opt["fx"]]
def stage(nops, filler=()):
    filler = list(filler)
    per = -(-len(filler) // max(1, nops))
    for _ in range(nops):
        if not any(l.startswith("buffer") for l in pend):
            if nextdma[0] >= NPRE: break
            kk = nextdma[0]
            if nextrd[0] < min(16, kk - NU + 3):
                k2 = nextrd[0]
                E(f"s_waitcnt vmcnt({vmn(f'wo{k2}')})")
                for l in wo_reads(k2): E(l)
                nextrd[0] += 1
            E(f"s_waitcnt lgkmcnt({S.lgn(f'r{kk-NU}')})")
            pend.extend(wo_dma(kk)); nextdma[0] += 1
        one_dma()
        k_ = per
        while k_ < len(filler) and isinstance(filler[k_], str) and filler[k_].endswith(":"): k_ += 1
        Q.extend(filler[:k_]); S.drain()
        del filler[:k_]
    Q.extend(filler); S.drain()
stage(opt["npost"], [f"v_xor_b32 v{vOq+k}, s1, v{vOq+k}" for k in range(4)] + FU)
if opt["osp"] >= 3:
    E(f"s_waitcnt vmcnt({S.vmn('ost')})"); E("buffer_wbl2 sc1 ; ost")
M(f"""
s_waitcnt vmcnt({S.vmn('ost')})
s_mov_b64 exec, 1
buffer_store_dword v{vN}, off, s[{sW}:{sW+3}], s69 sc1 ; flag
s_mov_b64 exec, -1
""")
stamp(1)
nleft = (NPRE - nextdma[0])*4 + sum(l.startswith("buffer") for l in pend)
stage(nleft - opt["pollat"])
E(f"buffer_load_dword v2, v{vFl}, s[{sW}:{sW+3}], 0 offen sc1 ; poll")
stage(opt["pollat"])
plain(pend); del pend[:]
stamp(1)
M(f"""
s_waitcnt vmcnt({S.vmn('poll')})
v_cmp_ne_u32 vcc, s{sNonce}, v2
s_cbranch_vccnz L_oflag
L_oflag_ok:
""")
cold += ["L_oflag:"] + spin("", "L_oflag_ok") + [f"buffer_load_dword v2, v{vFl}, s[{sW}:{sW+3}], 0 offen sc1", "s_waitcnt vmcnt(0)",
         f"v_cmp_ne_u32 vcc, s{sNonce}, v2", "s_cbranch_vccnz L_oflag", "s_branch L_oflag_ok"]
stamp(5)
LOOK = opt["look"]
for z in range(LOOK):
    for l in o_loads(z): E(l)
stamp(1)
t = 36
cold += ["L_stf_retry:"] + spin("", "L_stf_ok") + [f"buffer_load_dwordx2 v[{vSt}:{vSt+1}], v{vSa}, s[{sW}:{sW+3}], 0 offen sc1"] + updld + ["s_waitcnt vmcnt(0)"] + \
        updchk + ["s_cbranch_vccnz L_stf_retry", "s_branch L_stf_ok"]
G = updchk + ["s_cbranch_vccnz L_stf_retry", "L_stf_ok:", f"v_and_b32 v{vSt+1}, 0xffff0000, v{vSt}", f"v_lshlrev_b32 v{vSt}, 16, v{vSt}", f"v_rcp_f32 v{vSt+1}, v{vSt+1}"]
for hf in range(2):
    G += unpack(t, vXr + 4*hf)
    G += [f"v_sub_f32 v{t+e}, v{t+e}, v{vSt}" for e in range(8)]
    G += [f"v_cvt_pk_bf16_f32 v{8+e}, v{t+2*e}, v{t+2*e+1}" for e in range(4)] + unpack(t, 8)
    G += [f"v_mul_f32 v{t+e}, v{t+e}, v{vSt+1}" for e in range(8)]
    G += [f"v_cvt_pk_bf16_f32 v{8+e}, v{t+2*e}, v{t+2*e+1}" for e in range(4)] + unpack(t, 8)
    if opt["moe"]:
        G += unpack(8, vU + 8*hf, 2) + unpack(12, vU + 8*hf + 4, 2) + [f"v_add_f32 v{t+e}, v{t+e}, v{8+e}" for e in range(8)]
        G += [f"v_cvt_pk_bf16_f32 v{8+e}, v{t+2*e}, v{t+2*e+1}" for e in range(4)] + unpack(t, 8)
    G += [f"v_mul_f32 v{8+e}, {NLOG2E}, v{t+e}" for e in range(8)]
    G += [f"v_exp_f32 v{8+e}, v{8+e}" for e in range(8)]
    G += [f"v_add_f32 v{8+e}, 1.0, v{8+e}" for e in range(8)]
    G += [f"v_rcp_f32 v{8+e}, v{8+e}" for e in range(8)]
    G += [f"v_mul_f32 v{t+e}, v{t+e}, v{8+e}" for e in range(8)]
    G += [f"v_cvt_pk_bf16_f32 v{8+e}, v{t+2*e}, v{t+2*e+1}" for e in range(4)] + unpack(vGf + 8*hf, 8)
G += unpack(vU, vXr, 8)
G += [f"v_lshl_add_u32 v32, v0, 4, s{r.sM0K}"] + [f"v_xor_b32 v{32+nb}, {nb*1024 + nb*64}, v32" for nb in range(1, 4)]
G += ["v_lshrrev_b32 v31, 2, v0", f"v_lshlrev_b32 v30, 2, v{vC3}", "v_xor_b32 v31, v31, v30", "v_lshlrev_b32 v31, 4, v31", f"v_lshl_add_u32 v31, v{vC3}, 10, v31",
      f"s_lshl_b32 s3, s{sWave}, 14", "v_add_u32 v31, s3, v31"]
assert S.vmn("xf") >= S.vmn("poll")
Q += G
wq = []; dma_done = {kk: -99 for kk in range(NPRE)}
nw = (32 - NPRE)*4; ZD = opt["zd"]; issued = 0
for z in range(32):
    h, qb = z >> 2, z & 3
    Wb, Ob = WBLK[h & 3], OBUF[z % len(OBUF)]
    vtags = [f"o{z}"]; ltags = []
    rdq = []
    kk = nextrd[0]
    if kk < 32 and z >= (kk >> 2)*4 - 12 and kk in dma_done and (z - dma_done[kk] >= opt["dlag"] or (kk >> 2)*4 - z <= 4 - (kk & 3)):
        rdq = wo_reads(kk); vtags.append(f"wo{kk}"); nextrd[0] += 1
    if qb == 0:
        assert kk >= 4*h + 4, (z, kk)
        ltags += [f"r{4*h+3}"]
    ops = o_loads(z + LOOK) if z + LOOK < 32 else []
    want = min(nw, -(-nw*(z + 1) // ZD))
    wops = []
    while issued < want:
        if not wq:
            k2 = nextdma[0]
            if k2 - NU >= kk: break
            wq = wo_dma(k2); ltags.append(f"r{k2-NU}"); nextdma[0] += 1
        while wq:
            l = wq.pop(0); wops.append(l)
            if l.startswith("buffer"): issued += 1; break
        if len(wq) == 1: wops.append(wq.pop(0)); dma_done[nextdma[0] - 1] = z
    pend.extend(ops + wops)
    w = f"s_waitcnt vmcnt({S.vmn(*vtags)})"
    if ltags: w += f" lgkmcnt({S.lgn(*ltags)})"
    E(w)
    if qb == 0: stamp(4)
    wr = [f"ds_write_b128 v{32+nb}, {blk(ACC, ((qb-1)*4+nb)*4, 4)} offset:{(qb-1)*16384}" for nb in range(4)] if z > 28 else []
    if z == 29: assert not Q, len(Q)
    nbuf = sum(l.startswith("buffer") for l in pend)
    slots = [1 + 2*int(i*8/nbuf) for i in range(nbuf)] if nbuf else []
    for n in range(16):
        nb, i = n >> 2, n & 3
        if nb & 1: i = 3 - i
        D = blk(ACC, (qb*4 + nb)*4, 4)
        m = f"{MF} {D}, {blk(Wb, (nb*4 + i)*4, 4)}, {blk(Ob, i*4, 4)}, {'0' if h == 0 and n & 3 == 0 else D}"
        lead = []
        if n & 1 == 0:
            while pend and pend[0].startswith("s_"): lead.append(pend.pop(0))
            if rdq: lead.append(rdq.pop(0))
            elif wr and n & 3 == 2: lead.append(wr.pop(0))
        elif n in slots:
            lead.append(pend.pop(0))
            if n == 15:
                while pend: lead.append(pend.pop(0))
        S.gap(m, lead)
    assert not rdq and not pend and not wr, (z, pend)
assert nextrd[0] == 32
stamp(5)
for nb in range(4):
    l = f"ds_write_b128 v{32+nb}, {blk(ACC, (12+nb)*4, 4)} offset:{3*16384}"
    while not S.ok(l): E("s_nop 0")
    E(l)
E("s_waitcnt lgkmcnt(0)")
E("s_barrier")
for g in range(4):
    for s_ in range(4): E(f"ds_read_b128 {v(64+s_*16+g*4,4)}, v31 offset:{s_*4096 + g*256}")
for g in range(4):
    E(f"s_waitcnt lgkmcnt({12 - 4*g})")
    for e in range(4*g, 4*g + 4): E(f"v_add_f32 v{64+e}, v{64+e}, v{80+e}"); E(f"v_add_f32 v{96+e}, v{96+e}, v{112+e}")
    for e in range(4*g, 4*g + 4): E(f"v_add_f32 v{64+e}, v{64+e}, v{96+e}")
    for e in range(4*g, 4*g + 4): E(f"v_fma_f32 v{64+e}, v{64+e}, v{vGf+e}, v{vU+e}")
    for e in range(2*g, 2*g + 2): E(f"v_cvt_pk_bf16_f32 v{8+e}, v{64+2*e}, v{65+2*e}")
    if g & 1: E(f"global_store_dwordx4 v{vXo}, {v(8+4*(g>>1),4)}, s[{pOut}:{pOut+1}] offset:{16*(g>>1)}{POL[opt['ost']]}")
stamp(1)
if opt["stamp"]: E("s_waitcnt vmcnt(0)")
stamp(1)
if opt["stamp"]:
    M(f"""
    s_lshl_b32 s3, s2, 2
    s_add_u32 s3, s3, s{sWave}
    s_lshl_b32 s3, s3, 7
    s_add_u32 s3, s3, {WS_T}
    v_mov_b32 v3, 0
    """)
    for i in range(32): E(f"v_mov_b32 v{4+i}, s{70+i}" if i < 2*nstamp[0] else f"v_mov_b32 v{4+i}, 0")
    for i in range(8): E(f"buffer_store_dwordx4 v[{4+4*i}:{7+4*i}], v3, s[{sW}:{sW+3}], s3 offen offset:{16*i}")
E("s_endpgm")
r.vVDl = [20, 21, 20, 21]
M(f"""
L_fallback:
s_cmp_lg_u32 s{sFb}, 0
s_cbranch_scc1 L_safe
s_mov_b32 s{sFb}, 1
s_mov_b32 s{sMask2}, 0
s_mov_b32 s{sMask4}, 0x80
s_lshl_b32 s3, s{sHead}, 19
s_add_u32 s{sK}, s{pK}, s3
s_addc_u32 s{sK+1}, s{pK+1}, 0
s_mov_b32 s{sK+2}, 0x80000
s_add_u32 s{sV}, s{pV}, s3
s_addc_u32 s{sV+1}, s{pV+1}, 0
s_mov_b32 s{sV+2}, 0x80000
s_mov_b32 s{r.sKoff}, 0
s_mov_b32 s{r.sVoff}, 0
s_mov_b32 s{r.sKinc}, 0x4000
s_mov_b32 s{r.sVinc}, 0x4000
s_mov_b32 s{r.sIt}, 0
v_lshlrev_b32 v3, 4, v0
v_lshrrev_b32 v60, 2, v2
v_and_b32 v61, 1, v1
v_lshl_add_u32 v60, v61, 2, v60
v_and_b32 v63, 3, v0
s_waitcnt vmcnt(0) lgkmcnt(0)
s_barrier
""")
for l in ADDR + VCOPY: E(l)
for i in range(16): E(f"v_mov_b32 v{r.vM+i}, 0")
for i in range(16): E(f"v_mov_b32 v{r.vL+i}, 0")
for l in ozero(r.vM): E(l)
for qb in range(4): E(f"v_mov_b32 v{60+qb}, 0xff800000")
E("L_fb_loop:")
plain(kdma(0))
M("s_waitcnt vmcnt(0)\ns_barrier")
for i in range(16): E(X.kread(0, i))
M("s_waitcnt lgkmcnt(0)\ns_barrier")
for g in range(64): E(X.qk(g))
E("s_nop 7")
for qb in range(4):
    for e in range(8): E(f"v_max3_f32 v{60+qb}, v{60+qb}, v{r.vS+16*qb+2*e}, v{r.vS+16*qb+2*e+1}")
M(f"""
s_cmp_lt_u32 s{r.sKoff}, 0x80000
s_cbranch_scc1 L_fb_loop
s_mov_b32 s{r.sKoff}, 0
""")
plain(kdma(0) + kdma(1) + vdma(0) + kdma(2) + vdma(1) + kdma(3) + vdma(2))
for sw in ("v_permlane32_swap_b32", "v_permlane16_swap_b32"):
    for qb in range(4): E(f"v_mov_b32 v{128+qb}, v{60+qb}")
    E("s_nop 1")
    for qb in range(4): E(f"{sw} v{128+qb}, v{60+qb}")
    E("s_nop 1")
    for qb in range(4): E(f"v_max_f32 v{60+qb}, v{60+qb}, v{128+qb}")
for qb in range(4):
    for e in range(4): E(f"v_sub_f32 v{r.vM+4*qb+e}, 0, v{60+qb}")
M("s_waitcnt vmcnt(0)\ns_barrier")
for i in range(16): E(X.kread(0, i))
M("s_waitcnt lgkmcnt(0)\ns_branch L_restart")
for l in cold: E(l)
A.label("L_end")
E("s_endpgm")
A.raw(f""".section .rodata,"a"
.p2align 6
.amdhsa_kernel {KN}_kernel
  .amdhsa_next_free_vgpr 512
  .amdhsa_next_free_sgpr 102
  .amdhsa_accum_offset 256
  .amdhsa_group_segment_fixed_size 0
  .amdhsa_kernarg_size 104
  .amdhsa_user_sgpr_count 2
  .amdhsa_user_sgpr_kernarg_segment_ptr 1
  .amdhsa_system_sgpr_workgroup_id_x 1
  .amdhsa_float_denorm_mode_32 3
.end_amdhsa_kernel""")
txt = A.text()
if opt["exper"]:
    import re as _re
    a_, b_ = txt.index("L_loop:"), txt.index("L_disp4:")
    body = txt[a_:b_].split("\n"); ex = opt["exper"]; out = []
    for l in body:
        t_ = l.strip()
        if ex == 2 and t_.startswith("v_cvt_pk"): continue
        if ex == 3 and t_.startswith("v_exp"): l = l.replace("v_exp_f32", "v_mov_b32")
        if ex == 4 and t_.startswith("ds_read_b128"): continue
        if ex == 5 and t_.startswith("ds_read_b64_tr"): continue
        if ex == 6 and t_.startswith("v_smfmac"): continue
        if ex == 7: l = _re.sub(r", v\[(44:47|48:51|52:55|56:59)\]$", ", 0", l)
        if ex == 8 and t_.startswith("buffer_load"): continue
        if ex == 10 and t_.startswith("buffer_load"): l = _re.sub(r"dwordx4 v\d+,", "dwordx4 v60,", l)
        if ex == 11 and t_.startswith("buffer_load"): l = _re.sub(r"dwordx4 v\d+,", "dwordx4 v60,", l).replace("s23 ", "0 ").replace("s24 ", "0 ").replace(" nt", "")
        if ex == 9 and t_.startswith("v_cvt_pk"):
            m_ = _re.match(r"v_cvt_pk_bf16_f32 (v\d+), (v\d+), (v\d+)", t_); l = f"    v_perm_b32 {m_[1]}, {m_[3]}, {m_[2]}, s64"
        out.append(l)
    txt = txt[:a_] + "\n".join(out) + txt[b_:]
    if ex >= 10: txt = txt.replace("L_restart:\n", "L_restart:\n    v_add_u32 v60, s25, v3\n")
    if ex == 9: txt = txt.replace("L_restart:\n", "L_restart:\n    s_mov_b32 s64, 0x07060302\n")
for ro in "FRS": txt = txt.replace("MASK2" + ro, hex(m2[ro])).replace("MASK4" + ro, hex(m4[ro]))
bad = check_hazards(txt)
if bad: print("hazards:", len(bad), file=sys.stderr)
open(sys.argv[1], "w").write(txt)
```

```python
from asmlib import *
class R: pass
def default_regs():
    r = R()
    r.vKA, r.vVA, r.vKD, r.vVD, r.vIdx = 4, 8, 16, 20, 22
    r.vOne, r.vL, r.vM = 24, 28, 44
    r.vQ, r.vS, r.vP = 64, 128, 192
    r.aO, r.aK, r.aV = 0, 128, 192
    r.sK, r.sV = 8, 12
    r.sKoff, r.sVoff, r.sM0K, r.sM0V, r.sIt = 23, 24, 25, 26, 27
    r.VBASE = 0x10000
    r.sPerm = 43
    r.vVDl = [20, 21, 20, 21]
    r.sKinc, r.sVinc = 30, 31
    return r
MF = "v_mfma_f32_16x16x32_bf16"
class Attn:
    def __init__(self, A, r, opt):
        self.A, self.r, self.opt = A, r, opt
    def kread(self, T, i):
        r = self.r; kb, st = i >> 2, i & 3
        return f"ds_read_b128 {a(r.aK+4*i,4)}, v{r.vKA+st} offset:{(T&3)*16384 + kb*4096}"
    def vread(self, T, i):
        r = self.r; db, ks, half = i >> 2, (i >> 1) & 1, i & 1
        return f"ds_read_b64_tr_b16 {a(r.aV+4*(ks*8+db)+2*half,2)}, v{r.vVA+db} offset:{((T+1)&3)*16384 + (ks*32+half*16)*256}"
    def qk(self, i):
        r = self.r; qb, kb, st = i >> 4, (i >> 2) & 3, i & 3
        if self.opt.get("qkord", 0) == 1:
            j = i & 7; st = j >> 1; kb = (kb & 2) | (j & 1)
            first = st == 0
            if (i >> 3) & 1: st = 3 - st
            D = v(r.vS + qb*16 + kb*4, 4); C = v(r.vM + qb*4, 4) if first else D
            return f"{MF} {D}, {a(r.aK+4*(kb*4+st),4)}, {v(r.vQ+qb*16+st*4,4)}, {C}"
        first = st == 0
        if self.opt.get("snake", 1) and kb & 1: st = 3 - st
        D = v(r.vS + qb*16 + kb*4, 4)
        C = v(r.vM + qb*4, 4) if first else D
        return f"{MF} {D}, {a(r.aK+4*(kb*4+st),4)}, {v(r.vQ+qb*16+st*4,4)}, {C}"
    def pv(self, T, i):
        r = self.r; qb, j = divmod(i, 17)
        P = r.vP + (T & 1)*32 + qb*8
        if j == 16:
            if self.opt.get("smf", 1) == 0: return f"{MF} {v(r.vL+qb*4,4)}, {v(r.vOne,4)}, {v(P,4)}, {v(r.vL+qb*4,4)}"
            return f"v_smfmac_f32_16x16x64_bf16 {v(r.vL+qb*4,4)}, {v(r.vOne,4)}, {v(P,8)}, v{r.vIdx}"
        if self.opt.get("pvchain", 1):
            db, ks = j >> 1, j & 1
            if self.opt.get("snake", 1) and db & 1: ks ^= 1
        else:
            db, ks = j & 7, j >> 3
        D = a(r.aO + qb*32 + db*4, 4)
        return f"{MF} {D}, {a(r.aV+4*(ks*8+db),4)}, {v(P+ks*4,4)}, {D}"
    def exp(self, k): return f"v_exp_f32 v{self.r.vS+k}, v{self.r.vS+k}"
    def cvt(self, T, k):
        r = self.r
        if self.opt.get("perm", 0): return f"v_perm_b32 v{r.vP+(T&1)*32+(k>>1)}, v{r.vS+k}, v{r.vS+k-1}, s{r.sPerm}"
        return f"v_cvt_pk_bf16_f32 v{r.vP+(T&1)*32+(k>>1)}, v{r.vS+k-1}, v{r.vS+k}"
    def dma(self, slot):
        r = self.r; nt = ["", " nt", " sc1", " sc0", " sc1 nt", " sc0 sc1", " sc0 sc1 nt", " sc0 nt"][self.opt.get("nt", 0)]
        L = [f"s_add_u32 m0, s{r.sM0K}, {slot*16384}"]
        L += [f"buffer_load_dwordx4 v{r.vKD+p}, s[{r.sK}:{r.sK+3}], s{r.sKoff} offen offset:{p*1024}{nt} lds" for p in range(4)]
        L += [f"s_add_u32 m0, s{r.sM0V}, {slot*16384}"]
        L += [f"buffer_load_dwordx4 v{r.vVDl[p]}, s[{r.sV}:{r.sV+3}], s{r.sVoff} offen offset:{p*1024}{nt} lds" for p in range(4)]
        return L
    def sched(self):
        return list(range(8, 64, 2)) + [64 + 17*q + j for q in range(4) for j in range(0, 16, 2)] + [132, 134, 136, 138]
    def fillers(self, T, NT):
        eg = self.sched()
        F = {g: [] for g in range(132)}
        isexp = set(x % 132 for x in eg)
        if self.opt.get("sm", 1):
            for TT, off in ((T, 0), (T - 1, 132)):
                if not (0 <= TT < NT): continue
                for k in range(64):
                    g = eg[k] - off
                    if 0 <= g < 132: F[g].append(self.exp(k))
                    if k & 1:
                        g = eg[k] + (3 if k == 27 else 1) - off
                        if 0 <= g < 132: F[g].append(self.cvt(TT, k))
        self.isexp = isexp
        return F
```

```python
import sys, struct
from attn16 import *
KN = "recurrent_scan__mha_block_cached__moe_arch_mod__prompt"
opt = dict(exf=1, exb=0, ext=0, zb=16, zl=25, zc=30, rdpre=13, early=1, rotq=0, rotx=0, bnd=7, tg0=1, dhold=0, shift=16, perm=1, exper=0, kv6=2, wqt=0, wqlo=2, wqpos=0, otch=0, nostore=0, flip=0, xcc=0, map8=0, onerow=0, lnfirst=0, qrot=0, osp=0, fx=0, holdrel=0, bgap=63, bsplit=1, bar=1, nodma=0, pad=0, holdp=0, holdt=0, forcefb=0, ntw=0, ost=0, tlb=1, varb=1, TF=18, TP=22, moeT=99, moe=1, pollat=6, wtouch=1, otouch=0, epace=40, npost=8, npre=24, look=5, zd=24, dlag=5, rot=0, s1st=5, cyc=0, stamp=0, snake=1, pvchain=1, G0=8, nt=1, ntq=0, sm=1, drate=4, pre=2)
opt_s = dict(tg="[]", oT="(20,26)", touch="{}", hs="(8,10,12,14,16,24,27)", wT="(27,28)")
for x in sys.argv[2:]:
    k, val = x.split("=")
    if k in opt_s: opt_s[k] = val
    else: opt[k] = int(val)
A = Asm(); r = default_regs(); X = Attn(A, r, opt); S = Stream(A); E = S.emit; M = S.many
POL = ["", " nt", " sc1"]
def fbits(x): return hex(struct.unpack("<I", struct.pack("<f", x))[0])
WS_O = 0
WS_STAT = 16 << 20
WS_KEY = WS_STAT + 0x4000
WS_FLAG = WS_STAT + 0x10000
WS_SEL = WS_STAT + 0x8000
WS_FC = WS_STAT + 0x9000
WS_UPD = WS_STAT + 0xC000
WS_XN = 18 << 20
WS_PART = 20 << 20
WS_EX = 24 << 20
WS_T = 64 << 20
sX, sK, sV, sW, sWq = 4, 8, 12, 16, 28
sWave, sHead, sQb = 20, 21, 22
sXoff, sWoff, sM0X, sM0W = 34, 35, 62, 63
pX, pK, pV, pWq, pWo, pWr, pWg, pWu, pWd, pOut, pDbg, pWs = 36, 38, 40, 42, 44, 48, 50, 52, 54, 56, 58, 60
sKey0, sRow0, sNonce = 64, 66, 46
sSpin = 33
def spin(label, ok): return [f"s_cmp_eq_u32 s{sSpin}, 0", f"s_cbranch_scc1 {ok}", f"s_sub_u32 s{sSpin}, s{sSpin}, 1"]
cold = []
nstamp = [0]
CLK = "s_memtime" if opt["cyc"] else "s_memrealtime"
npoint = [0]
def hold_at():
    npoint[0] += 1
    if opt["holdp"] == npoint[0]:
        M(f"""
        L_hold:
        s_memrealtime s[98:99]
        s_waitcnt lgkmcnt(0)
        s_sub_u32 s98, s98, s{46 if opt['holdrel'] else 100}
        s_cmp_lt_u32 s98, {opt['holdt']*100}
        s_cbranch_scc1 L_hold
        """)
def stamp(lvl=1, wait=True):
    if lvl & 1: hold_at()
    if opt["stamp"] & lvl and nstamp[0] < 16:
        i = nstamp[0]; nstamp[0] += 1
        E(f"{CLK} s[{70+2*i}:{71+2*i}]")
        if wait: E("s_waitcnt lgkmcnt(0)")

A.raw("; @launch grid=(256,1,1) block=(256,1,1) lds=163840")
A.raw('.amdgcn_target "amdgcn-amd-amdhsa--gfx950"')
A.raw(".text"); A.raw(f".globl {KN}_kernel"); A.raw(".p2align 8"); A.raw(f".type {KN}_kernel,@function")
A.label(f"{KN}_kernel")
M(f"""
s_cmp_ge_u32 s2, 256
s_cbranch_scc1 L_end
s_load_dwordx16 s[36:51], s[0:1], 0
s_load_dwordx8 s[52:59], s[0:1], 64
s_load_dwordx2 s[60:61], s[0:1], 96
s_memrealtime s[68:69]
""")
if opt["stamp"]:
    E(f"{CLK} s[70:71]"); nstamp[0] = 1
if opt["holdp"]: E("s_memrealtime s[100:101]")
M(f"""
s_getpc_b64 s[32:33]
v_lshrrev_b32 v1, 6, v0
v_and_b32 v0, 63, v0
s_and_b32 s3, s2, 0xf8
s_lshl_b32 s3, s3, 1
v_lshl_add_u32 v4, v1, 2, v0
v_add_lshl_u32 v4, v4, s3, 7
v_min_u32 v4, L_end-{KN}_kernel-128, v4
s_mov_b64 exec, 15
global_load_dword v23, v4, s[32:33]
s_mov_b64 exec, -1
v_readfirstlane_b32 s{sWave}, v1
s_and_b32 s3, s2, {6 if opt['map8'] else 7}
s_lshl_b32 s3, s3, 2
s_bfe_u32 s{sHead}, s2, {'0x30003' if opt['map8'] else '0x20003'}
s_or_b32 s{sHead}, s{sHead}, s3
s_lshr_b32 s{sQb}, s2, {6 if opt['map8'] else 5}
s_and_b32 s3, s2, {1 if opt['map8'] else 0}
s_lshl_b32 s3, s3, 2
s_or_b32 s{sQb}, s{sQb}, s3
v_lshrrev_b32 v1, 4, v0
v_and_b32 v2, 15, v0
""")
vXD, vWD, vXA, vWA, vCS, vKM = 76, 84, 88, 92, 100, 108
vSX, vG = r.vL, r.vM
M(f"""
v_lshrrev_b32 v4, 3, v0
s_lshl_b32 s3, s{sWave}, 6
v_add_u32 v4, s3, v4
v_lshlrev_b32 v4, 10, v4
v_and_b32 v5, 7, v0
v_xor_b32 v6, v5, v1
v_xor_b32 v7, 4, v6
v_lshl_add_u32 v6, v6, 4, v4
v_lshl_add_u32 v7, v7, 4, v4
""")
for p in range(8): E(f"v_add_u32 v{vXD+p}, {p*8192 - (p&3)*1024}, v{6+(p&1)}")
M(f"""
s_lshl_b32 s3, s{sWave}, 4
v_add_u32 v4, s3, v1
v_lshlrev_b32 v4, 13, v4
v_lshlrev_b32 v5, 1, v1
v_xor_b32 v6, v5, v2
v_xor_b32 v7, 8, v6
v_lshl_add_u32 v6, v6, 4, v4
v_lshl_add_u32 v7, v7, 4, v4
""")
for p in range(4): E(f"v_add_u32 v{vWD+p}, {p*4*8192 - p*1024}, v{6+(p>>1)}")
M(f"""
s_lshl_b32 s{sM0X}, s{sWave}, 13
s_lshl_b32 s{r.sM0K}, s{sWave}, 12
s_add_u32 s{sM0W}, s{r.sM0K}, 0xC000
s_and_b32 s3, s{sQb}, {opt['rotq']}
s_and_b32 s67, s2, {opt['rotx']}
s_add_u32 s3, s3, s67
s_and_b32 s3, s3, 7
s_lshl_b32 s{sXoff}, s3, 7
s_lshl_b32 s{sWoff}, s3, 19
s_mov_b32 s{sX+2}, 0x40000
s_mov_b32 s{sX+3}, 0x20000
s_mov_b32 s{sWq+3}, 0x20000
s_lshl_b32 s3, s{sQb}, 18
s_lshl_b32 s67, s{sHead}, 8
s_sub_u32 s{sWq+2}, 0x400000, s67
s_waitcnt lgkmcnt(0)
s_add_u32 s{sX}, s{pX}, s3
s_addc_u32 s{sX+1}, s{pX+1}, 0
s_add_u32 s{sWq}, s{pWq}, s67
s_addc_u32 s{sWq+1}, s{pWq+1}, 0
s_or_b32 s3, s2, s{sWave}
s_cbranch_scc1 L_nononce
""")
A("s_getreg_b32 s3, hwreg(HW_REG_XCC_ID, 0, 1)"); A("s_lshl_b32 s68, s68, 2"); A("s_lshl_b32 s3, s3, 1"); A("s_or_b32 s68, s68, s3")
A("s_or_b32 s68, s68, 1"); A("v_mov_b32 v4, 0"); A("v_mov_b32 v5, s68"); A(f"global_store_dword v4, v5, s[{pDbg}:{pDbg+1}] sc1")
E("L_nononce:")
if opt["xcc"]:
    M(f"""s_cmp_ge_u32 s2, 8
    s_cbranch_scc1 L_noxcc
    s_getreg_b32 s3, hwreg(HW_REG_XCC_ID)
    s_add_u32 s3, s3, 100
    v_mov_b32 v5, s3
    s_lshl_b32 s3, s2, 2
    v_mov_b32 v4, s3""")
    A(f"global_store_dword v4, v5, s[{pDbg}:{pDbg+1}] offset:4")
    E("L_noxcc:")
stamp(2)
XSLOT = [0x18000, 0x20000, 0x4000]
def xdma(st):
    L = []
    for p in range(8):
        if p & 3 == 0: L.append(f"s_add_u32 m0, s{sM0X}, {XSLOT[st%3] + (p>>2)*4096}")
        L.append(f"buffer_load_dwordx4 v{vXD+p}, s[{sX}:{sX+3}], s{sXoff} offen offset:{(p&3)*1024}{POL[opt['ntq']]} lds ; x{st}")
    L.append(f"s_add_u32 s{sXoff}, s{sXoff}, 128")
    if opt["rotq"] or opt["rotx"]: L.append(f"s_and_b32 s{sXoff}, s{sXoff}, 0x3ff")
    return L
def wdma(st):
    L = [f"s_add_u32 m0, s{sM0W}, {(st%3)*16384}"]
    for p in range(4):
        L.append(f"buffer_load_dwordx4 v{vWD+p}, s[{sWq}:{sWq+3}], s{sWoff} offen offset:{p*1024}{POL[opt['ntw']]} lds ; w{st}")
    L.append(f"s_add_u32 s{sWoff}, s{sWoff}, 0x80000")
    if opt["rotq"] or opt["rotx"]: L.append(f"s_and_b32 s{sWoff}, s{sWoff}, 0x3fffff")
    return L
def tagged(L, t): return [l + " ; " + t if l.startswith("buffer") else l for l in L]
def kdma(T): return tagged(X.dma(T & 3)[:5], f"k{T}") + [f"s_add_u32 s{r.sKoff}, s{r.sKoff}, 0x4000"]
def vdma(T): return tagged(X.dma((T + 1) & 3)[5:], f"v{T}") + [f"s_add_u32 s{r.sVoff}, s{r.sVoff}, 0x4000"]
def plain(L):
    for l in L:
        E(l)
        if l.startswith("s_add_u32 m0"): E("s_nop 0")
Q = S.q
vCA = 124
def xors(dst, n, step): return [f"v_xor_b32 v{dst+k}, {k*step}, v{dst}" for k in range(1, n)]
PRE = f"""v_lshlrev_b32 v3, 4, v0
s_lshl_b32 s3, s{sHead}, 2
s_add_u32 s3, s3, s{sWave}
s_lshl_b32 s{sRow0}, s3, 11
v_lshrrev_b32 v4, 1, v2
v_xor_b32 v4, v4, v1
v_lshl_add_u32 v5, v2, 7, s{sM0X}
v_lshl_add_u32 v6, v4, 4, v5
v_add_u32 v{vXA}, {XSLOT[0]}, v6
v_add_u32 v{vXA+2}, {XSLOT[2]}, v6
v_xor_b32 v{vXA+1}, 64, v{vXA}
v_xor_b32 v{vXA+3}, 64, v{vXA+2}
v_lshrrev_b32 v4, 2, v2
v_and_b32 v63, 3, v0
v_and_b32 v6, 1, v1
v_lshl_add_u32 v60, v6, 2, v4
v_lshl_add_u32 v5, v1, 3, v4
v_lshlrev_b32 v5, 8, v5
v_lshl_add_u32 v5, v63, 3, v5
v_lshl_add_u32 v5, v60, 5, v5
s_lshl_b32 s3, s{sWave}, 6
s_add_u32 s3, s3, 0xC000
v_xor_b32 v{vWA}, s3, v5""".split("\n") + xors(vWA, 8, 32)
PRE += [f"v_mov_b32 v{vCS+i}, 0" for i in range(8)]
PRE += f"""v_mov_b32 v62, 0x3f803f80
v_cmp_gt_u32 vcc, 2, v63
v_and_b32 v4, 1, v0
v_mov_b32 v5, 0x44444444
v_mov_b32 v6, 0xeeeeeeee
v_cndmask_b32 v{r.vOne}, 0, v62, vcc
v_cndmask_b32 v{r.vOne+1}, 0, v62, vcc
v_cndmask_b32 v{r.vOne+2}, 0, v62, vcc
v_cndmask_b32 v{r.vOne+3}, 0, v62, vcc
v_cmp_eq_u32 vcc, 1, v4
s_lshl_b32 s1, s{sQb}, 2
s_add_u32 s1, s1, s{sWave}
v_cndmask_b32 v{r.vIdx}, v5, v6, vcc
s_lshl_b32 s1, s1, 9
s_add_u32 s1, s1, {WS_STAT}""".split("\n")
def ozero(z): return [f"v_mfma_f32_32x32x16_bf16 {a(r.aO+16*i,16)}, {v(z,4)}, {v(z,4)}, 0" for i in range(8)]
ADDR = f"""v_lshl_add_u32 v61, v1, 8, s{r.sM0K}
v_xor_b32 v62, v1, v2
v_lshl_add_u32 v{r.vKD}, v62, 4, v61""".split("\n") + xors(r.vKD, 4, 64) + f"""v_lshlrev_b32 v62, 1, v1
v_xor_b32 v62, v62, v2
v_lshl_add_u32 v{r.vVD}, v62, 4, v61
v_xor_b32 v{r.vVD+1}, 128, v{r.vVD}
v_lshrrev_b32 v61, 2, v0
v_lshlrev_b32 v61, 8, v61
v_lshl_add_u32 v61, v63, 3, v61
v_lshl_add_u32 v61, v60, 5, v61
v_add_u32 v{r.vVA}, {r.VBASE}, v61""".split("\n") + xors(r.vVA, 8, 32) + f"""v_lshrrev_b32 v61, 1, v1
v_and_b32 v62, 1, v1
v_lshl_add_u32 v62, v62, 1, v61
v_lshl_add_u32 v62, s{sWave}, 2, v62
v_xor_b32 v61, v62, v2
v_lshlrev_b32 v61, 4, v61
v_lshl_add_u32 v{r.vKA}, v2, 8, v61""".split("\n") + xors(r.vKA, 4, 64)
VCOPY = ["v_mov_b32 v1, v20", "v_mov_b32 v2, v21"]
PRE2 = ADDR + f"""v_xor_b32 v61, v62, v63
v_lshlrev_b32 v61, 4, v61
v_lshl_add_u32 v{vKM}, v63, 8, v61""".split("\n") + xors(vKM, 4, 64)
PRE2 += [f"s_add_u32 s67, s{sM0X}, {XSLOT[1]}", "v_lshl_add_u32 v62, v2, 2, s67", "v_lshlrev_b32 v61, 3, v2", f"v_lshl_add_u32 v{vCA}, v1, 4, s67"] + xors(vCA, 4, 8192)
PRE2 += VCOPY
PRE2 += [f"s_lshl_b32 s3, s{sHead}, 19", [f"s_add_u32 s{sK}, s{pK}, s3", f"s_addc_u32 s{sK+1}, s{pK+1}, 0"], [f"s_add_u32 s{sV}, s{pV}, s3", f"s_addc_u32 s{sV+1}, s{pV+1}, 0"]]
PRE2 += f"""s_mov_b32 s{sK+2}, 0x80000
s_mov_b32 s{sK+3}, 0x20000
s_mov_b32 s{sV+2}, 0x80000
s_mov_b32 s{sV+3}, 0x20000
s_mov_b32 s{sW}, s{pWs}
s_mov_b32 s{sW+1}, s{pWs+1}
s_mov_b32 s{sW+2}, 0x10000000
s_mov_b32 s{sW+3}, 0x20000
s_mov_b32 s{r.sKoff}, 0
s_mov_b32 s{r.sVoff}, 0
s_mov_b32 s{sSpin}, 0x100000
s_add_u32 s{r.sM0V}, s{r.sM0K}, {r.VBASE}""".split("\n")
for n, m in enumerate(ozero(vCS + 4)): PRE2.insert(8*n + 2, m)
def issue(L, F):
    F = list(F); per = -(-len(F) // sum("lds" in l for l in L))
    for l in L:
        E(l)
        if l.startswith("s_add_u32 m0"): E("s_nop 0")
        if "lds" in l:
            for f in F[:per]:
                for x_ in (f if isinstance(f, list) else [f]): E(x_)
            del F[:per]
issue(wdma(0) + xdma(0), PRE)
stamp(2, False)
LN = f"""buffer_load_dwordx4 v[64:67], v3, s[{sX}:{sX+3}], s{sRow0} offen ; ln
buffer_load_dwordx4 v[68:71], v3, s[{sX}:{sX+3}], s{sRow0} offen offset:1024 ; ln
global_load_dwordx4 v[72:75], v3, s[{pWr}:{pWr+1}] ; ln""".split("\n")
L1 = []
for st in range(1, opt["pre"]): L1 += wdma(st) + xdma(st)
issue(L1 + LN, PRE2)
M(f"""
v_mov_b32 v55, 0
s_lshl_b32 s3, s{sQb}, 8
s_lshr_b32 s{sRow0}, s{sRow0}, 10
s_add_u32 s{sRow0}, s{sRow0}, s3
""")
stamp(2, False)
aXN = 248
def unpack(dst, src, n=4):
    L = []
    for k in range(n):
        L += [f"v_lshlrev_b32 v{dst+2*k}, 16, v{src+k}", f"v_and_b32 v{dst+2*k+1}, 0xffff0000, v{src+k}"]
    return L
def wave_sum(reg, sdst):
    return [f"v_add_f32_dpp v{reg}, v{reg}, v{reg} {m} bank_mask:0xf" for m in
            ("quad_perm:[1,0,3,2] row_mask:0xf", "quad_perm:[2,3,0,1] row_mask:0xf", "row_half_mirror row_mask:0xf",
             "row_mirror row_mask:0xf", "row_bcast:15 row_mask:0xa", "row_bcast:31 row_mask:0xc")] + [f"v_readlane_b32 s{sdst}, v{reg}, 63"]
def rbf(x): return [f"v_cvt_pk_bf16_f32 v{x}, v{x}, v{x}", f"v_lshlrev_b32 v{x}, 16, v{x}"]
vE, vD, vWr, vO = 32, 40, 112, 120
Q.append(lambda: f"s_waitcnt vmcnt({S.vmn('ln')})")
NONCE = [lambda: f"s_waitcnt vmcnt({S.vmn('nonce')})", f"v_readfirstlane_b32 s{sNonce}, v23", "s_nop 0", f"s_cmp_eq_u32 s{sNonce}, 0",
         "s_cbranch_scc1 L_nonce_retry", "L_nonce_ok:"]
cold += ["L_nonce_retry:"] + spin("", "L_nonce_ok") + [f"global_load_dword v23, v55, s[{pDbg}:{pDbg+1}] sc1", "s_waitcnt vmcnt(0)",
         f"v_readfirstlane_b32 s{sNonce}, v23", "s_nop 0", f"s_cmp_eq_u32 s{sNonce}, 0", "s_cbranch_scc1 L_nonce_retry", "s_branch L_nonce_ok"]
Q += ["v_mov_b32 v50, 0x3b000000"]
for k in range(2):
    Q += unpack(vE, 64 + 4*k)
    Q += [f"v_add_f32 v{vD+e}, v{vE+2*e}, v{vE+2*e+1}" for e in range(4)]
    Q += [f"v_add_f32 v{vD}, v{vD}, v{vD+1}", f"v_add_f32 v{vD+2}, v{vD+2}, v{vD+3}", f"v_add_f32 v48, v{vD}, v{vD+2}"]
    Q += wave_sum(48, 68) + ["v_mul_f32 v48, s68, v50"]
    Q += [f"v_sub_f32 v{vD+e}, v{vE+e}, v48" for e in range(8)]
    Q += [f"v_mul_f32 v49, v{vD}, v{vD}"] + [f"v_fmac_f32 v49, v{vD+e}, v{vD+e}" for e in range(1, 8)]
    Q += wave_sum(49, 68)
    Q += ["v_mul_f32 v49, s68, v50"] + rbf(49) + ["v_add_f32 v49, 0x3727c5ac, v49"] + rbf(49) + ["v_sqrt_f32 v49, v49"]
    Q += [f"v_cvt_pk_bf16_f32 v{vO+2*k}, v48, v49"]
Q += [NONCE, f"v_mov_b32 v{vO+1}, s{sNonce}", f"v_mov_b32 v{vO+3}, s{sNonce}"]
Q += [f"s_lshl_b32 s68, s{sRow0}, 3", f"s_add_u32 s65, s68, {WS_KEY}", f"s_add_u32 s68, s68, {WS_STAT}"]
Q.append(["s_mov_b64 exec, 1", f"buffer_store_dwordx4 v[{vO}:{vO+3}], off, s[{sW}:{sW+3}], s68 sc1 ; s1", "s_mov_b64 exec, -1"])
Q += unpack(vWr, 72)
for k in range(2):
    Q += unpack(vE, 64 + 4*k) + [f"v_lshlrev_b32 v48, 16, v{vO+2*k}", f"v_and_b32 v49, 0xffff0000, v{vO+2*k}", "v_rcp_f32 v49, v49"]
    Q += [f"v_sub_f32 v{vE+e}, v{vE+e}, v48" for e in range(8)]
    Q += [f"v_cvt_pk_bf16_f32 v{vD+e}, v{vE+2*e}, v{vE+2*e+1}" for e in range(4)]
    Q += unpack(vE, vD)
    Q += [f"v_mul_f32 v{vE+e}, v{vE+e}, v49" for e in range(8)]
    Q += [f"v_cvt_pk_bf16_f32 v{64+4*k+e}, v{vE+2*e}, v{vE+2*e+1}" for e in range(4)]
    Q += unpack(vE, 64 + 4*k)
    Q += [f"v_mul_f32 v49, v{vE}, v{vWr}"] + [f"v_fmac_f32 v49, v{vE+e}, v{vWr+e}" for e in range(1, 8)]
    Q += wave_sum(49, 68) + [f"s_sub_u32 s67, {2047-k}, s{sRow0}", "v_mov_b32 v49, s68", "v_cvt_pk_bf16_f32 v49, v49, v49",
          "v_ashrrev_i32 v48, 31, v49", "v_or_b32 v48, 0x80000000, v48", "v_xor_b32 v49, v48, v49", "v_and_b32 v49, 0xffff0000, v49",
          f"v_or_b32 v{72+k}, s67, v49", f"v_mov_b32 v{74+k}, s{sNonce}"]
Q += [f"s_lshl_b32 s64, s{sRow0}, 10", f"s_add_u32 s64, s64, {WS_XN}"]
XNST = [f"buffer_store_dwordx4 v[{64+4*k}:{67+4*k}], v3, s[{sW}:{sW+3}], s64 offen offset:{k*1024} sc1 ; xn" for k in range(2)]
KEYST = ["s_mov_b64 exec, 1", f"buffer_store_dwordx4 v[60:63], off, s[{sW}:{sW+3}], s65 sc1 ; s1", "s_mov_b64 exec, -1"]
NFILL = len(Q); S1 = list(Q); del Q[:]
r.sKinc, r.sVinc = 34, 35
sMask2, sMask4 = 62, 63
sQt, sNt = 47, 32
sChunk, sSlow = 69, 66
sFb = 0
SET = f"""s_mov_b32 s{r.sKinc}, 0x4000
s_mov_b32 s{r.sVinc}, 0x4000
s_mov_b32 s{r.sIt}, 0
s_and_b32 s3, s2, 3
s_lshl_b32 s3, s3, 2
s_lshr_b32 s{sQt}, s2, 6
s_add_u32 s{sQt}, s{sQt}, s3
s_lshl_b32 s{sQt}, s{sQt}, 1
s_bfe_u32 s67, s2, 0x10002
s_add_u32 s{sQt}, s{sQt}, s67
s_bfe_u32 s{sNt}, s2, 0x30003
s_andn2_b32 s67, 4, s2
s_add_u32 s67, s67, s{sWave}
s_lshl_b32 s67, s67, 19
s_lshl_b32 s3, s{sNt}, 7
s_add_u32 s3, s3, s67
s_sub_u32 s{sWq+2}, 0x400000, s3""".split("\n")
SET.append([f"s_add_u32 s{sWq}, s{pWo}, s3", f"s_addc_u32 s{sWq+1}, s{pWo+1}, 0"])
if opt["moe"]:
    SET += f"""s_bfe_u32 s3, s2, 0x20001
s_mul_i32 s68, s3, 28
s_lshr_b32 s67, s2, 3
s_add_u32 s{sChunk}, s68, s67
s_lshr_b32 s3, s{sNonce}, 1
s_xor_b32 s3, s3, s2
s_xor_b32 s{sSlow}, s3, {opt['flip']}""".split("\n")
    SET += [f"s_mov_b32 s{sMask2}, MASK2F", f"s_mov_b32 s{sMask4}, MASK4F"]
    SET.append(["s_cmp_ge_u32 s67, 28", f"s_cselect_b32 s{sChunk}, -1, s{sChunk}"])
    SET.append(["s_cmp_ge_u32 s67, 28", f"s_cselect_b32 s{sMask2}, MASK2R, s{sMask2}", f"s_cselect_b32 s{sMask4}, MASK4R, s{sMask4}"])
    SET.append([f"s_and_b32 s{sSlow}, s{sSlow}, 1", f"s_cselect_b32 s{sMask2}, MASK2S, s{sMask2}", f"s_cselect_b32 s{sMask4}, MASK4S, s{sMask4}"])
    SET += f"""s_lshl_b32 s68, s68, 5
s_lshl_b32 s67, s67, 1
s_and_b32 s3, s{sWave}, 1
s_add_u32 s67, s67, s3
s_mul_i32 s67, s67, {8*3584}
s_add_u32 s68, s68, s67
v_lshrrev_b32 v112, 3, v0
v_mul_u32_u24 v112, 3584, v112
v_and_b32 v113, 7, v0
v_min_u32 v113, 6, v113
v_lshl_add_u32 v112, v113, 7, v112
v_add_u32 v23, s68, v112""".split("\n")
    SET.append([f"s_cmp_lt_u32 s{sWave}, 2", f"s_cselect_b64 s[6:7], s[{pWg}:{pWg+1}], s[{pWu}:{pWu+1}]"])
else: SET += [f"s_mov_b32 s{sMask2}, MASK2F", f"s_mov_b32 s{sMask4}, MASK4F"]
SET += [f"s_mov_b32 s{sFb}, 0"]
aXF, aWF = 128, 192
SMF = "v_smfmac_f32_16x16x64_bf16"
def acc(j, qb): return 128 + (3 - (j >> 1))*32 + qb*8 + (j & 1)*4
def xread(st, n):
    qb, ks = n >> 1, n & 1; slot = st % 3
    base = vXA + (2 if slot == 2 else 0) + ks
    off = (XSLOT[slot] - XSLOT[0] if slot != 2 else 0) + qb*2048
    return f"ds_read_b128 {a(aXF+(st&1)*32+n*4,4)}, v{base} offset:{off}"
def wread(st, j, n):
    ks, half = n >> 1, n & 1
    return f"ds_read_b64_tr_b16 {a(aWF+(j&3)*8+ks*4+half*2,2)}, v{vWA+j} offset:{(st%3)*16384 + ks*8192 + half*1024}"
def qmf(st, j):
    L = []
    cs = [f"{SMF} {v(vCS+4*j,4)}, {v(r.vOne,4)}, {a(aWF+(j&3)*8,8)}, v{r.vIdx}"] if j < 2 else []
    if not opt["bnd"] & 4: L += cs; cs = []
    for qb in range(4):
        for t in range(2):
            ks = t ^ (qb & 1)
            D = v(acc(j, qb), 4); C = "0" if (st == 0 and t == 0) else D
            L.append(f"{MF} {D}, {a(aWF+(j&3)*8+ks*4,4)}, {a(aXF+(st&1)*32+(qb*2+ks)*4,4)}, {C}")
    return L + cs
E(f"s_waitcnt vmcnt({S.vmn('x0', 'w0')}) lgkmcnt(0)")
E("s_barrier")
stamp(3)
for n in range(8): E(xread(0, n))
for j in range(2):
    for n in range(4): E(wread(0, j, n))
pend = []
for st in range(opt["pre"], 3): pend += wdma(st) + xdma(st)
def vmn(*tags):
    assert not any(l.split(";")[-1].strip() in tags for l in pend), (tags, pend)
    return S.vmn(*tags)
def one_dma():
    while pend:
        l = pend.pop(0); E(l)
        if l.startswith("s_add_u32 m0"): E("s_nop 0")
        if l.startswith("buffer"): break
statld = [f"buffer_load_dwordx2 v[{vG+4*qb}:{vG+4*qb+1}], v61, s[{sW}:{sW+3}], s1 offen offset:{qb*128} sc1 ; st" for qb in range(4)]
since = [99]
def dma_slot(j, n, hasds):
    if pend and pend[0].startswith("s_"): return [pend.pop(0)]
    slots = {0: (1, 5, 7), 1: (1, 5, 7), 5: (4, 6), 6: (), 7: ()}.get(j, (1, 5))
    if opt["bnd"] & 4: slots = {0: (1, 5, 7), 1: (1, 5, 7), 4: (1, 3, 5), 5: (5,), 6: (), 7: ()}.get(j, (1, 5))
    if opt["drate"] == 3: slots = {0: (1, 3, 5, 7), 1: (1, 5, 7), 5: (4, 6), 6: (), 7: ()}.get(j, (1, 3, 5))
    if pend and not hasds and (n in slots or "lds" not in pend[0]): return [pend.pop(0)]
    return []
vC = r.vL
def csread(s_): return [f"ds_read_b128 {v(vC+(s_&1)*8+4*jj,4)}, v{vCA+s_} offset:{jj*64}" for jj in range(2)]
CL2E = 1.4426950408889634 / (128 ** 0.5)
E("s_waitcnt lgkmcnt(4)")
for st in range(8):
    if st == 6:
        assert not any(f"s{sXoff}" in l or f"s{sWoff}" in l or f"s{sM0X}" in l or f"s{sM0W}" in l for l in pend)
        Q += SET
    if st == 1: pend.insert(0, f"global_load_dword v23, v55, s[{pDbg}:{pDbg+1}] sc1 ; nonce")
    if st + 3 < 8: pend += xdma(st + 3)
    if st == 5:
        pend += kdma(0)

    for j in range(8):
        L = qmf(st, j)
        if st*8 + j == opt["s1st"]: Q += S1
        ds = [None] * len(L); last = []
        if j < 6:
            o = 0
            for n in range(4): ds[o + (n if j == 5 else 2*n)] = wread(st, j + 2, n)
            if j < 5: last = ["s_waitcnt lgkmcnt(4)"]
            elif st < 7:
                tags = [f"x{st+1}", f"w{st+1}"]
                last = [lambda tags=tags: f"s_waitcnt vmcnt({vmn(*tags)}) lgkmcnt(0)", "s_barrier"]
            else: last = [lambda: f"s_waitcnt vmcnt({vmn('k0', 'st')}) lgkmcnt(0)", "s_barrier"]
        elif st < 7:
            seq = [xread(st + 1, n) for n in range(4)] + [wread(st + 1, 0, n) for n in range(4)] if j == 6 else \
                  [xread(st + 1, 4 + n) for n in range(4)] + [wread(st + 1, 1, n) for n in range(4)]
            ds = seq
            if j == 7: last = ["s_waitcnt lgkmcnt(4)"]
        else:
            seq = csread(0) + csread(1) + [f"ds_read_b128 {a(aWF+4*s_,4)}, v{vKM+s_}" for s_ in range(4)] if j == 6 else \
                  [X.kread(0, i) for i in range(8)]
            ds = seq
        if st == 7 and j == 2:
            Q += [f"v_add_f32 v{vCS}, v{vCS}, v{vCS+1}", f"v_add_f32 v{vCS+4}, v{vCS+4}, v{vCS+5}",
                  f"ds_write2_b32 v62, v{vCS}, v{vCS+4} offset0:0 offset1:16"]
        if st == 7 and j == 6:
            assert not Q, len(Q)
            Q.append([f"v_xor_b32 v{vG+2}, s{sNonce}, v{vG+1}", f"v_xor_b32 v{vG+6}, s{sNonce}, v{vG+5}"])
            Q.append([f"v_xor_b32 v{vG+10}, s{sNonce}, v{vG+9}", f"v_xor_b32 v{vG+14}, s{sNonce}, v{vG+13}"])
            del Q[:]
            chk = [f"v_xor_b32 v{vG+4*qb+2}, s{sNonce}, v{vG+4*qb+1}" for qb in range(4)] + \
                  [f"v_or3_b32 v{vG+2}, v{vG+2}, v{vG+6}, v{vG+10}", f"v_or_b32 v{vG+2}, v{vG+2}, v{vG+14}", f"v_cmp_ne_u32 vcc, 0, v{vG+2}"]
            Q += chk + ["s_cbranch_vccnz L_stat_retry", "L_stat_ok:"]
            cold += ["L_stat_retry:"] + spin("", "L_stat_ok") + [l.split(";")[0] for l in statld] + ["s_waitcnt vmcnt(0)"] + chk + ["s_cbranch_vccnz L_stat_retry", "s_branch L_stat_ok"]
            P_ = []
            for qb in range(4):
                g = vG + 4*qb
                P_.append([f"v_and_b32 v{g+1}, 0xffff0000, v{g}", f"v_lshlrev_b32 v{g}, 16, v{g}", f"v_rcp_f32 v{g+1}, v{g+1}",
                           f"v_sub_f32 v{g}, 0, v{g}", f"v_mul_f32 v{g+1}, {fbits(CL2E)}, v{g+1}"])
            for tup in zip(*P_): Q += list(tup)
        for n, m in enumerate(L):
            lead = []
            if n == len(L) - 1 and last:
                lead = ([ds[n]] if ds[n] else []) + last
            else:
                lead = dma_slot(j, n, ds[n] is not None) + ([ds[n]] if ds[n] else [])
            S.gap(m, lead)
        if j == 5:
            stamp(2)
            if st + 3 < 8: pend += wdma(st + 3)
            if st == 6: assert len(Q) <= len(SET)
            kv = [kdma(1), vdma(0), kdma(2), vdma(1), kdma(3), vdma(2)]
            if st == 5: pend += sum(kv[:opt["kv6"]], [])
            if st == 6: pend[0:0] = statld; pend += sum(kv[opt["kv6"]:], [])
print("fillers", NFILL, "left", len(Q), "dma left", len(pend), file=sys.stderr)
for i in range(8, 16): E(X.kread(0, i))
for l in XNST: E(l)
Q += [f"v_mov_b32 v{60+e}, v{72+e}" for e in range(4)]
S.drain()
stamp(3)
for s_ in range(4):
    E("s_waitcnt lgkmcnt(0)" if s_ != 1 else "s_nop 0")
    for qb in range(4):
        b = acc(2*s_, qb); st = vG + 4*qb
        for e in range(4):
            E(f"v_pk_fma_f32 v[{b+2*e}:{b+2*e+1}], v[{vC+(s_&1)*8+2*e}:{vC+(s_&1)*8+2*e+1}], v[{st}:{st+1}], v[{b+2*e}:{b+2*e+1}] op_sel:[0,0,0] op_sel_hi:[1,0,1]")
        if qb == 3 and s_ + 2 < 4:
            for l in csread(s_ + 2): E(l)
        for e in range(4):
            E(f"v_pk_mul_f32 v[{b+2*e}:{b+2*e+1}], v[{b+2*e}:{b+2*e+1}], v[{st}:{st+1}] op_sel:[0,1] op_sel_hi:[1,1]")
        q = r.vQ + qb*16 + s_*4
        for e in range(4): E(f"v_cvt_pk_bf16_f32 v{q+e}, v{b+2*e}, v{b+2*e+1}")
        one_dma()
    for qb in range(4):
        q = r.vQ + qb*16 + s_*4
        E(f"v_permlane16_swap_b32 v{q}, v{q+2}"); E(f"v_permlane16_swap_b32 v{q+1}, v{q+3}")
plain(pend); del pend[:]
stamp(2)
Q += [f"v_mov_b32 v{r.vL+i}, 0" for i in range(16)]
for qb in range(4):
    for s_ in range(4):
        D = v(r.vS + 48 + 4*qb, 4)
        S.gap(f"{MF} {D}, {a(aWF+4*s_,4)}, {v(r.vQ+qb*16+s_*4,4)}, {'0' if s_ == 0 else D}")
    if qb == 1:
        for q2 in range(4):
            b = r.vS + 48 + 4*q2
            Q += [f"v_max3_f32 v{b}, v{b}, v{b+1}, v{b+2}", f"v_max_f32 v{b}, v{b}, v{b+3}"] + [f"v_sub_f32 v{r.vM+4*q2+e}, {fbits(-float(opt['shift']))}, v{b}" for e in range(4)]
            if q2 == 1: hold = len(Q)
        tail = Q[hold:]; del Q[hold:]
Q += tail
S.drain()
E("s_nop 1")
stamp(3)
NT = 32
def emit_gaps(T, lo, hi, lead, mf):
    F = X.fillers(T, NT)
    for g in range(lo, hi):
        m = mf(g)
        if m: E(m)
        for f in lead.get(g, []):
            E(f)
            if not m and f.startswith("s_add_u32 m0"): E("s_nop 0")
        fs = F[g]
        if m and T == 0 and not fs and not lead.get(g): E("s_nop 0")
        if not m and fs and fs[0].startswith("v_cvt"): E("s_nop 0")
        for f in fs: E(f)
def gapsets(lo, hi):
    F = X.fillers(1, NT)
    ex = [g for g in range(lo, hi) if g in X.isexp]
    cv = [g for g in range(lo, hi) if g not in X.isexp and F[g]]
    em = [g for g in range(lo, hi) if g not in X.isexp and not F[g]]
    return ex, cv, em
NVE = 6
def pv_part(T, dmaslot, salu):
    lead = {}
    ex, cv, em = gapsets(64, 131)
    fg = sorted(cv + em)
    late = fg[-NVE:]
    em_e = [g for g in em if g not in late]
    L = X.dma(dmaslot) if dmaslot is not None else []
    dm = [L[i] for i in (1, 2, 3, 4, 6, 7, 8, 9)] if L else []
    step = len(em_e) / 8.0
    dg = [em_e[min(len(em_e) - 1, int(i*step) + 1)] for i in range(8)] if dm else []
    assert len(set(dg)) == len(dg)
    for s_, g in zip(dm, dg): lead.setdefault(g, []).append(s_)
    kg = [g for g in fg if g not in late and g not in dg]
    if T + 1 < NT:
        assert len(kg) >= 16
        for i in range(16): lead.setdefault(kg[i], []).append(X.kread(T + 1, i))
    if L:
        for mi, first in ((0, 0), (5, 4)):
            g = max(x for x in ex if x < dg[first]); lead.setdefault(g, []).append(L[mi])
            if first: assert g > dg[3]
        after = [x for x in ex if x > dg[7]]
        sal = [f"s_add_u32 s{r.sKoff}, s{r.sKoff}, s{r.sKinc}", f"s_add_u32 s{r.sVoff}, s{r.sVoff}, s{r.sVinc}"] + list(salu)
    else:
        after = ex[-8:]; sal = list(salu)
    assert len(after) >= len(sal)
    for s_, g in zip(sal, after): lead.setdefault(g, []).append(s_)
    if T < NT:
        for i, g in enumerate(late): lead.setdefault(g, []).append(X.vread(T, i))
    assert 131 not in late
    if T + 1 < NT: lead.setdefault(131, []).insert(0, f"s_waitcnt lgkmcnt({NVE})")
    emit_gaps(T, 64, 132, lead, lambda g: X.pv(T - 1, g - 64) if T >= 1 else None)
def qk_part(T, sync=True, salu=None):
    lead = {}
    if salu: lead[60] = [salu]
    ex, cv, em = gapsets(0, 64)
    fg = sorted(cv + em)
    if T >= 1:
        for i in range(NVE, 32): lead.setdefault(fg[i - NVE], []).append(X.vread(T - 1, i))
    if sync:
        bg = opt["bgap"]
        if opt["bsplit"]:
            lead.setdefault(bg - 2, []).append("s_waitcnt vmcnt(16) lgkmcnt(0)")
            lead.setdefault(bg, []).append("s_barrier")
        else:
            lead.setdefault(bg, []).append("s_waitcnt vmcnt(16) lgkmcnt(0)")
            if opt["bar"]: lead[bg].append("s_barrier")
    emit_gaps(T, 0, 64, lead, lambda g: X.qk(g) if T < NT else None)
HOOK = {}
if opt["onerow"]:
    M("v_and_b32 v224, 15, v0\nv_cmp_gt_u32 vcc, 2, v224\ns_nop 1")
    for e in range(4): E(f"v_cndmask_b32 v{r.vOne+e}, 0, v{r.vOne+e}, vcc")
    E("s_nop 1")
if opt["perm"]: E(f"s_mov_b32 s{r.sPerm}, 0x07060302")
E("L_restart:")
pend += kdma(4) + vdma(3)
krel = sorted((48 + 4*(i >> 2) + ((3 - (i & 3)) if (i >> 2) & 1 else (i & 3)) + 1, i) for i in range(16))
vq = [X.vread(0, i) for i in range(NVE)]
ne, nc = 0, 0
for g in range(64):
    lead = []; budget = 2
    if g == 0: lead = [f"s_waitcnt vmcnt({vmn('k1', 'v0')})", "s_barrier"]
    else:
        if pend and pend[0].startswith("s_"): lead = [pend.pop(0)]
        elif pend and g % 4 == 2: lead = [pend.pop(0)]; budget = 0
        if budget:
            if vq and g < 8: lead += vq[:2]; del vq[:2]; budget = 0
            elif krel and krel[0][0] <= g and (2*nc + 2 < ne or len(krel) > 1 and krel[1][0] <= g):
                lead.append(X.kread(1, krel.pop(0)[1])); budget = 1
                if 2*nc + 2 >= ne: lead.append(X.kread(1, krel.pop(0)[1])); budget = 0
    if budget == 2 and g >= 4*(ne >> 2) + 7 and (ne - 2*nc < 5 or g >= 30):
        lead.append(X.exp(ne)); ne += 1
    else:
        while budget and 2*nc + 2 <= ne - (1 if False else 0) and nc < 30:
            lead.append(X.cvt(0, 2*nc + 1)); nc += 1; budget -= 1
    if not lead: lead = ["s_nop 0"]
    E(X.qk(g))
    for l in lead: E(l)
print("period0: exps", ne, "cvts", nc, "pend", len(pend), "krel", len(krel), "vq", len(vq), file=sys.stderr)
for _, i in krel: E(X.kread(1, i))
assert not vq and not pend
while ne < 60 or nc < 30:
    if 2*nc + 2 < ne or ne == 60: Q.append(X.cvt(0, 2*nc + 1)); nc += 1
    else: Q.append(X.exp(ne)); ne += 1
S.drain()
E("s_waitcnt lgkmcnt(0)")
if opt["moe"]:
    A(f"s_cmp_lg_u32 s{sFb}, 0"); A("s_cbranch_scc1 L_notouch")
    A(f"s_waitcnt vmcnt({S.vmn('xn')})")
    for l in KEYST: A(l)
    A(f"s_cmp_lg_u32 s{sSlow}, 0"); A("s_cbranch_scc1 L_notouch")
    A("global_load_dword v23, v23, s[6:7]"); A.label("L_notouch")
assert S.vmn("k2", "v1") >= 16
r.vVDl = [20, 21, 1, 2]
stamp(3)
A.raw(".p2align 6")
for _ in range(opt["pad"]): E("s_nop 0")
A.label("L_loop")
for u in range(1, 5):
    qk_part(u, salu=(f"s_cmp_eq_u32 s{r.sIt}, 7" if u == 3 else None))
    if u == 3: E("s_cbranch_scc1 L_tail")
    sal = []
    if u == 2: sal = [f"s_bitcmp1_b32 s{sMask2}, s{r.sIt}"]
    if u == 3: sal = [f"s_cmp_eq_u32 s{r.sIt}, 6"]
    if u == 4: sal = [f"s_add_u32 s{r.sIt}, s{r.sIt}, 1", f"s_bitcmp1_b32 s{sMask4}, s{r.sIt}"]
    pv_part(u, None if opt["nodma"] else u & 3, sal)
    if u == 2: E("s_cbranch_scc1 L_disp2"); E("L_ret2:")
    if u == 3: E("s_cbranch_scc1 L_hook27"); E("L_ret3:")
E("s_cbranch_scc0 L_loop")
def wo_voff(dst):
    return f"""v_lshrrev_b32 v180, 3, v0
v_and_b32 v181, 7, v0
v_lshrrev_b32 v182, 1, v180
v_lshlrev_b32 v182, 1, v182
v_xor_b32 v182, v182, v181
v_lshlrev_b32 v182, 4, v182
v_lshl_add_u32 v{dst[0]}, v180, 10, v182""".split("\n") + [f"v_add_u32 v{dst[p]}, {7168*p}, v{dst[0]}" for p in range(1, 4)]
HOOK[27] = wo_voff([r.vKD + p for p in range(4)]) + [f"s_mov_b32 s{sK}, s{sWq}", f"s_mov_b32 s{sK+1}, s{sWq+1}", f"s_mov_b32 s{sK+2}, s{sWq+2}",
            f"s_mov_b32 s{r.sKoff}, 0", f"s_mov_b32 s{r.sKinc}, 0x8000"]
HOOK[28] = [f"v_mov_b32 v{r.vVDl[p]}, v{r.vKD+p}" for p in range(4)] + [f"s_mov_b32 s{sV}, s{sWq}", f"s_mov_b32 s{sV+1}, s{sWq+1}", f"s_mov_b32 s{sV+2}, s{sWq+2}",
            f"s_mov_b32 s{r.sVoff}, 0x10000", f"s_mov_b32 s{r.sKinc}, 0x10000", f"s_mov_b32 s{r.sVinc}, 0x10000"]
def H(T, txt): HOOK.setdefault(T, []).extend(l.strip() for l in txt.strip().split("\n") if l.strip())
SEL = [4, 5, 6, 7, 42, 43, 48, 49]
TF, TP, TK, TS = opt['TF'], opt['TP'], 2, 8
ROLE = {}
NLOG2E = fbits(-1.4426950408889634)
if opt["moe"]:
    ROLE.update({TK: "R", TK + 2: "R", TS: "FR", TS + 2: "FR", TS + 4: "F", TS + 6: "F", TS + 8: "F", TF: "F", TP: "FR", TP + 2: "FR"})
    H(TK, f"""s_add_u32 m0, s{r.sM0K}, 0x20000
    s_add_u32 s3, s{r.sM0K}, {WS_KEY}""")
    HOOK[TK] += [f"buffer_load_dwordx4 v3, s[{sW}:{sW+3}], s3 offen offset:{p*1024} sc1 lds" for p in range(4)]
    KQ = [128 + 4*n for n in range(15)] + [224]
    chk = ["v_mov_b32 v228, 0"] + [f"v_bitop3_b32 v228, v228, v{q+2}, s{sNonce} bitop3:0xf6" for q in KQ] + ["v_cmp_ne_u32 vcc, 0, v228"]
    H(TK + 2, "v_add_u32 v229, 0x20000, v3\ns_waitcnt vmcnt(16)\ns_barrier")
    HOOK[TK + 2] += [f"ds_read_b128 {v(q,4)}, v229 offset:{n*1024}" for n, q in enumerate(KQ)]
    H(TK + 2, f"""s_and_b32 s3, s2, 6
    s_lshl_b32 s3, s3, 1
    s_bfe_u32 s67, s2, 0x20003
    s_add_u32 s3, s3, s67
    s_lshl_b32 s3, s3, 2
    s_add_u32 s3, s3, s{sWave}
    s_lshl_b32 s3, s3, 8
    v_bfe_u32 v232, v0, 1, 4
    v_and_b32 v233, 1, v0
    v_lshlrev_b32 v233, 2, v233
    v_lshl_add_u32 v232, v232, 4, v233
    v_add_u32 v232, s3, v232
    v_add_u32 v233, 0x20000, v232
    ds_read_b32 v234, v233
    s_waitcnt lgkmcnt(0)""")
    HOOK[TK + 2] += chk
    H(TK + 2, f"""s_cbranch_vccnz L_key_retry
    L_key_ok:
    v_mov_b32 v235, v234
    v_max_u32 v228, v{KQ[0]}, v{KQ[0]+1}""")
    mx = [f"v_max3_u32 v228, v228, v{q}, v{q+1}" for q in KQ[1:]]
    for n, m_ in enumerate(("quad_perm:[1,0,3,2]", "quad_perm:[2,3,0,1]", "row_half_mirror", "row_mirror")):
        mx.insert(3*n + 2, f"v_max_u32_dpp v235, v235, v235 {m_} row_mask:0xf bank_mask:0xf")
    HOOK[TK + 2] += mx
    H(TK + 2, f"""v_readlane_b32 s3, v235, 0
    v_readlane_b32 s67, v235, 16
    s_max_u32 s{sKey0}, s3, s67
    v_cmp_lt_u32 vcc, s{sKey0}, v228
    s_bcnt1_i32_b64 s3, vcc
    s_cmp_lt_u32 s3, 8
    s_cbranch_scc1 L_rank
    L_rank_done:""")
    cold += ["L_key_retry:"] + spin("", "L_key_ok")
    for n, q in enumerate(KQ):
        if n % 4 == 0: cold += [f"s_mov_b32 s3, {WS_KEY + n*1024}"]
        cold += [f"buffer_load_dwordx4 {v(q,4)}, v3, s[{sW}:{sW+3}], s3 offen offset:{(n%4)*1024} sc1"]
    cold += ["s_waitcnt vmcnt(0)"] + chk + ["s_cbranch_vccnz L_key_retry", f"s_mov_b32 s3, {WS_KEY}",
             f"buffer_load_dword v234, v232, s[{sW}:{sW+3}], s3 offen sc1", "s_waitcnt vmcnt(0)", "s_branch L_key_ok"]
    cold += ["L_rank:", f"s_cmp_eq_u32 s{sKey0}, 0", "s_cbranch_scc1 L_rank_done", "v_mov_b32 v236, 0"]
    ks_ = [q + e for q in KQ for e in range(2)]
    for n in range(0, 33, 3):
        grp = list(zip(ks_[n:n+3], ("s[4:5]", "s[6:7]", "vcc")))
        cold += [f"v_cmp_lt_u32 {m_}, s{sKey0}, v{k_}" for k_, m_ in grp] + ["s_nop 0"]*(3 - len(grp))
        cold += [f"v_addc_co_u32 v236, {m_}, 0, v236, {m_}" for k_, m_ in grp]
    for l in wave_sum(236, 68): cold += ["s_nop 1", l.replace("v_add_f32_dpp", "v_add_u32_dpp")]
    cold += f"""s_cmp_ge_u32 s68, 8
s_cbranch_scc1 L_rank_done
s_not_b32 s3, s{sKey0}
s_xor_b32 s67, s{sKey0}, 0x80000000
s_bitcmp1_b32 s{sKey0}, 31
s_cselect_b32 s3, s67, s3
s_and_b32 s3, s3, 0xffff0000
v_mov_b32 v230, {NLOG2E}
v_mul_f32 v230, s3, v230
v_exp_f32 v230, v230
s_andn2_b32 s67, 0x7ff, s{sKey0}
v_add_f32 v230, 1.0, v230
v_rcp_f32 v230, v230
s_lshl_b32 s68, s68, 3
v_cvt_pk_bf16_f32 v230, v230, v230
v_and_b32 v230, 0xffff0000, v230
v_or_b32 v230, s67, v230
v_mov_b32 v231, s{sNonce}
s_add_u32 s68, s68, {WS_SEL}
s_mov_b64 exec, 1
buffer_store_dwordx2 v[230:231], off, s[{sW}:{sW+3}], s68 sc1
s_mov_b64 exec, -1
v_cmp_ne_u32 vcc, s{sKey0}, v234
s_nop 1
v_cndmask_b32 v234, 0, v234, vcc
s_nop 1
v_max_u32_dpp v235, v234, v234 quad_perm:[1,0,3,2] row_mask:0xf bank_mask:0xf
s_nop 1
v_max_u32_dpp v235, v235, v235 quad_perm:[2,3,0,1] row_mask:0xf bank_mask:0xf
s_nop 1
v_max_u32_dpp v235, v235, v235 row_half_mirror row_mask:0xf bank_mask:0xf
s_nop 1
v_max_u32_dpp v235, v235, v235 row_mirror row_mask:0xf bank_mask:0xf
s_nop 0
v_readlane_b32 s3, v235, 0
v_readlane_b32 s67, v235, 16
s_max_u32 s{sKey0}, s3, s67
v_cmp_lt_u32 vcc, s{sKey0}, v228
s_bcnt1_i32_b64 s3, vcc
s_cmp_lt_u32 s3, 8
s_cbranch_scc1 L_rank
s_branch L_rank_done""".split("\n")
    def gu_dma(p):
        L = f"""s_mul_i32 s3, s{sWave}, {128*3584}
s_lshl_b32 s67, s{sChunk}, 5
s_add_u32 s3, s3, s67
v_lshrrev_b32 v184, 1, v0
v_and_b32 v185, 8, v184
v_xor_b32 v185, v185, v0
v_lshrrev_b32 v184, 1, v185
v_mul_u32_u24 v184, 3584, v184
v_and_b32 v185, 16, v3
v_add3_u32 v184, v184, v185, s3""".split("\n")
        for k in range(4):
            L += [f"s_add_u32 m0, s{r.sM0K}, {0x24000 + k*1024}", "s_nop 0" if k == 0 else f"v_add_u32 v184, {32*3584}, v184",
                  f"global_load_lds_dwordx4 v184, s[{p}:{p+1}]"]
        return L
    selld = f"buffer_load_dwordx2 v[60:61], v128, s[{sW}:{sW+3}], 0 offen sc1"
    seladdr = ["v_and_b32 v128, 7, v0", "v_lshlrev_b32 v128, 3, v128", f"v_add_u32 v128, {WS_SEL}, v128"]
    HOOK[TS] = seladdr + [selld, f"s_cmp_eq_u32 s{sChunk}, -1", "s_cbranch_scc1 L_wp0"] + gu_dma(pWg) + ["L_wp0:"]
    H(TS + 2, f"""s_waitcnt vmcnt(16)
    v_cmp_ne_u32 vcc, s{sNonce}, v61
    s_cbranch_vccnz L_sel_retry
    L_sel_ok:
    v_and_b32 v128, 0xffff, v60
    v_and_b32 v129, 48, v0
    v_bfe_u32 v130, v0, 3, 1
    v_lshl_add_u32 v129, v130, 6, v129
    v_lshl_add_u32 v128, v128, 10, v129
    s_lshl_b32 s3, s{sWave}, 8
    s_add_u32 s3, s3, {WS_XN}
    s_lshr_b32 s68, s{r.sM0K}, 1
    s_add_u32 m0, s68, 0x20000
    s_add_u32 s67, s3, 128
    buffer_load_dwordx4 v128, s[{sW}:{sW+3}], s3 offen sc1 lds
    s_add_u32 m0, s68, 0x20400
    s_nop 0
    buffer_load_dwordx4 v128, s[{sW}:{sW+3}], s67 offen sc1 lds""")
    cold += ["L_sel_retry:"] + spin("", "L_sel_ok") + seladdr + [selld, "s_waitcnt vmcnt(0)", f"v_cmp_ne_u32 vcc, s{sNonce}, v61",
             "s_cbranch_vccnz L_sel_retry", "s_branch L_sel_ok"]
    def gu_step(T, scratch, nxt):
        H(T, f"""v_and_b32 v224, 48, v0
        v_and_b32 v225, 15, v0
        v_lshlrev_b32 v225, 3, v225
        v_lshl_add_u32 v224, v224, 4, v225
        v_and_b32 v225, 16, v0
        v_lshl_add_u32 v224, v225, 3, v224
        s_add_u32 s3, s{r.sM0K}, 0x24000
        v_add_u32 v224, s3, v224
        v_xor_b32 v225, 128, v224
        s_lshr_b32 s68, s{r.sM0K}, 1
        v_and_b32 v226, 0x370, v3
        s_add_u32 s3, s68, 0x20000
        v_add_u32 v226, s3, v226
        s_waitcnt vmcnt(16)""")
        for ks in range(4):
            HOOK[T] += [f"ds_read_b64_tr_b16 v[{128+4*ks}:{129+4*ks}], v224 offset:{ks*1024}", f"ds_read_b64_tr_b16 v[{130+4*ks}:{131+4*ks}], v225 offset:{ks*1024}",
                        f"ds_read_b128 {v(144+4*ks,4)}, v226 offset:{(ks>>1)*1024 + (ks&1)*128}"]
        n0 = next(i for i, l in enumerate(nxt) if l.startswith("s_add_u32 m0"))
        HOOK[T] += [f"s_lshr_b32 s68, s{r.sM0K}, 2", f"s_add_u32 s68, s68, {scratch}", "v_add_u32 v227, s68, v3"] + nxt[:n0] + ["s_waitcnt lgkmcnt(0)"]
        HOOK[T] += [f"{MF} v[160:163], {v(128+4*ks,4)}, {v(144+4*ks,4)}, {'0' if ks == 0 else 'v[160:163]'}" for ks in range(4)]
        HOOK[T] += nxt[n0:] + ["ds_write_b128 v227, v[160:163]"]
    gu_step(TS + 4, 0x22000, gu_dma(pWu))
    dn = f"""s_lshl_b32 s3, s{sChunk}, 14
s_lshl_b32 s67, s{sWave}, 8
s_add_u32 s3, s3, s67
v_and_b32 v184, 0xff, v{r.vVD}
v_and_b32 v185, 48, v0
v_lshl_add_u32 v184, v185, 6, v184
v_add_u32 v184, s3, v184
v_xor_b32 v185, 128, v184
v_add_u32 v185, 0x1000, v185""".split("\n")
    for k in range(4):
        dn += [f"s_add_u32 m0, s{r.sM0K}, {0x24000 + k*1024}", "s_nop 0" if k < 2 else f"v_add_u32 v{184+(k&1)}, 0x2000, v{184+(k&1)}",
               f"global_load_lds_dwordx4 v{184+(k&1)}, s[{pWd}:{pWd+1}]"]
    gu_step(TS + 6, 0x23000, dn)
    T3 = TS + 8
    H(T3, f"v_add_u32 v224, 0x22000, v3\ns_add_u32 s3, s{r.sM0K}, {0x24000 - r.VBASE}")
    HOOK[T3] += [f"ds_read_b128 {v(128+4*n,4)}, v224 offset:{n*1024}" for n in range(8)]
    HOOK[T3] += [f"v_add_u32 v{228+nb}, s3, v{r.vVA+nb}" for nb in range(8)] + ["s_waitcnt vmcnt(16)"]
    HOOK[T3] += [f"ds_read_b64_tr_b16 v[{164+2*nb}:{165+2*nb}], v{228+nb}" for nb in range(8)]
    H(T3, f"""v_and_b32 v225, 0x70, v3
    v_and_b32 v226, 48, v0
    v_lshl_add_u32 v225, v226, 3, v225
    v_and_b32 v226, 8, v0
    v_lshl_add_u32 v225, v226, 6, v225
    v_cmp_eq_u32 vcc, 0, v226
    s_lshl_b32 s3, s{sChunk}, 14
    s_add_u32 s3, s3, s{r.sM0K}
    s_add_u32 s3, s3, {WS_PART}
    s_waitcnt lgkmcnt(8)""")
    for b_ in (128, 144):
        for e in range(4): HOOK[T3] += [f"v_add_f32 v{b_+e}, v{b_+e}, v{b_+4+e}", f"v_add_f32 v{b_+8+e}, v{b_+8+e}, v{b_+12+e}"]
        for e in range(4): HOOK[T3] += [f"v_add_f32 v{b_+e}, v{b_+e}, v{b_+8+e}"]
        HOOK[T3] += [f"v_cvt_pk_bf16_f32 v{b_+4+e}, v{b_+2*e}, v{b_+2*e+1}" for e in range(2)] + unpack(b_, b_ + 4, 2)
    for op_ in (f"v_mul_f32 v{{t}}, {NLOG2E}, v{{g}}", "v_exp_f32 v{t}, v{t}", "v_add_f32 v{t}, 1.0, v{t}", "v_rcp_f32 v{t}, v{t}", "v_mul_f32 v{g}, v{g}, v{t}"):
        HOOK[T3] += [op_.format(t=132 + e, g=128 + e) for e in range(4)]
    HOOK[T3] += [f"v_cvt_pk_bf16_f32 v{132+e}, v{128+2*e}, v{129+2*e}" for e in range(2)] + unpack(128, 132, 2)
    HOOK[T3] += [f"v_mul_f32 v{128+e}, v{128+e}, v{144+e}" for e in range(4)]
    H(T3, """v_cvt_pk_bf16_f32 v146, v128, v129
    v_cvt_pk_bf16_f32 v147, v130, v131
    v_cndmask_b32 v144, 0, v146, vcc
    v_cndmask_b32 v145, 0, v147, vcc
    v_cndmask_b32 v146, v146, 0, vcc
    v_cndmask_b32 v147, v147, 0, vcc
    s_waitcnt lgkmcnt(0)""")
    for j in range(4):
        HOOK[T3] += [f"v_mfma_f32_16x16x16_bf16 {v(128+4*j,4)}, v[{164+4*j}:{165+4*j}], v[144:145], 0",
                     f"v_mfma_f32_16x16x16_bf16 {v(128+4*j,4)}, v[{166+4*j}:{167+4*j}], v[146:147], {v(128+4*j,4)}"]
    H(T3, "s_nop 4")
    for j in range(4): HOOK[T3] += [f"buffer_store_dwordx4 {v(128+4*j,4)}, v225, s[{sW}:{sW+3}], s3 offen offset:{j*1024} sc1"]
    H(T3, "s_nop 0")
    H(TF, f"""s_lshl_b32 s3, s{sWave}, 7
    s_add_u32 s3, s3, s{sChunk}
    s_lshl_b32 s3, s3, 2
    s_add_u32 s3, s3, {WS_FC}
    v_mov_b32 v128, s{sNonce}
    s_waitcnt vmcnt(16)
    s_mov_b64 exec, 1
    buffer_store_dword v128, off, s[{sW}:{sW+3}], s3 sc1
    s_mov_b64 exec, -1""")
    fcaddr = ["v_min_u32 v128, 55, v0", "v_lshlrev_b32 v128, 3, v128", "s_lshr_b32 s3, s2, 6", "s_lshl_b32 s3, s3, 9", f"s_add_u32 s3, s3, {WS_FC}"]
    fcld = f"buffer_load_dwordx2 v[62:63], v128, s[{sW}:{sW+3}], s3 offen sc1"
    fcchk = [f"v_xor_b32 v129, s{sNonce}, v62", f"v_bitop3_b32 v129, v129, v63, s{sNonce} bitop3:0xf6", "v_cmp_ne_u32 vcc, 0, v129"]
    HOOK.setdefault(TP, []).extend(fcaddr + [fcld])
    HOOK.setdefault(TP + 2, []).extend(["s_waitcnt vmcnt(16)"] + fcchk)
    H(TP + 2, f"""s_cbranch_vccnz L_fc_retry
    L_fc_ok:
    v_lshrrev_b32 v128, 3, v0
    v_xor_b32 v129, v128, v0
    v_and_b32 v129, 7, v129
    v_lshlrev_b32 v129, 4, v129
    v_lshl_add_u32 v128, v128, 14, v129
    s_lshr_b32 s3, s2, 1
    s_lshl_b32 s3, s3, 7
    s_lshl_b32 s67, s{sWave}, 17
    s_add_u32 s3, s3, s67
    s_add_u32 s3, s3, {WS_PART}
    s_lshr_b32 s68, s{r.sM0K}, 2""")
    for k in range(4):
        HOOK[TP + 2] += [f"s_add_u32 m0, s68, {0x20000 + k*4096}", f"s_add_u32 s67, s3, {k << 19}"]
        if k == 3: HOOK[TP + 2] += [f"s_cmp_lt_u32 s{sWave}, 2", "s_cselect_b32 s67, s67, 0x40000000"]
        HOOK[TP + 2] += [f"buffer_load_dwordx4 v128, s[{sW}:{sW+3}], s67 offen sc1 lds"]
    cold += ["L_fc_retry:"] + spin("", "L_fc_ok") + fcaddr + [fcld, "s_waitcnt vmcnt(0)"] + fcchk + ["s_cbranch_vccnz L_fc_retry", "s_branch L_fc_ok"]
    T4 = TP + 5
    H(T4, f"""s_or_b32 s3, s{sFb}, s{sSlow}
    s_cbranch_scc1 L_s4_done
    s_lshl_b32 s68, s{sWave}, 1
    v_lshrrev_b32 v145, 5, v0
    v_add_u32 v145, s68, v145
    v_xor_b32 v144, v145, v0
    v_and_b32 v144, 7, v144
    v_and_b32 v146, 31, v0
    v_lshl_add_u32 v144, v146, 3, v144
    v_lshlrev_b32 v144, 4, v144
    v_add_u32 v144, 0x20000, v144""")
    HOOK[T4] += [f"ds_read_b128 {v(128+4*k,4)}, v144 offset:{k*4096}" for k in range(4)]
    H(T4, f"""v_lshlrev_b32 v146, 2, v145
    ds_bpermute_b32 v147, v146, v60
    v_lshlrev_b32 v145, 11, v145
    s_lshr_b32 s3, s2, 1
    s_lshl_b32 s3, s3, 4
    s_add_u32 s3, s3, {WS_UPD}
    s_waitcnt lgkmcnt(0)""")
    for e in range(4): HOOK[T4] += [f"v_add_f32 v{128+e}, v{128+e}, v{132+e}", f"v_add_f32 v{136+e}, v{136+e}, v{140+e}"]
    for e in range(4): HOOK[T4] += [f"v_add_f32 v{128+e}, v{128+e}, v{136+e}"]
    for tup in zip(*[wave_sum(128 + e, 0)[:-2] for e in range(4)]): HOOK[T4] += list(tup)
    H(T4, "v_and_b32 v147, 0xffff0000, v147\nv_cvt_pk_bf16_f32 v132, v128, v129\nv_cvt_pk_bf16_f32 v133, v130, v131")
    HOOK[T4] += unpack(128, 132, 2) + [f"v_mul_f32 v{128+e}, v147, v{128+e}" for e in range(4)]
    H(T4, f"""v_cvt_pk_bf16_f32 v132, v128, v129
    v_cvt_pk_bf16_f32 v133, v130, v131
    v_mov_b32 v134, s{sNonce}
    v_mov_b32 v135, s{sNonce}
    s_mov_b32 exec_lo, 0x80000000
    s_mov_b32 exec_hi, 0x80000000
    buffer_store_dwordx4 v[132:135], v145, s[{sW}:{sW+3}], s3 offen sc1
    s_mov_b64 exec, -1
    L_s4_done:""")
if opt["wtouch"]:
    for n, T in enumerate(eval(opt_s["wT"])):
        HOOK.setdefault(T, []).extend(["s_andn2_b32 s3, 4, s2", f"s_add_u32 s3, s3, s{sWave}", "s_lshl_b32 s3, s3, 9",
            "s_and_b32 s67, s2, 0xf8", "s_add_u32 s3, s3, s67", f"s_add_u32 s3, s3, {256*n}", "s_lshl_b32 s3, s3, 10",
            "v_lshl_add_u32 v180, v0, 7, s3", f"global_load_dword v23, v180, s[{pWo}:{pWo+1}]"])
if opt["ext"]:
    HOOK[28].extend(["s_lshl_b32 s3, s2, 14", f"s_add_u32 s3, s3, s{r.sM0K}", f"s_add_u32 s3, s3, {WS_EX}", "v_lshlrev_b32 v180, 6, v0",
                     f"buffer_load_dword v23, v180, s[{sW}:{sW+3}], s3 offen sc1"])
if opt["otch"]:
    for n, T in enumerate(eval(opt_s["oT"])):
        HOOK.setdefault(T, []).extend([f"s_lshl_b32 s3, s{sQb}, 2", f"s_add_u32 s3, s3, s{sWave}", "s_lshl_b32 s3, s3, 7", f"s_add_u32 s3, s3, s{sHead}", "s_lshl_b32 s3, s3, 12",
            f"s_add_u32 s3, s3, {n*0x40000}", "v_lshrrev_b32 v180, 5, v0", "v_and_b32 v181, 31, v0", "v_lshlrev_b32 v181, 7, v181", "v_lshl_add_u32 v180, v180, 17, v181",
            f"buffer_load_dword v23, v180, s[{sW}:{sW+3}], s3 offen{['', '', ' sc1', ' nt', ' sc0 sc1'][opt['otch']]}"])
if opt["stamp"] & 8:
    Ts = eval(opt_s["hs"])
    def st_(i): return [f"{CLK} s[{70+2*i}:{71+2*i}]", "s_waitcnt lgkmcnt(0)"]
    i = 1
    for T in Ts:
        body = []
        for l in HOOK[T]:
            if l.startswith("STAMP"):
                body += st_(i + 1); i += 1
            else: body.append(l)
        k = sum(l.startswith("STAMP") for l in HOOK[T])
        HOOK[T] = st_(i - k) + body + st_(i + 1); i += 2
    nstamp[0] = i
for T in HOOK: HOOK[T] = [l for l in HOOK[T] if not l.startswith("STAMP")]
def emit_hooks():
    msk = {}
    for site in (4, 2):
        Ts = sorted(T for T in HOOK if T % 4 == site % 4)
        msk[site] = {ro: sum(1 << (T // 4) for T in Ts if ro in ROLE.get(T, ro)) for ro in "FRS"}
        E(f"L_disp{site}:")
        first = min(HOOK)
        for T in Ts:
            if site == 2 and T == first: continue
            if T == Ts[-1] and not (site == 2 and first in Ts): E(f"s_branch L_hook{T}")
            else: E(f"s_cmp_eq_u32 s{r.sIt}, {T // 4}"); E(f"s_cbranch_scc1 L_hook{T}")
        if not Ts: E("s_branch " + ("L_ret2" if site == 2 else "L_loop"))
    for T in sorted(HOOK):
        E(f"L_hook{T}:")
        for l in HOOK[T]: E(l)
        E("s_branch " + {2: "L_ret2", 3: "L_ret3", 0: "L_loop"}[T % 4])
    return msk[2], msk[4]
m2, m4 = emit_hooks()
A.label("L_tail")
S.vm[:] = ["wo0"]*4 + ["v31"]*4 + [f"wo{k}" for k in range(1, 5) for _ in range(4)]
sOoff = 63
vWo, vWr, vOq, vFl = r.vKD, 48, 4, 44
VA, VB, VC, AA, AB, AC, AD = ("v", 64), ("v", 128), ("v", 192), ("a", 0), ("a", 64), ("a", 128), ("a", 192)
def blk(B, off, n): return (v if B[0] == "v" else a)(B[1] + off, n)
WBLK = [VA, AA, AD, VC]; ACC = AC
NU = 10
UNIT = [0, 1, 5, 2, 6, 3, 7, 8, 4, 9]
def wo_dma(kk):
    L = [f"s_add_u32 m0, s{r.sM0K}, {UNIT[kk % NU]*16384}"]
    L += [f"buffer_load_dwordx4 v{vWo+p}, s[{sWq}:{sWq+3}], s{sWoff} offen offset:{p*1024} lds ; wo{kk}" for p in range(4)]
    L += [f"s_add_u32 s{sWoff}, s{sWoff}, 0x8000"]
    return L
def wo_reads(kk):
    u = UNIT[kk % NU]; B = WBLK[(kk >> 2) & 3]
    return [f"ds_read_b64_tr_b16 {blk(B, (nb*4 + (kk & 3))*4 + 2*half, 2)}, v{vWr + 4*(u >> 2) + nb} offset:{(u & 3)*16384 + half*2048} ; r{kk}"
            for nb in range(4) for half in range(2)]
OBUF = [("a", 64), ("a", 80), ("a", 96), ("a", 112), ("a", 160), ("a", 176)][:opt["look"] + 1]
def o_loads(z):
    B = OBUF[z % len(OBUF)]
    L = [f"buffer_load_dwordx4 {blk(B, i*4, 4)}, v{vOq}, s[{sW}:{sW+3}], s{sOoff} offen offset:{i*1024} sc1 ; o{z}" for i in range(4)]
    if z == 15: return L + [f"s_sub_u32 s{sOoff}, s{sOoff}, {3*0x20000 + 0x3000}", f"s_xor_b32 s{sOoff}, s{sOoff}, 0x80000"]
    return L + [f"s_add_u32 s{sOoff}, s{sOoff}, {0x1000 if z & 3 < 3 else 0x20000 - 0x3000}"]
L_ = r.vL
vXo, vXr, vGf, vSt = 45, 20, 176, 46
vU, vRow, vSa, vC3, vUa, vUt, vT, vN = 160, 12, 14, 3, 15, 11, 10, 13
setup1 = f"""s_mov_b32 s{sWoff}, {5*0x8000}
s_lshl_b32 s3, s{sQb}, 2
s_add_u32 s3, s3, s{sWave}
s_lshl_b32 s69, s3, 5
s_add_u32 s69, s69, s{sHead}
s_lshl_b32 s69, s69, 7
s_add_u32 s69, s69, {WS_FLAG}
s_lshl_b32 s3, s3, 7
s_add_u32 s3, s3, s{sHead}
s_lshl_b32 s68, s3, 12
s_andn2_b32 s1, 4, s2
s_add_u32 s1, s1, s{sWave}
s_lshl_b32 s1, s1, 2""".split("\n")
setupO = [f"v_mov_b32 v{vOq}, v3"] + [f"v_add_u32 v{vOq+qb}, {qb*0x20000}, v3" for qb in range(1, 4)]
setup2 = f"""v_lshrrev_b32 v1, 4, v0
v_and_b32 v2, 15, v0
v_and_b32 v9, 4, v0
v_lshrrev_b32 v8, 2, v2
v_lshl_add_u32 v8, v1, 2, v8
v_bfe_u32 v10, v8, 1, 2
v_lshlrev_b32 v8, 7, v8
v_and_b32 v{vC3}, 3, v0
v_lshl_add_u32 v8, v{vC3}, 3, v8
v_add_u32 v8, s{r.sM0K}, v8""".split("\n")
for nb in range(4):
    setup2 += [f"v_xor_b32 v11, {nb}, v10", f"v_lshl_add_u32 v{vWr+nb}, v11, 5, v8",
               f"v_add_u32 v{vWr+4+nb}, 0x10000, v{vWr+nb}", f"v_add_u32 v{vWr+8+nb}, 0x20000, v{vWr+nb}"]
setup2 += [f"s_xor_b32 s3, s{sQt}, 1", "s_lshl_b32 s3, s3, 7", "s_add_u32 s3, s3, s1", f"s_lshl_b32 s{sOoff}, s3, 12",
           f"s_and_b32 s3, s{sQt}, 30", "s_lshl_b32 s3, s3, 5", "s_add_u32 s3, s3, s1", f"v_lshl_add_u32 v9, v9, 3, v{vC3}", "v_add_u32 v9, s3, v9",
           f"v_lshlrev_b32 v{vFl}, 7, v9", f"v_add_u32 v{vFl}, {WS_FLAG}, v{vFl}",
           f"s_lshl_b32 s3, s{sWave}, 2", "s_add_u32 s3, s3, 0x24000", f"v_lshl_add_u32 v192, v{vC3}, 12, s3",
           f"s_add_u32 s3, s{r.sM0K}, 0x24000", "v_mov_b32 v193, s3"]
FS = f"""s_lshl_b32 s3, s{sQt}, 2
s_add_u32 s3, s3, s{sWave}
s_lshl_b32 s3, s3, 4
v_lshrrev_b32 v{vRow}, 2, v0
v_add_u32 v{vRow}, s3, v{vRow}
v_lshlrev_b32 v{vSa}, 3, v{vRow}
v_add_u32 v{vSa}, {WS_STAT}, v{vSa}
s_lshl_b32 s3, s{sNt}, 7
v_lshl_add_u32 v{vT}, v{vC3}, 5, s3
v_lshl_add_u32 v{vXo}, v{vRow}, 10, v{vT}
v_mov_b32 v{vN}, s{sNonce}
global_load_dwordx4 v[{vXr}:{vXr+3}], v{vXo}, s[{pX}:{pX+1}] ; xf
global_load_dwordx4 v[{vXr+4}:{vXr+7}], v{vXo}, s[{pX}:{pX+1}] offset:16 ; xf
buffer_load_dwordx2 v[{vSt}:{vSt+1}], v{vSa}, s[{sW}:{sW+3}], 0 offen sc1 ; xf""".split("\n")
updld = [f"buffer_load_dwordx4 {v(vU+4*k,4)}, v{vUa}, s[{sW}:{sW+3}], s67 offen offset:{16*k} sc1" for k in range(4)] if opt["moe"] else []
updchk = [f"v_xor_b32 v{vT}, s{sNonce}, v{vSt+1}"]
FU = []
if opt["moe"]:
    selld2 = f"buffer_load_dwordx2 v[200:201], v202, s[{sW}:{sW+3}], 0 offen sc1"
    setup2[0:0] = ["v_and_b32 v202, 7, v0", "v_lshlrev_b32 v202, 3, v202", f"v_add_u32 v202, {WS_SEL}, v202", selld2 + " ; sel"]
    FU += [lambda: f"s_waitcnt vmcnt({S.vmn('sel')})", f"v_cmp_ne_u32 vcc, s{sNonce}, v201", "s_cbranch_vccnz L_sel2_retry", "L_sel2_ok:", "v_and_b32 v200, 0xffff, v200"]
    cold += ["L_sel2_retry:"] + spin("", "L_sel2_ok") + [selld2, "s_waitcnt vmcnt(0)", f"v_cmp_ne_u32 vcc, s{sNonce}, v201",
             "s_cbranch_vccnz L_sel2_retry", "s_branch L_sel2_ok"]
    FU += [f"v_mov_b32 v{vUa}, 0x200000"] + [f"v_readlane_b32 s{SEL[t_]}, v200, {t_}" for t_ in range(8)]
    for t_ in range(8): FU += [f"v_cmp_eq_u32 vcc, s{SEL[t_]}, v{vRow}", f"v_mov_b32 v{vT}, {t_*32}", f"v_cndmask_b32 v{vUa}, v{vUa}, v{vT}, vcc"]
    FU += f"""v_cmp_gt_u32 vcc, 0x1000, v{vUa}
v_add_u32 v{vUa}, v{vUa}, v{vC3}
v_lshlrev_b32 v{vUa}, 6, v{vUa}
v_cndmask_b32 v{vUt}, 0, v{vN}, vcc
v_mov_b32 v{vT}, 0x40000000
v_cndmask_b32 v{vUa}, v{vT}, v{vUa}, vcc
s_lshl_b32 s67, s{sNt}, 8
s_add_u32 s67, s67, {WS_UPD}""".split("\n") + [l + " ; xf" for l in updld]
    updchk += [f"v_bitop3_b32 v{vT}, v{vT}, v{vU+4*k+2}, v{vUt} bitop3:0xf6" for k in range(4)]
updchk += [f"v_cmp_ne_u32 vcc, 0, v{vT}"]
def pv2(T, qb, db, ks):
    base = r.aV if T == 30 else r.aK
    D = a(r.aO + qb*32 + db*4, 4)
    return f"{MF} {D}, {a(base+4*(ks*8+db),4)}, {v(r.vP+(T&1)*32+qb*8+ks*4,4)}, {D}"
def v31(i): return X.vread(31, i).replace(a(r.aV + 4*(((i >> 1) & 1)*8 + (i >> 2)) + 2*(i & 1), 2), a(r.aK + 4*(((i >> 1) & 1)*8 + (i >> 2)) + 2*(i & 1), 2)) + f" ; v31_{i >> 2}"
nst = [0]
OSP = [" sc1", " sc0 sc1", " sc1 nt", "", " nt"][opt["osp"]]
def epi(qb):
    L = []
    for i4 in range(4):
        t = r.vS; o = r.vS + 8 + (nst[0] & 1)*4; nst[0] += 1
        L += [f"v_accvgpr_read_b32 v{t+e}, a{r.aO+qb*32+8*i4+e}" for e in range(8)]
        L += [f"v_mul_f32 v{t+e}, v{60+qb}, v{t+e}" for e in range(8)]
        L += [f"v_cvt_pk_bf16_f32 v{o+e}, v{t+2*e}, v{t+2*e+1}" for e in range(4)]
        L += [f"buffer_store_dwordx4 {v(o,4)}, v{vOq+qb}, s[{sW}:{sW+3}], s68 offen offset:{i4*1024}{OSP} ; ost" if not (opt["nostore"] and nst[0] < 16) else "s_nop 1"]
    return L
def smx(lo, hi):
    L = []
    for k in range(lo, hi):
        L.append(X.exp(k))
        if k % 2 == 0 and k > lo: L.append(X.cvt(31, k - 1))
    return L + [X.cvt(31, hi - 1)]
def rsum(qb): return [f"v_add_f32 v{L_+4*qb}, v{L_+4*qb}, v{L_+4*qb+1}", f"v_rcp_f32 v{60+qb}, v{L_+4*qb}"]
def dmaf(kk):
    L = wo_dma(kk)
    return [[L[0], "s_nop 0", L[1]], L[2], L[3], [L[4], L[5]]]
def weave(*lists):
    items = sorted(((i + 0.5) / len(L), n, i) for n, L in enumerate(lists) if L for i in range(len(L)))
    return [lists[n][i] for _, n, i in items]
def qcost(): return sum(len(f) if isinstance(f, list) else (1 if callable(f) else (0 if f.endswith(":") else S.cost(f))) for f in Q)
def chains(CH):
    for c, ch in enumerate(CH):
        for n, m in enumerate(ch):
            if n < len(ch) - 1: S.gap(m, novm=opt['bnd'] & 1)
            else:
                left = len(CH) - c
                small = sum(2*(len(x) - 1) for x in CH[c+1:])
                S.gap(m, budget=max(2, -(-(qcost() - small*3//4) // left)), big=True)
    S.drain()
eg = X.sched()
assert eg[27] == 62 and eg[28] == 64
stamp(16)
seq = [pv2(30, 0, j >> 1, (j & 1) ^ ((j >> 1) & 1)) for j in range(16)] + [X.pv(30, 16)]
su = list(setup1)
for n, m in enumerate(seq):
    E(m)
    if su: E(su.pop(0))
    if opt["early"] and n in (3, 7, 11, 15):
        f = dmaf(5)[n >> 2]
        for x_ in (f if isinstance(f, list) else [f]): E(x_)
    if n < 16: E(v31(2*n)); E(v31(2*n + 1))
    else: E(X.cvt(31, 27)); E(setupO[0])
Q += smx(28, 32) + setupO[1:] + [None]
for n, m in enumerate([X.pv(31, 16)] + [pv2(31, 0, j >> 1, (j & 1) ^ ((j >> 1) & 1)) for j in range(16)]):
    lead = []
    if n in (0, 4, 8): lead = [f"s_waitcnt lgkmcnt({S.lgn('v31_' + str({0: 1, 4: 3, 8: 7}[n]))})"]
    if n == 9: Q.pop(); Q += rsum(0) + ([] if opt["early"] else dmaf(5))
    if opt["early"] and n in (2, 6, 10, 14):
        f = dmaf(6)[n >> 2]; lead = f if isinstance(f, list) else [f]
    S.gap(m, lead)
carry = list(Q); del Q[:]
stamp(16)
def qchains(qb):
    CH = [[X.pv(30, 17*qb + 16), X.pv(31, 17*qb + 16)]]
    for db in range(8):
        o = [(30, 0), (30, 1), (31, 0), (31, 1)]
        CH.append([pv2(T, qb, db, ks) for T, ks in (o[::-1] if db & 1 else o)])
    return CH
if opt["early"] == 2:
    e0 = weave(epi(0), smx(32, 48))
    Q += carry + weave(e0[:50], dmaf(7)) + e0[50:] + rsum(1)
else: Q += carry + weave(epi(0), smx(32, 48), dmaf(7 if opt["early"] else 6)) + rsum(1)
chains(qchains(1))
stamp(16)
Q += weave(epi(1), smx(48, 64), [] if opt["early"] else dmaf(7), setup2) + rsum(2)
chains(qchains(2))
stamp(16)
e2 = epi(2)
vote = rsum(3) + [f"v_add_f32 v194, v{L_}, v{L_+4}", f"v_add_f32 v195, v{L_+8}, v{L_+12}", "v_add_f32 v194, v194, v195",
        f"v_cmp_ngt_f32 vcc, {'0' if opt['forcefb'] else '0x5f800000'}, v194", "s_or_b32 s3, vcc_lo, vcc_hi", "v_mov_b32 v194, s3", "ds_write_b32 v192, v194"]
def wrd(kk): return [lambda: f"s_waitcnt vmcnt({S.vmn(f'wo{kk}')})"] + [list(p) for p in zip(wo_reads(kk)[0::2], wo_reads(kk)[1::2])]
Q += e2[:10] + vote + e2[10:30] + [["s_waitcnt lgkmcnt(0)", "s_barrier", "ds_read_b128 v[196:199], v193"]] + weave(e2[30:52], dmaf(8)) + \
     ["s_waitcnt lgkmcnt(0)", "v_or3_b32 v196, v196, v197, v198", "v_or_b32 v196, v196, v199", "v_cmp_ne_u32 vcc, 0, v196", "s_cbranch_vccnz L_fallback" if not opt["exper"] else "s_nop 0", "L_safe:"] + \
     weave(e2[52:], FS, wrd(0) + wrd(1))
chains(qchains(3))
stamp(17)
xd = []
for kk in range(NU, NU + opt["fx"]): xd += [lambda kk=kk: f"s_waitcnt lgkmcnt({S.lgn(f'r{kk-NU}')})"] + dmaf(kk)
Q += weave(epi(3), dmaf(9) + xd, wrd(2) + wrd(3) + wrd(4) + wrd(5))
S.drain()
stamp(17)
NPRE = 16
nextrd = [6]; nextdma = [NU + opt["fx"]]
def stage(nops, filler=()):
    filler = list(filler)
    per = -(-len(filler) // max(1, nops))
    for _ in range(nops):
        if not any(l.startswith("buffer") for l in pend):
            if nextdma[0] >= NPRE: break
            kk = nextdma[0]
            if nextrd[0] < min(NU, kk - NU + 5):
                k2 = nextrd[0]
                E(f"s_waitcnt vmcnt({vmn(f'wo{k2}')})")
                for l in wo_reads(k2): E(l)
                nextrd[0] += 1
            E(f"s_waitcnt lgkmcnt({S.lgn(f'r{kk-NU}')})")
            pend.extend(wo_dma(kk)); nextdma[0] += 1
        one_dma()
        k_ = per
        while k_ < len(filler) and isinstance(filler[k_], str) and filler[k_].endswith(":"): k_ += 1
        Q.extend(filler[:k_]); S.drain()
        del filler[:k_]
    Q.extend(filler); S.drain()
stage(opt["npost"], FU)
if opt["osp"] >= 3:
    E(f"s_waitcnt vmcnt({S.vmn('ost')})"); E("buffer_wbl2 sc1 ; ost")
M(f"""
s_waitcnt vmcnt({S.vmn('ost')})
s_mov_b64 exec, 1
buffer_store_dword v{vN}, off, s[{sW}:{sW+3}], s69 sc1 ; flag
s_mov_b64 exec, -1
""")
stamp(1)
nleft = (NPRE - nextdma[0])*4 + sum(l.startswith("buffer") for l in pend)
stage(nleft - opt["pollat"])
E(f"buffer_load_dword v2, v{vFl}, s[{sW}:{sW+3}], 0 offen sc1 ; poll")
stage(opt["pollat"])
plain(pend); del pend[:]
def rest_reads(upto):
    while nextrd[0] < upto:
        k2 = nextrd[0]; nextrd[0] += 1
        E(f"s_waitcnt vmcnt({vmn(f'wo{k2}')})")
        for l in wo_reads(k2): E(l)
rest_reads(opt["rdpre"])
stamp(1)
M(f"""
s_waitcnt vmcnt({S.vmn('poll')})
v_cmp_ne_u32 vcc, s{sNonce}, v2
s_cbranch_vccnz L_oflag
L_oflag_ok:
""")
cold += ["L_oflag:"] + spin("", "L_oflag_ok") + [f"buffer_load_dword v2, v{vFl}, s[{sW}:{sW+3}], 0 offen sc1", "s_waitcnt vmcnt(0)",
         f"v_cmp_ne_u32 vcc, s{sNonce}, v2", "s_cbranch_vccnz L_oflag", "s_branch L_oflag_ok"]
stamp(5)
LOOK = opt["look"]
for z in range(LOOK):
    for l in o_loads(z): E(l)
    rest_reads(min(16, nextrd[0] + 1))
rest_reads(16)
stamp(1)
t = 36
cold += ["L_stf_retry:"] + spin("", "L_stf_ok") + [f"buffer_load_dwordx2 v[{vSt}:{vSt+1}], v{vSa}, s[{sW}:{sW+3}], 0 offen sc1"] + updld + ["s_waitcnt vmcnt(0)"] + \
        updchk + ["s_cbranch_vccnz L_stf_retry", "s_branch L_stf_ok"]
G = updchk + ["s_cbranch_vccnz L_stf_retry", "L_stf_ok:", f"v_and_b32 v{vSt+1}, 0xffff0000, v{vSt}", f"v_lshlrev_b32 v{vSt}, 16, v{vSt}", f"v_rcp_f32 v{vSt+1}, v{vSt+1}"]
for hf in range(2):
    G += unpack(t, vXr + 4*hf)
    G += [f"v_sub_f32 v{t+e}, v{t+e}, v{vSt}" for e in range(8)]
    G += [f"v_cvt_pk_bf16_f32 v{8+e}, v{t+2*e}, v{t+2*e+1}" for e in range(4)] + unpack(t, 8)
    G += [f"v_mul_f32 v{t+e}, v{t+e}, v{vSt+1}" for e in range(8)]
    G += [f"v_cvt_pk_bf16_f32 v{8+e}, v{t+2*e}, v{t+2*e+1}" for e in range(4)] + unpack(t, 8)
    if opt["moe"]:
        G += unpack(8, vU + 8*hf, 2) + unpack(12, vU + 8*hf + 4, 2) + [f"v_add_f32 v{t+e}, v{t+e}, v{8+e}" for e in range(8)]
        G += [f"v_cvt_pk_bf16_f32 v{8+e}, v{t+2*e}, v{t+2*e+1}" for e in range(4)] + unpack(t, 8)
    G += [f"v_mul_f32 v{8+e}, {NLOG2E}, v{t+e}" for e in range(8)]
    G += [f"v_exp_f32 v{8+e}, v{8+e}" for e in range(8)]
    G += [f"v_add_f32 v{8+e}, 1.0, v{8+e}" for e in range(8)]
    G += [f"v_rcp_f32 v{8+e}, v{8+e}" for e in range(8)]
    G += [f"v_mul_f32 v{t+e}, v{t+e}, v{8+e}" for e in range(8)]
    G += [f"v_cvt_pk_bf16_f32 v{8+e}, v{t+2*e}, v{t+2*e+1}" for e in range(4)] + unpack(vGf + 8*hf, 8)
G += unpack(vU, vXr, 8)
GA = [f"v_add_u32 v32, s{r.sM0K}, v{vOq}"] + [f"v_xor_b32 v{32+nb}, {nb*1024 + nb*64}, v32" for nb in range(1, 4)]
GA += ["v_lshrrev_b32 v31, 2, v0", f"v_lshlrev_b32 v30, 2, v{vC3}", "v_xor_b32 v31, v31, v30", "v_lshlrev_b32 v31, 4, v31", f"v_lshl_add_u32 v31, v{vC3}, 10, v31",
       f"s_lshl_b32 s3, s{sWave}, 14", "v_add_u32 v31, s3, v31", "v_mov_b32 v29, 0xffffff00"]
NB = [4, 5, 6, 7]
GA += [f"s_bfe_u32 s{NB[e]}, s{sNonce}, {hex(0x80000 + 8*e)}" for e in range(4)]
GA += ["s_lshl_b32 s42, s2, 14", f"s_add_u32 s42, s42, s{r.sM0K}", f"s_add_u32 s42, s42, {WS_EX}", "s_xor_b32 s43, s42, 0x10000"]
assert S.vmn("xf") >= S.vmn("poll")
Q += GA + G
def ex_reads(g): return [f"ds_read_b128 {v(128+(g&1)*16+4*s_,4)}, v31 offset:{s_*4096 + g*256} ; e{g}" for s_ in range(4)]
def exreg(g): return [8, 12, 36, 40][g] if opt["exb"] else 128 + (g & 1)*16 + 4
def ex_send(g):
    b_ = 128 + (g & 1)*16
    L = [f"v_add_f32 v{b_+e}, v{b_+e}, v{b_+4+e}" for e in range(4)] + [f"v_add_f32 v{b_+8+e}, v{b_+8+e}, v{b_+12+e}" for e in range(4)]
    L += [f"v_add_f32 v{b_+e}, v{b_+e}, v{b_+8+e}" for e in range(4)] + [f"v_and_or_b32 v{exreg(g)+e}, v{b_+e}, v29, s{NB[e]}" for e in range(4)]
    return L
exld = [f"buffer_load_dwordx4 {v(128+4*g,4)}, v{vOq}, s[{sW}:{sW+3}], s43 offen offset:{g*1024} sc1" for g in range(4)]
exchk = [f"v_xor_b32 v30, s{NB[0]}, v128"] + [f"v_bitop3_b32 v30, v30, v{128+n}, s{NB[n&3]} bitop3:0xf6" for n in range(1, 16)] + \
        ["v_and_b32 v30, 0xff, v30", "v_cmp_ne_u32 vcc, 0, v30"]
cold += ["L_ex_retry:"] + spin("", "L_ex_ok") + exld + ["s_waitcnt vmcnt(0)"] + exchk + ["s_cbranch_vccnz L_ex_retry", "s_branch L_ex_ok"]
ZB, ZL, ZC = opt["zb"], opt["zl"], opt["zc"]
for z in range(32):
    qb, h = z >> 2, z & 3
    Wb, Ob = WBLK[h], OBUF[z % len(OBUF)]
    vtags = [f"o{z}"]; ltags = []
    if z < 4: ltags.append(f"r{4*z+3}")
    ops = o_loads(z + LOOK) if z + LOOK < 32 else []
    rdq = []; post = []
    if z == ZB + 1:
        assert not Q, len(Q)
        Q += [f"v_add_u32 v{32+nb}, 0x10000, v{32+nb}" for nb in range(4)]
    if opt["exf"]:
        k = z - ZB - 1
        if k in (0, 2): rdq = ex_reads(k) + ex_reads(k + 1)
        gs = (k - 1, k) if k in (1, 3) else ()
    else:
        if 0 <= z - ZB - 1 < 4: rdq = ex_reads(z - ZB - 1)
        gs = (z - ZB - 2,) if 0 <= z - ZB - 2 < 4 else ()
    for g in gs:
        ltags.append(f"e{g}"); Q += ex_send(g)
        post += [f"buffer_store_dwordx4 {v(exreg(g),4)}, v{vOq}, s[{sW}:{sW+3}], s42 offen offset:{g*1024} sc1"]
    if z == ZB + 6: Q += ["v_add_u32 v31, 0x10000, v31"]
    if z == ZL: ops += [l + " ; ex" for l in exld]
    if z == ZC:
        vtags.append("ex")
        Q += exchk + ["s_cbranch_vccnz L_ex_retry" if opt["exb"] != 2 else "s_nop 0", "L_ex_ok:"] + [f"v_and_b32 v{128+n}, v29, v{128+n}" for n in range(16)] + \
             [f"v_fma_f32 v{vU+n}, v{128+n}, v{vGf+n}, v{vU+n}" for n in range(16)]
    pend.extend(ops)
    w = f"s_waitcnt vmcnt({S.vmn(*vtags)})"
    if ltags: w += f" lgkmcnt({S.lgn(*ltags)})"
    E(w)
    if h == 0: stamp(4)
    if z >= 17: stamp(32)
    wr = [f"ds_write_b128 v{32+nb}, {blk(ACC, ((qb-1)&1)*16 + nb*4, 4)} offset:{((qb-1)&3)*16384}" for nb in range(4)] if h == 0 and qb else []
    if z == 4: assert len(Q) <= len(G)
    assert not (wr and qb == 5 and z <= ZB + 1)
    nbuf = sum(l.startswith("buffer") for l in pend)
    slots = [3 + 4*int(i*4/nbuf) for i in range(nbuf)]
    for n in range(16):
        nb, i = n >> 2, n & 3
        if nb & 1: i = 3 - i
        D = blk(ACC, (qb & 1)*16 + nb*4, 4)
        m = f"{MF} {D}, {blk(Wb, (nb*4 + i)*4, 4)}, {blk(Ob, i*4, 4)}, {'0' if h == 0 and n & 3 == 0 else D}"
        lead = []
        if n & 3 == 3:
            for _ in range(2 if z == ZB else 1):
                if wr: lead.append(wr.pop(0))
            for _ in range(slots.count(n)):
                while pend[0].startswith("s_"): lead.append(pend.pop(0))
                lead.append(pend.pop(0))
            if n == 15:
                lead += pend; del pend[:]
                if post:
                    while Q: lead.append(Q.pop(0))
                    lead += post
                if z == ZB: lead += ["s_waitcnt lgkmcnt(0)", "s_barrier"]
        elif rdq and (n & 3 == 0 or opt["exf"]): lead.append(rdq.pop(0))
        S.gap(m, lead)
    assert not rdq and not pend and not wr, (z, pend)
S.drain()
stamp(5)
for nb in range(4):
    l = f"ds_write_b128 v{32+nb}, {blk(ACC, 16 + nb*4, 4)} offset:{3*16384}"
    while not S.ok(l): E("s_nop 0")
    E(l)
E("s_waitcnt lgkmcnt(0)")
E("s_barrier")
for g in range(4):
    for s_ in range(4): E(f"ds_read_b128 {v(64+s_*16+g*4,4)}, v31 offset:{s_*4096 + g*256}")
for g in range(4):
    E(f"s_waitcnt lgkmcnt({12 - 4*g})")
    for e in range(4*g, 4*g + 4): E(f"v_add_f32 v{64+e}, v{64+e}, v{80+e}"); E(f"v_add_f32 v{96+e}, v{96+e}, v{112+e}")
    for e in range(4*g, 4*g + 4): E(f"v_add_f32 v{64+e}, v{64+e}, v{96+e}")
    for e in range(4*g, 4*g + 4): E(f"v_fma_f32 v{64+e}, v{64+e}, v{vGf+e}, v{vU+e}")
    for e in range(2*g, 2*g + 2): E(f"v_cvt_pk_bf16_f32 v{8+e}, v{64+2*e}, v{65+2*e}")
    if g & 1: E(f"global_store_dwordx4 v{vXo}, {v(8+4*(g>>1),4)}, s[{pOut}:{pOut+1}] offset:{16*(g>>1)}{POL[opt['ost']]}")
stamp(1)
if opt["stamp"]: E("s_waitcnt vmcnt(0)")
stamp(1)
if opt["stamp"]:
    M(f"""
    s_lshl_b32 s3, s2, 2
    s_add_u32 s3, s3, s{sWave}
    s_lshl_b32 s3, s3, 7
    s_add_u32 s3, s3, {WS_T}
    v_mov_b32 v3, 0
    """)
    for i in range(32): E(f"v_mov_b32 v{4+i}, s{70+i}" if i < 2*nstamp[0] else f"v_mov_b32 v{4+i}, 0")
    for i in range(8): E(f"buffer_store_dwordx4 v[{4+4*i}:{7+4*i}], v3, s[{sW}:{sW+3}], s3 offen offset:{16*i}")
E("s_endpgm")
r.vVDl = [20, 21, 20, 21]
M(f"""
L_fallback:
s_cmp_lg_u32 s{sFb}, 0
s_cbranch_scc1 L_safe
s_mov_b32 s{sFb}, 1
s_mov_b32 s{sMask2}, 0
s_mov_b32 s{sMask4}, 0x80
s_lshl_b32 s3, s{sHead}, 19
s_add_u32 s{sK}, s{pK}, s3
s_addc_u32 s{sK+1}, s{pK+1}, 0
s_mov_b32 s{sK+2}, 0x80000
s_add_u32 s{sV}, s{pV}, s3
s_addc_u32 s{sV+1}, s{pV+1}, 0
s_mov_b32 s{sV+2}, 0x80000
s_mov_b32 s{r.sKoff}, 0
s_mov_b32 s{r.sVoff}, 0
s_mov_b32 s{r.sKinc}, 0x4000
s_mov_b32 s{r.sVinc}, 0x4000
s_mov_b32 s{r.sIt}, 0
v_lshlrev_b32 v3, 4, v0
v_lshrrev_b32 v60, 2, v2
v_and_b32 v61, 1, v1
v_lshl_add_u32 v60, v61, 2, v60
v_and_b32 v63, 3, v0
s_waitcnt vmcnt(0) lgkmcnt(0)
s_barrier
""")
for l in ADDR + VCOPY: E(l)
for i in range(16): E(f"v_mov_b32 v{r.vM+i}, 0")
for i in range(16): E(f"v_mov_b32 v{r.vL+i}, 0")
for l in ozero(r.vM): E(l)
for qb in range(4): E(f"v_mov_b32 v{60+qb}, 0xff800000")
E("L_fb_loop:")
plain(kdma(0))
M("s_waitcnt vmcnt(0)\ns_barrier")
for i in range(16): E(X.kread(0, i))
M("s_waitcnt lgkmcnt(0)\ns_barrier")
for g in range(64): E(X.qk(g))
E("s_nop 7")
for qb in range(4):
    for e in range(8): E(f"v_max3_f32 v{60+qb}, v{60+qb}, v{r.vS+16*qb+2*e}, v{r.vS+16*qb+2*e+1}")
M(f"""
s_cmp_lt_u32 s{r.sKoff}, 0x80000
s_cbranch_scc1 L_fb_loop
s_mov_b32 s{r.sKoff}, 0
""")
plain(kdma(0) + kdma(1) + vdma(0) + kdma(2) + vdma(1) + kdma(3) + vdma(2))
for sw in ("v_permlane32_swap_b32", "v_permlane16_swap_b32"):
    for qb in range(4): E(f"v_mov_b32 v{128+qb}, v{60+qb}")
    E("s_nop 1")
    for qb in range(4): E(f"{sw} v{128+qb}, v{60+qb}")
    E("s_nop 1")
    for qb in range(4): E(f"v_max_f32 v{60+qb}, v{60+qb}, v{128+qb}")
for qb in range(4):
    for e in range(4): E(f"v_sub_f32 v{r.vM+4*qb+e}, 0, v{60+qb}")
M("s_waitcnt vmcnt(0)\ns_barrier")
for i in range(16): E(X.kread(0, i))
M("s_waitcnt lgkmcnt(0)\ns_branch L_restart")
for l in cold: E(l)
A.label("L_end")
E("s_endpgm")
A.raw(f""".section .rodata,"a"
.p2align 6
.amdhsa_kernel {KN}_kernel
  .amdhsa_next_free_vgpr 512
  .amdhsa_next_free_sgpr 102
  .amdhsa_accum_offset 256
  .amdhsa_group_segment_fixed_size 0
  .amdhsa_kernarg_size 104
  .amdhsa_user_sgpr_count 2
  .amdhsa_user_sgpr_kernarg_segment_ptr 1
  .amdhsa_system_sgpr_workgroup_id_x 1
  .amdhsa_float_denorm_mode_32 3
.end_amdhsa_kernel""")
txt = A.text()
if opt["exper"]:
    import re as _re
    a_, b_ = txt.index("L_loop:"), txt.index("L_disp4:")
    body = txt[a_:b_].split("\n"); ex = opt["exper"]; out = []
    for l in body:
        t_ = l.strip()
        if ex == 2 and t_.startswith("v_cvt_pk"): continue
        if ex == 3 and t_.startswith("v_exp"): l = l.replace("v_exp_f32", "v_mov_b32")
        if ex == 4 and t_.startswith("ds_read_b128"): continue
        if ex == 5 and t_.startswith("ds_read_b64_tr"): continue
        if ex == 6 and t_.startswith("v_smfmac"): continue
        if ex == 7: l = _re.sub(r", v\[(44:47|48:51|52:55|56:59)\]$", ", 0", l)
        if ex == 8 and t_.startswith("buffer_load"): continue
        if ex == 10 and t_.startswith("buffer_load"): l = _re.sub(r"dwordx4 v\d+,", "dwordx4 v60,", l)
        if ex == 11 and t_.startswith("buffer_load"): l = _re.sub(r"dwordx4 v\d+,", "dwordx4 v60,", l).replace("s23 ", "0 ").replace("s24 ", "0 ").replace(" nt", "")
        if (ex == 12 and t_.startswith("v_mfma_f32_16x16x32_bf16 a")) or (ex == 13 and t_.startswith("v_mfma_f32_16x16x32_bf16 v")):
            o_ = t_.split(", "); l = "    " + ", ".join([o_[0], o_[2], o_[1], o_[3]])
        if ex == 9 and t_.startswith("v_cvt_pk"):
            m_ = _re.match(r"v_cvt_pk_bf16_f32 (v\d+), (v\d+), (v\d+)", t_); l = f"    v_perm_b32 {m_[1]}, {m_[3]}, {m_[2]}, s64"
        out.append(l)
    txt = txt[:a_] + "\n".join(out) + txt[b_:]
    if ex >= 10: txt = txt.replace("L_restart:\n", "L_restart:\n    v_add_u32 v60, s25, v3\n")
    if ex == 9: txt = txt.replace("L_restart:\n", "L_restart:\n    s_mov_b32 s64, 0x07060302\n")
for ro in "FRS": txt = txt.replace("MASK2" + ro, hex(m2[ro])).replace("MASK4" + ro, hex(m4[ro]))
bad = check_hazards(txt)
if bad: print("hazards:", len(bad), file=sys.stderr)
open(sys.argv[1], "w").write(txt)
```

```python
import sys, struct
from attn16 import *
KN = "recurrent_scan__mha_block_cached__moe_arch_mod__prompt"
opt = dict(al6=0, walk=1, walkat=3, kbase=768, xs=0, nos1=0, stl=1, k0st=5, kvrot=1, fline=1, ftouch=0, ppol=0, fpol=0, qs=0x29000, xe=1, exf=1, exb=0, ext=0, zb=16, zl=25, zc=30, rdpre=13, early=1, rotq=0, rotx=0, bnd=7, tg0=1, dhold=0, shift=16, perm=1, exper=0, kv6=2, wqt=0, wqlo=2, wqpos=0, otch=0, nostore=0, flip=0, xcc=0, map8=0, onerow=0, lnfirst=0, qrot=0, osp=0, fx=0, holdrel=0, bgap=63, bsplit=1, bar=1, nodma=0, pad=0, holdp=0, holdt=0, forcefb=0, ntw=0, ost=0, tlb=1, varb=1, TF=18, TP=22, moeT=99, moe=1, pollat=6, wtouch=1, otouch=0, epace=40, npost=8, npre=24, look=5, zd=24, dlag=5, rot=0, s1st=5, cyc=0, stamp=0, snake=1, pvchain=1, G0=8, nt=1, ntq=0, sm=1, drate=4, pre=2)
opt_s = dict(tg="[]", oT="(20,26)", touch="{}", hs="(8,10,12,14,16,24,27)", wT="(27,28)")
for x in sys.argv[2:]:
    k, val = x.split("=")
    if k in opt_s: opt_s[k] = val
    else: opt[k] = int(val)
A = Asm(); r = default_regs(); X = Attn(A, r, opt); S = Stream(A); E = S.emit; M = S.many
PP = [' sc1', ' sc0 sc1', ' sc1 nt', ' sc0 sc1 nt']
POL = ["", " nt", " sc1"]
def fbits(x): return hex(struct.unpack("<I", struct.pack("<f", x))[0])
WS_O = 32 << 20
QS = opt['qs']
WS_STAT = 16 << 20
WS_KEY = WS_STAT + 0x4000
WS_FLAG = WS_STAT + 0x10000
WS_SEL = WS_STAT + 0x8000
WS_FC = WS_STAT + 0x9000
WS_UPD = WS_STAT + 0xC000
WS_XN = 18 << 20
WS_PART = 20 << 20
WS_EX = 24 << 20
WS_T = 64 << 20
sX, sK, sV, sW, sWq = 4, 8, 12, 16, 28
sWave, sHead, sQb = 20, 21, 22
sXoff, sWoff, sM0X, sM0W = 34, 35, 62, 63
pX, pK, pV, pWq, pWo, pWr, pWg, pWu, pWd, pOut, pDbg, pWs = 36, 38, 40, 42, 44, 48, 50, 52, 54, 56, 58, 60
sKey0, sRow0, sNonce = 64, 66, 46
sSpin = 33
def spin(label, ok): return [f"s_cmp_eq_u32 s{sSpin}, 0", f"s_cbranch_scc1 {ok}", f"s_sub_u32 s{sSpin}, s{sSpin}, 1"]
cold = []
nstamp = [0]
CLK = "s_memtime" if opt["cyc"] else "s_memrealtime"
npoint = [0]
def hold_at():
    npoint[0] += 1
    if opt["holdp"] == npoint[0]:
        M(f"""
        L_hold:
        s_memrealtime s[98:99]
        s_waitcnt lgkmcnt(0)
        s_sub_u32 s98, s98, s{46 if opt['holdrel'] else 100}
        s_cmp_lt_u32 s98, {opt['holdt']*100}
        s_cbranch_scc1 L_hold
        """)
def stamp(lvl=1, wait=True):
    if lvl & 1: hold_at()
    if opt["stamp"] & lvl and nstamp[0] < 16:
        i = nstamp[0]; nstamp[0] += 1
        E(f"{CLK} s[{70+2*i}:{71+2*i}]")
        if wait: E("s_waitcnt lgkmcnt(0)")

A.raw("; @launch grid=(256,1,1) block=(256,1,1) lds=163840")
A.raw('.amdgcn_target "amdgcn-amd-amdhsa--gfx950"')
A.raw(".text"); A.raw(".p2align 12"); A.raw(f".globl {KN}_kernel"); A.raw(".p2align 8"); A.raw(f".type {KN}_kernel,@function")
A.label(f"{KN}_kernel")
M(f"""
s_cmp_ge_u32 s2, 256
s_cbranch_scc1 L_end
s_load_dwordx16 s[36:51], s[0:1], 0
s_load_dwordx8 s[52:59], s[0:1], 64
s_load_dwordx2 s[60:61], s[0:1], 96
s_memrealtime s[68:69]
""")
if opt["stamp"]:
    E(f"{CLK} s[70:71]"); nstamp[0] = 1
if opt["holdp"]: E("s_memrealtime s[100:101]")
M(f"""
s_getpc_b64 s[32:33]
v_lshrrev_b32 v1, 6, v0
v_and_b32 v0, 63, v0
s_and_b32 s3, s2, 0xf8
s_lshl_b32 s3, s3, 1
v_lshl_add_u32 v4, v1, 2, v0
v_add_lshl_u32 v4, v4, s3, 7
v_min_u32 v4, L_end-{KN}_kernel-128, v4
s_mov_b64 exec, 15
global_load_dword v23, v4, s[32:33]
s_mov_b64 exec, -1
v_readfirstlane_b32 s{sWave}, v1
s_and_b32 s3, s2, {6 if opt['map8'] else 7}
s_lshl_b32 s3, s3, 2
s_bfe_u32 s{sHead}, s2, {'0x30003' if opt['map8'] else '0x20003'}
s_or_b32 s{sHead}, s{sHead}, s3
s_lshr_b32 s{sQb}, s2, {6 if opt['map8'] else 5}
s_and_b32 s3, s2, {1 if opt['map8'] else 0}
s_lshl_b32 s3, s3, 2
s_or_b32 s{sQb}, s{sQb}, s3
v_lshrrev_b32 v1, 4, v0
v_and_b32 v2, 15, v0
""")
vXD, vWD, vXA, vWA, vCS, vKM = 76, 84, 88, 92, 100, 108
vSX, vG = r.vL, r.vM
M(f"""
v_lshrrev_b32 v4, 3, v0
s_lshl_b32 s3, s{sWave}, 6
v_add_u32 v4, s3, v4
v_lshlrev_b32 v4, 10, v4
v_and_b32 v5, 7, v0
v_xor_b32 v6, v5, v1
v_xor_b32 v7, 4, v6
v_lshl_add_u32 v6, v6, 4, v4
v_lshl_add_u32 v7, v7, 4, v4
""")
for p in range(8): E(f"v_add_u32 v{vXD+p}, {p*8192 - (p&3)*1024}, v{6+(p&1)}")
M(f"""
s_lshl_b32 s3, s{sWave}, 4
v_add_u32 v4, s3, v1
v_lshlrev_b32 v4, 13, v4
v_lshlrev_b32 v5, 1, v1
v_xor_b32 v6, v5, v2
v_xor_b32 v7, 8, v6
v_lshl_add_u32 v6, v6, 4, v4
v_lshl_add_u32 v7, v7, 4, v4
""")
for p in range(4): E(f"v_add_u32 v{vWD+p}, {p*4*8192 - p*1024}, v{6+(p>>1)}")
M(f"""
s_lshl_b32 s{sM0X}, s{sWave}, 13
s_lshl_b32 s{r.sM0K}, s{sWave}, 12
s_add_u32 s{sM0W}, s{r.sM0K}, 0xC000
s_and_b32 s3, s{sQb}, {opt['rotq']}
s_and_b32 s67, s2, {opt['rotx']}
s_add_u32 s3, s3, s67
s_and_b32 s3, s3, 7
s_lshl_b32 s{sXoff}, s3, 7
s_lshl_b32 s{sWoff}, s3, 19
s_mov_b32 s{sX+2}, 0x40000
s_mov_b32 s{sX+3}, 0x20000
s_mov_b32 s{sWq+3}, 0x20000
s_lshl_b32 s3, s{sQb}, 18
s_lshl_b32 s67, s{sHead}, 8
s_sub_u32 s{sWq+2}, 0x400000, s67
s_waitcnt lgkmcnt(0)
s_add_u32 s{sX}, s{pX}, s3
s_addc_u32 s{sX+1}, s{pX+1}, 0
s_add_u32 s{sWq}, s{pWq}, s67
s_addc_u32 s{sWq+1}, s{pWq+1}, 0
s_or_b32 s3, s2, s{sWave}
s_cbranch_scc1 L_nononce
""")
A("s_getreg_b32 s3, hwreg(HW_REG_XCC_ID, 0, 1)"); A("s_lshl_b32 s68, s68, 2"); A("s_lshl_b32 s3, s3, 1"); A("s_or_b32 s68, s68, s3")
A("s_or_b32 s68, s68, 1"); A("v_mov_b32 v4, 0"); A("v_mov_b32 v5, s68"); A(f"global_store_dword v4, v5, s[{pDbg}:{pDbg+1}] sc1")
E("L_nononce:")
if opt["xcc"]:
    M(f"""s_cmp_ge_u32 s2, 8
    s_cbranch_scc1 L_noxcc
    s_getreg_b32 s3, hwreg(HW_REG_XCC_ID)
    s_add_u32 s3, s3, 100
    v_mov_b32 v5, s3
    s_lshl_b32 s3, s2, 2
    v_mov_b32 v4, s3""")
    A(f"global_store_dword v4, v5, s[{pDbg}:{pDbg+1}] offset:4")
    E("L_noxcc:")
stamp(2)
XSLOT = [[0x18000, 0x20000, 0x4000], [0x20000, 0x18000, 0x4000], [0x18000, 0x18000, 0x4000]][opt['xs']]
def xdma(st):
    L = []
    for p in range(8):
        if p & 3 == 0: L.append(f"s_add_u32 m0, s{sM0X}, {XSLOT[st%3] + (p>>2)*4096}")
        L.append(f"buffer_load_dwordx4 v{vXD+p}, s[{sX}:{sX+3}], s{sXoff} offen offset:{(p&3)*1024}{POL[opt['ntq']]} lds ; x{st}")
    L.append(f"s_add_u32 s{sXoff}, s{sXoff}, 128")
    if opt["rotq"] or opt["rotx"]: L.append(f"s_and_b32 s{sXoff}, s{sXoff}, 0x3ff")
    return L
def wdma(st):
    L = [f"s_add_u32 m0, s{sM0W}, {(st%3)*16384}"]
    for p in range(4):
        L.append(f"buffer_load_dwordx4 v{vWD+p}, s[{sWq}:{sWq+3}], s{sWoff} offen offset:{p*1024}{POL[opt['ntw']]} lds ; w{st}")
    L.append(f"s_add_u32 s{sWoff}, s{sWoff}, 0x80000")
    if opt["rotq"] or opt["rotx"]: L.append(f"s_and_b32 s{sWoff}, s{sWoff}, 0x3fffff")
    return L
def tagged(L, t): return [l + " ; " + t if l.startswith("buffer") else l for l in L]
def wrap(x): return [f"s_and_b32 s{x}, s{x}, 0x7ffff"] if opt["kvrot"] else []
def kdma(T): return tagged(X.dma(T & 3)[:5], f"k{T}") + [f"s_add_u32 s{r.sKoff}, s{r.sKoff}, 0x4000"] + wrap(r.sKoff)
def vdma(T): return tagged(X.dma((T + 1) & 3)[5:], f"v{T}") + [f"s_add_u32 s{r.sVoff}, s{r.sVoff}, 0x4000"] + wrap(r.sVoff)
def plain(L):
    for l in L:
        E(l)
        if l.startswith("s_add_u32 m0"): E("s_nop 0")
Q = S.q
vCA = 124
def xors(dst, n, step): return [f"v_xor_b32 v{dst+k}, {k*step}, v{dst}" for k in range(1, n)]
PRE = f"""v_lshlrev_b32 v3, 4, v0
s_lshl_b32 s3, s{sHead}, 2
s_add_u32 s3, s3, s{sWave}
s_lshl_b32 s{sRow0}, s3, 11
v_lshrrev_b32 v4, 1, v2
v_xor_b32 v4, v4, v1
v_lshl_add_u32 v5, v2, 7, s{sM0X}
v_lshl_add_u32 v6, v4, 4, v5
v_add_u32 v{vXA}, 0x18000, v6
v_add_u32 v{vXA+2}, {XSLOT[2]}, v6
v_xor_b32 v{vXA+1}, 64, v{vXA}
v_xor_b32 v{vXA+3}, 64, v{vXA+2}
v_lshrrev_b32 v4, 2, v2
v_and_b32 v63, 3, v0
v_and_b32 v6, 1, v1
v_lshl_add_u32 v60, v6, 2, v4
v_lshl_add_u32 v5, v1, 3, v4
v_lshlrev_b32 v5, 8, v5
v_lshl_add_u32 v5, v63, 3, v5
v_lshl_add_u32 v5, v60, 5, v5
s_lshl_b32 s3, s{sWave}, 6
s_add_u32 s3, s3, 0xC000
v_xor_b32 v{vWA}, s3, v5""".split("\n") + xors(vWA, 8, 32)
PRE += [f"v_mov_b32 v{vCS+i}, 0" for i in range(8)]
PRE += f"""v_mov_b32 v62, 0x3f803f80
v_cmp_gt_u32 vcc, 2, v63
v_and_b32 v4, 1, v0
v_mov_b32 v5, 0x44444444
v_mov_b32 v6, 0xeeeeeeee
v_cndmask_b32 v{r.vOne}, 0, v62, vcc
v_cndmask_b32 v{r.vOne+1}, 0, v62, vcc
v_cndmask_b32 v{r.vOne+2}, 0, v62, vcc
v_cndmask_b32 v{r.vOne+3}, 0, v62, vcc
v_cmp_eq_u32 vcc, 1, v4
s_lshl_b32 s1, s{sQb}, 2
s_add_u32 s1, s1, s{sWave}
v_cndmask_b32 v{r.vIdx}, v5, v6, vcc
s_lshl_b32 s1, s1, 9
s_add_u32 s1, s1, {WS_STAT}""".split("\n")
def ozero(z): return [f"v_mfma_f32_32x32x16_bf16 {a(r.aO+16*i,16)}, {v(z,4)}, {v(z,4)}, 0" for i in range(8)]
ADDR = f"""v_lshl_add_u32 v61, v1, 8, s{r.sM0K}
v_xor_b32 v62, v1, v2
v_lshl_add_u32 v{r.vKD}, v62, 4, v61""".split("\n") + xors(r.vKD, 4, 64) + f"""v_lshlrev_b32 v62, 1, v1
v_xor_b32 v62, v62, v2
v_lshl_add_u32 v{r.vVD}, v62, 4, v61
v_xor_b32 v{r.vVD+1}, 128, v{r.vVD}
v_lshrrev_b32 v61, 2, v0
v_lshlrev_b32 v61, 8, v61
v_lshl_add_u32 v61, v63, 3, v61
v_lshl_add_u32 v61, v60, 5, v61
v_add_u32 v{r.vVA}, {r.VBASE}, v61""".split("\n") + xors(r.vVA, 8, 32) + f"""v_lshrrev_b32 v61, 1, v1
v_and_b32 v62, 1, v1
v_lshl_add_u32 v62, v62, 1, v61
v_lshl_add_u32 v62, s{sWave}, 2, v62
v_xor_b32 v61, v62, v2
v_lshlrev_b32 v61, 4, v61
v_lshl_add_u32 v{r.vKA}, v2, 8, v61""".split("\n") + xors(r.vKA, 4, 64)
VCOPY = ["v_mov_b32 v1, v20", "v_mov_b32 v2, v21"]
PRE2 = ADDR + f"""v_xor_b32 v61, v62, v63
v_lshlrev_b32 v61, 4, v61
v_lshl_add_u32 v{vKM}, v63, 8, v61""".split("\n") + xors(vKM, 4, 64)
PRE2 += [f"s_add_u32 s67, s{sM0X}, {XSLOT[1]}", "v_lshl_add_u32 v62, v2, 2, s67", "v_lshlrev_b32 v61, 3, v2", f"v_lshl_add_u32 v{vCA}, v1, 4, s67"] + xors(vCA, 4, 8192)
PRE2 += VCOPY
PRE2 += [f"s_lshl_b32 s3, s{sHead}, 19", [f"s_add_u32 s{sK}, s{pK}, s3", f"s_addc_u32 s{sK+1}, s{pK+1}, 0"], [f"s_add_u32 s{sV}, s{pV}, s3", f"s_addc_u32 s{sV+1}, s{pV+1}, 0"]]
PRE2 += f"""s_mov_b32 s{sK+2}, 0x80000
s_mov_b32 s{sK+3}, 0x20000
s_mov_b32 s{sV+2}, 0x80000
s_mov_b32 s{sV+3}, 0x20000
s_mov_b32 s{sW}, s{pWs}
s_mov_b32 s{sW+1}, s{pWs+1}
s_mov_b32 s{sW+2}, 0x10000000
s_mov_b32 s{sW+3}, 0x20000
s_mul_i32 s{r.sKoff}, s{sHead}, {0x4000*opt['kvrot']}
s_and_b32 s{r.sKoff}, s{r.sKoff}, 0x7ffff
s_mov_b32 s{r.sVoff}, s{r.sKoff}
s_mov_b32 s{sSpin}, 0x100000
s_add_u32 s{r.sM0V}, s{r.sM0K}, {r.VBASE}""".split("\n")
for n, m in enumerate(ozero(vCS + 4)): PRE2.insert(8*n + 2, m)
def issue(L, F):
    F = list(F); per = -(-len(F) // sum("lds" in l for l in L))
    for l in L:
        E(l)
        if l.startswith("s_add_u32 m0"): E("s_nop 0")
        if "lds" in l:
            for f in F[:per]:
                for x_ in (f if isinstance(f, list) else [f]): E(x_)
            del F[:per]
issue(wdma(0) + xdma(0), PRE)
stamp(2, False)
LN = f"""buffer_load_dwordx4 v[64:67], v3, s[{sX}:{sX+3}], s{sRow0} offen ; ln
buffer_load_dwordx4 v[68:71], v3, s[{sX}:{sX+3}], s{sRow0} offen offset:1024 ; ln
global_load_dwordx4 v[72:75], v3, s[{pWr}:{pWr+1}] ; ln""".split("\n")
L1 = []
for st in range(1, opt["pre"]): L1 += wdma(st) + xdma(st)
if opt["walk"]:
    nw_ = [i for i, l in enumerate(L1) if "lds" in l][opt["walkat"]] + 1
    L1[nw_:nw_] = ["s_mov_b64 exec, 0", f"s_bitcmp1_b32 s{sWave}, 1", "s_cbranch_scc1 L_walk_hi", f"s_bitcmp1_b32 s{sWave}, 0", "s_cbranch_scc1 L_pad1", "s_branch L_pad0",
                   "L_walk_hi:", f"s_bitcmp1_b32 s{sWave}, 0", "s_cbranch_scc1 L_pad3", "s_branch L_pad2", "L_walk_done:", "s_mov_b64 exec, -1"]
issue(L1 + LN, PRE2)
M(f"""
v_mov_b32 v55, 0
s_lshl_b32 s3, s{sQb}, 8
s_lshr_b32 s{sRow0}, s{sRow0}, 10
s_add_u32 s{sRow0}, s{sRow0}, s3
""")
stamp(2, False)
aXN = 248
def unpack(dst, src, n=4):
    L = []
    for k in range(n):
        L += [f"v_lshlrev_b32 v{dst+2*k}, 16, v{src+k}", f"v_and_b32 v{dst+2*k+1}, 0xffff0000, v{src+k}"]
    return L
def wave_sum(reg, sdst):
    return [f"v_add_f32_dpp v{reg}, v{reg}, v{reg} {m} bank_mask:0xf" for m in
            ("quad_perm:[1,0,3,2] row_mask:0xf", "quad_perm:[2,3,0,1] row_mask:0xf", "row_half_mirror row_mask:0xf",
             "row_mirror row_mask:0xf", "row_bcast:15 row_mask:0xa", "row_bcast:31 row_mask:0xc")] + [f"v_readlane_b32 s{sdst}, v{reg}, 63"]
def rbf(x): return [f"v_cvt_pk_bf16_f32 v{x}, v{x}, v{x}", f"v_lshlrev_b32 v{x}, 16, v{x}"]
vE, vD, vWr, vO = 32, 40, 112, 120
Q.append(lambda: f"s_waitcnt vmcnt({S.vmn('ln')})")
NONCE = [lambda: f"s_waitcnt vmcnt({S.vmn('nonce')})", f"v_readfirstlane_b32 s{sNonce}, v23", "s_nop 0", f"s_cmp_eq_u32 s{sNonce}, 0",
         "s_cbranch_scc1 L_nonce_retry", "L_nonce_ok:"]
cold += ["L_nonce_retry:"] + spin("", "L_nonce_ok") + [f"global_load_dword v23, v55, s[{pDbg}:{pDbg+1}] sc1", "s_waitcnt vmcnt(0)",
         f"v_readfirstlane_b32 s{sNonce}, v23", "s_nop 0", f"s_cmp_eq_u32 s{sNonce}, 0", "s_cbranch_scc1 L_nonce_retry", "s_branch L_nonce_ok"]
Q += ["v_mov_b32 v50, 0x3b000000"]
for k in range(2):
    Q += unpack(vE, 64 + 4*k)
    Q += [f"v_add_f32 v{vD+e}, v{vE+2*e}, v{vE+2*e+1}" for e in range(4)]
    Q += [f"v_add_f32 v{vD}, v{vD}, v{vD+1}", f"v_add_f32 v{vD+2}, v{vD+2}, v{vD+3}", f"v_add_f32 v48, v{vD}, v{vD+2}"]
    Q += wave_sum(48, 68) + ["v_mul_f32 v48, s68, v50"]
    Q += [f"v_sub_f32 v{vD+e}, v{vE+e}, v48" for e in range(8)]
    Q += [f"v_mul_f32 v49, v{vD}, v{vD}"] + [f"v_fmac_f32 v49, v{vD+e}, v{vD+e}" for e in range(1, 8)]
    Q += wave_sum(49, 68)
    Q += ["v_mul_f32 v49, s68, v50"] + rbf(49) + ["v_add_f32 v49, 0x3727c5ac, v49"] + rbf(49) + ["v_sqrt_f32 v49, v49"]
    Q += [f"v_cvt_pk_bf16_f32 v{vO+2*k}, v48, v49"]
Q += [NONCE, f"v_mov_b32 v{vO+1}, s{sNonce}", f"v_mov_b32 v{vO+3}, s{sNonce}"]
Q += [f"s_lshl_b32 s68, s{sRow0}, 3", f"s_add_u32 s65, s68, {WS_KEY}", f"s_add_u32 s68, s68, {WS_STAT}"]
Q.append(["s_mov_b64 exec, 1", f"buffer_store_dwordx4 v[{vO}:{vO+3}], off, s[{sW}:{sW+3}], s68 sc1 ; s1", "s_mov_b64 exec, -1"])
Q += unpack(vWr, 72)
for k in range(2):
    Q += unpack(vE, 64 + 4*k) + [f"v_lshlrev_b32 v48, 16, v{vO+2*k}", f"v_and_b32 v49, 0xffff0000, v{vO+2*k}", "v_rcp_f32 v49, v49"]
    Q += [f"v_sub_f32 v{vE+e}, v{vE+e}, v48" for e in range(8)]
    Q += [f"v_cvt_pk_bf16_f32 v{vD+e}, v{vE+2*e}, v{vE+2*e+1}" for e in range(4)]
    Q += unpack(vE, vD)
    Q += [f"v_mul_f32 v{vE+e}, v{vE+e}, v49" for e in range(8)]
    Q += [f"v_cvt_pk_bf16_f32 v{64+4*k+e}, v{vE+2*e}, v{vE+2*e+1}" for e in range(4)]
    Q += unpack(vE, 64 + 4*k)
    Q += [f"v_mul_f32 v49, v{vE}, v{vWr}"] + [f"v_fmac_f32 v49, v{vE+e}, v{vWr+e}" for e in range(1, 8)]
    Q += wave_sum(49, 68) + [f"s_sub_u32 s67, {2047-k}, s{sRow0}", "v_mov_b32 v49, s68", "v_cvt_pk_bf16_f32 v49, v49, v49",
          "v_ashrrev_i32 v48, 31, v49", "v_or_b32 v48, 0x80000000, v48", "v_xor_b32 v49, v48, v49", "v_and_b32 v49, 0xffff0000, v49",
          f"v_or_b32 v{72+k}, s67, v49", f"v_mov_b32 v{74+k}, s{sNonce}"]
Q += [f"s_lshl_b32 s64, s{sRow0}, 10", f"s_add_u32 s64, s64, {WS_XN}"]
XNST = [f"buffer_store_dwordx4 v[{64+4*k}:{67+4*k}], v3, s[{sW}:{sW+3}], s64 offen offset:{k*1024} sc1 ; xn" for k in range(2)]
KEYST = ["s_mov_b64 exec, 1", f"buffer_store_dwordx4 v[60:63], off, s[{sW}:{sW+3}], s65 sc1 ; s1", "s_mov_b64 exec, -1"]
NFILL = len(Q); S1 = list(Q); del Q[:]
r.sKinc, r.sVinc = 34, 35
sMask2, sMask4 = 62, 63
sQt, sNt = 47, 32
sChunk, sSlow = 69, 66
sFb = 0
SET = f"""s_mov_b32 s{r.sKinc}, 0x4000
s_mov_b32 s{r.sVinc}, 0x4000
s_mov_b32 s{r.sIt}, 0
s_and_b32 s3, s2, 3
s_lshl_b32 s3, s3, 2
s_lshr_b32 s{sQt}, s2, 6
s_add_u32 s{sQt}, s{sQt}, s3
s_lshl_b32 s{sQt}, s{sQt}, 1
s_bfe_u32 s67, s2, 0x10002
s_add_u32 s{sQt}, s{sQt}, s67
s_bfe_u32 s{sNt}, s2, 0x30003
s_andn2_b32 s67, 4, s2
s_add_u32 s67, s67, s{sWave}
s_lshl_b32 s67, s67, 19
s_lshl_b32 s3, s{sNt}, 7
s_add_u32 s3, s3, s67
s_sub_u32 s{sWq+2}, 0x400000, s3""".split("\n")
SET.append([f"s_add_u32 s{sWq}, s{pWo}, s3", f"s_addc_u32 s{sWq+1}, s{pWo+1}, 0"])
if opt["moe"]:
    SET += f"""s_bfe_u32 s3, s2, 0x20001
s_mul_i32 s68, s3, 28
s_lshr_b32 s67, s2, 3
s_add_u32 s{sChunk}, s68, s67
s_lshr_b32 s3, s{sNonce}, 1
s_xor_b32 s3, s3, s2
s_xor_b32 s{sSlow}, s3, {opt['flip']}""".split("\n")
    SET += [f"s_mov_b32 s{sMask2}, MASK2F", f"s_mov_b32 s{sMask4}, MASK4F"]
    SET.append(["s_cmp_ge_u32 s67, 28", f"s_cselect_b32 s{sChunk}, -1, s{sChunk}"])
    SET.append(["s_cmp_ge_u32 s67, 28", f"s_cselect_b32 s{sMask2}, MASK2R, s{sMask2}", f"s_cselect_b32 s{sMask4}, MASK4R, s{sMask4}"])
    SET.append([f"s_and_b32 s{sSlow}, s{sSlow}, 1", f"s_cselect_b32 s{sMask2}, MASK2S, s{sMask2}", f"s_cselect_b32 s{sMask4}, MASK4S, s{sMask4}"])
    SET += f"""s_lshl_b32 s68, s68, 5
s_lshl_b32 s67, s67, 1
s_and_b32 s3, s{sWave}, 1
s_add_u32 s67, s67, s3
s_mul_i32 s67, s67, {8*3584}
s_add_u32 s68, s68, s67
v_lshrrev_b32 v112, 3, v0
v_mul_u32_u24 v112, 3584, v112
v_and_b32 v113, 7, v0
v_min_u32 v113, 6, v113
v_lshl_add_u32 v112, v113, 7, v112
v_add_u32 v23, s68, v112""".split("\n")
    SET.append([f"s_cmp_lt_u32 s{sWave}, 2", f"s_cselect_b64 s[6:7], s[{pWg}:{pWg+1}], s[{pWu}:{pWu+1}]"])
else: SET += [f"s_mov_b32 s{sMask2}, MASK2F", f"s_mov_b32 s{sMask4}, MASK4F"]
SET += [f"s_mov_b32 s{sFb}, 0"]
aXF, aWF = 128, 192
SMF = "v_smfmac_f32_16x16x64_bf16"
def acc(j, qb): return 128 + (3 - (j >> 1))*32 + qb*8 + (j & 1)*4
def xread(st, n):
    qb, ks = n >> 1, n & 1; slot = st % 3
    base = vXA + (2 if slot == 2 else 0) + ks
    off = (XSLOT[slot] - 0x18000 if slot != 2 else 0) + qb*2048
    return f"ds_read_b128 {a(aXF+(st&1)*32+n*4,4)}, v{base} offset:{off}"
def wread(st, j, n):
    ks, half = n >> 1, n & 1
    return f"ds_read_b64_tr_b16 {a(aWF+(j&3)*8+ks*4+half*2,2)}, v{vWA+j} offset:{(st%3)*16384 + ks*8192 + half*1024}"
def qmf(st, j):
    L = []
    cs = [f"{SMF} {v(vCS+4*j,4)}, {v(r.vOne,4)}, {a(aWF+(j&3)*8,8)}, v{r.vIdx}"] if j < 2 else []
    if not opt["bnd"] & 4: L += cs; cs = []
    for qb in range(4):
        for t in range(2):
            ks = t ^ (qb & 1)
            D = v(acc(j, qb), 4); C = "0" if (st == 0 and t == 0) else D
            L.append(f"{MF} {D}, {a(aWF+(j&3)*8+ks*4,4)}, {a(aXF+(st&1)*32+(qb*2+ks)*4,4)}, {C}")
    return L + cs
E(f"s_waitcnt vmcnt({S.vmn('x0', 'w0')}) lgkmcnt(0)")
E("s_barrier")
stamp(3)
for n in range(8): E(xread(0, n))
for j in range(2):
    for n in range(4): E(wread(0, j, n))
pend = []
for st in range(opt["pre"], 3): pend += wdma(st) + xdma(st)
def vmn(*tags):
    assert not any(l.split(";")[-1].strip() in tags for l in pend), (tags, pend)
    return S.vmn(*tags)
def one_dma():
    while pend:
        l = pend.pop(0); E(l)
        if l.startswith("s_add_u32 m0"): E("s_nop 0")
        if l.startswith("buffer"): break
statld = [f"buffer_load_dwordx2 v[{vG+4*qb}:{vG+4*qb+1}], v61, s[{sW}:{sW+3}], s1 offen offset:{qb*128} sc1 ; st" for qb in range(4)]
since = [99]
def dma_slot(j, n, hasds):
    if pend and pend[0].startswith("s_"): return [pend.pop(0)]
    slots = {0: (1, 5, 7), 1: (1, 5, 7), 5: (4, 6), 6: (), 7: ()}.get(j, (1, 5))
    if opt["bnd"] & 4: slots = {0: (1, 5, 7), 1: (1, 5, 7), 4: (1, 3, 5), 5: (5,), 6: (), 7: ()}.get(j, (1, 5))
    if opt["drate"] == 3: slots = {0: (1, 3, 5, 7), 1: (1, 5, 7), 5: (4, 6), 6: (), 7: ()}.get(j, (1, 3, 5))
    if pend and not hasds and (n in slots or "lds" not in pend[0]): return [pend.pop(0)]
    return []
vC = r.vL
def csread(s_): return [f"ds_read_b128 {v(vC+(s_&1)*8+4*jj,4)}, v{vCA+s_} offset:{jj*64}" for jj in range(2)]
CL2E = 1.4426950408889634 / (128 ** 0.5)
E("s_waitcnt lgkmcnt(4)")
for st in range(8):
    if st == 6:
        assert not any(f"s{sXoff}" in l or f"s{sWoff}" in l or f"s{sM0X}" in l or f"s{sM0W}" in l for l in pend)
        Q += SET
    if st == 1: pend.insert(0, f"global_load_dword v23, v55, s[{pDbg}:{pDbg+1}] sc1 ; nonce")
    if st + 3 < 8: pend += xdma(st + 3)
    if st == opt["k0st"]:
        pend += kdma(0)

    for j in range(8):
        L = qmf(st, j)
        if st*8 + j == opt["s1st"]: Q += S1 if not opt["nos1"] else [f for f in S1 if not (isinstance(f, str) and (f.startswith("v_") and ("dpp" in f or "readlane" in f or opt["nos1"] == 2) and "s46" not in f))]
        ds = [None] * len(L); last = []
        if j < 6:
            o = 0
            for n in range(4): ds[o + (n if j == 5 else 2*n)] = wread(st, j + 2, n)
            if j < 5: last = ["s_waitcnt lgkmcnt(4)"]
            elif st < 7:
                tags = [f"x{st+1}", f"w{st+1}"]
                last = [lambda tags=tags: f"s_waitcnt vmcnt({vmn(*tags)}) lgkmcnt(0)", "s_barrier"]
            else: last = [lambda: f"s_waitcnt vmcnt({vmn(*(('k0',) if opt['stl'] else ('k0', 'st')))}) lgkmcnt(0)", "s_barrier"]
        elif st < 7:
            seq = [xread(st + 1, n) for n in range(4)] + [wread(st + 1, 0, n) for n in range(4)] if j == 6 else \
                  [xread(st + 1, 4 + n) for n in range(4)] + [wread(st + 1, 1, n) for n in range(4)]
            ds = seq
            if j == 7: last = ["s_waitcnt lgkmcnt(4)"]
        else:
            seq = csread(0) + csread(1) + [f"ds_read_b128 {a(aWF+4*s_,4)}, v{vKM+s_}" for s_ in range(4)] if j == 6 else \
                  [X.kread(0, i) for i in range(8)]
            ds = seq
        if st == 7 and j == 2:
            Q += [f"v_add_f32 v{vCS}, v{vCS}, v{vCS+1}", f"v_add_f32 v{vCS+4}, v{vCS+4}, v{vCS+5}",
                  f"ds_write2_b32 v62, v{vCS}, v{vCS+4} offset0:0 offset1:16"]
        if st == 7 and j == 6: assert not Q, len(Q)
        if st == 7 and j == (7 if opt["stl"] else 6):
            Q.append([f"v_xor_b32 v{vG+2}, s{sNonce}, v{vG+1}", f"v_xor_b32 v{vG+6}, s{sNonce}, v{vG+5}"])
            Q.append([f"v_xor_b32 v{vG+10}, s{sNonce}, v{vG+9}", f"v_xor_b32 v{vG+14}, s{sNonce}, v{vG+13}"])
            del Q[:]
            chk = [f"v_xor_b32 v{vG+4*qb+2}, s{sNonce}, v{vG+4*qb+1}" for qb in range(4)] + \
                  [f"v_or3_b32 v{vG+2}, v{vG+2}, v{vG+6}, v{vG+10}", f"v_or_b32 v{vG+2}, v{vG+2}, v{vG+14}", f"v_cmp_ne_u32 vcc, 0, v{vG+2}"]
            if opt["stl"] == 2: Q.append(None)
            if opt["stl"]: Q.append(lambda: f"s_waitcnt vmcnt({vmn('st')})")
            Q += chk + ["s_cbranch_vccnz L_stat_retry", "L_stat_ok:"]
            cold += ["L_stat_retry:"] + spin("", "L_stat_ok") + [l.split(";")[0] for l in statld] + ["s_waitcnt vmcnt(0)"] + chk + ["s_cbranch_vccnz L_stat_retry", "s_branch L_stat_ok"]
            P_ = []
            for qb in range(4):
                g = vG + 4*qb
                P_.append([f"v_and_b32 v{g+1}, 0xffff0000, v{g}", f"v_lshlrev_b32 v{g}, 16, v{g}", f"v_rcp_f32 v{g+1}, v{g+1}",
                           f"v_sub_f32 v{g}, 0, v{g}", f"v_mul_f32 v{g+1}, {fbits(CL2E)}, v{g+1}"])
            for tup in zip(*P_): Q += list(tup)
        for n, m in enumerate(L):
            lead = []
            if n == len(L) - 1 and last:
                lead = ([ds[n]] if ds[n] else []) + last
            else:
                lead = dma_slot(j, n, ds[n] is not None) + ([ds[n]] if ds[n] else [])
            S.gap(m, lead)
        if j == 5:
            stamp(2)
            if st + 3 < 8: pend += wdma(st + 3)
            if st == 6: assert len(Q) <= len(SET)
            kv = [kdma(1), vdma(0), kdma(2), vdma(1), kdma(3), vdma(2)]
            if st == 5: pend += sum(kv[:opt["kv6"]], [])
            if st == 6: pend[0:0] = statld; pend += sum(kv[opt["kv6"]:], [])
print("fillers", NFILL, "left", len(Q), "dma left", len(pend), file=sys.stderr)
if Q and Q[0] is None: Q.pop(0)
for i in range(8, 16): E(X.kread(0, i))
for l in XNST: E(l)
Q += [f"v_mov_b32 v{60+e}, v{72+e}" for e in range(4)]
S.drain()
stamp(3)
for s_ in range(4):
    E("s_waitcnt lgkmcnt(0)" if s_ != 1 else "s_nop 0")
    for qb in range(4):
        b = acc(2*s_, qb); st = vG + 4*qb
        for e in range(4):
            E(f"v_pk_fma_f32 v[{b+2*e}:{b+2*e+1}], v[{vC+(s_&1)*8+2*e}:{vC+(s_&1)*8+2*e+1}], v[{st}:{st+1}], v[{b+2*e}:{b+2*e+1}] op_sel:[0,0,0] op_sel_hi:[1,0,1]")
        if qb == 3 and s_ + 2 < 4:
            for l in csread(s_ + 2): E(l)
        for e in range(4):
            E(f"v_pk_mul_f32 v[{b+2*e}:{b+2*e+1}], v[{b+2*e}:{b+2*e+1}], v[{st}:{st+1}] op_sel:[0,1] op_sel_hi:[1,1]")
        q = r.vQ + qb*16 + s_*4
        for e in range(4): E(f"v_cvt_pk_bf16_f32 v{q+e}, v{b+2*e}, v{b+2*e+1}")
        one_dma()
    for qb in range(4):
        q = r.vQ + qb*16 + s_*4
        E(f"v_permlane16_swap_b32 v{q}, v{q+2}"); E(f"v_permlane16_swap_b32 v{q+1}, v{q+3}")
plain(pend); del pend[:]
stamp(2)
Q += [f"v_mov_b32 v{r.vL+i}, 0" for i in range(16)]
for qb in range(4):
    for s_ in range(4):
        D = v(r.vS + 48 + 4*qb, 4)
        S.gap(f"{MF} {D}, {a(aWF+4*s_,4)}, {v(r.vQ+qb*16+s_*4,4)}, {'0' if s_ == 0 else D}")
    if qb == 1:
        for q2 in range(4):
            b = r.vS + 48 + 4*q2
            Q += [f"v_max3_f32 v{b}, v{b}, v{b+1}, v{b+2}", f"v_max_f32 v{b}, v{b}, v{b+3}"] + [f"v_sub_f32 v{r.vM+4*q2+e}, {fbits(-float(opt['shift']))}, v{b}" for e in range(4)]
            if q2 == 1: hold = len(Q)
        tail = Q[hold:]; del Q[hold:]
Q += tail
S.drain()
E("s_nop 1")
stamp(3)
NT = 32
def emit_gaps(T, lo, hi, lead, mf):
    F = X.fillers(T, NT)
    for g in range(lo, hi):
        m = mf(g)
        if m: E(m)
        for f in lead.get(g, []):
            E(f)
            if not m and f.startswith("s_add_u32 m0"): E("s_nop 0")
        fs = F[g]
        if m and T == 0 and not fs and not lead.get(g): E("s_nop 0")
        if not m and fs and fs[0].startswith("v_cvt"): E("s_nop 0")
        for f in fs: E(f)
def gapsets(lo, hi):
    F = X.fillers(1, NT)
    ex = [g for g in range(lo, hi) if g in X.isexp]
    cv = [g for g in range(lo, hi) if g not in X.isexp and F[g]]
    em = [g for g in range(lo, hi) if g not in X.isexp and not F[g]]
    return ex, cv, em
NVE = 6
def pv_part(T, dmaslot, salu):
    lead = {}
    ex, cv, em = gapsets(64, 131)
    fg = sorted(cv + em)
    late = fg[-NVE:]
    em_e = [g for g in em if g not in late]
    L = X.dma(dmaslot) if dmaslot is not None else []
    dm = [L[i] for i in (1, 2, 3, 4, 6, 7, 8, 9)] if L else []
    step = len(em_e) / 8.0
    dg = [em_e[min(len(em_e) - 1, int(i*step) + 1)] for i in range(8)] if dm else []
    assert len(set(dg)) == len(dg)
    for s_, g in zip(dm, dg): lead.setdefault(g, []).append(s_)
    kg = [g for g in fg if g not in late and g not in dg]
    if T + 1 < NT:
        assert len(kg) >= 16
        for i in range(16): lead.setdefault(kg[i], []).append(X.kread(T + 1, i))
    if L:
        for mi, first in ((0, 0), (5, 4)):
            g = max(x for x in ex if x < dg[first]); lead.setdefault(g, []).append(L[mi])
            if first: assert g > dg[3]
        after = [x for x in ex if x > dg[7]]
        sal = [f"s_add_u32 s{r.sKoff}, s{r.sKoff}, s{r.sKinc}", f"s_add_u32 s{r.sVoff}, s{r.sVoff}, s{r.sVinc}"] + wrap(r.sKoff) + wrap(r.sVoff) + list(salu)
    else:
        after = ex[-8:]; sal = list(salu)
    assert len(after) >= len(sal)
    for s_, g in zip(sal, after): lead.setdefault(g, []).append(s_)
    if T < NT:
        for i, g in enumerate(late): lead.setdefault(g, []).append(X.vread(T, i))
    assert 131 not in late
    if T + 1 < NT: lead.setdefault(131, []).insert(0, f"s_waitcnt lgkmcnt({NVE})")
    emit_gaps(T, 64, 132, lead, lambda g: X.pv(T - 1, g - 64) if T >= 1 else None)
def qk_part(T, sync=True, salu=None):
    lead = {}
    if salu: lead[60] = [salu]
    ex, cv, em = gapsets(0, 64)
    fg = sorted(cv + em)
    if T >= 1:
        for i in range(NVE, 32): lead.setdefault(fg[i - NVE], []).append(X.vread(T - 1, i))
    if sync:
        bg = opt["bgap"]
        if opt["bsplit"]:
            lead.setdefault(bg - 2, []).append("s_waitcnt vmcnt(16) lgkmcnt(0)")
            lead.setdefault(bg, []).append("s_barrier")
        else:
            lead.setdefault(bg, []).append("s_waitcnt vmcnt(16) lgkmcnt(0)")
            if opt["bar"]: lead[bg].append("s_barrier")
    emit_gaps(T, 0, 64, lead, lambda g: X.qk(g) if T < NT else None)
HOOK = {}
if opt["onerow"]:
    M("v_and_b32 v224, 15, v0\nv_cmp_gt_u32 vcc, 2, v224\ns_nop 1")
    for e in range(4): E(f"v_cndmask_b32 v{r.vOne+e}, 0, v{r.vOne+e}, vcc")
    E("s_nop 1")
if opt["perm"]: E(f"s_mov_b32 s{r.sPerm}, 0x07060302")
E("L_restart:")
pend += kdma(4) + vdma(3)
krel = sorted((48 + 4*(i >> 2) + ((3 - (i & 3)) if (i >> 2) & 1 else (i & 3)) + 1, i) for i in range(16))
vq = [X.vread(0, i) for i in range(NVE)]
ne, nc = 0, 0
for g in range(64):
    lead = []; budget = 2
    if g == 0: lead = [f"s_waitcnt vmcnt({vmn('k1', 'v0')})", "s_barrier"]
    else:
        if pend and pend[0].startswith("s_"): lead = [pend.pop(0)]
        elif pend and g % 4 == 2: lead = [pend.pop(0)]; budget = 0
        if budget:
            if vq and g < 8: lead += vq[:2]; del vq[:2]; budget = 0
            elif krel and krel[0][0] <= g and (2*nc + 2 < ne or len(krel) > 1 and krel[1][0] <= g):
                lead.append(X.kread(1, krel.pop(0)[1])); budget = 1
                if 2*nc + 2 >= ne: lead.append(X.kread(1, krel.pop(0)[1])); budget = 0
    if budget == 2 and g >= 4*(ne >> 2) + 7 and (ne - 2*nc < 5 or g >= 30):
        lead.append(X.exp(ne)); ne += 1
    else:
        while budget and 2*nc + 2 <= ne - (1 if False else 0) and nc < 30:
            lead.append(X.cvt(0, 2*nc + 1)); nc += 1; budget -= 1
    if not lead: lead = ["s_nop 0"]
    E(X.qk(g))
    for l in lead: E(l)
print("period0: exps", ne, "cvts", nc, "pend", len(pend), "krel", len(krel), "vq", len(vq), file=sys.stderr)
for _, i in krel: E(X.kread(1, i))
assert not vq and not pend
while ne < 60 or nc < 30:
    if 2*nc + 2 < ne or ne == 60: Q.append(X.cvt(0, 2*nc + 1)); nc += 1
    else: Q.append(X.exp(ne)); ne += 1
S.drain()
E("s_waitcnt lgkmcnt(0)")
if opt["moe"]:
    A(f"s_cmp_lg_u32 s{sFb}, 0"); A("s_cbranch_scc1 L_notouch")
    A(f"s_waitcnt vmcnt({S.vmn('xn')})")
    for l in KEYST: A(l)
    A(f"s_cmp_lg_u32 s{sSlow}, 0"); A("s_cbranch_scc1 L_notouch")
    A("global_load_dword v23, v23, s[6:7]"); A.label("L_notouch")
assert S.vmn("k2", "v1") >= 16
r.vVDl = [20, 21, 1, 2]
stamp(3)
if opt["al6"]: A.raw(".p2align 6")
for _ in range(opt["pad"]): E("s_nop 0")
A.label("L_loop")
for u in range(1, 5):
    qk_part(u, salu=(f"s_cmp_eq_u32 s{r.sIt}, 7" if u == 3 else None))
    if u == 3: E("s_cbranch_scc1 L_tail")
    sal = []
    if u == 2: sal = [f"s_bitcmp1_b32 s{sMask2}, s{r.sIt}"]
    if u == 3: sal = [f"s_cmp_eq_u32 s{r.sIt}, 6"]
    if u == 4: sal = [f"s_add_u32 s{r.sIt}, s{r.sIt}, 1", f"s_bitcmp1_b32 s{sMask4}, s{r.sIt}"]
    pv_part(u, None if opt["nodma"] else u & 3, sal)
    if u == 2: E("s_cbranch_scc1 L_disp2"); E("L_ret2:")
    if u == 3: E("s_cbranch_scc1 L_hook27"); E("L_ret3:")
E("s_cbranch_scc0 L_loop")
def wo_voff(dst):
    return f"""v_lshrrev_b32 v180, 3, v0
v_and_b32 v181, 7, v0
v_lshrrev_b32 v182, 1, v180
v_lshlrev_b32 v182, 1, v182
v_xor_b32 v182, v182, v181
v_lshlrev_b32 v182, 4, v182
v_lshl_add_u32 v{dst[0]}, v180, 10, v182""".split("\n") + [f"v_add_u32 v{dst[p]}, {7168*p}, v{dst[0]}" for p in range(1, 4)]
HOOK[27] = wo_voff([r.vKD + p for p in range(4)]) + [f"s_mov_b32 s{sK}, s{sWq}", f"s_mov_b32 s{sK+1}, s{sWq+1}", f"s_mov_b32 s{sK+2}, s{sWq+2}",
            f"s_mov_b32 s{r.sKoff}, 0", f"s_mov_b32 s{r.sKinc}, 0x8000"]
HOOK[28] = [f"v_mov_b32 v{r.vVDl[p]}, v{r.vKD+p}" for p in range(4)] + [f"s_mov_b32 s{sV}, s{sWq}", f"s_mov_b32 s{sV+1}, s{sWq+1}", f"s_mov_b32 s{sV+2}, s{sWq+2}",
            f"s_mov_b32 s{r.sVoff}, 0x10000", f"s_mov_b32 s{r.sKinc}, 0x10000", f"s_mov_b32 s{r.sVinc}, 0x10000"]
def H(T, txt): HOOK.setdefault(T, []).extend(l.strip() for l in txt.strip().split("\n") if l.strip())
SEL = [4, 5, 6, 7, 42, 43, 48, 49]
TF, TP, TK, TS = opt['TF'], opt['TP'], 2, 8
ROLE = {}
NLOG2E = fbits(-1.4426950408889634)
if opt["moe"]:
    ROLE.update({TK: "R", TK + 2: "R", TS: "FR", TS + 2: "FR", TS + 4: "F", TS + 6: "F", TS + 8: "F", TF: "F", TP: "FR", TP + 2: "FR"})
    H(TK, f"""s_add_u32 m0, s{r.sM0K}, 0x20000
    s_add_u32 s3, s{r.sM0K}, {WS_KEY}""")
    HOOK[TK] += [f"buffer_load_dwordx4 v3, s[{sW}:{sW+3}], s3 offen offset:{p*1024} sc1 lds" for p in range(4)]
    KQ = [128 + 4*n for n in range(15)] + [224]
    chk = ["v_mov_b32 v228, 0"] + [f"v_bitop3_b32 v228, v228, v{q+2}, s{sNonce} bitop3:0xf6" for q in KQ] + ["v_cmp_ne_u32 vcc, 0, v228"]
    H(TK + 2, "v_add_u32 v229, 0x20000, v3\ns_waitcnt vmcnt(16)\ns_barrier")
    HOOK[TK + 2] += [f"ds_read_b128 {v(q,4)}, v229 offset:{n*1024}" for n, q in enumerate(KQ)]
    H(TK + 2, f"""s_and_b32 s3, s2, 6
    s_lshl_b32 s3, s3, 1
    s_bfe_u32 s67, s2, 0x20003
    s_add_u32 s3, s3, s67
    s_lshl_b32 s3, s3, 2
    s_add_u32 s3, s3, s{sWave}
    s_lshl_b32 s3, s3, 8
    v_bfe_u32 v232, v0, 1, 4
    v_and_b32 v233, 1, v0
    v_lshlrev_b32 v233, 2, v233
    v_lshl_add_u32 v232, v232, 4, v233
    v_add_u32 v232, s3, v232
    v_add_u32 v233, 0x20000, v232
    ds_read_b32 v234, v233
    s_waitcnt lgkmcnt(0)""")
    HOOK[TK + 2] += chk
    H(TK + 2, f"""s_cbranch_vccnz L_key_retry
    L_key_ok:
    v_mov_b32 v235, v234
    v_max_u32 v228, v{KQ[0]}, v{KQ[0]+1}""")
    mx = [f"v_max3_u32 v228, v228, v{q}, v{q+1}" for q in KQ[1:]]
    for n, m_ in enumerate(("quad_perm:[1,0,3,2]", "quad_perm:[2,3,0,1]", "row_half_mirror", "row_mirror")):
        mx.insert(3*n + 2, f"v_max_u32_dpp v235, v235, v235 {m_} row_mask:0xf bank_mask:0xf")
    HOOK[TK + 2] += mx
    H(TK + 2, f"""v_readlane_b32 s3, v235, 0
    v_readlane_b32 s67, v235, 16
    s_max_u32 s{sKey0}, s3, s67
    v_cmp_lt_u32 vcc, s{sKey0}, v228
    s_bcnt1_i32_b64 s3, vcc
    s_cmp_lt_u32 s3, 8
    s_cbranch_scc1 L_rank
    L_rank_done:""")
    cold += ["L_key_retry:"] + spin("", "L_key_ok")
    for n, q in enumerate(KQ):
        if n % 4 == 0: cold += [f"s_mov_b32 s3, {WS_KEY + n*1024}"]
        cold += [f"buffer_load_dwordx4 {v(q,4)}, v3, s[{sW}:{sW+3}], s3 offen offset:{(n%4)*1024} sc1"]
    cold += ["s_waitcnt vmcnt(0)"] + chk + ["s_cbranch_vccnz L_key_retry", f"s_mov_b32 s3, {WS_KEY}",
             f"buffer_load_dword v234, v232, s[{sW}:{sW+3}], s3 offen sc1", "s_waitcnt vmcnt(0)", "s_branch L_key_ok"]
    cold += ["L_rank:", f"s_cmp_eq_u32 s{sKey0}, 0", "s_cbranch_scc1 L_rank_done", "v_mov_b32 v236, 0"]
    ks_ = [q + e for q in KQ for e in range(2)]
    for n in range(0, 33, 3):
        grp = list(zip(ks_[n:n+3], ("s[4:5]", "s[6:7]", "vcc")))
        cold += [f"v_cmp_lt_u32 {m_}, s{sKey0}, v{k_}" for k_, m_ in grp] + ["s_nop 0"]*(3 - len(grp))
        cold += [f"v_addc_co_u32 v236, {m_}, 0, v236, {m_}" for k_, m_ in grp]
    for l in wave_sum(236, 68): cold += ["s_nop 1", l.replace("v_add_f32_dpp", "v_add_u32_dpp")]
    cold += f"""s_cmp_ge_u32 s68, 8
s_cbranch_scc1 L_rank_done
s_not_b32 s3, s{sKey0}
s_xor_b32 s67, s{sKey0}, 0x80000000
s_bitcmp1_b32 s{sKey0}, 31
s_cselect_b32 s3, s67, s3
s_and_b32 s3, s3, 0xffff0000
v_mov_b32 v230, {NLOG2E}
v_mul_f32 v230, s3, v230
v_exp_f32 v230, v230
s_andn2_b32 s67, 0x7ff, s{sKey0}
v_add_f32 v230, 1.0, v230
v_rcp_f32 v230, v230
s_lshl_b32 s68, s68, 3
v_cvt_pk_bf16_f32 v230, v230, v230
v_and_b32 v230, 0xffff0000, v230
v_or_b32 v230, s67, v230
v_mov_b32 v231, s{sNonce}
s_add_u32 s68, s68, {WS_SEL}
s_mov_b64 exec, 1
buffer_store_dwordx2 v[230:231], off, s[{sW}:{sW+3}], s68 sc1
s_mov_b64 exec, -1
v_cmp_ne_u32 vcc, s{sKey0}, v234
s_nop 1
v_cndmask_b32 v234, 0, v234, vcc
s_nop 1
v_max_u32_dpp v235, v234, v234 quad_perm:[1,0,3,2] row_mask:0xf bank_mask:0xf
s_nop 1
v_max_u32_dpp v235, v235, v235 quad_perm:[2,3,0,1] row_mask:0xf bank_mask:0xf
s_nop 1
v_max_u32_dpp v235, v235, v235 row_half_mirror row_mask:0xf bank_mask:0xf
s_nop 1
v_max_u32_dpp v235, v235, v235 row_mirror row_mask:0xf bank_mask:0xf
s_nop 0
v_readlane_b32 s3, v235, 0
v_readlane_b32 s67, v235, 16
s_max_u32 s{sKey0}, s3, s67
v_cmp_lt_u32 vcc, s{sKey0}, v228
s_bcnt1_i32_b64 s3, vcc
s_cmp_lt_u32 s3, 8
s_cbranch_scc1 L_rank
s_branch L_rank_done""".split("\n")
    def gu_dma(p):
        L = f"""s_mul_i32 s3, s{sWave}, {128*3584}
s_lshl_b32 s67, s{sChunk}, 5
s_add_u32 s3, s3, s67
v_lshrrev_b32 v184, 1, v0
v_and_b32 v185, 8, v184
v_xor_b32 v185, v185, v0
v_lshrrev_b32 v184, 1, v185
v_mul_u32_u24 v184, 3584, v184
v_and_b32 v185, 16, v3
v_add3_u32 v184, v184, v185, s3""".split("\n")
        for k in range(4):
            L += [f"s_add_u32 m0, s{r.sM0K}, {0x24000 + k*1024}", "s_nop 0" if k == 0 else f"v_add_u32 v184, {32*3584}, v184",
                  f"global_load_lds_dwordx4 v184, s[{p}:{p+1}]"]
        return L
    selld = f"buffer_load_dwordx2 v[60:61], v128, s[{sW}:{sW+3}], 0 offen sc1"
    seladdr = ["v_and_b32 v128, 7, v0", "v_lshlrev_b32 v128, 3, v128", f"v_add_u32 v128, {WS_SEL}, v128"]
    HOOK[TS] = seladdr + [selld, f"s_cmp_eq_u32 s{sChunk}, -1", "s_cbranch_scc1 L_wp0"] + gu_dma(pWg) + ["L_wp0:"]
    H(TS + 2, f"""s_waitcnt vmcnt(16)
    v_cmp_ne_u32 vcc, s{sNonce}, v61
    s_cbranch_vccnz L_sel_retry
    L_sel_ok:
    v_and_b32 v128, 0xffff, v60
    v_and_b32 v129, 48, v0
    v_bfe_u32 v130, v0, 3, 1
    v_lshl_add_u32 v129, v130, 6, v129
    v_lshl_add_u32 v128, v128, 10, v129
    s_lshl_b32 s3, s{sWave}, 8
    s_add_u32 s3, s3, {WS_XN}
    s_lshr_b32 s68, s{r.sM0K}, 1
    s_add_u32 m0, s68, 0x20000
    s_add_u32 s67, s3, 128
    buffer_load_dwordx4 v128, s[{sW}:{sW+3}], s3 offen sc1 lds
    s_add_u32 m0, s68, 0x20400
    s_nop 0
    buffer_load_dwordx4 v128, s[{sW}:{sW+3}], s67 offen sc1 lds""")
    cold += ["L_sel_retry:"] + spin("", "L_sel_ok") + seladdr + [selld, "s_waitcnt vmcnt(0)", f"v_cmp_ne_u32 vcc, s{sNonce}, v61",
             "s_cbranch_vccnz L_sel_retry", "s_branch L_sel_ok"]
    def gu_step(T, scratch, nxt):
        H(T, f"""v_and_b32 v224, 48, v0
        v_and_b32 v225, 15, v0
        v_lshlrev_b32 v225, 3, v225
        v_lshl_add_u32 v224, v224, 4, v225
        v_and_b32 v225, 16, v0
        v_lshl_add_u32 v224, v225, 3, v224
        s_add_u32 s3, s{r.sM0K}, 0x24000
        v_add_u32 v224, s3, v224
        v_xor_b32 v225, 128, v224
        s_lshr_b32 s68, s{r.sM0K}, 1
        v_and_b32 v226, 0x370, v3
        s_add_u32 s3, s68, 0x20000
        v_add_u32 v226, s3, v226
        s_waitcnt vmcnt(16)""")
        for ks in range(4):
            HOOK[T] += [f"ds_read_b64_tr_b16 v[{128+4*ks}:{129+4*ks}], v224 offset:{ks*1024}", f"ds_read_b64_tr_b16 v[{130+4*ks}:{131+4*ks}], v225 offset:{ks*1024}",
                        f"ds_read_b128 {v(144+4*ks,4)}, v226 offset:{(ks>>1)*1024 + (ks&1)*128}"]
        n0 = next(i for i, l in enumerate(nxt) if l.startswith("s_add_u32 m0"))
        HOOK[T] += [f"s_lshr_b32 s68, s{r.sM0K}, 2", f"s_add_u32 s68, s68, {scratch}", "v_add_u32 v227, s68, v3"] + nxt[:n0] + ["s_waitcnt lgkmcnt(0)"]
        HOOK[T] += [f"{MF} v[160:163], {v(128+4*ks,4)}, {v(144+4*ks,4)}, {'0' if ks == 0 else 'v[160:163]'}" for ks in range(4)]
        HOOK[T] += nxt[n0:] + ["ds_write_b128 v227, v[160:163]"]
    gu_step(TS + 4, 0x22000, gu_dma(pWu))
    dn = f"""s_lshl_b32 s3, s{sChunk}, 14
s_lshl_b32 s67, s{sWave}, 8
s_add_u32 s3, s3, s67
v_and_b32 v184, 0xff, v{r.vVD}
v_and_b32 v185, 48, v0
v_lshl_add_u32 v184, v185, 6, v184
v_add_u32 v184, s3, v184
v_xor_b32 v185, 128, v184
v_add_u32 v185, 0x1000, v185""".split("\n")
    for k in range(4):
        dn += [f"s_add_u32 m0, s{r.sM0K}, {0x24000 + k*1024}", "s_nop 0" if k < 2 else f"v_add_u32 v{184+(k&1)}, 0x2000, v{184+(k&1)}",
               f"global_load_lds_dwordx4 v{184+(k&1)}, s[{pWd}:{pWd+1}]"]
    gu_step(TS + 6, 0x23000, dn)
    T3 = TS + 8
    H(T3, f"v_add_u32 v224, 0x22000, v3\ns_add_u32 s3, s{r.sM0K}, {0x24000 - r.VBASE}")
    HOOK[T3] += [f"ds_read_b128 {v(128+4*n,4)}, v224 offset:{n*1024}" for n in range(8)]
    HOOK[T3] += [f"v_add_u32 v{228+nb}, s3, v{r.vVA+nb}" for nb in range(8)] + ["s_waitcnt vmcnt(16)"]
    HOOK[T3] += [f"ds_read_b64_tr_b16 v[{164+2*nb}:{165+2*nb}], v{228+nb}" for nb in range(8)]
    H(T3, f"""v_and_b32 v225, 0x70, v3
    v_and_b32 v226, 48, v0
    v_lshl_add_u32 v225, v226, 3, v225
    v_and_b32 v226, 8, v0
    v_lshl_add_u32 v225, v226, 6, v225
    v_cmp_eq_u32 vcc, 0, v226
    s_lshl_b32 s3, s{sChunk}, 14
    s_add_u32 s3, s3, s{r.sM0K}
    s_add_u32 s3, s3, {WS_PART}
    s_waitcnt lgkmcnt(8)""")
    for b_ in (128, 144):
        for e in range(4): HOOK[T3] += [f"v_add_f32 v{b_+e}, v{b_+e}, v{b_+4+e}", f"v_add_f32 v{b_+8+e}, v{b_+8+e}, v{b_+12+e}"]
        for e in range(4): HOOK[T3] += [f"v_add_f32 v{b_+e}, v{b_+e}, v{b_+8+e}"]
        HOOK[T3] += [f"v_cvt_pk_bf16_f32 v{b_+4+e}, v{b_+2*e}, v{b_+2*e+1}" for e in range(2)] + unpack(b_, b_ + 4, 2)
    for op_ in (f"v_mul_f32 v{{t}}, {NLOG2E}, v{{g}}", "v_exp_f32 v{t}, v{t}", "v_add_f32 v{t}, 1.0, v{t}", "v_rcp_f32 v{t}, v{t}", "v_mul_f32 v{g}, v{g}, v{t}"):
        HOOK[T3] += [op_.format(t=132 + e, g=128 + e) for e in range(4)]
    HOOK[T3] += [f"v_cvt_pk_bf16_f32 v{132+e}, v{128+2*e}, v{129+2*e}" for e in range(2)] + unpack(128, 132, 2)
    HOOK[T3] += [f"v_mul_f32 v{128+e}, v{128+e}, v{144+e}" for e in range(4)]
    H(T3, """v_cvt_pk_bf16_f32 v146, v128, v129
    v_cvt_pk_bf16_f32 v147, v130, v131
    v_cndmask_b32 v144, 0, v146, vcc
    v_cndmask_b32 v145, 0, v147, vcc
    v_cndmask_b32 v146, v146, 0, vcc
    v_cndmask_b32 v147, v147, 0, vcc
    s_waitcnt lgkmcnt(0)""")
    for j in range(4):
        HOOK[T3] += [f"v_mfma_f32_16x16x16_bf16 {v(128+4*j,4)}, v[{164+4*j}:{165+4*j}], v[144:145], 0",
                     f"v_mfma_f32_16x16x16_bf16 {v(128+4*j,4)}, v[{166+4*j}:{167+4*j}], v[146:147], {v(128+4*j,4)}"]
    H(T3, "s_nop 4")
    for j in range(4): HOOK[T3] += [f"buffer_store_dwordx4 {v(128+4*j,4)}, v225, s[{sW}:{sW+3}], s3 offen offset:{j*1024} sc1"]
    H(T3, "s_nop 0")
    H(TF, f"""s_lshl_b32 s3, s{sWave}, 7
    s_add_u32 s3, s3, s{sChunk}
    s_lshl_b32 s3, s3, 2
    s_add_u32 s3, s3, {WS_FC}
    v_mov_b32 v128, s{sNonce}
    s_waitcnt vmcnt(16)
    s_mov_b64 exec, 1
    buffer_store_dword v128, off, s[{sW}:{sW+3}], s3 sc1
    s_mov_b64 exec, -1""")
    fcaddr = ["v_min_u32 v128, 55, v0", "v_lshlrev_b32 v128, 3, v128", "s_lshr_b32 s3, s2, 6", "s_lshl_b32 s3, s3, 9", f"s_add_u32 s3, s3, {WS_FC}"]
    fcld = f"buffer_load_dwordx2 v[62:63], v128, s[{sW}:{sW+3}], s3 offen sc1"
    fcchk = [f"v_xor_b32 v129, s{sNonce}, v62", f"v_bitop3_b32 v129, v129, v63, s{sNonce} bitop3:0xf6", "v_cmp_ne_u32 vcc, 0, v129"]
    HOOK.setdefault(TP, []).extend(fcaddr + [fcld])
    HOOK.setdefault(TP + 2, []).extend(["s_waitcnt vmcnt(16)"] + fcchk)
    H(TP + 2, f"""s_cbranch_vccnz L_fc_retry
    L_fc_ok:
    v_lshrrev_b32 v128, 3, v0
    v_xor_b32 v129, v128, v0
    v_and_b32 v129, 7, v129
    v_lshlrev_b32 v129, 4, v129
    v_lshl_add_u32 v128, v128, 14, v129
    s_lshr_b32 s3, s2, 1
    s_lshl_b32 s3, s3, 7
    s_lshl_b32 s67, s{sWave}, 17
    s_add_u32 s3, s3, s67
    s_add_u32 s3, s3, {WS_PART}
    s_lshr_b32 s68, s{r.sM0K}, 2""")
    for k in range(4):
        HOOK[TP + 2] += [f"s_add_u32 m0, s68, {0x20000 + k*4096}", f"s_add_u32 s67, s3, {k << 19}"]
        if k == 3: HOOK[TP + 2] += [f"s_cmp_lt_u32 s{sWave}, 2", "s_cselect_b32 s67, s67, 0x40000000"]
        HOOK[TP + 2] += [f"buffer_load_dwordx4 v128, s[{sW}:{sW+3}], s67 offen sc1 lds"]
    cold += ["L_fc_retry:"] + spin("", "L_fc_ok") + fcaddr + [fcld, "s_waitcnt vmcnt(0)"] + fcchk + ["s_cbranch_vccnz L_fc_retry", "s_branch L_fc_ok"]
    T4 = TP + 5
    H(T4, f"""s_or_b32 s3, s{sFb}, s{sSlow}
    s_cbranch_scc1 L_s4_done
    s_lshl_b32 s68, s{sWave}, 1
    v_lshrrev_b32 v145, 5, v0
    v_add_u32 v145, s68, v145
    v_xor_b32 v144, v145, v0
    v_and_b32 v144, 7, v144
    v_and_b32 v146, 31, v0
    v_lshl_add_u32 v144, v146, 3, v144
    v_lshlrev_b32 v144, 4, v144
    v_add_u32 v144, 0x20000, v144""")
    HOOK[T4] += [f"ds_read_b128 {v(128+4*k,4)}, v144 offset:{k*4096}" for k in range(4)]
    H(T4, f"""v_lshlrev_b32 v146, 2, v145
    ds_bpermute_b32 v147, v146, v60
    v_lshlrev_b32 v145, 11, v145
    s_lshr_b32 s3, s2, 1
    s_lshl_b32 s3, s3, 4
    s_add_u32 s3, s3, {WS_UPD}
    s_waitcnt lgkmcnt(0)""")
    for e in range(4): HOOK[T4] += [f"v_add_f32 v{128+e}, v{128+e}, v{132+e}", f"v_add_f32 v{136+e}, v{136+e}, v{140+e}"]
    for e in range(4): HOOK[T4] += [f"v_add_f32 v{128+e}, v{128+e}, v{136+e}"]
    for tup in zip(*[wave_sum(128 + e, 0)[:-2] for e in range(4)]): HOOK[T4] += list(tup)
    H(T4, "v_and_b32 v147, 0xffff0000, v147\nv_cvt_pk_bf16_f32 v132, v128, v129\nv_cvt_pk_bf16_f32 v133, v130, v131")
    HOOK[T4] += unpack(128, 132, 2) + [f"v_mul_f32 v{128+e}, v147, v{128+e}" for e in range(4)]
    H(T4, f"""v_cvt_pk_bf16_f32 v132, v128, v129
    v_cvt_pk_bf16_f32 v133, v130, v131
    v_mov_b32 v134, s{sNonce}
    v_mov_b32 v135, s{sNonce}
    s_mov_b32 exec_lo, 0x80000000
    s_mov_b32 exec_hi, 0x80000000
    buffer_store_dwordx4 v[132:135], v145, s[{sW}:{sW+3}], s3 offen sc1
    s_mov_b64 exec, -1
    L_s4_done:""")
if opt["wtouch"]:
    for n, T in enumerate(eval(opt_s["wT"])):
        HOOK.setdefault(T, []).extend(["s_andn2_b32 s3, 4, s2", f"s_add_u32 s3, s3, s{sWave}", "s_lshl_b32 s3, s3, 9",
            "s_and_b32 s67, s2, 0xf8", "s_add_u32 s3, s3, s67", f"s_add_u32 s3, s3, {256*n}", "s_lshl_b32 s3, s3, 10",
            "v_lshl_add_u32 v180, v0, 7, s3", f"global_load_dword v23, v180, s[{pWo}:{pWo+1}]"])
if opt["ftouch"]:
    HOOK[28].extend([f"s_lshl_b32 s3, s{sQb}, 2", f"s_add_u32 s3, s3, s{sWave}", "s_lshl_b32 s3, s3, 5", f"s_add_u32 s3, s3, s{sHead}", "s_lshl_b32 s3, s3, 7",
                     f"s_add_u32 s3, s3, {WS_FLAG}", f"buffer_load_dword v23, off, s[{sW}:{sW+3}], s3"])
if opt["ext"]:
    HOOK[28].extend(["s_lshl_b32 s3, s2, 14", f"s_add_u32 s3, s3, s{r.sM0K}", f"s_add_u32 s3, s3, {WS_EX}", "v_lshlrev_b32 v180, 6, v0",
                     f"buffer_load_dword v23, v180, s[{sW}:{sW+3}], s3 offen sc1"])
if opt["otch"]:
    for n, T in enumerate(eval(opt_s["oT"])):
        HOOK.setdefault(T, []).extend([f"s_lshl_b32 s3, s{sQb}, 2", f"s_add_u32 s3, s3, s{sWave}", "s_lshl_b32 s3, s3, 7", f"s_add_u32 s3, s3, s{sHead}", "s_lshl_b32 s3, s3, 12",
            f"s_add_u32 s3, s3, {n*0x40000}", "v_lshrrev_b32 v180, 5, v0", "v_and_b32 v181, 31, v0", "v_lshlrev_b32 v181, 7, v181", "v_lshl_add_u32 v180, v180, 17, v181",
            f"buffer_load_dword v23, v180, s[{sW}:{sW+3}], s3 offen{['', '', ' sc1', ' nt', ' sc0 sc1'][opt['otch']]}"])
if opt["stamp"] & 8:
    Ts = eval(opt_s["hs"])
    def st_(i): return [f"{CLK} s[{70+2*i}:{71+2*i}]", "s_waitcnt lgkmcnt(0)"]
    i = 1
    for T in Ts:
        body = []
        for l in HOOK[T]:
            if l.startswith("STAMP"):
                body += st_(i + 1); i += 1
            else: body.append(l)
        k = sum(l.startswith("STAMP") for l in HOOK[T])
        HOOK[T] = st_(i - k) + body + st_(i + 1); i += 2
    nstamp[0] = i
for T in HOOK: HOOK[T] = [l for l in HOOK[T] if not l.startswith("STAMP")]
def emit_hooks():
    msk = {}
    for site in (4, 2):
        Ts = sorted(T for T in HOOK if T % 4 == site % 4)
        msk[site] = {ro: sum(1 << (T // 4) for T in Ts if ro in ROLE.get(T, ro)) for ro in "FRS"}
        E(f"L_disp{site}:")
        first = min(HOOK)
        for T in Ts:
            if site == 2 and T == first: continue
            if T == Ts[-1] and not (site == 2 and first in Ts): E(f"s_branch L_hook{T}")
            else: E(f"s_cmp_eq_u32 s{r.sIt}, {T // 4}"); E(f"s_cbranch_scc1 L_hook{T}")
        if not Ts: E("s_branch " + ("L_ret2" if site == 2 else "L_loop"))
    for T in sorted(HOOK):
        E(f"L_hook{T}:")
        for l in HOOK[T]: E(l)
        E("s_branch " + {2: "L_ret2", 3: "L_ret3", 0: "L_loop"}[T % 4])
    return msk[2], msk[4]
m2, m4 = emit_hooks()
A.label("L_tail")
S.vm[:] = ["wo0"]*4 + ["v31"]*4 + [f"wo{k}" for k in range(1, 5) for _ in range(4)]
sOoff = 63
vWo, vWr, vOq, vFl = r.vKD, 48, 4, 44
VA, VB, VC, AA, AB, AC, AD = ("v", 64), ("v", 128), ("v", 192), ("a", 0), ("a", 64), ("a", 128), ("a", 192)
def blk(B, off, n): return (v if B[0] == "v" else a)(B[1] + off, n)
WBLK = [VA, AA, AD, VC]; ACC = AC
NU = 10
UNIT = [0, 1, 5, 2, 6, 3, 7, 8, 4, 9]
def wo_dma(kk):
    L = [f"s_add_u32 m0, s{r.sM0K}, {UNIT[kk % NU]*16384}"]
    L += [f"buffer_load_dwordx4 v{vWo+p}, s[{sWq}:{sWq+3}], s{sWoff} offen offset:{p*1024} lds ; wo{kk}" for p in range(4)]
    L += [f"s_add_u32 s{sWoff}, s{sWoff}, 0x8000"]
    return L
def wo_reads(kk):
    u = UNIT[kk % NU]; B = WBLK[(kk >> 2) & 3]
    return [f"ds_read_b64_tr_b16 {blk(B, (nb*4 + (kk & 3))*4 + 2*half, 2)}, v{vWr + 4*(u >> 2) + nb} offset:{(u & 3)*16384 + half*2048} ; r{kk}"
            for nb in range(4) for half in range(2)]
OBUF = [("a", 64), ("a", 80), ("a", 96), ("a", 112), ("a", 160), ("a", 176)][:opt["look"] + 1]
def o_loads(z):
    B = OBUF[z % len(OBUF)]
    L = [f"buffer_load_dwordx4 {blk(B, i*4, 4)}, v{vOq}, s[{sW}:{sW+3}], s{sOoff} offen offset:{i*1024} sc1 ; o{z}" for i in range(4)]
    if z == 15: return L + [f"s_mov_b32 s{sOoff}, s65"]
    return L + [f"s_add_u32 s{sOoff}, s{sOoff}, {0x1000 if z & 3 < 3 else QS - 0x3000}"]
L_ = r.vL
vXo, vXr, vGf, vSt = 45, (144 if opt['xe'] else 20), 176, 46
vU, vRow, vSa, vC3, vUa, vUt, vT, vN = 160, 12, 14, 3, 15, 11, 10, 13
setup1 = f"""s_mov_b32 s{sWoff}, {5*0x8000}
s_lshl_b32 s3, s{sQb}, 2
s_add_u32 s3, s3, s{sWave}
s_lshl_b32 s69, s3, 5
s_add_u32 s69, s69, s{sHead}
s_lshl_b32 s69, s69, 7
s_add_u32 s69, s69, {WS_FLAG}
s_mul_i32 s3, s3, {4*QS}
s_lshl_b32 s68, s{sHead}, 12
s_add_u32 s68, s68, s3
s_add_u32 s68, s68, {WS_O}
s_andn2_b32 s1, 4, s2
s_add_u32 s1, s1, s{sWave}
s_lshl_b32 s1, s1, 2""".split("\n")
setupO = [f"v_mov_b32 v{vOq}, v3"] + [f"v_add_u32 v{vOq+qb}, {qb*QS}, v3" for qb in range(1, 4)] + [f"v_and_b32 v{vC3}, 3, v0"]
setup2 = f"""v_lshrrev_b32 v1, 4, v0
v_and_b32 v2, 15, v0
v_and_b32 v9, 4, v0
v_lshrrev_b32 v8, 2, v2
v_lshl_add_u32 v8, v1, 2, v8
v_bfe_u32 v10, v8, 1, 2
v_lshlrev_b32 v8, 7, v8
v_lshl_add_u32 v8, v{vC3}, 3, v8
v_add_u32 v8, s{r.sM0K}, v8""".split("\n")
for nb in range(4):
    setup2 += [f"v_xor_b32 v11, {nb}, v10", f"v_lshl_add_u32 v{vWr+nb}, v11, 5, v8",
               f"v_add_u32 v{vWr+4+nb}, 0x10000, v{vWr+nb}", f"v_add_u32 v{vWr+8+nb}, 0x20000, v{vWr+nb}"]
setup2 += ["s_lshl_b32 s67, s1, 12", f"s_add_u32 s67, s67, {WS_O}", f"s_xor_b32 s3, s{sQt}, 1", f"s_mul_i32 s3, s3, {4*QS}", f"s_add_u32 s{sOoff}, s3, s67",
           f"s_mul_i32 s3, s{sQt}, {4*QS}", "s_add_u32 s65, s3, s67",
           f"s_and_b32 s3, s{sQt}, 30", "s_lshl_b32 s3, s3, 5", "s_add_u32 s3, s3, s1", f"v_lshl_add_u32 v9, v9, 3, v{vC3}", "v_add_u32 v9, s3, v9",
           f"v_lshlrev_b32 v{vFl}, 7, v9", f"v_add_u32 v{vFl}, {WS_FLAG + 4}, v{vFl}",
           f"s_lshl_b32 s3, s{sWave}, 2", "s_add_u32 s3, s3, 0x24000", f"v_lshl_add_u32 v192, v{vC3}, 12, s3",
           f"s_add_u32 s3, s{r.sM0K}, 0x24000", "v_mov_b32 v193, s3"]
FS = f"""s_lshl_b32 s3, s{sQt}, 2
s_add_u32 s3, s3, s{sWave}
s_lshl_b32 s3, s3, 4
v_lshrrev_b32 v{vRow}, 2, v0
v_add_u32 v{vRow}, s3, v{vRow}
v_lshlrev_b32 v{vSa}, 3, v{vRow}
v_add_u32 v{vSa}, {WS_STAT}, v{vSa}
s_lshl_b32 s3, s{sNt}, 7
v_lshl_add_u32 v{vT}, v{vC3}, 5, s3
v_lshl_add_u32 v{vXo}, v{vRow}, 10, v{vT}
v_mov_b32 v{vN}, s{sNonce}
global_load_dwordx4 v[{vXr}:{vXr+3}], v{vXo}, s[{pX}:{pX+1}] ; xf
global_load_dwordx4 v[{vXr+4}:{vXr+7}], v{vXo}, s[{pX}:{pX+1}] offset:16 ; xf
buffer_load_dwordx2 v[{vSt}:{vSt+1}], v{vSa}, s[{sW}:{sW+3}], 0 offen sc1 ; xf""".split("\n")
updld = [f"buffer_load_dwordx4 {v(vU+4*k,4)}, v{vUa}, s[{sW}:{sW+3}], s67 offen offset:{16*k} sc1" for k in range(4)] if opt["moe"] else []
updchk = [f"v_xor_b32 v{vT}, s{sNonce}, v{vSt+1}"]
FU = []
if opt["moe"]:
    selld2 = f"buffer_load_dwordx2 v[152:153], v154, s[{sW}:{sW+3}], 0 offen sc1"
    (FS if opt['xe'] else setup2)[0:0] = ["v_and_b32 v154, 7, v0", "v_lshlrev_b32 v154, 3, v154", f"v_add_u32 v154, {WS_SEL}, v154", selld2 + " ; sel"]
    FU += [lambda: f"s_waitcnt vmcnt({S.vmn('sel')})", f"v_cmp_ne_u32 vcc, s{sNonce}, v153", "s_cbranch_vccnz L_sel2_retry", "L_sel2_ok:", "v_and_b32 v152, 0xffff, v152"]
    cold += ["L_sel2_retry:"] + spin("", "L_sel2_ok") + [selld2, "s_waitcnt vmcnt(0)", f"v_cmp_ne_u32 vcc, s{sNonce}, v153",
             "s_cbranch_vccnz L_sel2_retry", "s_branch L_sel2_ok"]
    FU += [f"v_mov_b32 v{vUa}, 0x200000"] + [f"v_readlane_b32 s{SEL[t_]}, v152, {t_}" for t_ in range(8)]
    for t_ in range(8): FU += [f"v_cmp_eq_u32 vcc, s{SEL[t_]}, v{vRow}", f"v_mov_b32 v{vT}, {t_*32}", f"v_cndmask_b32 v{vUa}, v{vUa}, v{vT}, vcc"]
    FU += f"""v_cmp_gt_u32 vcc, 0x1000, v{vUa}
v_add_u32 v{vUa}, v{vUa}, v{vC3}
v_lshlrev_b32 v{vUa}, 6, v{vUa}
v_cndmask_b32 v{vUt}, 0, v{vN}, vcc
v_mov_b32 v{vT}, 0x40000000
v_cndmask_b32 v{vUa}, v{vT}, v{vUa}, vcc
s_lshl_b32 s67, s{sNt}, 8
s_add_u32 s67, s67, {WS_UPD}""".split("\n") + [l + " ; xf" for l in updld]
    updchk += [f"v_bitop3_b32 v{vT}, v{vT}, v{vU+4*k+2}, v{vUt} bitop3:0xf6" for k in range(4)]
updchk += [f"v_cmp_ne_u32 vcc, 0, v{vT}"]
def pv2(T, qb, db, ks):
    base = r.aV if T == 30 else r.aK
    D = a(r.aO + qb*32 + db*4, 4)
    return f"{MF} {D}, {a(base+4*(ks*8+db),4)}, {v(r.vP+(T&1)*32+qb*8+ks*4,4)}, {D}"
def v31(i): return X.vread(31, i).replace(a(r.aV + 4*(((i >> 1) & 1)*8 + (i >> 2)) + 2*(i & 1), 2), a(r.aK + 4*(((i >> 1) & 1)*8 + (i >> 2)) + 2*(i & 1), 2)) + f" ; v31_{i >> 2}"
nst = [0]
OSP = [" sc1", " sc0 sc1", " sc1 nt", "", " nt"][opt["osp"]]
def epi(qb):
    L = []
    for i4 in range(4):
        t = r.vS; o = r.vS + 8 + (nst[0] & 1)*4; nst[0] += 1
        L += [f"v_accvgpr_read_b32 v{t+e}, a{r.aO+qb*32+8*i4+e}" for e in range(8)]
        L += [f"v_mul_f32 v{t+e}, v{60+qb}, v{t+e}" for e in range(8)]
        L += [f"v_cvt_pk_bf16_f32 v{o+e}, v{t+2*e}, v{t+2*e+1}" for e in range(4)]
        L += [f"buffer_store_dwordx4 {v(o,4)}, v{vOq+qb}, s[{sW}:{sW+3}], s68 offen offset:{i4*1024}{OSP} ; ost" if not (opt["nostore"] and nst[0] < 16) else "s_nop 1"]
    return L
def smx(lo, hi):
    L = []
    for k in range(lo, hi):
        L.append(X.exp(k))
        if k % 2 == 0 and k > lo: L.append(X.cvt(31, k - 1))
    return L + [X.cvt(31, hi - 1)]
def rsum(qb): return [f"v_add_f32 v{L_+4*qb}, v{L_+4*qb}, v{L_+4*qb+1}", f"v_rcp_f32 v{60+qb}, v{L_+4*qb}"]
def dmaf(kk):
    L = wo_dma(kk)
    return [[L[0], "s_nop 0", L[1]], L[2], L[3], [L[4], L[5]]]
def weave(*lists):
    items = sorted(((i + 0.5) / len(L), n, i) for n, L in enumerate(lists) if L for i in range(len(L)))
    return [lists[n][i] for _, n, i in items]
def qcost(): return sum(len(f) if isinstance(f, list) else (1 if callable(f) else (0 if f.endswith(":") else S.cost(f))) for f in Q)
def chains(CH):
    for c, ch in enumerate(CH):
        for n, m in enumerate(ch):
            if n < len(ch) - 1: S.gap(m, novm=opt['bnd'] & 1)
            else:
                left = len(CH) - c
                small = sum(2*(len(x) - 1) for x in CH[c+1:])
                S.gap(m, budget=max(2, -(-(qcost() - small*3//4) // left)), big=True)
    S.drain()
eg = X.sched()
assert eg[27] == 62 and eg[28] == 64
stamp(16)
seq = [pv2(30, 0, j >> 1, (j & 1) ^ ((j >> 1) & 1)) for j in range(16)] + [X.pv(30, 16)]
su = list(setup1)
for n, m in enumerate(seq):
    E(m)
    if su: E(su.pop(0))
    if opt["early"] and n in (3, 7, 11, 15):
        f = dmaf(5)[n >> 2]
        for x_ in (f if isinstance(f, list) else [f]): E(x_)
    if n < 16: E(v31(2*n)); E(v31(2*n + 1))
    else: E(X.cvt(31, 27)); E(setupO[0])
Q += smx(28, 32) + setupO[1:] + [None]
for n, m in enumerate([X.pv(31, 16)] + [pv2(31, 0, j >> 1, (j & 1) ^ ((j >> 1) & 1)) for j in range(16)]):
    lead = []
    if n in (0, 4, 8): lead = [f"s_waitcnt lgkmcnt({S.lgn('v31_' + str({0: 1, 4: 3, 8: 7}[n]))})"]
    if n == 9: Q.pop(); Q += rsum(0) + ([] if opt["early"] else dmaf(5)) + (FS if opt["xe"] else [])
    if opt["early"] and n in (2, 6, 10, 14):
        f = dmaf(6)[n >> 2]; lead = f if isinstance(f, list) else [f]
    S.gap(m, lead)
carry = list(Q); del Q[:]
stamp(16)
def qchains(qb):
    CH = [[X.pv(30, 17*qb + 16), X.pv(31, 17*qb + 16)]]
    for db in range(8):
        o = [(30, 0), (30, 1), (31, 0), (31, 1)]
        CH.append([pv2(T, qb, db, ks) for T, ks in (o[::-1] if db & 1 else o)])
    return CH
if opt["early"] == 2:
    e0 = weave(epi(0), smx(32, 48))
    Q += carry + weave(e0[:50], dmaf(7)) + e0[50:] + rsum(1)
else: Q += carry + weave(epi(0), smx(32, 48), dmaf(7 if opt["early"] else 6)) + rsum(1)
chains(qchains(1))
stamp(16)
Q += weave(epi(1), smx(48, 64), [] if opt["early"] else dmaf(7), setup2) + rsum(2)
chains(qchains(2))
stamp(16)
e2 = epi(2)
vote = rsum(3) + [f"v_add_f32 v194, v{L_}, v{L_+4}", f"v_add_f32 v195, v{L_+8}, v{L_+12}", "v_add_f32 v194, v194, v195",
        f"v_cmp_ngt_f32 vcc, {'0' if opt['forcefb'] else '0x5f800000'}, v194", "s_or_b32 s3, vcc_lo, vcc_hi", "v_mov_b32 v194, s3", "ds_write_b32 v192, v194"]
def wrd(kk): return [lambda: f"s_waitcnt vmcnt({S.vmn(f'wo{kk}')})"] + [list(p) for p in zip(wo_reads(kk)[0::2], wo_reads(kk)[1::2])]
Q += e2[:10] + vote + e2[10:30] + [["s_waitcnt lgkmcnt(0)", "s_barrier", "ds_read_b128 v[196:199], v193"]] + weave(e2[30:52], dmaf(8)) + \
     ["s_waitcnt lgkmcnt(0)", "v_or3_b32 v196, v196, v197, v198", "v_or_b32 v196, v196, v199", "v_cmp_ne_u32 vcc, 0, v196", "s_cbranch_vccnz L_fallback" if not opt["exper"] else "s_nop 0", "L_safe:"] + \
     weave(e2[52:], [] if opt["xe"] else FS, wrd(0) + wrd(1))
chains(qchains(3))
stamp(17)
xd = []
for kk in range(NU, NU + opt["fx"]): xd += [lambda kk=kk: f"s_waitcnt lgkmcnt({S.lgn(f'r{kk-NU}')})"] + dmaf(kk)
Q += weave(epi(3), dmaf(9) + xd, wrd(2) + wrd(3) + wrd(4) + wrd(5))
S.drain()
stamp(17)
NPRE = 16
nextrd = [6]; nextdma = [NU + opt["fx"]]
def stage(nops, filler=()):
    filler = list(filler)
    per = -(-len(filler) // max(1, nops))
    for _ in range(nops):
        if not any(l.startswith("buffer") for l in pend):
            if nextdma[0] >= NPRE: break
            kk = nextdma[0]
            if nextrd[0] < min(NU, kk - NU + 5):
                k2 = nextrd[0]
                E(f"s_waitcnt vmcnt({vmn(f'wo{k2}')})")
                for l in wo_reads(k2): E(l)
                nextrd[0] += 1
            E(f"s_waitcnt lgkmcnt({S.lgn(f'r{kk-NU}')})")
            pend.extend(wo_dma(kk)); nextdma[0] += 1
        one_dma()
        k_ = per
        while k_ < len(filler) and isinstance(filler[k_], str) and filler[k_].endswith(":"): k_ += 1
        Q.extend(filler[:k_]); S.drain()
        del filler[:k_]
    Q.extend(filler); S.drain()
stage(opt["npost"], FU)
if opt["osp"] >= 3:
    E(f"s_waitcnt vmcnt({S.vmn('ost')})"); E("buffer_wbl2 sc1 ; ost")
M(f"""
s_waitcnt vmcnt({S.vmn('ost')})
s_mov_b64 exec, {0xff if opt['fline'] else 1}
buffer_store_dwordx4 v[{vN-1}:{vN+2}], v{vOq}, s[{sW}:{sW+3}], s69 offen{PP[opt['fpol']]} ; flag
s_mov_b64 exec, -1
""")
stamp(1)
nleft = (NPRE - nextdma[0])*4 + sum(l.startswith("buffer") for l in pend)
stage(nleft - opt["pollat"])
E(f"buffer_load_dword v2, v{vFl}, s[{sW}:{sW+3}], 0 offen{PP[opt['ppol']]} ; poll")
stage(opt["pollat"])
plain(pend); del pend[:]
def rest_reads(upto):
    while nextrd[0] < upto:
        k2 = nextrd[0]; nextrd[0] += 1
        E(f"s_waitcnt vmcnt({vmn(f'wo{k2}')})")
        for l in wo_reads(k2): E(l)
rest_reads(opt["rdpre"])
stamp(1)
M(f"""
s_waitcnt vmcnt({S.vmn('poll')})
v_cmp_ne_u32 vcc, s{sNonce}, v2
s_cbranch_vccnz L_oflag
L_oflag_ok:
""")
cold += ["L_oflag:"] + spin("", "L_oflag_ok") + [f"buffer_load_dword v2, v{vFl}, s[{sW}:{sW+3}], 0 offen{PP[opt['ppol']]}", "s_waitcnt vmcnt(0)",
         f"v_cmp_ne_u32 vcc, s{sNonce}, v2", "s_cbranch_vccnz L_oflag", "s_branch L_oflag_ok"]
stamp(5)
LOOK = opt["look"]
for z in range(LOOK):
    for l in o_loads(z): E(l)
    rest_reads(min(16, nextrd[0] + 1))
rest_reads(16)
stamp(1)
t = 36
cold += ["L_stf_retry:"] + spin("", "L_stf_ok") + [f"buffer_load_dwordx2 v[{vSt}:{vSt+1}], v{vSa}, s[{sW}:{sW+3}], 0 offen sc1"] + updld + ["s_waitcnt vmcnt(0)"] + \
        updchk + ["s_cbranch_vccnz L_stf_retry", "s_branch L_stf_ok"]
G = updchk + ["s_cbranch_vccnz L_stf_retry", "L_stf_ok:", f"v_and_b32 v{vSt+1}, 0xffff0000, v{vSt}", f"v_lshlrev_b32 v{vSt}, 16, v{vSt}", f"v_rcp_f32 v{vSt+1}, v{vSt+1}"]
for hf in range(2):
    G += unpack(t, vXr + 4*hf)
    G += [f"v_sub_f32 v{t+e}, v{t+e}, v{vSt}" for e in range(8)]
    G += [f"v_cvt_pk_bf16_f32 v{8+e}, v{t+2*e}, v{t+2*e+1}" for e in range(4)] + unpack(t, 8)
    G += [f"v_mul_f32 v{t+e}, v{t+e}, v{vSt+1}" for e in range(8)]
    G += [f"v_cvt_pk_bf16_f32 v{8+e}, v{t+2*e}, v{t+2*e+1}" for e in range(4)] + unpack(t, 8)
    if opt["moe"]:
        G += unpack(8, vU + 8*hf, 2) + unpack(12, vU + 8*hf + 4, 2) + [f"v_add_f32 v{t+e}, v{t+e}, v{8+e}" for e in range(8)]
        G += [f"v_cvt_pk_bf16_f32 v{8+e}, v{t+2*e}, v{t+2*e+1}" for e in range(4)] + unpack(t, 8)
    G += [f"v_mul_f32 v{8+e}, {NLOG2E}, v{t+e}" for e in range(8)]
    G += [f"v_exp_f32 v{8+e}, v{8+e}" for e in range(8)]
    G += [f"v_add_f32 v{8+e}, 1.0, v{8+e}" for e in range(8)]
    G += [f"v_rcp_f32 v{8+e}, v{8+e}" for e in range(8)]
    G += [f"v_mul_f32 v{t+e}, v{t+e}, v{8+e}" for e in range(8)]
    G += [f"v_cvt_pk_bf16_f32 v{8+e}, v{t+2*e}, v{t+2*e+1}" for e in range(4)] + unpack(vGf + 8*hf, 8)
G += unpack(vU, vXr, 8)
GA = [f"v_add_u32 v32, s{r.sM0K}, v{vOq}"] + [f"v_xor_b32 v{32+nb}, {nb*1024 + nb*64}, v32" for nb in range(1, 4)]
GA += ["v_lshrrev_b32 v31, 2, v0", f"v_lshlrev_b32 v30, 2, v{vC3}", "v_xor_b32 v31, v31, v30", "v_lshlrev_b32 v31, 4, v31", f"v_lshl_add_u32 v31, v{vC3}, 10, v31",
       f"s_lshl_b32 s3, s{sWave}, 14", "v_add_u32 v31, s3, v31", "v_mov_b32 v29, 0xffffff00"]
NB = [4, 5, 6, 7]
GA += [f"s_bfe_u32 s{NB[e]}, s{sNonce}, {hex(0x80000 + 8*e)}" for e in range(4)]
GA += ["s_lshl_b32 s42, s2, 14", f"s_add_u32 s42, s42, s{r.sM0K}", f"s_add_u32 s42, s42, {WS_EX}", "s_xor_b32 s43, s42, 0x10000"]
assert S.vmn("xf") >= S.vmn("poll")
Q += GA + G
def ex_reads(g): return [f"ds_read_b128 {v(128+(g&1)*16+4*s_,4)}, v31 offset:{s_*4096 + g*256} ; e{g}" for s_ in range(4)]
def exreg(g): return [8, 12, 36, 40][g] if opt["exb"] else 128 + (g & 1)*16 + 4
def ex_send(g):
    b_ = 128 + (g & 1)*16
    L = [f"v_add_f32 v{b_+e}, v{b_+e}, v{b_+4+e}" for e in range(4)] + [f"v_add_f32 v{b_+8+e}, v{b_+8+e}, v{b_+12+e}" for e in range(4)]
    L += [f"v_add_f32 v{b_+e}, v{b_+e}, v{b_+8+e}" for e in range(4)] + [f"v_and_or_b32 v{exreg(g)+e}, v{b_+e}, v29, s{NB[e]}" for e in range(4)]
    return L
exld = [f"buffer_load_dwordx4 {v(128+4*g,4)}, v{vOq}, s[{sW}:{sW+3}], s43 offen offset:{g*1024} sc1" for g in range(4)]
exchk = [f"v_xor_b32 v30, s{NB[0]}, v128"] + [f"v_bitop3_b32 v30, v30, v{128+n}, s{NB[n&3]} bitop3:0xf6" for n in range(1, 16)] + \
        ["v_and_b32 v30, 0xff, v30", "v_cmp_ne_u32 vcc, 0, v30"]
cold += ["L_ex_retry:"] + spin("", "L_ex_ok") + exld + ["s_waitcnt vmcnt(0)"] + exchk + ["s_cbranch_vccnz L_ex_retry", "s_branch L_ex_ok"]
ZB, ZL, ZC = opt["zb"], opt["zl"], opt["zc"]
for z in range(32):
    qb, h = z >> 2, z & 3
    Wb, Ob = WBLK[h], OBUF[z % len(OBUF)]
    vtags = [f"o{z}"]; ltags = []
    if z < 4: ltags.append(f"r{4*z+3}")
    ops = o_loads(z + LOOK) if z + LOOK < 32 else []
    rdq = []; post = []
    if z == ZB + 1:
        assert not Q, len(Q)
        Q += [f"v_add_u32 v{32+nb}, 0x10000, v{32+nb}" for nb in range(4)]
    if opt["exf"]:
        k = z - ZB - 1
        if k in (0, 2): rdq = ex_reads(k) + ex_reads(k + 1)
        gs = (k - 1, k) if k in (1, 3) else ()
    else:
        if 0 <= z - ZB - 1 < 4: rdq = ex_reads(z - ZB - 1)
        gs = (z - ZB - 2,) if 0 <= z - ZB - 2 < 4 else ()
    for g in gs:
        ltags.append(f"e{g}"); Q += ex_send(g)
        post += [f"buffer_store_dwordx4 {v(exreg(g),4)}, v{vOq}, s[{sW}:{sW+3}], s42 offen offset:{g*1024} sc1"]
    if z == ZB + 6: Q += ["v_add_u32 v31, 0x10000, v31"]
    if z == ZL: ops += [l + " ; ex" for l in exld]
    if z == ZC:
        vtags.append("ex")
        Q += exchk + ["s_cbranch_vccnz L_ex_retry" if opt["exb"] != 2 else "s_nop 0", "L_ex_ok:"] + [f"v_and_b32 v{128+n}, v29, v{128+n}" for n in range(16)] + \
             [f"v_fma_f32 v{vU+n}, v{128+n}, v{vGf+n}, v{vU+n}" for n in range(16)]
    pend.extend(ops)
    w = f"s_waitcnt vmcnt({S.vmn(*vtags)})"
    if ltags: w += f" lgkmcnt({S.lgn(*ltags)})"
    E(w)
    if h == 0: stamp(4)
    if z >= 17: stamp(32)
    wr = [f"ds_write_b128 v{32+nb}, {blk(ACC, ((qb-1)&1)*16 + nb*4, 4)} offset:{((qb-1)&3)*16384}" for nb in range(4)] if h == 0 and qb else []
    if z == 4: assert len(Q) <= len(G)
    assert not (wr and qb == 5 and z <= ZB + 1)
    nbuf = sum(l.startswith("buffer") for l in pend)
    slots = [3 + 4*int(i*4/nbuf) for i in range(nbuf)]
    for n in range(16):
        nb, i = n >> 2, n & 3
        if nb & 1: i = 3 - i
        D = blk(ACC, (qb & 1)*16 + nb*4, 4)
        m = f"{MF} {D}, {blk(Wb, (nb*4 + i)*4, 4)}, {blk(Ob, i*4, 4)}, {'0' if h == 0 and n & 3 == 0 else D}"
        lead = []
        if n & 3 == 3:
            for _ in range(2 if z == ZB else 1):
                if wr: lead.append(wr.pop(0))
            for _ in range(slots.count(n)):
                while pend[0].startswith("s_"): lead.append(pend.pop(0))
                lead.append(pend.pop(0))
            if n == 15:
                lead += pend; del pend[:]
                if post:
                    while Q: lead.append(Q.pop(0))
                    lead += post
                if z == ZB: lead += ["s_waitcnt lgkmcnt(0)", "s_barrier"]
        elif rdq and (n & 3 == 0 or opt["exf"]): lead.append(rdq.pop(0))
        S.gap(m, lead)
    assert not rdq and not pend and not wr, (z, pend)
S.drain()
stamp(5)
for nb in range(4):
    l = f"ds_write_b128 v{32+nb}, {blk(ACC, 16 + nb*4, 4)} offset:{3*16384}"
    while not S.ok(l): E("s_nop 0")
    E(l)
E("s_waitcnt lgkmcnt(0)")
E("s_barrier")
for g in range(4):
    for s_ in range(4): E(f"ds_read_b128 {v(64+s_*16+g*4,4)}, v31 offset:{s_*4096 + g*256}")
for g in range(4):
    E(f"s_waitcnt lgkmcnt({12 - 4*g})")
    for e in range(4*g, 4*g + 4): E(f"v_add_f32 v{64+e}, v{64+e}, v{80+e}"); E(f"v_add_f32 v{96+e}, v{96+e}, v{112+e}")
    for e in range(4*g, 4*g + 4): E(f"v_add_f32 v{64+e}, v{64+e}, v{96+e}")
    for e in range(4*g, 4*g + 4): E(f"v_fma_f32 v{64+e}, v{64+e}, v{vGf+e}, v{vU+e}")
    for e in range(2*g, 2*g + 2): E(f"v_cvt_pk_bf16_f32 v{8+e}, v{64+2*e}, v{65+2*e}")
    if g & 1: E(f"global_store_dwordx4 v{vXo}, {v(8+4*(g>>1),4)}, s[{pOut}:{pOut+1}] offset:{16*(g>>1)}{POL[opt['ost']]}")
stamp(1)
if opt["stamp"]: E("s_waitcnt vmcnt(0)")
stamp(1)
if opt["stamp"]:
    M(f"""
    s_lshl_b32 s3, s2, 2
    s_add_u32 s3, s3, s{sWave}
    s_lshl_b32 s3, s3, 7
    s_add_u32 s3, s3, {WS_T}
    v_mov_b32 v3, 0
    """)
    for i in range(32): E(f"v_mov_b32 v{4+i}, s{70+i}" if i < 2*nstamp[0] else f"v_mov_b32 v{4+i}, 0")
    for i in range(8): E(f"buffer_store_dwordx4 v[{4+4*i}:{7+4*i}], v3, s[{sW}:{sW+3}], s3 offen offset:{16*i}")
E("s_endpgm")
r.vVDl = [20, 21, 20, 21]
M(f"""
L_fallback:
s_cmp_lg_u32 s{sFb}, 0
s_cbranch_scc1 L_safe
s_mov_b32 s{sFb}, 1
s_mov_b32 s{sMask2}, 0
s_mov_b32 s{sMask4}, 0x80
s_lshl_b32 s3, s{sHead}, 19
s_add_u32 s{sK}, s{pK}, s3
s_addc_u32 s{sK+1}, s{pK+1}, 0
s_mov_b32 s{sK+2}, 0x80000
s_add_u32 s{sV}, s{pV}, s3
s_addc_u32 s{sV+1}, s{pV+1}, 0
s_mov_b32 s{sV+2}, 0x80000
s_mov_b32 s{r.sKoff}, 0
s_mov_b32 s{r.sVoff}, 0
s_mov_b32 s{r.sKinc}, 0x4000
s_mov_b32 s{r.sVinc}, 0x4000
s_mov_b32 s{r.sIt}, 0
v_lshlrev_b32 v3, 4, v0
v_lshrrev_b32 v60, 2, v2
v_and_b32 v61, 1, v1
v_lshl_add_u32 v60, v61, 2, v60
v_and_b32 v63, 3, v0
s_waitcnt vmcnt(0) lgkmcnt(0)
s_barrier
""")
for l in ADDR + VCOPY: E(l)
for i in range(16): E(f"v_mov_b32 v{r.vM+i}, 0")
for i in range(16): E(f"v_mov_b32 v{r.vL+i}, 0")
for l in ozero(r.vM): E(l)
for qb in range(4): E(f"v_mov_b32 v{60+qb}, 0xff800000")
E("L_fb_loop:")
plain(kdma(0))
M("s_waitcnt vmcnt(0)\ns_barrier")
for i in range(16): E(X.kread(0, i))
M("s_waitcnt lgkmcnt(0)\ns_barrier")
for g in range(64): E(X.qk(g))
E("s_nop 7")
for qb in range(4):
    for e in range(8): E(f"v_max3_f32 v{60+qb}, v{60+qb}, v{r.vS+16*qb+2*e}, v{r.vS+16*qb+2*e+1}")
M(f"""
s_and_b32 s3, s{r.sKoff}, 0x7ffff
s_cbranch_scc1 L_fb_loop
s_mov_b32 s{r.sKoff}, 0
""")
plain(kdma(0) + kdma(1) + vdma(0) + kdma(2) + vdma(1) + kdma(3) + vdma(2))
for sw in ("v_permlane32_swap_b32", "v_permlane16_swap_b32"):
    for qb in range(4): E(f"v_mov_b32 v{128+qb}, v{60+qb}")
    E("s_nop 1")
    for qb in range(4): E(f"{sw} v{128+qb}, v{60+qb}")
    E("s_nop 1")
    for qb in range(4): E(f"v_max_f32 v{60+qb}, v{60+qb}, v{128+qb}")
for qb in range(4):
    for e in range(4): E(f"v_sub_f32 v{r.vM+4*qb+e}, 0, v{60+qb}")
M("s_waitcnt vmcnt(0)\ns_barrier")
for i in range(16): E(X.kread(0, i))
M("s_waitcnt lgkmcnt(0)\ns_branch L_restart")
for l in cold: E(l)
A.label("L_end")
E("s_endpgm")
A.raw(f""".section .rodata,"a"
.p2align 6
.amdhsa_kernel {KN}_kernel
  .amdhsa_next_free_vgpr 512
  .amdhsa_next_free_sgpr 102
  .amdhsa_accum_offset 256
  .amdhsa_group_segment_fixed_size 0
  .amdhsa_kernarg_size 104
  .amdhsa_user_sgpr_count 2
  .amdhsa_user_sgpr_kernarg_segment_ptr 1
  .amdhsa_system_sgpr_workgroup_id_x 1
  .amdhsa_float_denorm_mode_32 3
.end_amdhsa_kernel""")
txt = A.text()
if opt["exper"]:
    import re as _re
    a_, b_ = txt.index("L_loop:"), txt.index("L_disp4:")
    body = txt[a_:b_].split("\n"); ex = opt["exper"]; out = []
    for l in body:
        t_ = l.strip()
        if ex == 2 and t_.startswith("v_cvt_pk"): continue
        if ex == 3 and t_.startswith("v_exp"): l = l.replace("v_exp_f32", "v_mov_b32")
        if ex == 4 and t_.startswith("ds_read_b128"): continue
        if ex == 5 and t_.startswith("ds_read_b64_tr"): continue
        if ex == 6 and t_.startswith("v_smfmac"): continue
        if ex == 7: l = _re.sub(r", v\[(44:47|48:51|52:55|56:59)\]$", ", 0", l)
        if ex == 8 and t_.startswith("buffer_load"): continue
        if ex == 10 and t_.startswith("buffer_load"): l = _re.sub(r"dwordx4 v\d+,", "dwordx4 v60,", l)
        if ex == 11 and t_.startswith("buffer_load"): l = _re.sub(r"dwordx4 v\d+,", "dwordx4 v60,", l).replace("s23 ", "0 ").replace("s24 ", "0 ").replace(" nt", "")
        if (ex == 12 and t_.startswith("v_mfma_f32_16x16x32_bf16 a")) or (ex == 13 and t_.startswith("v_mfma_f32_16x16x32_bf16 v")):
            o_ = t_.split(", "); l = "    " + ", ".join([o_[0], o_[2], o_[1], o_[3]])
        if ex == 9 and t_.startswith("v_cvt_pk"):
            m_ = _re.match(r"v_cvt_pk_bf16_f32 (v\d+), (v\d+), (v\d+)", t_); l = f"    v_perm_b32 {m_[1]}, {m_[3]}, {m_[2]}, s64"
        out.append(l)
    txt = txt[:a_] + "\n".join(out) + txt[b_:]
    if ex >= 10: txt = txt.replace("L_restart:\n", "L_restart:\n    v_add_u32 v60, s25, v3\n")
    if ex == 9: txt = txt.replace("L_restart:\n", "L_restart:\n    s_mov_b32 s64, 0x07060302\n")
for ro in "FRS": txt = txt.replace("MASK2" + ro, hex(m2[ro])).replace("MASK4" + ro, hex(m4[ro]))
if opt["walk"]:
    import subprocess, re as _re
    tmp = sys.argv[1] + ".tmp.s"
    open(tmp, "w").write(txt.replace("L_end:", "L_pad0:\nL_pad1:\nL_pad2:\nL_pad3:\nL_end:"))
    subprocess.run(["clang", "-x", "assembler", "-target", "amdgcn-amd-amdhsa", "-mcpu=gfx950", "-c", tmp, "-o", tmp + ".o"], check=True)
    dis = subprocess.run(["llvm-objdump", "-d", "--mcpu=gfx950", tmp + ".o"], capture_output=True, text=True).stdout
    ins = [(m_[1].strip(), 4*len(m_[2].split())) for m_ in _re.finditer(r"^\s+(\S.*?)//\s*[0-9A-F]+: ((?:[0-9A-F]{8} ?)+)$", dis, _re.M)]
    lines = txt.split("\n"); out = []; addr = opt["kbase"]; old = 0; k = 0; npad = 0; want = None; live = False
    lastb = addr >> 12
    for n, l in enumerate(lines):
        t_ = l.split(";")[0].strip()
        if t_ == f"{KN}_kernel:": live = True
        if t_ == "L_fallback:": live = False
        if live and t_ == ".p2align 6":
            while old % 64: old += 4; k += 1
            addr = (addr + 63) & ~63
        isin = live and t_ and not t_.startswith(".") and not t_.endswith(":")
        if isin and (addr >> 12) != lastb: lastb = addr >> 12; want = addr & ~4095
        if isin and want is not None:
            prev = out[-1].strip()
            nice = prev.startswith(("v_mfma", "v_smfmac")) and t_.startswith("v_")
            if nice or addr + ins[k][1] + 4 > want + 60:
                out += [f"L_pad{npad}:", f"    s_cbranch_execz PADNEXT{npad}_"]; npad += 1; addr += 4; want = None
        out.append(l)
        if isin: addr += ins[k][1]; old += ins[k][1]; k += 1
        if live and opt["walk"] > 1 and (t_.startswith("L_hook") or t_ == "L_tail:"):
            out += [f"L_pad{npad}:", f"    s_cbranch_execz PADNEXT{npad}_"]; npad += 1; addr += 4
    txt = "\n".join(out)
    for p_ in range(npad): txt = txt.replace(f"PADNEXT{p_}_", f"L_pad{p_+4}" if p_ + 4 < npad else "L_walk_done")
    print("pads", npad, file=sys.stderr)
bad = check_hazards(txt)
if bad: print("hazards:", len(bad), file=sys.stderr)
open(sys.argv[1], "w").write(txt)
```

```python
import sys, struct
from attn16 import *
KN = "recurrent_scan__mha_block_cached__moe_arch_mod__prompt"
opt = dict(pk=1, fin2=0, rdE=2, rdF=6, shiftk=0, altail=0, al6=0, walk=0, walkat=3, kbase=768, xs=0, nos1=0, stl=1, k0st=5, kvrot=1, fline=1, ftouch=0, ppol=0, fpol=0, qs=0x29000, xe=1, exf=1, exb=0, ext=0, zb=16, zl=25, zc=30, rdpre=13, early=1, rotq=0, rotx=0, bnd=7, tg0=1, dhold=0, shift=16, perm=1, exper=0, kv6=2, wqt=0, wqlo=2, wqpos=0, otch=0, nostore=0, flip=0, xcc=0, map8=0, onerow=0, lnfirst=0, qrot=0, osp=0, fx=0, holdrel=0, bgap=63, bsplit=1, bar=1, nodma=0, pad=0, holdp=0, holdt=0, forcefb=0, ntw=0, ost=0, tlb=1, varb=1, TF=18, TP=22, moeT=99, moe=1, pollat=6, wtouch=1, otouch=0, epace=40, npost=8, npre=24, look=5, zd=24, dlag=5, rot=0, s1st=5, cyc=0, stamp=0, snake=1, pvchain=1, G0=8, nt=1, ntq=0, sm=1, drate=4, pre=2)
opt_s = dict(tg="[]", oT="(20,26)", touch="{}", hs="(8,10,12,14,16,24,27)", wT="(27,28)")
for x in sys.argv[2:]:
    k, val = x.split("=")
    if k in opt_s: opt_s[k] = val
    else: opt[k] = int(val)
A = Asm(); r = default_regs(); X = Attn(A, r, opt); S = Stream(A); E = S.emit; M = S.many
PP = [' sc1', ' sc0 sc1', ' sc1 nt', ' sc0 sc1 nt']
POL = ["", " nt", " sc1"]
def fbits(x): return hex(struct.unpack("<I", struct.pack("<f", x))[0])
WS_O = 32 << 20
QS = opt['qs']
WS_STAT = 16 << 20
WS_KEY = WS_STAT + 0x4000
WS_FLAG = WS_STAT + 0x10000
WS_SEL = WS_STAT + 0x8000
WS_FC = WS_STAT + 0x9000
WS_UPD = WS_STAT + 0xC000
WS_XN = 18 << 20
WS_PART = 20 << 20
WS_EX = 24 << 20
WS_T = 64 << 20
sX, sK, sV, sW, sWq = 4, 8, 12, 16, 28
sWave, sHead, sQb = 20, 21, 22
sXoff, sWoff, sM0X, sM0W = 34, 35, 62, 63
pX, pK, pV, pWq, pWo, pWr, pWg, pWu, pWd, pOut, pDbg, pWs = 36, 38, 40, 42, 44, 48, 50, 52, 54, 56, 58, 60
sKey0, sRow0, sNonce = 64, 66, 46
sSpin = 33
def spin(label, ok): return [f"s_cmp_eq_u32 s{sSpin}, 0", f"s_cbranch_scc1 {ok}", f"s_sub_u32 s{sSpin}, s{sSpin}, 1"]
cold = []
nstamp = [0]
CLK = "s_memtime" if opt["cyc"] else "s_memrealtime"
npoint = [0]
def hold_at():
    npoint[0] += 1
    if opt["holdp"] == npoint[0]:
        M(f"""
        L_hold:
        s_memrealtime s[98:99]
        s_waitcnt lgkmcnt(0)
        s_sub_u32 s98, s98, s{46 if opt['holdrel'] else 100}
        s_cmp_lt_u32 s98, {opt['holdt']*100}
        s_cbranch_scc1 L_hold
        """)
def stamp(lvl=1, wait=True):
    if lvl & 1: hold_at()
    if opt["stamp"] & lvl and nstamp[0] < 16:
        i = nstamp[0]; nstamp[0] += 1
        E(f"{CLK} s[{70+2*i}:{71+2*i}]")
        if wait: E("s_waitcnt lgkmcnt(0)")

A.raw("; @launch grid=(256,1,1) block=(256,1,1) lds=163840")
A.raw('.amdgcn_target "amdgcn-amd-amdhsa--gfx950"')
A.raw(".text"); A.raw(".p2align 12")
if opt["shiftk"]: A.raw(f".fill {(4096 - 768) // 4}, 4, 0xbf800000      ; never executed: puts the kernel entry on a 4 KB boundary behind the three 256-byte harness stubs")
A.raw(f".globl {KN}_kernel"); A.raw(".p2align 8"); A.raw(f".type {KN}_kernel,@function")
A.label(f"{KN}_kernel")
M(f"""
s_cmp_ge_u32 s2, 256
s_cbranch_scc1 L_end
s_load_dwordx16 s[36:51], s[0:1], 0
s_load_dwordx8 s[52:59], s[0:1], 64
s_load_dwordx2 s[60:61], s[0:1], 96
s_memrealtime s[68:69]
""")
if opt["stamp"]:
    E(f"{CLK} s[70:71]"); nstamp[0] = 1
if opt["holdp"]: E("s_memrealtime s[100:101]")
M(f"""
s_getpc_b64 s[32:33]
v_lshrrev_b32 v1, 6, v0
v_and_b32 v0, 63, v0
s_and_b32 s3, s2, 0xf8
s_lshl_b32 s3, s3, 1
v_lshl_add_u32 v4, v1, 2, v0
v_add_lshl_u32 v4, v4, s3, 7
v_min_u32 v4, L_end-{KN}_kernel-128, v4
s_mov_b64 exec, 15
global_load_dword v23, v4, s[32:33]
s_mov_b64 exec, -1
v_readfirstlane_b32 s{sWave}, v1
s_and_b32 s3, s2, {6 if opt['map8'] else 7}
s_lshl_b32 s3, s3, 2
s_bfe_u32 s{sHead}, s2, {'0x30003' if opt['map8'] else '0x20003'}
s_or_b32 s{sHead}, s{sHead}, s3
s_lshr_b32 s{sQb}, s2, {6 if opt['map8'] else 5}
s_and_b32 s3, s2, {1 if opt['map8'] else 0}
s_lshl_b32 s3, s3, 2
s_or_b32 s{sQb}, s{sQb}, s3
v_lshrrev_b32 v1, 4, v0
v_and_b32 v2, 15, v0
""")
vXD, vWD, vXA, vWA, vCS, vKM = 76, 84, 88, 92, 100, 108
vSX, vG = r.vL, r.vM
M(f"""
v_lshrrev_b32 v4, 3, v0
s_lshl_b32 s3, s{sWave}, 6
v_add_u32 v4, s3, v4
v_lshlrev_b32 v4, 10, v4
v_and_b32 v5, 7, v0
v_xor_b32 v6, v5, v1
v_xor_b32 v7, 4, v6
v_lshl_add_u32 v6, v6, 4, v4
v_lshl_add_u32 v7, v7, 4, v4
""")
for p in range(8): E(f"v_add_u32 v{vXD+p}, {p*8192 - (p&3)*1024}, v{6+(p&1)}")
M(f"""
s_lshl_b32 s3, s{sWave}, 4
v_add_u32 v4, s3, v1
v_lshlrev_b32 v4, 13, v4
v_lshlrev_b32 v5, 1, v1
v_xor_b32 v6, v5, v2
v_xor_b32 v7, 8, v6
v_lshl_add_u32 v6, v6, 4, v4
v_lshl_add_u32 v7, v7, 4, v4
""")
for p in range(4): E(f"v_add_u32 v{vWD+p}, {p*4*8192 - p*1024}, v{6+(p>>1)}")
M(f"""
s_lshl_b32 s{sM0X}, s{sWave}, 13
s_lshl_b32 s{r.sM0K}, s{sWave}, 12
s_add_u32 s{sM0W}, s{r.sM0K}, 0xC000
s_and_b32 s3, s{sQb}, {opt['rotq']}
s_and_b32 s67, s2, {opt['rotx']}
s_add_u32 s3, s3, s67
s_and_b32 s3, s3, 7
s_lshl_b32 s{sXoff}, s3, 7
s_lshl_b32 s{sWoff}, s3, 19
s_mov_b32 s{sX+2}, 0x40000
s_mov_b32 s{sX+3}, 0x20000
s_mov_b32 s{sWq+3}, 0x20000
s_lshl_b32 s3, s{sQb}, 18
s_lshl_b32 s67, s{sHead}, 8
s_sub_u32 s{sWq+2}, 0x400000, s67
s_waitcnt lgkmcnt(0)
s_add_u32 s{sX}, s{pX}, s3
s_addc_u32 s{sX+1}, s{pX+1}, 0
s_add_u32 s{sWq}, s{pWq}, s67
s_addc_u32 s{sWq+1}, s{pWq+1}, 0
s_or_b32 s3, s2, s{sWave}
s_cbranch_scc1 L_nononce
""")
A("s_getreg_b32 s3, hwreg(HW_REG_XCC_ID, 0, 1)"); A("s_lshl_b32 s68, s68, 2"); A("s_lshl_b32 s3, s3, 1"); A("s_or_b32 s68, s68, s3")
A("s_or_b32 s68, s68, 1"); A("v_mov_b32 v4, 0"); A("v_mov_b32 v5, s68"); A(f"global_store_dword v4, v5, s[{pDbg}:{pDbg+1}] sc1")
E("L_nononce:")
if opt["xcc"]:
    M(f"""s_cmp_ge_u32 s2, 8
    s_cbranch_scc1 L_noxcc
    s_getreg_b32 s3, hwreg(HW_REG_XCC_ID)
    s_add_u32 s3, s3, 100
    v_mov_b32 v5, s3
    s_lshl_b32 s3, s2, 2
    v_mov_b32 v4, s3""")
    A(f"global_store_dword v4, v5, s[{pDbg}:{pDbg+1}] offset:4")
    E("L_noxcc:")
stamp(2)
XSLOT = [[0x18000, 0x20000, 0x4000], [0x20000, 0x18000, 0x4000], [0x18000, 0x18000, 0x4000]][opt['xs']]
def xdma(st):
    L = []
    for p in range(8):
        if p & 3 == 0: L.append(f"s_add_u32 m0, s{sM0X}, {XSLOT[st%3] + (p>>2)*4096}")
        L.append(f"buffer_load_dwordx4 v{vXD+p}, s[{sX}:{sX+3}], s{sXoff} offen offset:{(p&3)*1024}{POL[opt['ntq']]} lds ; x{st}")
    L.append(f"s_add_u32 s{sXoff}, s{sXoff}, 128")
    if opt["rotq"] or opt["rotx"]: L.append(f"s_and_b32 s{sXoff}, s{sXoff}, 0x3ff")
    return L
def wdma(st):
    L = [f"s_add_u32 m0, s{sM0W}, {(st%3)*16384}"]
    for p in range(4):
        L.append(f"buffer_load_dwordx4 v{vWD+p}, s[{sWq}:{sWq+3}], s{sWoff} offen offset:{p*1024}{POL[opt['ntw']]} lds ; w{st}")
    L.append(f"s_add_u32 s{sWoff}, s{sWoff}, 0x80000")
    if opt["rotq"] or opt["rotx"]: L.append(f"s_and_b32 s{sWoff}, s{sWoff}, 0x3fffff")
    return L
def tagged(L, t): return [l + " ; " + t if l.startswith("buffer") else l for l in L]
def wrap(x): return [f"s_and_b32 s{x}, s{x}, 0x7ffff"] if opt["kvrot"] else []
def kdma(T): return tagged(X.dma(T & 3)[:5], f"k{T}") + [f"s_add_u32 s{r.sKoff}, s{r.sKoff}, 0x4000"] + wrap(r.sKoff)
def vdma(T): return tagged(X.dma((T + 1) & 3)[5:], f"v{T}") + [f"s_add_u32 s{r.sVoff}, s{r.sVoff}, 0x4000"] + wrap(r.sVoff)
def plain(L):
    for l in L:
        E(l)
        if l.startswith("s_add_u32 m0"): E("s_nop 0")
Q = S.q
vCA = 124
def xors(dst, n, step): return [f"v_xor_b32 v{dst+k}, {k*step}, v{dst}" for k in range(1, n)]
PRE = f"""v_lshlrev_b32 v3, 4, v0
s_lshl_b32 s3, s{sHead}, 2
s_add_u32 s3, s3, s{sWave}
s_lshl_b32 s{sRow0}, s3, 11
v_lshrrev_b32 v4, 1, v2
v_xor_b32 v4, v4, v1
v_lshl_add_u32 v5, v2, 7, s{sM0X}
v_lshl_add_u32 v6, v4, 4, v5
v_add_u32 v{vXA}, 0x18000, v6
v_add_u32 v{vXA+2}, {XSLOT[2]}, v6
v_xor_b32 v{vXA+1}, 64, v{vXA}
v_xor_b32 v{vXA+3}, 64, v{vXA+2}
v_lshrrev_b32 v4, 2, v2
v_and_b32 v63, 3, v0
v_and_b32 v6, 1, v1
v_lshl_add_u32 v60, v6, 2, v4
v_lshl_add_u32 v5, v1, 3, v4
v_lshlrev_b32 v5, 8, v5
v_lshl_add_u32 v5, v63, 3, v5
v_lshl_add_u32 v5, v60, 5, v5
s_lshl_b32 s3, s{sWave}, 6
s_add_u32 s3, s3, 0xC000
v_xor_b32 v{vWA}, s3, v5""".split("\n") + xors(vWA, 8, 32)
PRE += [f"v_mov_b32 v{vCS+i}, 0" for i in range(8)]
PRE += f"""v_mov_b32 v62, 0x3f803f80
v_cmp_gt_u32 vcc, 2, v63
v_and_b32 v4, 1, v0
v_mov_b32 v5, 0x44444444
v_mov_b32 v6, 0xeeeeeeee
v_cndmask_b32 v{r.vOne}, 0, v62, vcc
v_cndmask_b32 v{r.vOne+1}, 0, v62, vcc
v_cndmask_b32 v{r.vOne+2}, 0, v62, vcc
v_cndmask_b32 v{r.vOne+3}, 0, v62, vcc
v_cmp_eq_u32 vcc, 1, v4
s_lshl_b32 s1, s{sQb}, 2
s_add_u32 s1, s1, s{sWave}
v_cndmask_b32 v{r.vIdx}, v5, v6, vcc
s_lshl_b32 s1, s1, 9
s_add_u32 s1, s1, {WS_STAT}""".split("\n")
def ozero(z): return [f"v_mfma_f32_32x32x16_bf16 {a(r.aO+16*i,16)}, {v(z,4)}, {v(z,4)}, 0" for i in range(8)]
ADDR = f"""v_lshl_add_u32 v61, v1, 8, s{r.sM0K}
v_xor_b32 v62, v1, v2
v_lshl_add_u32 v{r.vKD}, v62, 4, v61""".split("\n") + xors(r.vKD, 4, 64) + f"""v_lshlrev_b32 v62, 1, v1
v_xor_b32 v62, v62, v2
v_lshl_add_u32 v{r.vVD}, v62, 4, v61
v_xor_b32 v{r.vVD+1}, 128, v{r.vVD}
v_lshrrev_b32 v61, 2, v0
v_lshlrev_b32 v61, 8, v61
v_lshl_add_u32 v61, v63, 3, v61
v_lshl_add_u32 v61, v60, 5, v61
v_add_u32 v{r.vVA}, {r.VBASE}, v61""".split("\n") + xors(r.vVA, 8, 32) + f"""v_lshrrev_b32 v61, 1, v1
v_and_b32 v62, 1, v1
v_lshl_add_u32 v62, v62, 1, v61
v_lshl_add_u32 v62, s{sWave}, 2, v62
v_xor_b32 v61, v62, v2
v_lshlrev_b32 v61, 4, v61
v_lshl_add_u32 v{r.vKA}, v2, 8, v61""".split("\n") + xors(r.vKA, 4, 64)
VCOPY = ["v_mov_b32 v1, v20", "v_mov_b32 v2, v21"]
PRE2 = ADDR + f"""v_xor_b32 v61, v62, v63
v_lshlrev_b32 v61, 4, v61
v_lshl_add_u32 v{vKM}, v63, 8, v61""".split("\n") + xors(vKM, 4, 64)
PRE2 += [f"s_add_u32 s67, s{sM0X}, {XSLOT[1]}", "v_lshl_add_u32 v62, v2, 2, s67", "v_lshlrev_b32 v61, 3, v2", f"v_lshl_add_u32 v{vCA}, v1, 4, s67"] + xors(vCA, 4, 8192)
PRE2 += VCOPY
PRE2 += [f"s_lshl_b32 s3, s{sHead}, 19", [f"s_add_u32 s{sK}, s{pK}, s3", f"s_addc_u32 s{sK+1}, s{pK+1}, 0"], [f"s_add_u32 s{sV}, s{pV}, s3", f"s_addc_u32 s{sV+1}, s{pV+1}, 0"]]
PRE2 += f"""s_mov_b32 s{sK+2}, 0x80000
s_mov_b32 s{sK+3}, 0x20000
s_mov_b32 s{sV+2}, 0x80000
s_mov_b32 s{sV+3}, 0x20000
s_mov_b32 s{sW}, s{pWs}
s_mov_b32 s{sW+1}, s{pWs+1}
s_mov_b32 s{sW+2}, 0x10000000
s_mov_b32 s{sW+3}, 0x20000
s_mul_i32 s{r.sKoff}, s{sHead}, {0x4000*opt['kvrot']}
s_and_b32 s{r.sKoff}, s{r.sKoff}, 0x7ffff
s_mov_b32 s{r.sVoff}, s{r.sKoff}
s_mov_b32 s{sSpin}, 0x100000
s_add_u32 s{r.sM0V}, s{r.sM0K}, {r.VBASE}""".split("\n")
for n, m in enumerate(ozero(vCS + 4)): PRE2.insert(8*n + 2, m)
def issue(L, F):
    F = list(F); per = -(-len(F) // sum("lds" in l for l in L))
    for l in L:
        E(l)
        if l.startswith("s_add_u32 m0"): E("s_nop 0")
        if "lds" in l:
            for f in F[:per]:
                for x_ in (f if isinstance(f, list) else [f]): E(x_)
            del F[:per]
issue(wdma(0) + xdma(0), PRE)
stamp(2, False)
LN = f"""buffer_load_dwordx4 v[64:67], v3, s[{sX}:{sX+3}], s{sRow0} offen ; ln
buffer_load_dwordx4 v[68:71], v3, s[{sX}:{sX+3}], s{sRow0} offen offset:1024 ; ln
global_load_dwordx4 v[72:75], v3, s[{pWr}:{pWr+1}] ; ln""".split("\n")
L1 = []
for st in range(1, opt["pre"]): L1 += wdma(st) + xdma(st)
if opt["walk"]:
    nw_ = [i for i, l in enumerate(L1) if "lds" in l][opt["walkat"]] + 1
    L1[nw_:nw_] = ["s_mov_b64 exec, 0", f"s_bitcmp1_b32 s{sWave}, 1", "s_cbranch_scc1 L_walk_hi", f"s_bitcmp1_b32 s{sWave}, 0", "s_cbranch_scc1 L_pad1", "s_branch L_pad0",
                   "L_walk_hi:", f"s_bitcmp1_b32 s{sWave}, 0", "s_cbranch_scc1 L_pad3", "s_branch L_pad2", "L_walk_done:", "s_mov_b64 exec, -1"]
issue(L1 + LN, PRE2)
M(f"""
v_mov_b32 v55, 0
s_lshl_b32 s3, s{sQb}, 8
s_lshr_b32 s{sRow0}, s{sRow0}, 10
s_add_u32 s{sRow0}, s{sRow0}, s3
""")
stamp(2, False)
aXN = 248
def unpack(dst, src, n=4):
    L = []
    for k in range(n):
        L += [f"v_lshlrev_b32 v{dst+2*k}, 16, v{src+k}", f"v_and_b32 v{dst+2*k+1}, 0xffff0000, v{src+k}"]
    return L
def wave_sum(reg, sdst):
    return [f"v_add_f32_dpp v{reg}, v{reg}, v{reg} {m} bank_mask:0xf" for m in
            ("quad_perm:[1,0,3,2] row_mask:0xf", "quad_perm:[2,3,0,1] row_mask:0xf", "row_half_mirror row_mask:0xf",
             "row_mirror row_mask:0xf", "row_bcast:15 row_mask:0xa", "row_bcast:31 row_mask:0xc")] + [f"v_readlane_b32 s{sdst}, v{reg}, 63"]
def rbf(x): return [f"v_cvt_pk_bf16_f32 v{x}, v{x}, v{x}", f"v_lshlrev_b32 v{x}, 16, v{x}"]
vE, vD, vWr, vO = 32, 40, 112, 120
Q.append(lambda: f"s_waitcnt vmcnt({S.vmn('ln')})")
NONCE = [lambda: f"s_waitcnt vmcnt({S.vmn('nonce')})", f"v_readfirstlane_b32 s{sNonce}, v23", "s_nop 0", f"s_cmp_eq_u32 s{sNonce}, 0",
         "s_cbranch_scc1 L_nonce_retry", "L_nonce_ok:"]
cold += ["L_nonce_retry:"] + spin("", "L_nonce_ok") + [f"global_load_dword v23, v55, s[{pDbg}:{pDbg+1}] sc1", "s_waitcnt vmcnt(0)",
         f"v_readfirstlane_b32 s{sNonce}, v23", "s_nop 0", f"s_cmp_eq_u32 s{sNonce}, 0", "s_cbranch_scc1 L_nonce_retry", "s_branch L_nonce_ok"]
Q += ["v_mov_b32 v50, 0x3b000000"]
for k in range(2):
    Q += unpack(vE, 64 + 4*k)
    Q += [f"v_add_f32 v{vD+e}, v{vE+2*e}, v{vE+2*e+1}" for e in range(4)]
    Q += [f"v_add_f32 v{vD}, v{vD}, v{vD+1}", f"v_add_f32 v{vD+2}, v{vD+2}, v{vD+3}", f"v_add_f32 v48, v{vD}, v{vD+2}"]
    Q += wave_sum(48, 68) + ["v_mul_f32 v48, s68, v50"]
    Q += [f"v_sub_f32 v{vD+e}, v{vE+e}, v48" for e in range(8)]
    Q += [f"v_mul_f32 v49, v{vD}, v{vD}"] + [f"v_fmac_f32 v49, v{vD+e}, v{vD+e}" for e in range(1, 8)]
    Q += wave_sum(49, 68)
    Q += ["v_mul_f32 v49, s68, v50"] + rbf(49) + ["v_add_f32 v49, 0x3727c5ac, v49"] + rbf(49) + ["v_sqrt_f32 v49, v49"]
    Q += [f"v_cvt_pk_bf16_f32 v{vO+2*k}, v48, v49"]
Q += [NONCE, f"v_mov_b32 v{vO+1}, s{sNonce}", f"v_mov_b32 v{vO+3}, s{sNonce}"]
Q += [f"s_lshl_b32 s68, s{sRow0}, 3", f"s_add_u32 s65, s68, {WS_KEY}", f"s_add_u32 s68, s68, {WS_STAT}"]
Q.append(["s_mov_b64 exec, 1", f"buffer_store_dwordx4 v[{vO}:{vO+3}], off, s[{sW}:{sW+3}], s68 sc1 ; s1", "s_mov_b64 exec, -1"])
Q += unpack(vWr, 72)
for k in range(2):
    Q += unpack(vE, 64 + 4*k) + [f"v_lshlrev_b32 v48, 16, v{vO+2*k}", f"v_and_b32 v49, 0xffff0000, v{vO+2*k}", "v_rcp_f32 v49, v49"]
    Q += [f"v_sub_f32 v{vE+e}, v{vE+e}, v48" for e in range(8)]
    Q += [f"v_cvt_pk_bf16_f32 v{vD+e}, v{vE+2*e}, v{vE+2*e+1}" for e in range(4)]
    Q += unpack(vE, vD)
    Q += [f"v_mul_f32 v{vE+e}, v{vE+e}, v49" for e in range(8)]
    Q += [f"v_cvt_pk_bf16_f32 v{64+4*k+e}, v{vE+2*e}, v{vE+2*e+1}" for e in range(4)]
    Q += unpack(vE, 64 + 4*k)
    Q += [f"v_mul_f32 v49, v{vE}, v{vWr}"] + [f"v_fmac_f32 v49, v{vE+e}, v{vWr+e}" for e in range(1, 8)]
    Q += wave_sum(49, 68) + [f"s_sub_u32 s67, {2047-k}, s{sRow0}", "v_mov_b32 v49, s68", "v_cvt_pk_bf16_f32 v49, v49, v49",
          "v_ashrrev_i32 v48, 31, v49", "v_or_b32 v48, 0x80000000, v48", "v_xor_b32 v49, v48, v49", "v_and_b32 v49, 0xffff0000, v49",
          f"v_or_b32 v{72+k}, s67, v49", f"v_mov_b32 v{74+k}, s{sNonce}"]
Q += [f"s_lshl_b32 s64, s{sRow0}, 10", f"s_add_u32 s64, s64, {WS_XN}"]
XNST = [f"buffer_store_dwordx4 v[{64+4*k}:{67+4*k}], v3, s[{sW}:{sW+3}], s64 offen offset:{k*1024} sc1 ; xn" for k in range(2)]
KEYST = ["s_mov_b64 exec, 1", f"buffer_store_dwordx4 v[60:63], off, s[{sW}:{sW+3}], s65 sc1 ; s1", "s_mov_b64 exec, -1"]
NFILL = len(Q); S1 = list(Q); del Q[:]
r.sKinc, r.sVinc = 34, 35
sMask2, sMask4 = 62, 63
sQt, sNt = 47, 32
sChunk, sSlow = 69, 66
sFb = 0
SET = f"""s_mov_b32 s{r.sKinc}, 0x4000
s_mov_b32 s{r.sVinc}, 0x4000
s_mov_b32 s{r.sIt}, 0
s_and_b32 s3, s2, 3
s_lshl_b32 s3, s3, 2
s_lshr_b32 s{sQt}, s2, 6
s_add_u32 s{sQt}, s{sQt}, s3
s_lshl_b32 s{sQt}, s{sQt}, 1
s_bfe_u32 s67, s2, 0x10002
s_add_u32 s{sQt}, s{sQt}, s67
s_bfe_u32 s{sNt}, s2, 0x30003
s_andn2_b32 s67, 4, s2
s_add_u32 s67, s67, s{sWave}
s_lshl_b32 s67, s67, 19
s_lshl_b32 s3, s{sNt}, 7
s_add_u32 s3, s3, s67
s_sub_u32 s{sWq+2}, 0x400000, s3""".split("\n")
SET.append([f"s_add_u32 s{sWq}, s{pWo}, s3", f"s_addc_u32 s{sWq+1}, s{pWo+1}, 0"])
if opt["moe"]:
    SET += f"""s_bfe_u32 s3, s2, 0x20001
s_mul_i32 s68, s3, 28
s_lshr_b32 s67, s2, 3
s_add_u32 s{sChunk}, s68, s67
s_lshr_b32 s3, s{sNonce}, 1
s_xor_b32 s3, s3, s2
s_xor_b32 s{sSlow}, s3, {opt['flip']}""".split("\n")
    SET += [f"s_mov_b32 s{sMask2}, MASK2F", f"s_mov_b32 s{sMask4}, MASK4F"]
    SET.append(["s_cmp_ge_u32 s67, 28", f"s_cselect_b32 s{sChunk}, -1, s{sChunk}"])
    SET.append(["s_cmp_ge_u32 s67, 28", f"s_cselect_b32 s{sMask2}, MASK2R, s{sMask2}", f"s_cselect_b32 s{sMask4}, MASK4R, s{sMask4}"])
    SET.append([f"s_and_b32 s{sSlow}, s{sSlow}, 1", f"s_cselect_b32 s{sMask2}, MASK2S, s{sMask2}", f"s_cselect_b32 s{sMask4}, MASK4S, s{sMask4}"])
    SET += f"""s_lshl_b32 s68, s68, 5
s_lshl_b32 s67, s67, 1
s_and_b32 s3, s{sWave}, 1
s_add_u32 s67, s67, s3
s_mul_i32 s67, s67, {8*3584}
s_add_u32 s68, s68, s67
v_lshrrev_b32 v112, 3, v0
v_mul_u32_u24 v112, 3584, v112
v_and_b32 v113, 7, v0
v_min_u32 v113, 6, v113
v_lshl_add_u32 v112, v113, 7, v112
v_add_u32 v23, s68, v112""".split("\n")
    SET.append([f"s_cmp_lt_u32 s{sWave}, 2", f"s_cselect_b64 s[6:7], s[{pWg}:{pWg+1}], s[{pWu}:{pWu+1}]"])
else: SET += [f"s_mov_b32 s{sMask2}, MASK2F", f"s_mov_b32 s{sMask4}, MASK4F"]
SET += [f"s_mov_b32 s{sFb}, 0"]
aXF, aWF = 128, 192
SMF = "v_smfmac_f32_16x16x64_bf16"
def acc(j, qb): return 128 + (3 - (j >> 1))*32 + qb*8 + (j & 1)*4
def xread(st, n):
    qb, ks = n >> 1, n & 1; slot = st % 3
    base = vXA + (2 if slot == 2 else 0) + ks
    off = (XSLOT[slot] - 0x18000 if slot != 2 else 0) + qb*2048
    return f"ds_read_b128 {a(aXF+(st&1)*32+n*4,4)}, v{base} offset:{off}"
def wread(st, j, n):
    ks, half = n >> 1, n & 1
    return f"ds_read_b64_tr_b16 {a(aWF+(j&3)*8+ks*4+half*2,2)}, v{vWA+j} offset:{(st%3)*16384 + ks*8192 + half*1024}"
def qmf(st, j):
    L = []
    cs = [f"{SMF} {v(vCS+4*j,4)}, {v(r.vOne,4)}, {a(aWF+(j&3)*8,8)}, v{r.vIdx}"] if j < 2 else []
    if not opt["bnd"] & 4: L += cs; cs = []
    for qb in range(4):
        for t in range(2):
            ks = t ^ (qb & 1)
            D = v(acc(j, qb), 4); C = "0" if (st == 0 and t == 0) else D
            L.append(f"{MF} {D}, {a(aWF+(j&3)*8+ks*4,4)}, {a(aXF+(st&1)*32+(qb*2+ks)*4,4)}, {C}")
    return L + cs
E(f"s_waitcnt vmcnt({S.vmn('x0', 'w0')}) lgkmcnt(0)")
E("s_barrier")
stamp(3)
for n in range(8): E(xread(0, n))
for j in range(2):
    for n in range(4): E(wread(0, j, n))
pend = []
for st in range(opt["pre"], 3): pend += wdma(st) + xdma(st)
def vmn(*tags):
    assert not any(l.split(";")[-1].strip() in tags for l in pend), (tags, pend)
    return S.vmn(*tags)
def one_dma():
    while pend:
        l = pend.pop(0); E(l)
        if l.startswith("s_add_u32 m0"): E("s_nop 0")
        if l.startswith("buffer"): break
statld = [f"buffer_load_dwordx2 v[{vG+4*qb}:{vG+4*qb+1}], v61, s[{sW}:{sW+3}], s1 offen offset:{qb*128} sc1 ; st" for qb in range(4)]
since = [99]
def dma_slot(j, n, hasds):
    if pend and pend[0].startswith("s_"): return [pend.pop(0)]
    slots = {0: (1, 5, 7), 1: (1, 5, 7), 5: (4, 6), 6: (), 7: ()}.get(j, (1, 5))
    if opt["bnd"] & 4: slots = {0: (1, 5, 7), 1: (1, 5, 7), 4: (1, 3, 5), 5: (5,), 6: (), 7: ()}.get(j, (1, 5))
    if opt["drate"] == 3: slots = {0: (1, 3, 5, 7), 1: (1, 5, 7), 5: (4, 6), 6: (), 7: ()}.get(j, (1, 3, 5))
    if pend and not hasds and (n in slots or "lds" not in pend[0]): return [pend.pop(0)]
    return []
vC = r.vL
def csread(s_): return [f"ds_read_b128 {v(vC+(s_&1)*8+4*jj,4)}, v{vCA+s_} offset:{jj*64}" for jj in range(2)]
CL2E = 1.4426950408889634 / (128 ** 0.5)
E("s_waitcnt lgkmcnt(4)")
for st in range(8):
    if st == 6:
        assert not any(f"s{sXoff}" in l or f"s{sWoff}" in l or f"s{sM0X}" in l or f"s{sM0W}" in l for l in pend)
        Q += SET
    if st == 1: pend.insert(0, f"global_load_dword v23, v55, s[{pDbg}:{pDbg+1}] sc1 ; nonce")
    if st + 3 < 8: pend += xdma(st + 3)
    if st == opt["k0st"]:
        pend += kdma(0)

    for j in range(8):
        L = qmf(st, j)
        if st*8 + j == opt["s1st"]: Q += S1 if not opt["nos1"] else [f for f in S1 if not (isinstance(f, str) and (f.startswith("v_") and ("dpp" in f or "readlane" in f or opt["nos1"] == 2) and "s46" not in f))]
        ds = [None] * len(L); last = []
        if j < 6:
            o = 0
            for n in range(4): ds[o + (n if j == 5 else 2*n)] = wread(st, j + 2, n)
            if j < 5: last = ["s_waitcnt lgkmcnt(4)"]
            elif st < 7:
                tags = [f"x{st+1}", f"w{st+1}"]
                last = [lambda tags=tags: f"s_waitcnt vmcnt({vmn(*tags)}) lgkmcnt(0)", "s_barrier"]
            else: last = [lambda: f"s_waitcnt vmcnt({vmn(*(('k0',) if opt['stl'] else ('k0', 'st')))}) lgkmcnt(0)", "s_barrier"]
        elif st < 7:
            seq = [xread(st + 1, n) for n in range(4)] + [wread(st + 1, 0, n) for n in range(4)] if j == 6 else \
                  [xread(st + 1, 4 + n) for n in range(4)] + [wread(st + 1, 1, n) for n in range(4)]
            ds = seq
            if j == 7: last = ["s_waitcnt lgkmcnt(4)"]
        else:
            seq = csread(0) + csread(1) + [f"ds_read_b128 {a(aWF+4*s_,4)}, v{vKM+s_}" for s_ in range(4)] if j == 6 else \
                  [X.kread(0, i) for i in range(8)]
            ds = seq
        if st == 7 and j == 2:
            Q += [f"v_add_f32 v{vCS}, v{vCS}, v{vCS+1}", f"v_add_f32 v{vCS+4}, v{vCS+4}, v{vCS+5}",
                  f"ds_write2_b32 v62, v{vCS}, v{vCS+4} offset0:0 offset1:16"]
        if st == 7 and j == 6: assert not Q, len(Q)
        if st == 7 and j == (7 if opt["stl"] else 6):
            Q.append([f"v_xor_b32 v{vG+2}, s{sNonce}, v{vG+1}", f"v_xor_b32 v{vG+6}, s{sNonce}, v{vG+5}"])
            Q.append([f"v_xor_b32 v{vG+10}, s{sNonce}, v{vG+9}", f"v_xor_b32 v{vG+14}, s{sNonce}, v{vG+13}"])
            del Q[:]
            chk = [f"v_xor_b32 v{vG+4*qb+2}, s{sNonce}, v{vG+4*qb+1}" for qb in range(4)] + \
                  [f"v_or3_b32 v{vG+2}, v{vG+2}, v{vG+6}, v{vG+10}", f"v_or_b32 v{vG+2}, v{vG+2}, v{vG+14}", f"v_cmp_ne_u32 vcc, 0, v{vG+2}"]
            if opt["stl"] == 2: Q.append(None)
            if opt["stl"]: Q.append(lambda: f"s_waitcnt vmcnt({vmn('st')})")
            Q += chk + ["s_cbranch_vccnz L_stat_retry", "L_stat_ok:"]
            cold += ["L_stat_retry:"] + spin("", "L_stat_ok") + [l.split(";")[0] for l in statld] + ["s_waitcnt vmcnt(0)"] + chk + ["s_cbranch_vccnz L_stat_retry", "s_branch L_stat_ok"]
            P_ = []
            for qb in range(4):
                g = vG + 4*qb
                P_.append([f"v_and_b32 v{g+1}, 0xffff0000, v{g}", f"v_lshlrev_b32 v{g}, 16, v{g}", f"v_rcp_f32 v{g+1}, v{g+1}",
                           f"v_sub_f32 v{g}, 0, v{g}", f"v_mul_f32 v{g+1}, {fbits(CL2E)}, v{g+1}"])
            for tup in zip(*P_): Q += list(tup)
        for n, m in enumerate(L):
            lead = []
            if n == len(L) - 1 and last:
                lead = ([ds[n]] if ds[n] else []) + last
            else:
                lead = dma_slot(j, n, ds[n] is not None) + ([ds[n]] if ds[n] else [])
            S.gap(m, lead)
        if j == 5:
            stamp(2)
            if st + 3 < 8: pend += wdma(st + 3)
            if st == 6: assert len(Q) <= len(SET)
            kv = [kdma(1), vdma(0), kdma(2), vdma(1), kdma(3), vdma(2)]
            if st == 5: pend += sum(kv[:opt["kv6"]], [])
            if st == 6: pend[0:0] = statld; pend += sum(kv[opt["kv6"]:], [])
print("fillers", NFILL, "left", len(Q), "dma left", len(pend), file=sys.stderr)
if Q and Q[0] is None: Q.pop(0)
for i in range(8, 16): E(X.kread(0, i))
for l in XNST: E(l)
Q += [f"v_mov_b32 v{60+e}, v{72+e}" for e in range(4)]
S.drain()
stamp(3)
if opt["fin2"]:
    vMx = 224
    def mxm(qb, s_):
        D = v(vMx + 4*qb, 4)
        return f"{MF} {D}, {a(aWF+4*s_,4)}, {v(r.vQ+qb*16+s_*4,4)}, {'0' if s_ == 0 else D}"
    def mfin(qb):
        b = vMx + 4*qb
        return [f"v_max3_f32 v{b}, v{b}, v{b+1}, v{b+2}", f"v_max_f32 v{b}, v{b}, v{b+3}"] + \
               [f"v_sub_f32 v{r.vM+4*qb+e}, {fbits(-float(opt['shift']))}, v{b}" for e in range(4)]
    todo = []
    for s_ in range(4):
        if s_ != 1: E("s_waitcnt lgkmcnt(0)")
        for qb in range(4):
            b = acc(2*s_, qb); st = vG + 4*qb; q = r.vQ + qb*16 + s_*4
            F = [f"v_fmac_f32 v{b+e}, v{vC+(s_&1)*8+e}, v{st}" for e in range(8)]
            Q += F[:2] + todo[:2] + F[2:] + todo[2:]; todo = []
            if qb == 3 and s_ + 2 < 4: Q += csread(s_ + 2)
            if qb == 3 and s_ == 3: Q.append(f"v_mfma_f32_32x32x16_bf16 {v(r.vL,16)}, {a(r.aO,4)}, {a(r.aO,4)}, 0")
            Q += [f"v_mul_f32 v{b+e}, v{st+1}, v{b+e}" for e in range(8)]
            Q += [f"v_cvt_pk_bf16_f32 v{q+e}, v{b+2*e}, v{b+2*e+1}" for e in range(4)]
            if s_ == 3 and qb >= 2: Q += mfin(qb - 2)
            S.drain(); one_dma()
            todo = [f"v_permlane16_swap_b32 v{q}, v{q+2}", f"v_permlane16_swap_b32 v{q+1}, v{q+3}"]
            if s_ == 0: todo += [mxm(qb - 1, 0)] if qb in (1, 2) else ([mxm(2, 0), mxm(3, 0)] if qb == 3 else [])
            else: todo += [mxm(qb, s_)]
    plain(pend); del pend[:]
    Q += todo + mfin(2) + mfin(3)
    S.drain()
    E("s_nop 1")
    stamp(2)
    stamp(3)

else:
    for s_ in range(4):
        E("s_waitcnt lgkmcnt(0)" if s_ != 1 else "s_nop 0")
        for qb in range(4):
            b = acc(2*s_, qb); st = vG + 4*qb
            for e in range(4):
                E(f"v_pk_fma_f32 v[{b+2*e}:{b+2*e+1}], v[{vC+(s_&1)*8+2*e}:{vC+(s_&1)*8+2*e+1}], v[{st}:{st+1}], v[{b+2*e}:{b+2*e+1}] op_sel:[0,0,0] op_sel_hi:[1,0,1]")
            if qb == 3 and s_ + 2 < 4:
                for l in csread(s_ + 2): E(l)
            for e in range(4):
                E(f"v_pk_mul_f32 v[{b+2*e}:{b+2*e+1}], v[{b+2*e}:{b+2*e+1}], v[{st}:{st+1}] op_sel:[0,1] op_sel_hi:[1,1]")
            q = r.vQ + qb*16 + s_*4
            for e in range(4): E(f"v_cvt_pk_bf16_f32 v{q+e}, v{b+2*e}, v{b+2*e+1}")
            one_dma()
        for qb in range(4):
            q = r.vQ + qb*16 + s_*4
            E(f"v_permlane16_swap_b32 v{q}, v{q+2}"); E(f"v_permlane16_swap_b32 v{q+1}, v{q+3}")
    plain(pend); del pend[:]
    stamp(2)
    Q += [f"v_mov_b32 v{r.vL+i}, 0" for i in range(16)]
    for qb in range(4):
        for s_ in range(4):
            D = v(r.vS + 48 + 4*qb, 4)
            S.gap(f"{MF} {D}, {a(aWF+4*s_,4)}, {v(r.vQ+qb*16+s_*4,4)}, {'0' if s_ == 0 else D}")
        if qb == 1:
            for q2 in range(4):
                b = r.vS + 48 + 4*q2
                Q += [f"v_max3_f32 v{b}, v{b}, v{b+1}, v{b+2}", f"v_max_f32 v{b}, v{b}, v{b+3}"] + [f"v_sub_f32 v{r.vM+4*q2+e}, {fbits(-float(opt['shift']))}, v{b}" for e in range(4)]
                if q2 == 1: hold = len(Q)
            tail = Q[hold:]; del Q[hold:]
    Q += tail
    S.drain()
    E("s_nop 1")
    stamp(3)

NT = 32
def emit_gaps(T, lo, hi, lead, mf):
    F = X.fillers(T, NT)
    for g in range(lo, hi):
        m = mf(g)
        if m: E(m)
        for f in lead.get(g, []):
            E(f)
            if not m and f.startswith("s_add_u32 m0"): E("s_nop 0")
        fs = F[g]
        if m and T == 0 and not fs and not lead.get(g): E("s_nop 0")
        if not m and fs and fs[0].startswith("v_cvt"): E("s_nop 0")
        for f in fs: E(f)
def gapsets(lo, hi):
    F = X.fillers(1, NT)
    ex = [g for g in range(lo, hi) if g in X.isexp]
    cv = [g for g in range(lo, hi) if g not in X.isexp and F[g]]
    em = [g for g in range(lo, hi) if g not in X.isexp and not F[g]]
    return ex, cv, em
NVE = 6
def pv_part(T, dmaslot, salu):
    lead = {}
    ex, cv, em = gapsets(64, 131)
    fg = sorted(cv + em)
    late = fg[-NVE:]
    em_e = [g for g in em if g not in late]
    L = X.dma(dmaslot) if dmaslot is not None else []
    dm = [L[i] for i in (1, 2, 3, 4, 6, 7, 8, 9)] if L else []
    step = len(em_e) / 8.0
    dg = [em_e[min(len(em_e) - 1, int(i*step) + 1)] for i in range(8)] if dm else []
    assert len(set(dg)) == len(dg)
    for s_, g in zip(dm, dg): lead.setdefault(g, []).append(s_)
    kg = [g for g in fg if g not in late and g not in dg]
    if T + 1 < NT:
        assert len(kg) >= 16
        for i in range(16): lead.setdefault(kg[i], []).append(X.kread(T + 1, i))
    if L:
        for mi, first in ((0, 0), (5, 4)):
            g = max(x for x in ex if x < dg[first]); lead.setdefault(g, []).append(L[mi])
            if first: assert g > dg[3]
        after = [x for x in ex if x > dg[7]]
        sal = [f"s_add_u32 s{r.sKoff}, s{r.sKoff}, s{r.sKinc}", f"s_add_u32 s{r.sVoff}, s{r.sVoff}, s{r.sVinc}"] + wrap(r.sKoff) + wrap(r.sVoff) + list(salu)
    else:
        after = ex[-8:]; sal = list(salu)
    assert len(after) >= len(sal)
    for s_, g in zip(sal, after): lead.setdefault(g, []).append(s_)
    if T < NT:
        for i, g in enumerate(late): lead.setdefault(g, []).append(X.vread(T, i))
    assert 131 not in late
    if T + 1 < NT: lead.setdefault(131, []).insert(0, f"s_waitcnt lgkmcnt({NVE})")
    emit_gaps(T, 64, 132, lead, lambda g: X.pv(T - 1, g - 64) if T >= 1 else None)
def qk_part(T, sync=True, salu=None):
    lead = {}
    if salu: lead[60] = [salu]
    ex, cv, em = gapsets(0, 64)
    fg = sorted(cv + em)
    if T >= 1:
        for i in range(NVE, 32): lead.setdefault(fg[i - NVE], []).append(X.vread(T - 1, i))
    if sync:
        bg = opt["bgap"]
        if opt["bsplit"]:
            lead.setdefault(bg - 2, []).append("s_waitcnt vmcnt(16) lgkmcnt(0)")
            lead.setdefault(bg, []).append("s_barrier")
        else:
            lead.setdefault(bg, []).append("s_waitcnt vmcnt(16) lgkmcnt(0)")
            if opt["bar"]: lead[bg].append("s_barrier")
    emit_gaps(T, 0, 64, lead, lambda g: X.qk(g) if T < NT else None)
HOOK = {}
if opt["onerow"]:
    M("v_and_b32 v224, 15, v0\nv_cmp_gt_u32 vcc, 2, v224\ns_nop 1")
    for e in range(4): E(f"v_cndmask_b32 v{r.vOne+e}, 0, v{r.vOne+e}, vcc")
    E("s_nop 1")
if opt["perm"]: E(f"s_mov_b32 s{r.sPerm}, 0x07060302")
E("L_restart:")
pend += kdma(4) + vdma(3)
krel = sorted((48 + 4*(i >> 2) + ((3 - (i & 3)) if (i >> 2) & 1 else (i & 3)) + 1, i) for i in range(16))
vq = [X.vread(0, i) for i in range(NVE)]
ne, nc = 0, 0
for g in range(64):
    lead = []; budget = 2
    if g == 0: lead = [f"s_waitcnt vmcnt({vmn('k1', 'v0')})", "s_barrier"]
    else:
        if pend and pend[0].startswith("s_"): lead = [pend.pop(0)]
        elif pend and g % 4 == 2: lead = [pend.pop(0)]; budget = 0
        if budget:
            if vq and g < 8: lead += vq[:2]; del vq[:2]; budget = 0
            elif krel and krel[0][0] <= g and (2*nc + 2 < ne or len(krel) > 1 and krel[1][0] <= g):
                lead.append(X.kread(1, krel.pop(0)[1])); budget = 1
                if 2*nc + 2 >= ne: lead.append(X.kread(1, krel.pop(0)[1])); budget = 0
    if budget == 2 and g >= 4*(ne >> 2) + 7 and (ne - 2*nc < 5 or g >= 30):
        lead.append(X.exp(ne)); ne += 1
    else:
        while budget and 2*nc + 2 <= ne - (1 if False else 0) and nc < 30:
            lead.append(X.cvt(0, 2*nc + 1)); nc += 1; budget -= 1
    if not lead: lead = ["s_nop 0"]
    E(X.qk(g))
    for l in lead: E(l)
print("period0: exps", ne, "cvts", nc, "pend", len(pend), "krel", len(krel), "vq", len(vq), file=sys.stderr)
for _, i in krel: E(X.kread(1, i))
assert not vq and not pend
while ne < 60 or nc < 30:
    if 2*nc + 2 < ne or ne == 60: Q.append(X.cvt(0, 2*nc + 1)); nc += 1
    else: Q.append(X.exp(ne)); ne += 1
S.drain()
E("s_waitcnt lgkmcnt(0)")
if opt["moe"]:
    A(f"s_cmp_lg_u32 s{sFb}, 0"); A("s_cbranch_scc1 L_notouch")
    A(f"s_waitcnt vmcnt({S.vmn('xn')})")
    for l in KEYST: A(l)
    A(f"s_cmp_lg_u32 s{sSlow}, 0"); A("s_cbranch_scc1 L_notouch")
    A("global_load_dword v23, v23, s[6:7]"); A.label("L_notouch")
assert S.vmn("k2", "v1") >= 16
r.vVDl = [20, 21, 1, 2]
stamp(3)
if opt["al6"]: A.raw(".p2align 6")
for _ in range(opt["pad"]): E("s_nop 0")
A.label("L_loop")
for u in range(1, 5):
    qk_part(u, salu=(f"s_cmp_eq_u32 s{r.sIt}, 7" if u == 3 else None))
    if u == 3: E("s_cbranch_scc1 L_tail")
    sal = []
    if u == 2: sal = [f"s_bitcmp1_b32 s{sMask2}, s{r.sIt}"]
    if u == 3: sal = [f"s_cmp_eq_u32 s{r.sIt}, 6"]
    if u == 4: sal = [f"s_add_u32 s{r.sIt}, s{r.sIt}, 1", f"s_bitcmp1_b32 s{sMask4}, s{r.sIt}"]
    pv_part(u, None if opt["nodma"] else u & 3, sal)
    if u == 2: E("s_cbranch_scc1 L_disp2"); E("L_ret2:")
    if u == 3: E("s_cbranch_scc1 L_hook27"); E("L_ret3:")
E("s_cbranch_scc0 L_loop")
def wo_voff(dst):
    return f"""v_lshrrev_b32 v180, 3, v0
v_and_b32 v181, 7, v0
v_lshrrev_b32 v182, 1, v180
v_lshlrev_b32 v182, 1, v182
v_xor_b32 v182, v182, v181
v_lshlrev_b32 v182, 4, v182
v_lshl_add_u32 v{dst[0]}, v180, 10, v182""".split("\n") + [f"v_add_u32 v{dst[p]}, {7168*p}, v{dst[0]}" for p in range(1, 4)]
HOOK[27] = wo_voff([r.vKD + p for p in range(4)]) + [f"s_mov_b32 s{sK}, s{sWq}", f"s_mov_b32 s{sK+1}, s{sWq+1}", f"s_mov_b32 s{sK+2}, s{sWq+2}",
            f"s_mov_b32 s{r.sKoff}, 0", f"s_mov_b32 s{r.sKinc}, 0x8000"]
HOOK[28] = [f"v_mov_b32 v{r.vVDl[p]}, v{r.vKD+p}" for p in range(4)] + [f"s_mov_b32 s{sV}, s{sWq}", f"s_mov_b32 s{sV+1}, s{sWq+1}", f"s_mov_b32 s{sV+2}, s{sWq+2}",
            f"s_mov_b32 s{r.sVoff}, 0x10000", f"s_mov_b32 s{r.sKinc}, 0x10000", f"s_mov_b32 s{r.sVinc}, 0x10000"]
def H(T, txt): HOOK.setdefault(T, []).extend(l.strip() for l in txt.strip().split("\n") if l.strip())
SEL = [4, 5, 6, 7, 42, 43, 48, 49]
TF, TP, TK, TS = opt['TF'], opt['TP'], 2, 8
ROLE = {}
NLOG2E = fbits(-1.4426950408889634)
if opt["moe"]:
    ROLE.update({TK: "R", TK + 2: "R", TS: "FR", TS + 2: "FR", TS + 4: "F", TS + 6: "F", TS + 8: "F", TF: "F", TP: "FR", TP + 2: "FR"})
    H(TK, f"""s_add_u32 m0, s{r.sM0K}, 0x20000
    s_add_u32 s3, s{r.sM0K}, {WS_KEY}""")
    HOOK[TK] += [f"buffer_load_dwordx4 v3, s[{sW}:{sW+3}], s3 offen offset:{p*1024} sc1 lds" for p in range(4)]
    KQ = [128 + 4*n for n in range(15)] + [224]
    chk = ["v_mov_b32 v228, 0"] + [f"v_bitop3_b32 v228, v228, v{q+2}, s{sNonce} bitop3:0xf6" for q in KQ] + ["v_cmp_ne_u32 vcc, 0, v228"]
    H(TK + 2, "v_add_u32 v229, 0x20000, v3\ns_waitcnt vmcnt(16)\ns_barrier")
    HOOK[TK + 2] += [f"ds_read_b128 {v(q,4)}, v229 offset:{n*1024}" for n, q in enumerate(KQ)]
    H(TK + 2, f"""s_and_b32 s3, s2, 6
    s_lshl_b32 s3, s3, 1
    s_bfe_u32 s67, s2, 0x20003
    s_add_u32 s3, s3, s67
    s_lshl_b32 s3, s3, 2
    s_add_u32 s3, s3, s{sWave}
    s_lshl_b32 s3, s3, 8
    v_bfe_u32 v232, v0, 1, 4
    v_and_b32 v233, 1, v0
    v_lshlrev_b32 v233, 2, v233
    v_lshl_add_u32 v232, v232, 4, v233
    v_add_u32 v232, s3, v232
    v_add_u32 v233, 0x20000, v232
    ds_read_b32 v234, v233
    s_waitcnt lgkmcnt(0)""")
    HOOK[TK + 2] += chk
    H(TK + 2, f"""s_cbranch_vccnz L_key_retry
    L_key_ok:
    v_mov_b32 v235, v234
    v_max_u32 v228, v{KQ[0]}, v{KQ[0]+1}""")
    mx = [f"v_max3_u32 v228, v228, v{q}, v{q+1}" for q in KQ[1:]]
    for n, m_ in enumerate(("quad_perm:[1,0,3,2]", "quad_perm:[2,3,0,1]", "row_half_mirror", "row_mirror")):
        mx.insert(3*n + 2, f"v_max_u32_dpp v235, v235, v235 {m_} row_mask:0xf bank_mask:0xf")
    HOOK[TK + 2] += mx
    H(TK + 2, f"""v_readlane_b32 s3, v235, 0
    v_readlane_b32 s67, v235, 16
    s_max_u32 s{sKey0}, s3, s67
    v_cmp_lt_u32 vcc, s{sKey0}, v228
    s_bcnt1_i32_b64 s3, vcc
    s_cmp_lt_u32 s3, 8
    s_cbranch_scc1 L_rank
    L_rank_done:""")
    cold += ["L_key_retry:"] + spin("", "L_key_ok")
    for n, q in enumerate(KQ):
        if n % 4 == 0: cold += [f"s_mov_b32 s3, {WS_KEY + n*1024}"]
        cold += [f"buffer_load_dwordx4 {v(q,4)}, v3, s[{sW}:{sW+3}], s3 offen offset:{(n%4)*1024} sc1"]
    cold += ["s_waitcnt vmcnt(0)"] + chk + ["s_cbranch_vccnz L_key_retry", f"s_mov_b32 s3, {WS_KEY}",
             f"buffer_load_dword v234, v232, s[{sW}:{sW+3}], s3 offen sc1", "s_waitcnt vmcnt(0)", "s_branch L_key_ok"]
    cold += ["L_rank:", f"s_cmp_eq_u32 s{sKey0}, 0", "s_cbranch_scc1 L_rank_done", "v_mov_b32 v236, 0"]
    ks_ = [q + e for q in KQ for e in range(2)]
    for n in range(0, 33, 3):
        grp = list(zip(ks_[n:n+3], ("s[4:5]", "s[6:7]", "vcc")))
        cold += [f"v_cmp_lt_u32 {m_}, s{sKey0}, v{k_}" for k_, m_ in grp] + ["s_nop 0"]*(3 - len(grp))
        cold += [f"v_addc_co_u32 v236, {m_}, 0, v236, {m_}" for k_, m_ in grp]
    for l in wave_sum(236, 68): cold += ["s_nop 1", l.replace("v_add_f32_dpp", "v_add_u32_dpp")]
    cold += f"""s_cmp_ge_u32 s68, 8
s_cbranch_scc1 L_rank_done
s_not_b32 s3, s{sKey0}
s_xor_b32 s67, s{sKey0}, 0x80000000
s_bitcmp1_b32 s{sKey0}, 31
s_cselect_b32 s3, s67, s3
s_and_b32 s3, s3, 0xffff0000
v_mov_b32 v230, {NLOG2E}
v_mul_f32 v230, s3, v230
v_exp_f32 v230, v230
s_andn2_b32 s67, 0x7ff, s{sKey0}
v_add_f32 v230, 1.0, v230
v_rcp_f32 v230, v230
s_lshl_b32 s68, s68, 3
v_cvt_pk_bf16_f32 v230, v230, v230
v_and_b32 v230, 0xffff0000, v230
v_or_b32 v230, s67, v230
v_mov_b32 v231, s{sNonce}
s_add_u32 s68, s68, {WS_SEL}
s_mov_b64 exec, 1
buffer_store_dwordx2 v[230:231], off, s[{sW}:{sW+3}], s68 sc1
s_mov_b64 exec, -1
v_cmp_ne_u32 vcc, s{sKey0}, v234
s_nop 1
v_cndmask_b32 v234, 0, v234, vcc
s_nop 1
v_max_u32_dpp v235, v234, v234 quad_perm:[1,0,3,2] row_mask:0xf bank_mask:0xf
s_nop 1
v_max_u32_dpp v235, v235, v235 quad_perm:[2,3,0,1] row_mask:0xf bank_mask:0xf
s_nop 1
v_max_u32_dpp v235, v235, v235 row_half_mirror row_mask:0xf bank_mask:0xf
s_nop 1
v_max_u32_dpp v235, v235, v235 row_mirror row_mask:0xf bank_mask:0xf
s_nop 0
v_readlane_b32 s3, v235, 0
v_readlane_b32 s67, v235, 16
s_max_u32 s{sKey0}, s3, s67
v_cmp_lt_u32 vcc, s{sKey0}, v228
s_bcnt1_i32_b64 s3, vcc
s_cmp_lt_u32 s3, 8
s_cbranch_scc1 L_rank
s_branch L_rank_done""".split("\n")
    def gu_dma(p):
        L = f"""s_mul_i32 s3, s{sWave}, {128*3584}
s_lshl_b32 s67, s{sChunk}, 5
s_add_u32 s3, s3, s67
v_lshrrev_b32 v184, 1, v0
v_and_b32 v185, 8, v184
v_xor_b32 v185, v185, v0
v_lshrrev_b32 v184, 1, v185
v_mul_u32_u24 v184, 3584, v184
v_and_b32 v185, 16, v3
v_add3_u32 v184, v184, v185, s3""".split("\n")
        for k in range(4):
            L += [f"s_add_u32 m0, s{r.sM0K}, {0x24000 + k*1024}", "s_nop 0" if k == 0 else f"v_add_u32 v184, {32*3584}, v184",
                  f"global_load_lds_dwordx4 v184, s[{p}:{p+1}]"]
        return L
    selld = f"buffer_load_dwordx2 v[60:61], v128, s[{sW}:{sW+3}], 0 offen sc1"
    seladdr = ["v_and_b32 v128, 7, v0", "v_lshlrev_b32 v128, 3, v128", f"v_add_u32 v128, {WS_SEL}, v128"]
    HOOK[TS] = seladdr + [selld, f"s_cmp_eq_u32 s{sChunk}, -1", "s_cbranch_scc1 L_wp0"] + gu_dma(pWg) + ["L_wp0:"]
    H(TS + 2, f"""s_waitcnt vmcnt(16)
    v_cmp_ne_u32 vcc, s{sNonce}, v61
    s_cbranch_vccnz L_sel_retry
    L_sel_ok:
    v_and_b32 v128, 0xffff, v60
    v_and_b32 v129, 48, v0
    v_bfe_u32 v130, v0, 3, 1
    v_lshl_add_u32 v129, v130, 6, v129
    v_lshl_add_u32 v128, v128, 10, v129
    s_lshl_b32 s3, s{sWave}, 8
    s_add_u32 s3, s3, {WS_XN}
    s_lshr_b32 s68, s{r.sM0K}, 1
    s_add_u32 m0, s68, 0x20000
    s_add_u32 s67, s3, 128
    buffer_load_dwordx4 v128, s[{sW}:{sW+3}], s3 offen sc1 lds
    s_add_u32 m0, s68, 0x20400
    s_nop 0
    buffer_load_dwordx4 v128, s[{sW}:{sW+3}], s67 offen sc1 lds""")
    cold += ["L_sel_retry:"] + spin("", "L_sel_ok") + seladdr + [selld, "s_waitcnt vmcnt(0)", f"v_cmp_ne_u32 vcc, s{sNonce}, v61",
             "s_cbranch_vccnz L_sel_retry", "s_branch L_sel_ok"]
    def gu_step(T, scratch, nxt):
        H(T, f"""v_and_b32 v224, 48, v0
        v_and_b32 v225, 15, v0
        v_lshlrev_b32 v225, 3, v225
        v_lshl_add_u32 v224, v224, 4, v225
        v_and_b32 v225, 16, v0
        v_lshl_add_u32 v224, v225, 3, v224
        s_add_u32 s3, s{r.sM0K}, 0x24000
        v_add_u32 v224, s3, v224
        v_xor_b32 v225, 128, v224
        s_lshr_b32 s68, s{r.sM0K}, 1
        v_and_b32 v226, 0x370, v3
        s_add_u32 s3, s68, 0x20000
        v_add_u32 v226, s3, v226
        s_waitcnt vmcnt(16)""")
        for ks in range(4):
            HOOK[T] += [f"ds_read_b64_tr_b16 v[{128+4*ks}:{129+4*ks}], v224 offset:{ks*1024}", f"ds_read_b64_tr_b16 v[{130+4*ks}:{131+4*ks}], v225 offset:{ks*1024}",
                        f"ds_read_b128 {v(144+4*ks,4)}, v226 offset:{(ks>>1)*1024 + (ks&1)*128}"]
        n0 = next(i for i, l in enumerate(nxt) if l.startswith("s_add_u32 m0"))
        HOOK[T] += [f"s_lshr_b32 s68, s{r.sM0K}, 2", f"s_add_u32 s68, s68, {scratch}", "v_add_u32 v227, s68, v3"] + nxt[:n0] + ["s_waitcnt lgkmcnt(0)"]
        HOOK[T] += [f"{MF} v[160:163], {v(128+4*ks,4)}, {v(144+4*ks,4)}, {'0' if ks == 0 else 'v[160:163]'}" for ks in range(4)]
        HOOK[T] += nxt[n0:] + ["ds_write_b128 v227, v[160:163]"]
    gu_step(TS + 4, 0x22000, gu_dma(pWu))
    dn = f"""s_lshl_b32 s3, s{sChunk}, 14
s_lshl_b32 s67, s{sWave}, 8
s_add_u32 s3, s3, s67
v_and_b32 v184, 0xff, v{r.vVD}
v_and_b32 v185, 48, v0
v_lshl_add_u32 v184, v185, 6, v184
v_add_u32 v184, s3, v184
v_xor_b32 v185, 128, v184
v_add_u32 v185, 0x1000, v185""".split("\n")
    for k in range(4):
        dn += [f"s_add_u32 m0, s{r.sM0K}, {0x24000 + k*1024}", "s_nop 0" if k < 2 else f"v_add_u32 v{184+(k&1)}, 0x2000, v{184+(k&1)}",
               f"global_load_lds_dwordx4 v{184+(k&1)}, s[{pWd}:{pWd+1}]"]
    gu_step(TS + 6, 0x23000, dn)
    T3 = TS + 8
    H(T3, f"v_add_u32 v224, 0x22000, v3\ns_add_u32 s3, s{r.sM0K}, {0x24000 - r.VBASE}")
    HOOK[T3] += [f"ds_read_b128 {v(128+4*n,4)}, v224 offset:{n*1024}" for n in range(8)]
    HOOK[T3] += [f"v_add_u32 v{228+nb}, s3, v{r.vVA+nb}" for nb in range(8)] + ["s_waitcnt vmcnt(16)"]
    HOOK[T3] += [f"ds_read_b64_tr_b16 v[{164+2*nb}:{165+2*nb}], v{228+nb}" for nb in range(8)]
    H(T3, f"""v_and_b32 v225, 0x70, v3
    v_and_b32 v226, 48, v0
    v_lshl_add_u32 v225, v226, 3, v225
    v_and_b32 v226, 8, v0
    v_lshl_add_u32 v225, v226, 6, v225
    v_cmp_eq_u32 vcc, 0, v226
    s_lshl_b32 s3, s{sChunk}, 14
    s_add_u32 s3, s3, s{r.sM0K}
    s_add_u32 s3, s3, {WS_PART}
    s_waitcnt lgkmcnt(8)""")
    for b_ in (128, 144):
        for e in range(4): HOOK[T3] += [f"v_add_f32 v{b_+e}, v{b_+e}, v{b_+4+e}", f"v_add_f32 v{b_+8+e}, v{b_+8+e}, v{b_+12+e}"]
        for e in range(4): HOOK[T3] += [f"v_add_f32 v{b_+e}, v{b_+e}, v{b_+8+e}"]
        HOOK[T3] += [f"v_cvt_pk_bf16_f32 v{b_+4+e}, v{b_+2*e}, v{b_+2*e+1}" for e in range(2)] + unpack(b_, b_ + 4, 2)
    for op_ in (f"v_mul_f32 v{{t}}, {NLOG2E}, v{{g}}", "v_exp_f32 v{t}, v{t}", "v_add_f32 v{t}, 1.0, v{t}", "v_rcp_f32 v{t}, v{t}", "v_mul_f32 v{g}, v{g}, v{t}"):
        HOOK[T3] += [op_.format(t=132 + e, g=128 + e) for e in range(4)]
    HOOK[T3] += [f"v_cvt_pk_bf16_f32 v{132+e}, v{128+2*e}, v{129+2*e}" for e in range(2)] + unpack(128, 132, 2)
    HOOK[T3] += [f"v_mul_f32 v{128+e}, v{128+e}, v{144+e}" for e in range(4)]
    H(T3, """v_cvt_pk_bf16_f32 v146, v128, v129
    v_cvt_pk_bf16_f32 v147, v130, v131
    v_cndmask_b32 v144, 0, v146, vcc
    v_cndmask_b32 v145, 0, v147, vcc
    v_cndmask_b32 v146, v146, 0, vcc
    v_cndmask_b32 v147, v147, 0, vcc
    s_waitcnt lgkmcnt(0)""")
    for j in range(4):
        HOOK[T3] += [f"v_mfma_f32_16x16x16_bf16 {v(128+4*j,4)}, v[{164+4*j}:{165+4*j}], v[144:145], 0",
                     f"v_mfma_f32_16x16x16_bf16 {v(128+4*j,4)}, v[{166+4*j}:{167+4*j}], v[146:147], {v(128+4*j,4)}"]
    H(T3, "s_nop 4")
    for j in range(4): HOOK[T3] += [f"buffer_store_dwordx4 {v(128+4*j,4)}, v225, s[{sW}:{sW+3}], s3 offen offset:{j*1024} sc1"]
    H(T3, "s_nop 0")
    H(TF, f"""s_lshl_b32 s3, s{sWave}, 7
    s_add_u32 s3, s3, s{sChunk}
    s_lshl_b32 s3, s3, 2
    s_add_u32 s3, s3, {WS_FC}
    v_mov_b32 v128, s{sNonce}
    s_waitcnt vmcnt(16)
    s_mov_b64 exec, 1
    buffer_store_dword v128, off, s[{sW}:{sW+3}], s3 sc1
    s_mov_b64 exec, -1""")
    fcaddr = ["v_min_u32 v128, 55, v0", "v_lshlrev_b32 v128, 3, v128", "s_lshr_b32 s3, s2, 6", "s_lshl_b32 s3, s3, 9", f"s_add_u32 s3, s3, {WS_FC}"]
    fcld = f"buffer_load_dwordx2 v[62:63], v128, s[{sW}:{sW+3}], s3 offen sc1"
    fcchk = [f"v_xor_b32 v129, s{sNonce}, v62", f"v_bitop3_b32 v129, v129, v63, s{sNonce} bitop3:0xf6", "v_cmp_ne_u32 vcc, 0, v129"]
    HOOK.setdefault(TP, []).extend(fcaddr + [fcld])
    HOOK.setdefault(TP + 2, []).extend(["s_waitcnt vmcnt(16)"] + fcchk)
    H(TP + 2, f"""s_cbranch_vccnz L_fc_retry
    L_fc_ok:
    v_lshrrev_b32 v128, 3, v0
    v_xor_b32 v129, v128, v0
    v_and_b32 v129, 7, v129
    v_lshlrev_b32 v129, 4, v129
    v_lshl_add_u32 v128, v128, 14, v129
    s_lshr_b32 s3, s2, 1
    s_lshl_b32 s3, s3, 7
    s_lshl_b32 s67, s{sWave}, 17
    s_add_u32 s3, s3, s67
    s_add_u32 s3, s3, {WS_PART}
    s_lshr_b32 s68, s{r.sM0K}, 2""")
    for k in range(4):
        HOOK[TP + 2] += [f"s_add_u32 m0, s68, {0x20000 + k*4096}", f"s_add_u32 s67, s3, {k << 19}"]
        if k == 3: HOOK[TP + 2] += [f"s_cmp_lt_u32 s{sWave}, 2", "s_cselect_b32 s67, s67, 0x40000000"]
        HOOK[TP + 2] += [f"buffer_load_dwordx4 v128, s[{sW}:{sW+3}], s67 offen sc1 lds"]
    cold += ["L_fc_retry:"] + spin("", "L_fc_ok") + fcaddr + [fcld, "s_waitcnt vmcnt(0)"] + fcchk + ["s_cbranch_vccnz L_fc_retry", "s_branch L_fc_ok"]
    T4 = TP + 5
    H(T4, f"""s_or_b32 s3, s{sFb}, s{sSlow}
    s_cbranch_scc1 L_s4_done
    s_lshl_b32 s68, s{sWave}, 1
    v_lshrrev_b32 v145, 5, v0
    v_add_u32 v145, s68, v145
    v_xor_b32 v144, v145, v0
    v_and_b32 v144, 7, v144
    v_and_b32 v146, 31, v0
    v_lshl_add_u32 v144, v146, 3, v144
    v_lshlrev_b32 v144, 4, v144
    v_add_u32 v144, 0x20000, v144""")
    HOOK[T4] += [f"ds_read_b128 {v(128+4*k,4)}, v144 offset:{k*4096}" for k in range(4)]
    H(T4, f"""v_lshlrev_b32 v146, 2, v145
    ds_bpermute_b32 v147, v146, v60
    v_lshlrev_b32 v145, 11, v145
    s_lshr_b32 s3, s2, 1
    s_lshl_b32 s3, s3, 4
    s_add_u32 s3, s3, {WS_UPD}
    s_waitcnt lgkmcnt(0)""")
    for e in range(4): HOOK[T4] += [f"v_add_f32 v{128+e}, v{128+e}, v{132+e}", f"v_add_f32 v{136+e}, v{136+e}, v{140+e}"]
    for e in range(4): HOOK[T4] += [f"v_add_f32 v{128+e}, v{128+e}, v{136+e}"]
    for tup in zip(*[wave_sum(128 + e, 0)[:-2] for e in range(4)]): HOOK[T4] += list(tup)
    H(T4, "v_and_b32 v147, 0xffff0000, v147\nv_cvt_pk_bf16_f32 v132, v128, v129\nv_cvt_pk_bf16_f32 v133, v130, v131")
    HOOK[T4] += unpack(128, 132, 2) + [f"v_mul_f32 v{128+e}, v147, v{128+e}" for e in range(4)]
    H(T4, f"""v_cvt_pk_bf16_f32 v132, v128, v129
    v_cvt_pk_bf16_f32 v133, v130, v131
    v_mov_b32 v134, s{sNonce}
    v_mov_b32 v135, s{sNonce}
    s_mov_b32 exec_lo, 0x80000000
    s_mov_b32 exec_hi, 0x80000000
    buffer_store_dwordx4 v[132:135], v145, s[{sW}:{sW+3}], s3 offen sc1
    s_mov_b64 exec, -1
    L_s4_done:""")
if opt["wtouch"]:
    for n, T in enumerate(eval(opt_s["wT"])):
        HOOK.setdefault(T, []).extend(["s_andn2_b32 s3, 4, s2", f"s_add_u32 s3, s3, s{sWave}", "s_lshl_b32 s3, s3, 9",
            "s_and_b32 s67, s2, 0xf8", "s_add_u32 s3, s3, s67", f"s_add_u32 s3, s3, {256*n}", "s_lshl_b32 s3, s3, 10",
            "v_lshl_add_u32 v180, v0, 7, s3", f"global_load_dword v23, v180, s[{pWo}:{pWo+1}]"])
if opt["ftouch"]:
    HOOK[28].extend([f"s_lshl_b32 s3, s{sQb}, 2", f"s_add_u32 s3, s3, s{sWave}", "s_lshl_b32 s3, s3, 5", f"s_add_u32 s3, s3, s{sHead}", "s_lshl_b32 s3, s3, 7",
                     f"s_add_u32 s3, s3, {WS_FLAG}", f"buffer_load_dword v23, off, s[{sW}:{sW+3}], s3"])
if opt["ext"]:
    HOOK[28].extend(["s_lshl_b32 s3, s2, 14", f"s_add_u32 s3, s3, s{r.sM0K}", f"s_add_u32 s3, s3, {WS_EX}", "v_lshlrev_b32 v180, 6, v0",
                     f"buffer_load_dword v23, v180, s[{sW}:{sW+3}], s3 offen sc1"])
if opt["otch"]:
    for n, T in enumerate(eval(opt_s["oT"])):
        HOOK.setdefault(T, []).extend([f"s_lshl_b32 s3, s{sQb}, 2", f"s_add_u32 s3, s3, s{sWave}", "s_lshl_b32 s3, s3, 7", f"s_add_u32 s3, s3, s{sHead}", "s_lshl_b32 s3, s3, 12",
            f"s_add_u32 s3, s3, {n*0x40000}", "v_lshrrev_b32 v180, 5, v0", "v_and_b32 v181, 31, v0", "v_lshlrev_b32 v181, 7, v181", "v_lshl_add_u32 v180, v180, 17, v181",
            f"buffer_load_dword v23, v180, s[{sW}:{sW+3}], s3 offen{['', '', ' sc1', ' nt', ' sc0 sc1'][opt['otch']]}"])
if opt["stamp"] & 8:
    Ts = eval(opt_s["hs"])
    def st_(i): return [f"{CLK} s[{70+2*i}:{71+2*i}]", "s_waitcnt lgkmcnt(0)"]
    i = 1
    for T in Ts:
        body = []
        for l in HOOK[T]:
            if l.startswith("STAMP"):
                body += st_(i + 1); i += 1
            else: body.append(l)
        k = sum(l.startswith("STAMP") for l in HOOK[T])
        HOOK[T] = st_(i - k) + body + st_(i + 1); i += 2
    nstamp[0] = i
for T in HOOK: HOOK[T] = [l for l in HOOK[T] if not l.startswith("STAMP")]
def emit_hooks():
    msk = {}
    for site in (4, 2):
        Ts = sorted(T for T in HOOK if T % 4 == site % 4)
        msk[site] = {ro: sum(1 << (T // 4) for T in Ts if ro in ROLE.get(T, ro)) for ro in "FRS"}
        E(f"L_disp{site}:")
        first = min(HOOK)
        for T in Ts:
            if site == 2 and T == first: continue
            if T == Ts[-1] and not (site == 2 and first in Ts): E(f"s_branch L_hook{T}")
            else: E(f"s_cmp_eq_u32 s{r.sIt}, {T // 4}"); E(f"s_cbranch_scc1 L_hook{T}")
        if not Ts: E("s_branch " + ("L_ret2" if site == 2 else "L_loop"))
    for T in sorted(HOOK):
        E(f"L_hook{T}:")
        for l in HOOK[T]: E(l)
        E("s_branch " + {2: "L_ret2", 3: "L_ret3", 0: "L_loop"}[T % 4])
    return msk[2], msk[4]
m2, m4 = emit_hooks()
if opt["altail"]: A.raw(".p2align 12")
A.label("L_tail")
S.vm[:] = ["wo0"]*4 + ["v31"]*4 + [f"wo{k}" for k in range(1, 5) for _ in range(4)]
sOoff = 63
vWo, vWr, vOq, vFl = r.vKD, 48, 4, 44
VA, VB, VC, AA, AB, AC, AD = ("v", 64), ("v", 128), ("v", 192), ("a", 0), ("a", 64), ("a", 128), ("a", 192)
def blk(B, off, n): return (v if B[0] == "v" else a)(B[1] + off, n)
WBLK = [VA, AA, AD, VC]; ACC = AC
NU = 10
UNIT = [0, 1, 5, 2, 6, 3, 7, 8, 4, 9]
def wo_dma(kk):
    L = [f"s_add_u32 m0, s{r.sM0K}, {UNIT[kk % NU]*16384}"]
    L += [f"buffer_load_dwordx4 v{vWo+p}, s[{sWq}:{sWq+3}], s{sWoff} offen offset:{p*1024} lds ; wo{kk}" for p in range(4)]
    L += [f"s_add_u32 s{sWoff}, s{sWoff}, 0x8000"]
    return L
def wo_reads(kk):
    u = UNIT[kk % NU]; B = WBLK[(kk >> 2) & 3]
    return [f"ds_read_b64_tr_b16 {blk(B, (nb*4 + (kk & 3))*4 + 2*half, 2)}, v{vWr + 4*(u >> 2) + nb} offset:{(u & 3)*16384 + half*2048} ; r{kk}"
            for nb in range(4) for half in range(2)]
OBUF = [("a", 64), ("a", 80), ("a", 96), ("a", 112), ("a", 160), ("a", 176)][:opt["look"] + 1]
def o_loads(z):
    B = OBUF[z % len(OBUF)]
    L = [f"buffer_load_dwordx4 {blk(B, i*4, 4)}, v{vOq}, s[{sW}:{sW+3}], s{sOoff} offen offset:{i*1024} sc1 ; o{z}" for i in range(4)]
    if z == 15: return L + [f"s_mov_b32 s{sOoff}, s65"]
    return L + [f"s_add_u32 s{sOoff}, s{sOoff}, {0x1000 if z & 3 < 3 else QS - 0x3000}"]
L_ = r.vL
vXo, vXr, vGf, vSt = 45, (144 if opt['xe'] else 20), 176, 46
vU, vRow, vSa, vC3, vUa, vUt, vT, vN = 160, 12, 14, 3, 15, 11, 10, 13
setup1 = f"""s_mov_b32 s{sWoff}, {5*0x8000}
s_lshl_b32 s3, s{sQb}, 2
s_add_u32 s3, s3, s{sWave}
s_lshl_b32 s69, s3, 5
s_add_u32 s69, s69, s{sHead}
s_lshl_b32 s69, s69, 7
s_add_u32 s69, s69, {WS_FLAG}
s_mul_i32 s3, s3, {4*QS}
s_lshl_b32 s68, s{sHead}, 12
s_add_u32 s68, s68, s3
s_add_u32 s68, s68, {WS_O}
s_andn2_b32 s1, 4, s2
s_add_u32 s1, s1, s{sWave}
s_lshl_b32 s1, s1, 2""".split("\n")
setupO = [f"v_mov_b32 v{vOq}, v3"] + [f"v_add_u32 v{vOq+qb}, {qb*QS}, v3" for qb in range(1, 4)] + [f"v_and_b32 v{vC3}, 3, v0"]
setup2 = f"""v_lshrrev_b32 v1, 4, v0
v_and_b32 v2, 15, v0
v_and_b32 v9, 4, v0
v_lshrrev_b32 v8, 2, v2
v_lshl_add_u32 v8, v1, 2, v8
v_bfe_u32 v10, v8, 1, 2
v_lshlrev_b32 v8, 7, v8
v_lshl_add_u32 v8, v{vC3}, 3, v8
v_add_u32 v8, s{r.sM0K}, v8""".split("\n")
for nb in range(4):
    setup2 += [f"v_xor_b32 v11, {nb}, v10", f"v_lshl_add_u32 v{vWr+nb}, v11, 5, v8",
               f"v_add_u32 v{vWr+4+nb}, 0x10000, v{vWr+nb}", f"v_add_u32 v{vWr+8+nb}, 0x20000, v{vWr+nb}"]
setup2 += ["s_lshl_b32 s67, s1, 12", f"s_add_u32 s67, s67, {WS_O}", f"s_xor_b32 s3, s{sQt}, 1", f"s_mul_i32 s3, s3, {4*QS}", f"s_add_u32 s{sOoff}, s3, s67",
           f"s_mul_i32 s3, s{sQt}, {4*QS}", "s_add_u32 s65, s3, s67",
           f"s_and_b32 s3, s{sQt}, 30", "s_lshl_b32 s3, s3, 5", "s_add_u32 s3, s3, s1", f"v_lshl_add_u32 v9, v9, 3, v{vC3}", "v_add_u32 v9, s3, v9",
           f"v_lshlrev_b32 v{vFl}, 7, v9", f"v_add_u32 v{vFl}, {WS_FLAG + 4}, v{vFl}",
           f"s_lshl_b32 s3, s{sWave}, 2", "s_add_u32 s3, s3, 0x24000", f"v_lshl_add_u32 v192, v{vC3}, 12, s3",
           f"s_add_u32 s3, s{r.sM0K}, 0x24000", "v_mov_b32 v193, s3"]
FS = f"""s_lshl_b32 s3, s{sQt}, 2
s_add_u32 s3, s3, s{sWave}
s_lshl_b32 s3, s3, 4
v_lshrrev_b32 v{vRow}, 2, v0
v_add_u32 v{vRow}, s3, v{vRow}
v_lshlrev_b32 v{vSa}, 3, v{vRow}
v_add_u32 v{vSa}, {WS_STAT}, v{vSa}
s_lshl_b32 s3, s{sNt}, 7
v_lshl_add_u32 v{vT}, v{vC3}, 4, s3
v_lshl_add_u32 v{vXo}, v{vRow}, 10, v{vT}
v_mov_b32 v{vN}, s{sNonce}
global_load_dwordx4 v[{vXr}:{vXr+3}], v{vXo}, s[{pX}:{pX+1}] ; xf
global_load_dwordx4 v[{vXr+4}:{vXr+7}], v{vXo}, s[{pX}:{pX+1}] offset:64 ; xf
buffer_load_dwordx2 v[{vSt}:{vSt+1}], v{vSa}, s[{sW}:{sW+3}], 0 offen sc1 ; xf""".split("\n")
updld = [f"buffer_load_dwordx4 {v(vU+4*k,4)}, v{vUa}, s[{sW}:{sW+3}], s67 offen offset:{16*(k&1) + 128*(k>>1)} sc1" for k in range(4)] if opt["moe"] else []
updchk = [f"v_xor_b32 v{vT}, s{sNonce}, v{vSt+1}"]
FU = []
if opt["moe"]:
    selld2 = f"buffer_load_dwordx2 v[152:153], v154, s[{sW}:{sW+3}], 0 offen sc1"
    (FS if opt['xe'] else setup2)[0:0] = ["v_and_b32 v154, 7, v0", "v_lshlrev_b32 v154, 3, v154", f"v_add_u32 v154, {WS_SEL}, v154", selld2 + " ; sel"]
    FU += [lambda: f"s_waitcnt vmcnt({S.vmn('sel')})", f"v_cmp_ne_u32 vcc, s{sNonce}, v153", "s_cbranch_vccnz L_sel2_retry", "L_sel2_ok:", "v_and_b32 v152, 0xffff, v152"]
    cold += ["L_sel2_retry:"] + spin("", "L_sel2_ok") + [selld2, "s_waitcnt vmcnt(0)", f"v_cmp_ne_u32 vcc, s{sNonce}, v153",
             "s_cbranch_vccnz L_sel2_retry", "s_branch L_sel2_ok"]
    FU += [f"v_mov_b32 v{vUa}, 0x200000"] + [f"v_readlane_b32 s{SEL[t_]}, v152, {t_}" for t_ in range(8)]
    for t_ in range(8): FU += [f"v_cmp_eq_u32 vcc, s{SEL[t_]}, v{vRow}", f"v_mov_b32 v{vT}, {t_*64}", f"v_cndmask_b32 v{vUa}, v{vUa}, v{vT}, vcc"]
    FU += f"""v_cmp_gt_u32 vcc, 0x1000, v{vUa}
v_add_u32 v{vUa}, v{vUa}, v{vC3}
v_lshlrev_b32 v{vUa}, 5, v{vUa}
v_cndmask_b32 v{vUt}, 0, v{vN}, vcc
v_mov_b32 v{vT}, 0x40000000
v_cndmask_b32 v{vUa}, v{vT}, v{vUa}, vcc
s_lshl_b32 s67, s{sNt}, 8
s_add_u32 s67, s67, {WS_UPD}""".split("\n") + [l + " ; xf" for l in updld]
    updchk += [f"v_bitop3_b32 v{vT}, v{vT}, v{vU+4*k+2}, v{vUt} bitop3:0xf6" for k in range(4)]
updchk += [f"v_cmp_ne_u32 vcc, 0, v{vT}"]
def pv2(T, qb, db, ks):
    base = r.aV if T == 30 else r.aK
    D = a(r.aO + qb*32 + db*4, 4)
    return f"{MF} {D}, {a(base+4*(ks*8+db),4)}, {v(r.vP+(T&1)*32+qb*8+ks*4,4)}, {D}"
def v31(i): return X.vread(31, i).replace(a(r.aV + 4*(((i >> 1) & 1)*8 + (i >> 2)) + 2*(i & 1), 2), a(r.aK + 4*(((i >> 1) & 1)*8 + (i >> 2)) + 2*(i & 1), 2)) + f" ; v31_{i >> 2}"
nst = [0]
OSP = [" sc1", " sc0 sc1", " sc1 nt", "", " nt"][opt["osp"]]
def epi(qb):
    L = []
    for i4 in range(4):
        t = r.vS; o = r.vS + 8 + (nst[0] & 1)*4; nst[0] += 1
        L += [f"v_accvgpr_read_b32 v{t+e}, a{r.aO+qb*32+8*i4+e}" for e in range(8)]
        if qb == 3 and opt["pk"]:
            L += [f"v_pk_mul_f32 v[{t+2*e}:{t+2*e+1}], v[{t+2*e}:{t+2*e+1}], v[62:63] op_sel:[0,1] op_sel_hi:[1,1]" for e in range(4)]
        else: L += [f"v_mul_f32 v{t+e}, v{60+qb}, v{t+e}" for e in range(8)]
        L += [f"v_cvt_pk_bf16_f32 v{o+e}, v{t+2*e}, v{t+2*e+1}" for e in range(4)]
        L += [f"buffer_store_dwordx4 {v(o,4)}, v{vOq+qb}, s[{sW}:{sW+3}], s68 offen offset:{i4*1024}{OSP} ; ost" if not (opt["nostore"] and nst[0] < 16) else "s_nop 1"]
    return L
def smx(lo, hi):
    L = []
    for k in range(lo, hi):
        L.append(X.exp(k))
        if k % 2 == 0 and k > lo: L.append(X.cvt(31, k - 1))
    return L + [X.cvt(31, hi - 1)]
def rsum(qb): return [f"v_add_f32 v{L_+4*qb}, v{L_+4*qb}, v{L_+4*qb+1}", f"v_rcp_f32 v{60+qb}, v{L_+4*qb}"]
def dmaf(kk):
    L = wo_dma(kk)
    return [[L[0], "s_nop 0", L[1]], L[2], L[3], [L[4], L[5]]]
def weave(*lists):
    items = sorted(((i + 0.5) / len(L), n, i) for n, L in enumerate(lists) if L for i in range(len(L)))
    return [lists[n][i] for _, n, i in items]
def qcost(): return sum(len(f) if isinstance(f, list) else (1 if callable(f) else (0 if f.endswith(":") else S.cost(f))) for f in Q)
def chains(CH):
    for c, ch in enumerate(CH):
        for n, m in enumerate(ch):
            if n < len(ch) - 1: S.gap(m, novm=opt['bnd'] & 1)
            else:
                left = len(CH) - c
                small = sum(2*(len(x) - 1) for x in CH[c+1:])
                S.gap(m, budget=max(2, -(-(qcost() - small*3//4) // left)), big=True)
    S.drain()
eg = X.sched()
assert eg[27] == 62 and eg[28] == 64
stamp(16)
seq = [pv2(30, 0, j >> 1, (j & 1) ^ ((j >> 1) & 1)) for j in range(16)] + [X.pv(30, 16)]
su = list(setup1)
for n, m in enumerate(seq):
    E(m)
    if su: E(su.pop(0))
    if opt["early"] and n in (3, 7, 11, 15):
        f = dmaf(5)[n >> 2]
        for x_ in (f if isinstance(f, list) else [f]): E(x_)
    if n < 16: E(v31(2*n)); E(v31(2*n + 1))
    else: E(X.cvt(31, 27)); E(setupO[0])
Q += smx(28, 32) + setupO[1:] + [None]
for n, m in enumerate([X.pv(31, 16)] + [pv2(31, 0, j >> 1, (j & 1) ^ ((j >> 1) & 1)) for j in range(16)]):
    lead = []
    if n in (0, 4, 8): lead = [f"s_waitcnt lgkmcnt({S.lgn('v31_' + str({0: 1, 4: 3, 8: 7}[n]))})"]
    if n == 9: Q.pop(); Q += rsum(0) + ([] if opt["early"] else dmaf(5)) + (FS if opt["xe"] else [])
    if opt["early"] and n in (2, 6, 10, 14):
        f = dmaf(6)[n >> 2]; lead = f if isinstance(f, list) else [f]
    S.gap(m, lead)
carry = list(Q); del Q[:]
stamp(16)
def qchains(qb):
    CH = [[X.pv(30, 17*qb + 16), X.pv(31, 17*qb + 16)]]
    for db in range(8):
        o = [(30, 0), (30, 1), (31, 0), (31, 1)]
        CH.append([pv2(T, qb, db, ks) for T, ks in (o[::-1] if db & 1 else o)])
    return CH
if opt["early"] == 2:
    e0 = weave(epi(0), smx(32, 48))
    Q += carry + weave(e0[:50], dmaf(7)) + e0[50:] + rsum(1)
else: Q += carry + weave(epi(0), smx(32, 48), dmaf(7 if opt["early"] else 6)) + rsum(1)
chains(qchains(1))
stamp(16)
Q += weave(epi(1), smx(48, 64), [] if opt["early"] else dmaf(7), setup2) + rsum(2)
chains(qchains(2))
stamp(16)
e2 = epi(2)
vote = rsum(3) + [f"v_add_f32 v194, v{L_}, v{L_+4}", f"v_add_f32 v195, v{L_+8}, v{L_+12}", "v_add_f32 v194, v194, v195",
        f"v_cmp_ngt_f32 vcc, {'0' if opt['forcefb'] else '0x5f800000'}, v194", "s_or_b32 s3, vcc_lo, vcc_hi", "v_mov_b32 v194, s3", "ds_write_b32 v192, v194"]
def wrd(kk): return [lambda: f"s_waitcnt vmcnt({S.vmn(f'wo{kk}')})"] + [list(p) for p in zip(wo_reads(kk)[0::2], wo_reads(kk)[1::2])]
Q += e2[:10] + vote + e2[10:30] + [["s_waitcnt lgkmcnt(0)", "s_barrier", "ds_read_b128 v[196:199], v193"]] + weave(e2[30:52], dmaf(8)) + \
     ["s_waitcnt lgkmcnt(0)", "v_or3_b32 v196, v196, v197, v198", "v_or_b32 v196, v196, v199", "v_cmp_ne_u32 vcc, 0, v196", "s_cbranch_vccnz L_fallback" if not opt["exper"] else "s_nop 0", "L_safe:"] + \
     weave(e2[52:], [] if opt["xe"] else FS, sum((wrd(k_) for k_ in range(opt["rdE"])), []))
chains(qchains(3))
stamp(17)
xd = []
for kk in range(NU, NU + opt["fx"]): xd += [lambda kk=kk: f"s_waitcnt lgkmcnt({S.lgn(f'r{kk-NU}')})"] + dmaf(kk)
Q += weave(epi(3), dmaf(9) + xd, sum((wrd(k_) for k_ in range(opt["rdE"], opt["rdF"])), []))
S.drain()
stamp(17)
NPRE = 16
nextrd = [opt["rdF"]]; nextdma = [NU + opt["fx"]]
def stage(nops, filler=()):
    filler = list(filler)
    per = -(-len(filler) // max(1, nops))
    for _ in range(nops):
        if not any(l.startswith("buffer") for l in pend):
            if nextdma[0] >= NPRE: break
            kk = nextdma[0]
            for _r in range(2):
              if nextrd[0] < min(NU, kk - NU + 5):
                k2 = nextrd[0]
                E(f"s_waitcnt vmcnt({vmn(f'wo{k2}')})")
                for l in wo_reads(k2): E(l)
                nextrd[0] += 1
            E(f"s_waitcnt lgkmcnt({S.lgn(f'r{kk-NU}')})")
            pend.extend(wo_dma(kk)); nextdma[0] += 1
        one_dma()
        k_ = per
        while k_ < len(filler) and isinstance(filler[k_], str) and filler[k_].endswith(":"): k_ += 1
        Q.extend(filler[:k_]); S.drain()
        del filler[:k_]
    Q.extend(filler); S.drain()
stage(opt["npost"], FU)
if opt["osp"] >= 3:
    E(f"s_waitcnt vmcnt({S.vmn('ost')})"); E("buffer_wbl2 sc1 ; ost")
M(f"""
s_waitcnt vmcnt({S.vmn('ost')})
s_mov_b64 exec, {0xff if opt['fline'] else 1}
buffer_store_dwordx4 v[{vN-1}:{vN+2}], v{vOq}, s[{sW}:{sW+3}], s69 offen{PP[opt['fpol']]} ; flag
s_mov_b64 exec, -1
""")
stamp(1)
nleft = (NPRE - nextdma[0])*4 + sum(l.startswith("buffer") for l in pend)
stage(nleft - opt["pollat"])
E(f"buffer_load_dword v2, v{vFl}, s[{sW}:{sW+3}], 0 offen{PP[opt['ppol']]} ; poll")
stage(opt["pollat"])
plain(pend); del pend[:]
def rest_reads(upto):
    while nextrd[0] < upto:
        k2 = nextrd[0]; nextrd[0] += 1
        E(f"s_waitcnt vmcnt({vmn(f'wo{k2}')})")
        for l in wo_reads(k2): E(l)
rest_reads(opt["rdpre"])
stamp(1)
M(f"""
s_waitcnt vmcnt({S.vmn('poll')})
L_oflag:
v_cmp_ne_u32 vcc, s{sNonce}, v2
s_cbranch_vccz L_oflag_ok
""")
for l in spin("", "L_oflag_ok") + [f"buffer_load_dword v2, v{vFl}, s[{sW}:{sW+3}], 0 offen sc1", "s_waitcnt vmcnt(0)", "s_branch L_oflag"]: A(l)
E("L_oflag_ok:")
stamp(5)
LOOK = opt["look"]
for z in range(LOOK):
    for l in o_loads(z): E(l)
    rest_reads(min(16, nextrd[0] + 1))
rest_reads(16)
stamp(1)
t = 36
cold += ["L_stf_retry:"] + spin("", "L_stf_ok") + [f"buffer_load_dwordx2 v[{vSt}:{vSt+1}], v{vSa}, s[{sW}:{sW+3}], 0 offen sc1"] + updld + ["s_waitcnt vmcnt(0)"] + \
        updchk + ["s_cbranch_vccnz L_stf_retry", "s_branch L_stf_ok"]
G = updchk + ["s_cbranch_vccnz L_stf_retry", "L_stf_ok:", f"v_and_b32 v{vSt+1}, 0xffff0000, v{vSt}", f"v_lshlrev_b32 v{vSt}, 16, v{vSt}", f"v_rcp_f32 v{vSt+1}, v{vSt+1}"]
for hf in range(2):
    G += unpack(t, vXr + 4*hf)
    G += [f"v_sub_f32 v{t+e}, v{t+e}, v{vSt}" for e in range(8)]
    G += [f"v_cvt_pk_bf16_f32 v{8+e}, v{t+2*e}, v{t+2*e+1}" for e in range(4)] + unpack(t, 8)
    G += [f"v_mul_f32 v{t+e}, v{t+e}, v{vSt+1}" for e in range(8)]
    G += [f"v_cvt_pk_bf16_f32 v{8+e}, v{t+2*e}, v{t+2*e+1}" for e in range(4)] + unpack(t, 8)
    if opt["moe"]:
        G += unpack(8, vU + 8*hf, 2) + unpack(12, vU + 8*hf + 4, 2) + [f"v_add_f32 v{t+e}, v{t+e}, v{8+e}" for e in range(8)]
        G += [f"v_cvt_pk_bf16_f32 v{8+e}, v{t+2*e}, v{t+2*e+1}" for e in range(4)] + unpack(t, 8)
    G += [f"v_mul_f32 v{8+e}, {NLOG2E}, v{t+e}" for e in range(8)]
    G += [f"v_exp_f32 v{8+e}, v{8+e}" for e in range(8)]
    G += [f"v_add_f32 v{8+e}, 1.0, v{8+e}" for e in range(8)]
    G += [f"v_rcp_f32 v{8+e}, v{8+e}" for e in range(8)]
    G += [f"v_mul_f32 v{t+e}, v{t+e}, v{8+e}" for e in range(8)]
    G += [f"v_cvt_pk_bf16_f32 v{8+e}, v{t+2*e}, v{t+2*e+1}" for e in range(4)] + unpack(vGf + 8*hf, 8)
G += unpack(vU, vXr, 8)
GA = ["v_and_b32 v32, 32, v0", "v_lshlrev_b32 v32, 1, v32", f"v_xor_b32 v32, v32, v{vOq}", f"v_add_u32 v32, s{r.sM0K}, v32"] + \
     [f"v_xor_b32 v{32+nb}, {nb*1024 + (nb&1)*128}, v32" for nb in range(1, 4)]
GA += ["v_lshrrev_b32 v31, 2, v0", f"v_lshlrev_b32 v30, 2, v{vC3}", "v_xor_b32 v31, v31, v30", "v_lshlrev_b32 v31, 4, v31", f"v_lshl_add_u32 v31, v{vC3}, 9, v31",
       f"s_lshl_b32 s3, s{sWave}, 14", "v_add_u32 v31, s3, v31", "v_mov_b32 v29, 0xffffff00"]
NB = [4, 5, 6, 7]
GA += [f"s_bfe_u32 s{NB[e]}, s{sNonce}, {hex(0x80000 + 8*e)}" for e in range(4)]
GA += ["s_lshl_b32 s42, s2, 14", f"s_add_u32 s42, s42, s{r.sM0K}", f"s_add_u32 s42, s42, {WS_EX}", "s_xor_b32 s43, s42, 0x10000"]
assert S.vmn("xf") >= S.vmn("poll")
Q += GA + G
def ex_reads(g): return [f"ds_read_b128 {v(128+(g&1)*16+4*s_,4)}, v31 offset:{s_*4096 + (g>>1)*2048 + (g&1)*256} ; e{g}" for s_ in range(4)]
def exreg(g): return [8, 12, 36, 40][g] if opt["exb"] else 128 + (g & 1)*16 + 4
def ex_send(g):
    b_ = 128 + (g & 1)*16
    L = [f"v_add_f32 v{b_+e}, v{b_+e}, v{b_+4+e}" for e in range(4)] + [f"v_add_f32 v{b_+8+e}, v{b_+8+e}, v{b_+12+e}" for e in range(4)]
    L += [f"v_add_f32 v{b_+e}, v{b_+e}, v{b_+8+e}" for e in range(4)] + [f"v_and_or_b32 v{exreg(g)+e}, v{b_+e}, v29, s{NB[e]}" for e in range(4)]
    return L
exld = [f"buffer_load_dwordx4 {v(128+4*g,4)}, v{vOq}, s[{sW}:{sW+3}], s43 offen offset:{g*1024} sc1" for g in range(4)]
exchk = [f"v_xor_b32 v30, s{NB[0]}, v128"] + [f"v_bitop3_b32 v30, v30, v{128+n}, s{NB[n&3]} bitop3:0xf6" for n in range(1, 16)] + \
        ["v_and_b32 v30, 0xff, v30", "v_cmp_ne_u32 vcc, 0, v30"]
cold += ["L_ex_retry:"] + spin("", "L_ex_ok") + exld + ["s_waitcnt vmcnt(0)"] + exchk + ["s_cbranch_vccnz L_ex_retry", "s_branch L_ex_ok"]
ZB, ZL, ZC = opt["zb"], opt["zl"], opt["zc"]
for z in range(32):
    qb, h = z >> 2, z & 3
    Wb, Ob = WBLK[h], OBUF[z % len(OBUF)]
    vtags = [f"o{z}"]; ltags = []
    if z < 4: ltags.append(f"r{4*z+3}")
    ops = o_loads(z + LOOK) if z + LOOK < 32 else []
    rdq = []; post = []
    if z == ZB + 1:
        assert not Q, len(Q)
        Q += [f"v_add_u32 v{32+nb}, 0x10000, v{32+nb}" for nb in range(4)]
    if opt["exf"]:
        k = z - ZB - 1
        if k in (0, 2): rdq = ex_reads(k) + ex_reads(k + 1)
        gs = (k - 1, k) if k in (1, 3) else ()
    else:
        if 0 <= z - ZB - 1 < 4: rdq = ex_reads(z - ZB - 1)
        gs = (z - ZB - 2,) if 0 <= z - ZB - 2 < 4 else ()
    for g in gs:
        ltags.append(f"e{g}"); Q += ex_send(g)
        post += [f"buffer_store_dwordx4 {v(exreg(g),4)}, v{vOq}, s[{sW}:{sW+3}], s42 offen offset:{g*1024} sc1"]
    if z == ZB + 6: Q += ["v_add_u32 v31, 0x10000, v31"]
    if z == ZL: ops += [l + " ; ex" for l in exld]
    if z == ZC:
        vtags.append("ex")
        Q += exchk + ["s_cbranch_vccnz L_ex_retry" if opt["exb"] != 2 else "s_nop 0", "L_ex_ok:"] + [f"v_and_b32 v{128+n}, v29, v{128+n}" for n in range(16)] + \
             [f"v_fma_f32 v{vU+n}, v{128+n}, v{vGf+n}, v{vU+n}" for n in range(16)]
    pend.extend(ops)
    w = f"s_waitcnt vmcnt({S.vmn(*vtags)})"
    if ltags: w += f" lgkmcnt({S.lgn(*ltags)})"
    E(w)
    if h == 0: stamp(4)
    if z >= 17: stamp(32)
    wr = [f"ds_write_b128 v{32+nb}, {blk(ACC, ((qb-1)&1)*16 + nb*4, 4)} offset:{((qb-1)&3)*16384}" for nb in range(4)] if h == 0 and qb else []
    if z == 4: assert len(Q) <= len(G)
    assert not (wr and qb == 5 and z <= ZB + 1)
    nbuf = sum(l.startswith("buffer") for l in pend)
    slots = [3 + 4*int(i*4/nbuf) for i in range(nbuf)]
    for n in range(16):
        nb, i = n >> 2, n & 3
        if nb & 1: i = 3 - i
        D = blk(ACC, (qb & 1)*16 + nb*4, 4)
        m = f"{MF} {D}, {blk(Wb, (nb*4 + i)*4, 4)}, {blk(Ob, i*4, 4)}, {'0' if h == 0 and n & 3 == 0 else D}"
        lead = []
        if n & 3 == 3:
            for _ in range(2 if z == ZB else 1):
                if wr: lead.append(wr.pop(0))
            for _ in range(slots.count(n)):
                while pend[0].startswith("s_"): lead.append(pend.pop(0))
                lead.append(pend.pop(0))
            if n == 15:
                lead += pend; del pend[:]
                if post:
                    while Q: lead.append(Q.pop(0))
                    lead += post
                if z == ZB: lead += ["s_waitcnt lgkmcnt(0)", "s_barrier"]
        elif rdq and (n & 3 == 0 or opt["exf"]): lead.append(rdq.pop(0))
        S.gap(m, lead)
    assert not rdq and not pend and not wr, (z, pend)
S.drain()
stamp(5)
for nb in range(4):
    l = f"ds_write_b128 v{32+nb}, {blk(ACC, 16 + nb*4, 4)} offset:{3*16384}"
    while not S.ok(l): E("s_nop 0")
    E(l)
E("s_waitcnt lgkmcnt(0)")
E("s_barrier")
for g in range(4):
    for s_ in range(4): E(f"ds_read_b128 {v(64+s_*16+g*4,4)}, v31 offset:{s_*4096 + (g>>1)*2048 + (g&1)*256}")
for g in range(4):
    E(f"s_waitcnt lgkmcnt({12 - 4*g})")
    if opt["pk"]:
        for e in range(4*g, 4*g + 4, 2): E(f"v_pk_add_f32 {v(64+e,2)}, {v(64+e,2)}, {v(80+e,2)}"); E(f"v_pk_add_f32 {v(96+e,2)}, {v(96+e,2)}, {v(112+e,2)}")
        for e in range(4*g, 4*g + 4, 2): E(f"v_pk_add_f32 {v(64+e,2)}, {v(64+e,2)}, {v(96+e,2)}")
        for e in range(4*g, 4*g + 4, 2): E(f"v_pk_fma_f32 {v(64+e,2)}, {v(64+e,2)}, {v(vGf+e,2)}, {v(vU+e,2)}")
    else:
        for e in range(4*g, 4*g + 4): E(f"v_add_f32 v{64+e}, v{64+e}, v{80+e}"); E(f"v_add_f32 v{96+e}, v{96+e}, v{112+e}")
        for e in range(4*g, 4*g + 4): E(f"v_add_f32 v{64+e}, v{64+e}, v{96+e}")
        for e in range(4*g, 4*g + 4): E(f"v_fma_f32 v{64+e}, v{64+e}, v{vGf+e}, v{vU+e}")
    for e in range(2*g, 2*g + 2): E(f"v_cvt_pk_bf16_f32 v{8+e}, v{64+2*e}, v{65+2*e}")
    if g & 1: E(f"global_store_dwordx4 v{vXo}, {v(8+4*(g>>1),4)}, s[{pOut}:{pOut+1}] offset:{64*(g>>1)}{POL[opt['ost']]}")
stamp(1)
if opt["stamp"]: E("s_waitcnt vmcnt(0)")
stamp(1)
if opt["stamp"]:
    M(f"""
    s_lshl_b32 s3, s2, 2
    s_add_u32 s3, s3, s{sWave}
    s_lshl_b32 s3, s3, 7
    s_add_u32 s3, s3, {WS_T}
    v_mov_b32 v3, 0
    """)
    for i in range(32): E(f"v_mov_b32 v{4+i}, s{70+i}" if i < 2*nstamp[0] else f"v_mov_b32 v{4+i}, 0")
    for i in range(8): E(f"buffer_store_dwordx4 v[{4+4*i}:{7+4*i}], v3, s[{sW}:{sW+3}], s3 offen offset:{16*i}")
E("s_endpgm")
r.vVDl = [20, 21, 20, 21]
M(f"""
L_fallback:
s_cmp_lg_u32 s{sFb}, 0
s_cbranch_scc1 L_safe
s_mov_b32 s{sFb}, 1
s_mov_b32 s{sMask2}, 0
s_mov_b32 s{sMask4}, 0x80
s_lshl_b32 s3, s{sHead}, 19
s_add_u32 s{sK}, s{pK}, s3
s_addc_u32 s{sK+1}, s{pK+1}, 0
s_mov_b32 s{sK+2}, 0x80000
s_add_u32 s{sV}, s{pV}, s3
s_addc_u32 s{sV+1}, s{pV+1}, 0
s_mov_b32 s{sV+2}, 0x80000
s_mov_b32 s{r.sKoff}, 0
s_mov_b32 s{r.sVoff}, 0
s_mov_b32 s{r.sKinc}, 0x4000
s_mov_b32 s{r.sVinc}, 0x4000
s_mov_b32 s{r.sIt}, 0
v_lshlrev_b32 v3, 4, v0
v_lshrrev_b32 v60, 2, v2
v_and_b32 v61, 1, v1
v_lshl_add_u32 v60, v61, 2, v60
v_and_b32 v63, 3, v0
s_waitcnt vmcnt(0) lgkmcnt(0)
s_barrier
""")
for l in ADDR + VCOPY: E(l)
for i in range(16): E(f"v_mov_b32 v{r.vM+i}, 0")
for i in range(16): E(f"v_mov_b32 v{r.vL+i}, 0")
for l in ozero(r.vM): E(l)
for qb in range(4): E(f"v_mov_b32 v{60+qb}, 0xff800000")
E("L_fb_loop:")
plain(kdma(0))
M("s_waitcnt vmcnt(0)\ns_barrier")
for i in range(16): E(X.kread(0, i))
M("s_waitcnt lgkmcnt(0)\ns_barrier")
for g in range(64): E(X.qk(g))
E("s_nop 7")
for qb in range(4):
    for e in range(8): E(f"v_max3_f32 v{60+qb}, v{60+qb}, v{r.vS+16*qb+2*e}, v{r.vS+16*qb+2*e+1}")
M(f"""
s_and_b32 s3, s{r.sKoff}, 0x7ffff
s_cbranch_scc1 L_fb_loop
s_mov_b32 s{r.sKoff}, 0
""")
plain(kdma(0) + kdma(1) + vdma(0) + kdma(2) + vdma(1) + kdma(3) + vdma(2))
for sw in ("v_permlane32_swap_b32", "v_permlane16_swap_b32"):
    for qb in range(4): E(f"v_mov_b32 v{128+qb}, v{60+qb}")
    E("s_nop 1")
    for qb in range(4): E(f"{sw} v{128+qb}, v{60+qb}")
    E("s_nop 1")
    for qb in range(4): E(f"v_max_f32 v{60+qb}, v{60+qb}, v{128+qb}")
for qb in range(4):
    for e in range(4): E(f"v_sub_f32 v{r.vM+4*qb+e}, 0, v{60+qb}")
M("s_waitcnt vmcnt(0)\ns_barrier")
for i in range(16): E(X.kread(0, i))
M("s_waitcnt lgkmcnt(0)\ns_branch L_restart")
for l in cold: E(l)
A.label("L_end")
E("s_endpgm")
A.raw(f""".section .rodata,"a"
.p2align 6
.amdhsa_kernel {KN}_kernel
  .amdhsa_next_free_vgpr 512
  .amdhsa_next_free_sgpr 102
  .amdhsa_accum_offset 256
  .amdhsa_group_segment_fixed_size 0
  .amdhsa_kernarg_size 104
  .amdhsa_user_sgpr_count 2
  .amdhsa_user_sgpr_kernarg_segment_ptr 1
  .amdhsa_system_sgpr_workgroup_id_x 1
  .amdhsa_float_denorm_mode_32 3
.end_amdhsa_kernel""")
txt = A.text()
if opt["exper"]:
    import re as _re
    a_, b_ = txt.index("L_loop:"), txt.index("L_disp4:")
    body = txt[a_:b_].split("\n"); ex = opt["exper"]; out = []
    for l in body:
        t_ = l.strip()
        if ex == 2 and t_.startswith("v_cvt_pk"): continue
        if ex == 3 and t_.startswith("v_exp"): l = l.replace("v_exp_f32", "v_mov_b32")
        if ex == 4 and t_.startswith("ds_read_b128"): continue
        if ex == 5 and t_.startswith("ds_read_b64_tr"): continue
        if ex == 6 and t_.startswith("v_smfmac"): continue
        if ex == 7: l = _re.sub(r", v\[(44:47|48:51|52:55|56:59)\]$", ", 0", l)
        if ex == 8 and t_.startswith("buffer_load"): continue
        if ex == 10 and t_.startswith("buffer_load"): l = _re.sub(r"dwordx4 v\d+,", "dwordx4 v60,", l)
        if ex == 11 and t_.startswith("buffer_load"): l = _re.sub(r"dwordx4 v\d+,", "dwordx4 v60,", l).replace("s23 ", "0 ").replace("s24 ", "0 ").replace(" nt", "")
        if (ex == 12 and t_.startswith("v_mfma_f32_16x16x32_bf16 a")) or (ex == 13 and t_.startswith("v_mfma_f32_16x16x32_bf16 v")):
            o_ = t_.split(", "); l = "    " + ", ".join([o_[0], o_[2], o_[1], o_[3]])
        if ex == 9 and t_.startswith("v_cvt_pk"):
            m_ = _re.match(r"v_cvt_pk_bf16_f32 (v\d+), (v\d+), (v\d+)", t_); l = f"    v_perm_b32 {m_[1]}, {m_[3]}, {m_[2]}, s64"
        out.append(l)
    txt = txt[:a_] + "\n".join(out) + txt[b_:]
    if ex >= 10: txt = txt.replace("L_restart:\n", "L_restart:\n    v_add_u32 v60, s25, v3\n")
    if ex == 9: txt = txt.replace("L_restart:\n", "L_restart:\n    s_mov_b32 s64, 0x07060302\n")
for ro in "FRS": txt = txt.replace("MASK2" + ro, hex(m2[ro])).replace("MASK4" + ro, hex(m4[ro]))
if opt["walk"]:
    import subprocess, re as _re
    tmp = sys.argv[1] + ".tmp.s"
    open(tmp, "w").write(txt.replace("L_end:", "L_pad0:\nL_pad1:\nL_pad2:\nL_pad3:\nL_end:"))
    subprocess.run(["clang", "-x", "assembler", "-target", "amdgcn-amd-amdhsa", "-mcpu=gfx950", "-c", tmp, "-o", tmp + ".o"], check=True)
    dis = subprocess.run(["llvm-objdump", "-d", "--mcpu=gfx950", tmp + ".o"], capture_output=True, text=True).stdout
    ins = [(m_[1].strip(), 4*len(m_[2].split())) for m_ in _re.finditer(r"^\s+(\S.*?)//\s*[0-9A-F]+: ((?:[0-9A-F]{8} ?)+)$", dis, _re.M)]
    lines = txt.split("\n"); out = []; addr = opt["kbase"]; old = 0; k = 0; npad = 0; want = None; live = False
    lastb = addr >> 12
    for n, l in enumerate(lines):
        t_ = l.split(";")[0].strip()
        if t_ == f"{KN}_kernel:": live = True
        if t_ == "L_fallback:": live = False
        if live and t_ == ".p2align 6":
            while old % 64: old += 4; k += 1
            addr = (addr + 63) & ~63
        isin = live and t_ and not t_.startswith(".") and not t_.endswith(":")
        if isin and (addr >> 12) != lastb: lastb = addr >> 12; want = addr & ~4095
        if isin and want is not None:
            prev = out[-1].strip()
            nice = prev.startswith(("v_mfma", "v_smfmac")) and t_.startswith("v_")
            if nice or addr + ins[k][1] + 4 > want + 60:
                out += [f"L_pad{npad}:", f"    s_cbranch_execz PADNEXT{npad}_"]; npad += 1; addr += 4; want = None
        out.append(l)
        if isin: addr += ins[k][1]; old += ins[k][1]; k += 1
        if live and opt["walk"] > 1 and (t_.startswith("L_hook") or t_ == "L_tail:"):
            out += [f"L_pad{npad}:", f"    s_cbranch_execz PADNEXT{npad}_"]; npad += 1; addr += 4
    txt = "\n".join(out)
    for p_ in range(npad): txt = txt.replace(f"PADNEXT{p_}_", f"L_pad{p_+4}" if p_ + 4 < npad else "L_walk_done")
    print("pads", npad, file=sys.stderr)
bad = check_hazards(txt)
if bad: print("hazards:", len(bad), file=sys.stderr)
open(sys.argv[1], "w").write(txt)
```
